```python
import torch

def _softmax(x, axis=-1):
    return torch.softmax(x, dim=axis)
def _gelu(x):
    return torch.nn.functional.gelu(x, approximate="tanh")
def _silu(x):
    return torch.nn.functional.silu(x)
def _sigmoid(x):
    return torch.sigmoid(x)
def _layernorm(x, axis=-1, eps=1e-5):
    m = x.mean(dim=axis, keepdim=True)
    v = x.var(dim=axis, keepdim=True, unbiased=False)
    return (x - m) / torch.sqrt(v + eps)
def _scatter_add(tgt, idx, src, axis=0):
    return tgt.clone().index_add_(axis, idx, src)
def _segment_sum(src, seg, n):
    out = torch.zeros((n,) + src.shape[1:], dtype=src.dtype)
    return out.index_add_(0, seg, src)
def _pad(x, pw):
    flat = tuple(v for pair in reversed(pw) for v in pair)
    return torch.nn.functional.pad(x, flat)

kernel_name = 'concat_heads__grouped_kv_mqa__softmax_full_mha__prompt'

def setup_inputs():

    _w = (lambda a: (lambda t: t.to(torch.bfloat16) if t.is_floating_point() else t)(torch.as_tensor(a)))
    def _A_setup():
        B, S, D, H = 1, 2048, 1024, 32
        Dh = D // H
        return {
            "x": _w((lambda *s: torch.randn(*s, dtype=torch.bfloat16) * 0.05)(B, S, D)),
            "wq": _w((lambda *s: torch.randn(*s, dtype=torch.bfloat16) * 0.8)(D, H * Dh)),
            "wk": _w((lambda *s: torch.randn(*s, dtype=torch.bfloat16) * 0.8)(D, Dh)),
            "wv": _w((lambda *s: torch.randn(*s, dtype=torch.bfloat16) * 0.1)(D, Dh)),
            "wo": _w((lambda *s: torch.randn(*s, dtype=torch.bfloat16) * 0.1)(H * Dh, D)),
        }
    _A_in = _A_setup()

    def _B_setup():
        B, S, D = 1, 2048, 1024
        return {
            "x": _w((lambda *s: torch.randn(*s, dtype=torch.bfloat16) * 0.2)(B, S, D)),
            "wqkv": _w((lambda *s: torch.randn(*s, dtype=torch.bfloat16) * 0.2)(D, 3 * D)),
            "wo": _w((lambda *s: torch.randn(*s, dtype=torch.bfloat16) * 0.05)(D, D)),
        }
    _B_in = _B_setup()

    return {
        "A_x": _A_in["x"],
        "A_wq": _A_in["wq"],
        "A_wk": _A_in["wk"],
        "A_wv": _A_in["wv"],
        "A_wo": _A_in["wo"],
        "B_x": _B_in["x"],
        "B_wqkv": _B_in["wqkv"],
        "B_wo": _B_in["wo"],
    }

def reference(A_x, A_wq, A_wk, A_wv, A_wo, B_x, B_wqkv, B_wo):
    def _A_ref(x, wq, wk, wv, wo):
        B, S, D = x.shape
        H = 32
        Dh = D // H
        q = (lambda x, *d: x.permute(*d))((x @ wq).reshape(B, S, H, Dh), 0, 2, 1, 3)
        k = x @ wk
        v = x @ wv
        scores = torch.einsum("bhqd,bkd->bhqk", q, k) * (Dh ** -0.5)
        p = _softmax(scores, axis=-1)
        o = torch.einsum("bhqk,bkd->bhqd", p, v)
        return (lambda x, *d: x.permute(*d))(o, 0, 2, 1, 3).reshape(B, S, H * Dh) @ wo

    def _B_ref(x, wqkv, wo):
        B, S, D = x.shape
        H = 32; Dh = D // H
        qkv = (lambda x, *d: x.permute(*d))((x @ wqkv).reshape(B, S, 3, H, Dh), 2, 0, 3, 1, 4)
        q, k, v = qkv[0], qkv[1], qkv[2]
        scale = Dh ** -0.5
        scores = torch.einsum("bhqd,bhkd->bhqk", q, k) * scale
        p = _softmax(scores, axis=-1)
        o = torch.einsum("bhqk,bhkd->bhqd", p, v)
        return (lambda x, *d: x.permute(*d))(o, 0, 2, 1, 3).reshape(B, S, D) @ wo

    a = _A_ref(A_x, A_wq, A_wk, A_wv, A_wo)
    b = _B_ref(B_x, B_wqkv, B_wo)
    return torch.concatenate([a, b], axis=-1)
```

```python
import sys, math, struct

NAME = "concat_heads__grouped_kv_mqa__softmax_full_mha__prompt"

WS_QA = 0x0000000
WS_QB = 0x0400000
WS_KVA = 0x0800000
WS_KVB = 0x1000000
WS_OA = 0x2000000
WS_OB = 0x2400000
WS_SIZE = 268435456

QSCALE = (32 ** -0.5) * math.log2(math.e)


def f32bits(x):
    return struct.unpack("<I", struct.pack("<f", x))[0]


class A:
    def __init__(self):
        self.l = []

    def __call__(self, s):
        self.l.append("    " + s)

    def label(self, s):
        self.l.append(s + ":")

    def raw(self, s):
        self.l.append(s)

    def text(self):
        return "\n".join(self.l) + "\n"


def vr(b, n):
    return f"v[{b}:{b + n - 1}]"


def sr(b, n):
    return f"s[{b}:{b + n - 1}]"


def srd(a, d, lo, hi, size):
    a(f"s_mov_b32 s{d}, s{lo}")
    a(f"s_mov_b32 s{d+1}, s{hi}")
    a(f"s_mov_b32 s{d+2}, {size:#x}")
    a(f"s_mov_b32 s{d+3}, 0x00020000")


def csel(a, d, x, y):
    a(f"s_mov_b32 s{d}, {y}")
    a(f"s_cmov_b32 s{d}, {x}")


def kernel_head(a, name):
    a.raw(".text")
    a.raw(f".globl {name}")
    a.raw(".p2align 8")
    a.raw(f".type {name},@function")
    a.label(name)


def kernel_desc(name, nvgpr, nsgpr=102):
    acc = (nvgpr + 3) // 4 * 4
    return f""".section .rodata,"a"
.p2align 6
.amdhsa_kernel {name}
  .amdhsa_next_free_vgpr {nvgpr}
  .amdhsa_next_free_sgpr {nsgpr}
  .amdhsa_accum_offset {acc}
  .amdhsa_group_segment_fixed_size 0
  .amdhsa_kernarg_size 88
  .amdhsa_user_sgpr_count 2
  .amdhsa_user_sgpr_kernarg_segment_ptr 1
  .amdhsa_system_sgpr_workgroup_id_x 1
.end_amdhsa_kernel
"""


MF32 = "v_mfma_f32_32x32x16_bf16"
MF16 = "v_mfma_f32_16x16x32_bf16"

S_IN = 16
S_OUT = 32
S_WS = 34
SRD_X = 36
SRD_W = 40
SRD_O = 44
SRD_WK = 48
SRD_WV = 52
sWAVE = 56
sT0, sT1, sT2, sT3 = 57, 58, 59, 60
sXOFF, sWOFF, sW16, sWSTG, sSLOT, sCNT, sDELTA = 61, 62, 63, 64, 65, 66, 67
sOBASE, sOJ, sOI, sSCALE = 68, 69, 70, 72
sSEC, sM0, sCOL0, sWSTR, sNT, sEXO, sEXS = 74, 75, 76, 77, 78, 79, 80
sRSLOT = 81


class G:
    def __init__(self, kind):
        self.kind = kind
        if kind == "proj":
            self.NI, self.NJ = 4, 2
            self.XB = 32768
            self.NSLOT = 3
        else:
            self.NI, self.NJ = 2, 2
            self.XB = 16384
            self.NSLOT = 4
        self.SLOT = self.XB + 16384
        self.XP = self.XB // 1024 // 4
        self.WP = 4
        self.NST = 16
        self.EXB = self.NSLOT * self.SLOT
        self.lds = self.NSLOT * self.SLOT + (16384 if kind == "proj" else 0)
        self.ACC = 128 if kind == "proj" else 64
        self.nacc = self.NI * self.NJ * 16
        fsz = self.NI * 4 + self.NJ * 4
        self.F = [16, 16 + fsz]
        self.fsz = fsz
        self.vXA = 4
        self.vWA = 8
        self.vEXX = 10
        self.vEXW = 12
        self.vLANE16 = 13
        self.EXF = 16 + 2 * fsz
        self.EXACC = self.EXF + 12
        self.TMP = self.EXACC + 8
        self.nvgpr = self.ACC + self.nacc

    def fx(self, b, i):
        return self.F[b] + 4 * i

    def fw(self, b, j):
        return self.F[b] + self.NI * 4 + 4 * j

    def acc(self, i, j):
        return self.ACC + (i * self.NJ + j) * 16


def gemm_reads(g, t, buf):
    r = []
    wr = []
    for j in range(g.NJ):
        for u in range(2):
            off = 4096 * t + (1024 if g.kind == "proj" else 2048) * u
            wr.append(f"ds_read_b64_tr_b16 {vr(g.fw(buf, j) + 2 * u, 2)}, v{g.vWA + j} offset:{off}")
    xr = []
    for i in range(g.NI):
        if g.kind == "proj":
            xr.append(f"ds_read_b128 {vr(g.fx(buf, i), 4)}, v{g.vXA + t} offset:{4096 * i}")
        else:
            xr.append(f"ds_read_b128 {vr(g.fx(buf, i), 4)}, v{g.vXA} offset:{4096 * i + 1024 * t}")
    r = [xr[0]] + wr + xr[1:]
    return r


def gemm_extra_reads(g, e):
    r = []
    for u in range(2):
        r.append(f"ds_read_b64_tr_b16 {vr(g.EXF + 2 * u, 2)}, v{g.vEXW} offset:{2048 * e + 256 * u}")
    for th in range(2):
        r.append(f"ds_read_b128 {vr(g.EXF + 4 + 4 * th, 4)}, v{g.vEXX + e} offset:{2048 * th}")
    return r


def gemm_step(a, g, t, swap, reads, pre=(), extra_mfma=(), post_valu=()):
    buf = t & 1
    for p in pre:
        a(p)
    mf = []
    for i in range(g.NI):
        for j in range(g.NJ):
            x, w = vr(g.fx(buf, i), 4), vr(g.fw(buf, j), 4)
            c = vr(g.acc(i, j), 16)
            if swap:
                mf.append(f"{MF32} {c}, {x}, {w}, {c}")
            else:
                mf.append(f"{MF32} {c}, {w}, {x}, {c}")
    mf = mf + list(extra_mfma)
    reads = list(reads)
    post_valu = list(post_valu)
    per = 2
    for k, m in enumerate(mf):
        a(m)
        for _ in range(per):
            if reads:
                a(reads.pop(0))
        if not reads and post_valu:
            a(post_valu.pop(0))
            if post_valu:
                a(post_valu.pop(0))
    for x in reads + post_valu:
        a(x)


def gemm_compute(a, g, tag, swap, extras):
    exm = []
    if extras:
        pass

    def ex_mfma():
        w = vr(g.EXF, 4)
        out = []
        for th in range(2):
            x = vr(g.EXF + 4 + 4 * th, 4)
            c = vr(g.EXACC + 4 * th, 4)
            if extras == "V":
                out.append(f"{MF16} {c}, {x}, {w}, {c}")
            else:
                out.append(f"{MF16} {c}, {w}, {x}, {c}")
        return out

    def adv(reg):
        return f"v_add_u32 v{reg}, s{sDELTA}, v{reg}"

    def stage(last):
        for t in range(4):
            pre = ["s_waitcnt lgkmcnt(0)"]
            reads, post, em = [], [], []
            if t < 3:
                reads = gemm_reads(g, t + 1, (t + 1) & 1)
                if extras and t == 1:
                    reads += gemm_extra_reads(g, 1)
                if not last:
                    if g.kind == "proj":
                        post.append(adv(g.vXA + t + 1))
                    if t == 2:
                        post += [adv(g.vWA), adv(g.vWA + 1)]
                        if g.kind == "proj":
                            post.append(adv(g.vXA))
                        else:
                            post.append(adv(g.vXA))
                        if extras:
                            post += [adv(g.vEXX), adv(g.vEXX + 1),
                                     f"v_xor_b32 v{g.vEXW}, 0x2000, v{g.vEXW}"]
            elif not last:
                pre.append("s_barrier")
                reads = gemm_reads(g, 0, 0)
                if extras:
                    reads += gemm_extra_reads(g, 0)
            if extras and t in (0, 2):
                em = ex_mfma()
            gemm_step(a, g, t, swap, reads, pre, em, post)

    a("s_barrier")
    for x in gemm_reads(g, 0, 0):
        a(x)
    if extras:
        for x in gemm_extra_reads(g, 0):
            a(x)
    a(f"s_mov_b32 s{sCNT}, 0")
    a(f"s_mov_b32 s{sRSLOT}, 0")
    a.raw(".p2align 3")
    a.label(f"L_{tag}_loop")
    a(f"s_add_u32 s{sRSLOT}, s{sRSLOT}, 1")
    a(f"s_cmp_eq_u32 s{sRSLOT}, {g.NSLOT}")
    csel(a, sDELTA, f"{-(g.NSLOT - 1) * g.SLOT & 0xffffffff:#x}", g.SLOT)
    a(f"s_cselect_b32 s{sRSLOT}, 0, s{sRSLOT}")
    stage(False)
    a(f"s_add_u32 s{sCNT}, s{sCNT}, 1")
    a(f"s_cmp_lt_u32 s{sCNT}, {g.NST - 1}")
    a(f"s_cbranch_scc1 L_{tag}_loop")
    stage(True)


def gemm_loader(a, g, tag):
    proj = g.kind == "proj"
    per = g.XP + g.WP
    LA = g.NSLOT

    def issue():
        for i in range(g.XP):
            a(f"s_add_u32 m0, s{sSLOT}, {i * 4096}")
            step = 65536 if proj else 65536
            a(f"s_add_u32 s{sT0}, s{sXOFF}, {i * step}")
            a(f"buffer_load_dwordx4 v4, {sr(SRD_X, 4)}, s{sT0} offen lds")
        a(f"s_mov_b32 s{sT0}, s{sWOFF}")
        for i in range(g.WP):
            a(f"s_add_u32 m0, s{sSLOT}, {g.XB + i * 4096}")
            if i:
                a(f"s_add_u32 s{sT0}, s{sT0}, s{sW16}")
            else:
                a("s_nop 0")
            a(f"buffer_load_dwordx4 v5, {sr(SRD_W, 4)}, s{sT0} offen lds")
        a(f"s_add_u32 s{sXOFF}, s{sXOFF}, {128 if proj else 4096}")
        a(f"s_add_u32 s{sWOFF}, s{sWOFF}, s{sWSTG}")
        a(f"s_add_u32 s{sSLOT}, s{sSLOT}, {g.SLOT}")
        a(f"s_cmp_ge_u32 s{sSLOT}, {g.NSLOT * g.SLOT}")
        a(f"s_cselect_b32 s{sT1}, {g.NSLOT * g.SLOT}, 0")
        a(f"s_sub_u32 s{sSLOT}, s{sSLOT}, s{sT1}")

    def issue_extra():
        a(f"s_mov_b32 m0, s{sEXS}")
        a("s_nop 0")
        a(f"buffer_load_dwordx4 v6, {sr(SRD_WK, 4)}, s{sEXO} offen lds")
        a(f"s_add_u32 m0, s{sEXS}, 4096")
        a("s_nop 0")
        a(f"buffer_load_dwordx4 v6, {sr(SRD_WV, 4)}, s{sEXO} offen lds")
        a(f"s_add_u32 s{sEXO}, s{sEXO}, 4096")
        a(f"s_xor_b32 s{sEXS}, s{sEXS}, 0x2000")

    def maybe_extra(lbl):
        if proj:
            a(f"s_cmp_lg_u32 s{sSEC}, 0")
            a(f"s_cbranch_scc1 {lbl}")
            issue_extra()
            a.label(lbl)

    maybe_extra(f"L_{tag}_x0")
    issue()
    maybe_extra(f"L_{tag}_x1")
    for _ in range(LA - 1):
        issue()
    a(f"s_waitcnt vmcnt({(LA - 1) * per})")
    a("s_barrier")
    a(f"s_mov_b32 s{sCNT}, 0")
    a.label(f"L_{tag}_lloop")
    a(f"s_waitcnt vmcnt({(LA - 2) * per})")
    a("s_barrier")
    maybe_extra(f"L_{tag}_x2")
    issue()
    a(f"s_add_u32 s{sCNT}, s{sCNT}, 1")
    a(f"s_cmp_lt_u32 s{sCNT}, {g.NST - LA}")
    a(f"s_cbranch_scc1 L_{tag}_lloop")
    for s in range(g.NST - LA, g.NST - 1):
        left = (g.NST - 1) - (s + 1)
        a(f"s_waitcnt vmcnt({left * per})")
        a("s_barrier")
        if proj and s + 2 <= g.NST - 1:
            maybe_extra(f"L_{tag}_x3_{s}")
            if s + 1 < g.NST - 1:
                pass
    a("s_endpgm")


def gen_proj():
    g = G("proj")
    a = A()
    name = "proj_kernel"
    kernel_head(a, name)
    a("s_cmp_ge_u32 s2, 256")
    a("s_cbranch_scc1 L_proj_end")
    a(f"s_load_dwordx16 {sr(S_IN, 16)}, s[0:1], 0")
    a(f"s_load_dwordx2 {sr(S_WS, 2)}, s[0:1], 80")
    a("v_lshrrev_b32 v1, 6, v0")
    a("v_and_b32 v0, 63, v0")
    a(f"v_readfirstlane_b32 s{sWAVE}, v1")
    a(f"s_and_b32 s{sT0}, s2, 7")
    a(f"s_lshr_b32 s{sT1}, s2, 3")
    a(f"s_lshr_b32 s{sSEC}, s{sT0}, 1")
    a(f"s_and_b32 s{sT0}, s{sT0}, 1")
    a(f"s_lshl_b32 s{sM0}, s{sT0}, 10")
    a(f"s_and_b32 s{sT2}, s{sT1}, 3")
    a(f"s_lshl_b32 s{sT2}, s{sT2}, 8")
    a(f"s_add_u32 s{sM0}, s{sM0}, s{sT2}")
    a(f"s_lshr_b32 s{sNT}, s{sT1}, 2")
    a(f"s_sub_u32 s{sT2}, s{sSEC}, 1")
    a(f"s_max_i32 s{sT2}, s{sT2}, 0")
    a(f"s_lshl_b32 s{sCOL0}, s{sT2}, 10")
    a(f"s_lshl_b32 s{sT2}, s{sNT}, 7")
    a(f"s_add_u32 s{sCOL0}, s{sCOL0}, s{sT2}")
    a(f"s_cmp_eq_u32 s{sSEC}, 0")
    csel(a, sWSTR, 2048, 6144)
    a("s_waitcnt lgkmcnt(0)")
    a(f"s_cmp_eq_u32 s{sSEC}, 0")
    a(f"s_cselect_b32 s{SRD_X}, s16, s26")
    a(f"s_cselect_b32 s{SRD_X+1}, s17, s27")
    a(f"s_mov_b32 s{SRD_X+2}, 0x400000")
    a(f"s_mov_b32 s{SRD_X+3}, 0x00020000")
    a(f"s_cselect_b32 s{SRD_W}, s18, s28")
    a(f"s_cselect_b32 s{SRD_W+1}, s19, s29")
    csel(a, SRD_W + 2, 0x200000, 0x600000)
    a(f"s_mov_b32 s{SRD_W+3}, 0x00020000")
    srd(a, SRD_O, S_WS, S_WS + 1, WS_SIZE)
    srd(a, SRD_WK, 20, 21, 0x10000)
    srd(a, SRD_WV, 22, 23, 0x10000)
    a(f"s_cmp_ge_u32 s{sWAVE}, 4")
    a("s_cbranch_scc1 L_proj_loader")

    a(f"s_lshr_b32 s{sT0}, s{sWAVE}, 1")
    a(f"s_and_b32 s{sT1}, s{sWAVE}, 1")
    a("v_and_b32 v1, 31, v0")
    a("v_lshlrev_b32 v1, 7, v1")
    a(f"s_lshl_b32 s{sT2}, s{sT0}, 14")
    a(f"v_add_u32 v1, s{sT2}, v1")
    a("v_bfe_u32 v2, v0, 1, 3")
    a("v_lshrrev_b32 v3, 5, v0")
    for t in range(4):
        a(f"v_add_u32 v14, {2 * t}, v3")
        a("v_xor_b32 v14, v14, v2")
        a(f"v_lshl_add_u32 v{g.vXA + t}, v14, 4, v1")
    a("v_bfe_u32 v2, v0, 2, 2")
    a("v_lshl_add_u32 v1, v3, 3, v2")
    a("v_lshlrev_b32 v1, 8, v1")
    a("v_bfe_u32 v14, v0, 4, 1")
    a("v_lshl_add_u32 v1, v14, 5, v1")
    a("v_and_b32 v14, 3, v0")
    a("v_lshl_add_u32 v1, v14, 3, v1")
    a(f"v_add_u32 v1, {g.XB}, v1")
    a(f"s_lshl_b32 s{sT2}, s{sT1}, 1")
    for j in range(2):
        a(f"s_add_u32 s{sT3}, s{sT2}, {j}")
        a(f"v_xor_b32 v14, s{sT3}, v2")
        a(f"v_lshl_add_u32 v{g.vWA + j}, v14, 6, v1")
    a(f"v_lshlrev_b32 v{g.vLANE16}, 4, v0")
    a("v_and_b32 v1, 15, v0")
    a("v_lshlrev_b32 v1, 7, v1")
    a(f"s_lshl_b32 s{sT2}, s{sNT}, 12")
    a(f"v_add_u32 v1, s{sT2}, v1")
    a("v_bfe_u32 v2, v0, 1, 3")
    a("v_lshrrev_b32 v3, 4, v0")
    for e in range(2):
        a(f"v_add_u32 v14, {4 * e}, v3")
        a("v_xor_b32 v14, v14, v2")
        a(f"v_lshl_add_u32 v{g.vEXX + e}, v14, 4, v1")
    a("v_bfe_u32 v2, v0, 2, 2")
    a("v_lshl_add_u32 v1, v3, 3, v2")
    a("v_lshlrev_b32 v1, 6, v1")
    a("v_and_b32 v14, 3, v0")
    a("v_lshl_add_u32 v1, v14, 3, v1")
    a(f"s_lshl_b32 s{sT2}, s{sT0}, 12")
    a(f"s_lshl_b32 s{sT3}, s{sT1}, 5")
    a(f"s_add_u32 s{sT2}, s{sT2}, s{sT3}")
    a(f"s_add_u32 s{sT2}, s{sT2}, {g.EXB}")
    a(f"v_add_u32 v{g.vEXW}, s{sT2}, v1")
    a(f"s_lshl_b32 s{sT2}, s{sNT}, 2")
    a(f"s_lshl_b32 s{sT3}, s{sT1}, 1")
    a(f"s_add_u32 s{sT2}, s{sT2}, s{sT3}")
    a(f"s_lshr_b32 s{sT3}, s{sM0}, 5")
    a(f"s_lshl_b32 s{sOBASE}, s{sT0}, 2")
    a(f"s_add_u32 s{sT3}, s{sT3}, s{sOBASE}")
    a(f"s_cmp_le_u32 s{sSEC}, 1")
    csel(a, sOJ, 0x20000, 0x40000)
    csel(a, sOI, 2048, 4096)
    a(f"s_cselect_b32 s{sSCALE}, {f32bits(QSCALE):#x}, 1.0")
    a(f"s_mov_b32 s{sSCALE+1}, s{sSCALE}")
    a(f"s_mul_i32 s{sOBASE}, s{sT2}, s{sOJ}")
    a(f"s_mul_i32 s{sT3}, s{sT3}, s{sOI}")
    a(f"s_add_u32 s{sOBASE}, s{sOBASE}, s{sT3}")
    a(f"s_mov_b32 s{sT2}, {WS_QA:#x}")
    a(f"s_cmp_eq_u32 s{sSEC}, 1")
    a(f"s_cselect_b32 s{sT2}, {WS_QB:#x}, s{sT2}")
    a(f"s_cmp_eq_u32 s{sSEC}, 2")
    a(f"s_cselect_b32 s{sT2}, {WS_KVB:#x}, s{sT2}")
    a(f"s_cmp_eq_u32 s{sSEC}, 3")
    a(f"s_cselect_b32 s{sT2}, {WS_KVB + 2048:#x}, s{sT2}")
    a(f"s_add_u32 s{sOBASE}, s{sOBASE}, s{sT2}")
    for r in range(g.nacc):
        a(f"v_mov_b32 v{g.ACC + r}, 0")
    for r in range(8):
        a(f"v_mov_b32 v{g.EXACC + r}, 0")
    a(f"s_cmp_eq_u32 s{sSEC}, 3")
    a("s_cbranch_scc1 L_proj_V")
    a(f"s_cmp_eq_u32 s{sSEC}, 0")
    a("s_cbranch_scc0 L_proj_QK")
    a(f"s_cmp_ge_u32 s{sWAVE}, 2")
    a("s_cbranch_scc1 L_proj_AV")

    def epi(scale):
        a("s_nop 7")
        a("s_nop 7")
        for i in range(g.NI):
            for j in range(g.NJ):
                c = g.acc(i, j)
                t = g.F[0] + ((i * g.NJ + j) & 1) * 8
                if scale:
                    for r in range(0, 16, 2):
                        a(f"v_pk_mul_f32 {vr(c + r, 2)}, {vr(c + r, 2)}, {sr(sSCALE, 2)}")
                for r in range(8):
                    a(f"v_cvt_pk_bf16_f32 v{t + r}, v{c + 2 * r}, v{c + 2 * r + 1}")
                a(f"s_mul_i32 s{sT0}, s{sOJ}, {j}")
                a(f"s_mul_i32 s{sT1}, s{sOI}, {i}")
                a(f"s_add_u32 s{sT0}, s{sT0}, s{sT1}")
                a(f"s_add_u32 s{sT0}, s{sT0}, s{sOBASE}")
                a(f"buffer_store_dwordx4 {vr(t, 4)}, v{g.vLANE16}, {sr(SRD_O, 4)}, s{sT0} offen")
                a(f"buffer_store_dwordx4 {vr(t + 4, 4)}, v{g.vLANE16}, {sr(SRD_O, 4)}, s{sT0} offen offset:1024")

    def epi_extra(part):
        a("v_and_b32 v1, 15, v0")
        a("v_lshlrev_b32 v1, 4, v1")
        a("v_bfe_u32 v2, v0, 4, 1")
        a("v_lshl_add_u32 v1, v2, 9, v1")
        a("v_lshrrev_b32 v2, 5, v0")
        a("v_lshl_add_u32 v1, v2, 3, v1")
        a(f"s_lshr_b32 s{sT0}, s{sM0}, 5")
        a(f"s_add_u32 s{sT0}, s{sT0}, s{sNT}")
        a(f"s_lshl_b32 s{sT0}, s{sT0}, 12")
        a(f"s_add_u32 s{sT0}, s{sT0}, {WS_KVA + (2048 if part == 'V' else 0):#x}")
        a(f"s_and_b32 s{sT1}, s{sWAVE}, 1")
        a(f"s_lshl_b32 s{sT1}, s{sT1}, {10 if part == 'K' else 8}")
        a(f"s_add_u32 s{sT0}, s{sT0}, s{sT1}")
        for th in range(2):
            c = g.EXACC + 4 * th
            a(f"v_cvt_pk_bf16_f32 v{g.EXF + 2 * th}, v{c}, v{c + 1}")
            a(f"v_cvt_pk_bf16_f32 v{g.EXF + 2 * th + 1}, v{c + 2}, v{c + 3}")
            off = th * (256 if part == 'K' else 1024)
            a(f"buffer_store_dwordx2 {vr(g.EXF + 2 * th, 2)}, v1, {sr(SRD_O, 4)}, s{sT0} offen offset:{off}")

    gemm_compute(a, g, "proj_AK", False, "K")
    epi(True)
    epi_extra("K")
    a("s_endpgm")
    a.label("L_proj_AV")
    gemm_compute(a, g, "proj_AV", False, "V")
    epi(True)
    epi_extra("V")
    a("s_endpgm")
    a.label("L_proj_QK")
    gemm_compute(a, g, "proj_QK", False, None)
    epi(True)
    a("s_endpgm")
    a.label("L_proj_V")
    gemm_compute(a, g, "proj_V", True, None)
    epi(False)
    a("s_endpgm")

    a.label("L_proj_loader")
    a(f"s_sub_u32 s{sT3}, s{sWAVE}, 4")
    a("v_lshrrev_b32 v1, 3, v0")
    a("v_lshlrev_b32 v1, 11, v1")
    a("v_lshrrev_b32 v2, 4, v0")
    a(f"s_and_b32 s{sT0}, s{sT3}, 1")
    a(f"s_lshl_b32 s{sT0}, s{sT0}, 2")
    a(f"v_add_u32 v3, s{sT0}, v2")
    a("v_and_b32 v7, 7, v0")
    a("v_xor_b32 v3, v3, v7")
    a("v_lshl_add_u32 v4, v3, 4, v1")
    a(f"v_mul_lo_u32 v1, v2, s{sWSTR}")
    a("v_lshlrev_b32 v3, 2, v2")
    a("v_and_b32 v7, 15, v0")
    a("v_xor_b32 v3, v3, v7")
    a("v_lshl_add_u32 v5, v3, 4, v1")
    a("v_lshlrev_b32 v6, 4, v0")
    a(f"s_lshl_b32 s{sT0}, s{sT3}, 3")
    a(f"s_add_u32 s{sT0}, s{sT0}, s{sM0}")
    a(f"s_lshl_b32 s{sXOFF}, s{sT0}, 11")
    a(f"s_mul_i32 s{sT0}, s{sT3}, s{sWSTR}")
    a(f"s_lshl_b32 s{sT0}, s{sT0}, 2")
    a(f"s_lshl_b32 s{sT1}, s{sCOL0}, 1")
    a(f"s_add_u32 s{sWOFF}, s{sT0}, s{sT1}")
    a(f"s_lshl_b32 s{sW16}, s{sWSTR}, 4")
    a(f"s_lshl_b32 s{sWSTG}, s{sWSTR}, 6")
    a(f"s_lshl_b32 s{sSLOT}, s{sT3}, 10")
    a(f"s_lshl_b32 s{sEXO}, s{sT3}, 10")
    a(f"s_add_u32 s{sEXS}, s{sEXO}, {g.EXB}")
    gemm_loader(a, g, "proj")
    a.label("L_proj_end")
    a("s_endpgm")
    return a.text(), kernel_desc(name, g.nvgpr), g.lds


def gen_outp():
    g = G("outp")
    a = A()
    name = "outp_kernel"
    kernel_head(a, name)
    a("s_cmp_ge_u32 s2, 256")
    a("s_cbranch_scc1 L_outp_end")
    a(f"s_load_dwordx16 {sr(S_IN, 16)}, s[0:1], 0")
    a(f"s_load_dwordx2 {sr(S_OUT, 2)}, s[0:1], 64")
    a(f"s_load_dwordx2 {sr(S_WS, 2)}, s[0:1], 80")
    a("v_lshrrev_b32 v1, 6, v0")
    a("v_and_b32 v0, 63, v0")
    a(f"v_readfirstlane_b32 s{sWAVE}, v1")
    a(f"s_and_b32 s{sT0}, s2, 7")
    a(f"s_lshr_b32 s{sT1}, s2, 3")
    a(f"s_lshr_b32 s{sSEC}, s{sT0}, 2")
    a(f"s_and_b32 s{sT0}, s{sT0}, 3")
    a(f"s_lshl_b32 s{sM0}, s{sT0}, 9")
    a(f"s_and_b32 s{sT2}, s{sT1}, 3")
    a(f"s_lshl_b32 s{sT2}, s{sT2}, 7")
    a(f"s_add_u32 s{sM0}, s{sM0}, s{sT2}")
    a(f"s_lshr_b32 s{sNT}, s{sT1}, 2")
    a(f"s_lshl_b32 s{sCOL0}, s{sNT}, 7")
    a("s_waitcnt lgkmcnt(0)")
    srd(a, SRD_X, S_WS, S_WS + 1, WS_SIZE)
    a(f"s_cmp_eq_u32 s{sSEC}, 0")
    a(f"s_cselect_b32 s{SRD_W}, s24, s30")
    a(f"s_cselect_b32 s{SRD_W+1}, s25, s31")
    a(f"s_mov_b32 s{SRD_W+2}, 0x200000")
    a(f"s_mov_b32 s{SRD_W+3}, 0x00020000")
    srd(a, SRD_O, S_OUT, S_OUT + 1, 0x800000)
    a(f"s_cmp_ge_u32 s{sWAVE}, 4")
    a("s_cbranch_scc1 L_outp_loader")
    a(f"s_lshr_b32 s{sT0}, s{sWAVE}, 1")
    a(f"s_and_b32 s{sT1}, s{sWAVE}, 1")
    a(f"s_lshl_b32 s{sT2}, s{sT0}, 13")
    a("v_lshlrev_b32 v1, 4, v0")
    a(f"v_add_u32 v{g.vXA}, s{sT2}, v1")
    a("v_lshrrev_b32 v3, 5, v0")
    a("v_bfe_u32 v2, v0, 2, 2")
    a("v_lshl_add_u32 v1, v3, 2, v2")
    a("v_lshlrev_b32 v1, 8, v1")
    a("v_and_b32 v14, 1, v0")
    a("v_lshl_add_u32 v1, v14, 5, v1")
    a("v_bfe_u32 v14, v0, 4, 1")
    a("v_lshl_add_u32 v1, v14, 4, v1")
    a("v_bfe_u32 v14, v0, 1, 1")
    a("v_lshl_add_u32 v1, v14, 3, v1")
    a(f"v_add_u32 v1, {g.XB}, v1")
    a(f"s_lshl_b32 s{sT2}, s{sT1}, 1")
    for j in range(2):
        a(f"s_add_u32 s{sT3}, s{sT2}, {j}")
        a(f"v_xor_b32 v14, s{sT3}, v2")
        a(f"v_lshl_add_u32 v{g.vWA + j}, v14, 6, v1")
    a("v_and_b32 v1, 31, v0")
    a("v_lshlrev_b32 v1, 12, v1")
    a(f"v_lshl_add_u32 v{g.vLANE16}, v3, 5, v1")
    a(f"s_lshl_b32 s{sT2}, s{sT0}, 6")
    a(f"s_add_u32 s{sT2}, s{sT2}, s{sM0}")
    a(f"s_lshl_b32 s{sOBASE}, s{sT2}, 12")
    a(f"s_lshl_b32 s{sT2}, s{sSEC}, 10")
    a(f"s_add_u32 s{sT2}, s{sT2}, s{sCOL0}")
    a(f"s_lshl_b32 s{sT3}, s{sT1}, 6")
    a(f"s_add_u32 s{sT2}, s{sT2}, s{sT3}")
    a(f"s_lshl_b32 s{sT2}, s{sT2}, 1")
    a(f"s_add_u32 s{sOBASE}, s{sOBASE}, s{sT2}")
    for r in range(g.nacc):
        a(f"v_mov_b32 v{g.ACC + r}, 0")
    gemm_compute(a, g, "outp", False, None)
    a("s_nop 7")
    a("s_nop 7")
    for i in range(g.NI):
        for j in range(g.NJ):
            c = g.acc(i, j)
            t = g.F[0] + ((i * g.NJ + j) & 1) * 8
            for r in range(8):
                a(f"v_cvt_pk_bf16_f32 v{t + r}, v{c + 2 * r}, v{c + 2 * r + 1}")
            a(f"s_add_u32 s{sT0}, s{sOBASE}, {i * 32 * 4096}")
            a(f"buffer_store_dwordx4 {vr(t, 4)}, v{g.vLANE16}, {sr(SRD_O, 4)}, s{sT0} offen offset:{64 * j}")
            a(f"buffer_store_dwordx4 {vr(t + 4, 4)}, v{g.vLANE16}, {sr(SRD_O, 4)}, s{sT0} offen offset:{64 * j + 16}")
    a("s_endpgm")
    a.label("L_outp_loader")
    a(f"s_sub_u32 s{sT3}, s{sWAVE}, 4")
    a("v_lshlrev_b32 v4, 4, v0")
    a("v_lshrrev_b32 v2, 4, v0")
    a("v_lshlrev_b32 v1, 11, v2")
    a("v_lshlrev_b32 v3, 2, v2")
    a("v_and_b32 v7, 15, v0")
    a("v_xor_b32 v3, v3, v7")
    a("v_lshl_add_u32 v5, v3, 4, v1")
    a(f"s_cmp_eq_u32 s{sSEC}, 0")
    csel(a, sT0, WS_OA, WS_OB)
    a(f"s_lshl_b32 s{sT1}, s{sM0}, 11")
    a(f"s_add_u32 s{sT0}, s{sT0}, s{sT1}")
    a(f"s_lshl_b32 s{sT1}, s{sT3}, 10")
    a(f"s_add_u32 s{sXOFF}, s{sT0}, s{sT1}")
    a(f"s_lshl_b32 s{sT0}, s{sT3}, 13")
    a(f"s_lshl_b32 s{sT1}, s{sCOL0}, 1")
    a(f"s_add_u32 s{sWOFF}, s{sT0}, s{sT1}")
    a(f"s_mov_b32 s{sW16}, {16 * 2048}")
    a(f"s_mov_b32 s{sWSTG}, {64 * 2048}")
    a(f"s_lshl_b32 s{sSLOT}, s{sT3}, 10")
    gemm_loader(a, g, "outp")
    a.label("L_outp_end")
    a("s_endpgm")
    return a.text(), kernel_desc(name, g.nvgpr), g.lds


def gen_attn():
    a = A()
    name = "attn_kernel"
    kernel_head(a, name)
    vL16, vK, vKN, IDX = 1, 2, 3, 4
    T0, T1, T2, T3 = 5, 6, 7, 8
    ONES = 12
    Q = [16, 24]
    P = [32, 40]
    KF = [48, 56]
    VF = [64, 72]
    L = [80, 84]
    S = [96, 112]
    NEG = [128, 144]
    O = [160, 176]
    NV = 192
    SRD = 36
    sW, sQB, sKV, sOB, sST, sSL, sDM, sGO = 40, 41, 42, 43, 44, 45, 46, 47
    t0, t1, t2, t3 = 48, 49, 50, 51
    TILES = 8
    STG = TILES * 4096
    NSLOT = 3
    NSTG = 64 // TILES
    lds = NSLOT * STG

    a("s_cmp_ge_u32 s2, 256")
    a("s_cbranch_scc1 L_attn_end")
    a(f"s_load_dwordx2 {sr(S_WS, 2)}, s[0:1], 80")
    a("v_lshrrev_b32 v1, 6, v0")
    a("v_and_b32 v0, 63, v0")
    a(f"v_readfirstlane_b32 s{sW}, v1")
    a(f"v_lshlrev_b32 v{vL16}, 4, v0")
    a(f"s_and_b32 s{t0}, s2, 7")
    a(f"s_lshr_b32 s{t1}, s2, 3")
    a(f"s_lshl_b32 s{t0}, s{t0}, 2")
    a(f"s_bfe_u32 s{t2}, s{t1}, 0x20002")
    a(f"s_add_u32 s{t0}, s{t0}, s{t2}")
    a(f"s_and_b32 s{t2}, s{t1}, 3")
    a(f"s_lshl_b32 s{t2}, s{t2}, 4")
    a(f"s_lshl_b32 s{t3}, s{sW}, 1")
    a(f"s_add_u32 s{t2}, s{t2}, s{t3}")
    a(f"s_lshr_b32 s{t1}, s{t1}, 4")
    a(f"s_lshl_b32 s{sQB}, s{t0}, 17")
    a(f"s_lshl_b32 s{t3}, s{t2}, 11")
    a(f"s_add_u32 s{sQB}, s{sQB}, s{t3}")
    a(f"s_lshl_b32 s{sOB}, s{t2}, 16")
    a(f"s_lshl_b32 s{t3}, s{t0}, 11")
    a(f"s_add_u32 s{sOB}, s{sOB}, s{t3}")
    a(f"s_lshl_b32 s{sKV}, s{t0}, 18")
    a(f"s_add_u32 s{sKV}, s{sKV}, {WS_KVB:#x}")
    a(f"s_cmp_eq_u32 s{t1}, 0")
    a(f"s_cselect_b32 s{sKV}, {WS_KVA:#x}, s{sKV}")
    a(f"s_cselect_b32 s{t3}, {WS_QA:#x}, {WS_QB:#x}")
    a(f"s_add_u32 s{sQB}, s{sQB}, s{t3}")
    a(f"s_cmp_eq_u32 s{t1}, 0")
    csel(a, t3, WS_OA, WS_OB)
    a(f"s_add_u32 s{sOB}, s{sOB}, s{t3}")
    a("s_waitcnt lgkmcnt(0)")
    srd(a, SRD, S_WS, S_WS + 1, WS_SIZE)
    for q in range(2):
        for c in range(2):
            a(f"buffer_load_dwordx4 {vr(Q[q] + 4 * c, 4)}, v{vL16}, {sr(SRD, 4)}, s{sQB} offen offset:{2048 * q + 1024 * c}")
    a(f"s_lshl_b32 s{sDM}, s{sW}, 12")
    a(f"s_add_u32 s{sGO}, s{sKV}, s{sDM}")

    def dma():
        a(f"s_mov_b32 m0, s{sDM}")
        a("s_nop 0")
        for c in range(4):
            a(f"buffer_load_dwordx4 v{vL16}, {sr(SRD, 4)}, s{sGO} offen offset:{1024 * c} lds")
        a(f"s_add_u32 s{sGO}, s{sGO}, {STG}")
        a(f"s_add_u32 s{sDM}, s{sDM}, {STG}")
        a(f"s_cmp_ge_u32 s{sDM}, {NSLOT * STG}")
        a(f"s_cselect_b32 s{t0}, {NSLOT * STG}, 0")
        a(f"s_sub_u32 s{sDM}, s{sDM}, s{t0}")

    dma()
    dma()
    a(f"v_and_b32 v{T0}, 2, v0")
    a(f"v_bfe_u32 v{T1}, v0, 2, 1")
    a(f"v_or_b32 v{T2}, v{T0}, v{T1}")
    a(f"v_xor_b32 v{T1}, 1, v{T1}")
    a(f"v_or_b32 v{T3}, v{T0}, v{T1}")
    a(f"v_mov_b32 v{T0}, 0x3f803f80")
    a(f"v_cmp_eq_u32 vcc, 0, v{T2}")
    a("s_nop 1")
    a(f"v_cndmask_b32 v{ONES}, 0, v{T0}, vcc")
    a(f"v_cndmask_b32 v{ONES + 1}, 0, v{T0}, vcc")
    a(f"v_cmp_eq_u32 vcc, 0, v{T3}")
    a("s_nop 1")
    a(f"v_cndmask_b32 v{ONES + 2}, 0, v{T0}, vcc")
    a(f"v_cndmask_b32 v{ONES + 3}, 0, v{T0}, vcc")
    a(f"v_and_b32 v{T0}, 1, v0")
    a(f"v_mov_b32 v{T1}, 0x44444444")
    a(f"v_mov_b32 v{T2}, 0xeeeeeeee")
    a(f"v_cmp_eq_u32 vcc, 1, v{T0}")
    a("s_nop 1")
    a(f"v_cndmask_b32 v{IDX}, v{T1}, v{T2}, vcc")
    for q in range(2):
        for r in range(16):
            a(f"v_mov_b32 v{O[q] + r}, 0")
        for r in range(4):
            a(f"v_mov_b32 v{L[q] + r}, 0")
        for r in range(8):
            a(f"v_mov_b32 v{P[q] + r}, 0")
    for r in range(8):
        a(f"v_mov_b32 v{VF[1] + r}, 0")
    a(f"v_mov_b32 v{vK}, v{vL16}")
    a(f"v_add_u32 v{vKN}, {STG}, v{vL16}")
    a("s_waitcnt vmcnt(4)")
    a("s_barrier")

    def kread(kt):
        reg, k = (vK, kt) if kt < TILES else (vKN, kt - TILES)
        return [f"ds_read_b128 {vr(KF[kt & 1] + 4 * c, 4)}, v{reg} offset:{4096 * k + 1024 * c}" for c in range(2)]

    def vread(kt):
        reg, k = (vK, kt) if kt < TILES else (vKN, kt - TILES)
        return [f"ds_read_b128 {vr(VF[kt & 1] + 4 * c, 4)}, v{reg} offset:{4096 * k + 2048 + 1024 * c}" for c in range(2)]

    for x in kread(0) + vread(0) + kread(1):
        a(x)
    a("s_waitcnt lgkmcnt(4)")
    for q in range(2):
        a(f"{MF32} {vr(S[q], 16)}, {vr(KF[0], 4)}, {vr(Q[q], 4)}, 0")
        a(f"{MF32} {vr(S[q], 16)}, {vr(KF[0] + 4, 4)}, {vr(Q[q] + 4, 4)}, {vr(S[q], 16)}")
    a("s_nop 7")
    a("s_nop 7")
    for q in range(2):
        s = S[q]
        t = T0 + 2 * q
        a(f"v_max3_f32 v{t}, v{s}, v{s + 1}, v{s + 2}")
        for r in range(3, 15, 2):
            a(f"v_max3_f32 v{t}, v{s + r}, v{s + r + 1}, v{t}")
        a(f"v_max_f32 v{t}, v{s + 15}, v{t}")
        a(f"v_mov_b32 v{t + 1}, v{t}")
    a("s_nop 1")
    for q in range(2):
        t = T0 + 2 * q
        a(f"v_permlane32_swap_b32 v{t}, v{t + 1}")
    a("s_nop 1")
    for q in range(2):
        t = T0 + 2 * q
        a(f"v_max_f32 v{t}, v{t}, v{t + 1}")
        for r in range(16):
            a(f"v_sub_f32 v{NEG[q] + r}, 0, v{t}")
    a("s_nop 1")
    a(f"{MF32} {vr(S[0], 16)}, {vr(KF[0], 4)}, {vr(Q[0], 4)}, {vr(NEG[0], 16)}")
    a(f"{MF32} {vr(S[0], 16)}, {vr(KF[0] + 4, 4)}, {vr(Q[0] + 4, 4)}, {vr(S[0], 16)}")
    a(f"s_mov_b32 s{sST}, 0")
    a(f"s_mov_b32 s{sSL}, {STG}")
    a("s_nop 7")
    a("s_nop 3")

    def step(u):
        q, kt = u & 1, u >> 1
        qp = q ^ 1
        ktn = (u + 1) >> 1
        ktp = (u - 1) >> 1
        cur, nxt = S[q], S[qp]
        E = lambda i: f"v_exp_f32 v{cur + i}, v{cur + i}"
        C = lambda i: f"v_cvt_pk_bf16_f32 v{P[q] + i}, v{cur + 2 * i}, v{cur + 2 * i + 1}"
        QK0 = f"{MF32} {vr(nxt, 16)}, {vr(KF[ktn & 1], 4)}, {vr(Q[qp], 4)}, {vr(NEG[qp], 16)}"
        QK1 = f"{MF32} {vr(nxt, 16)}, {vr(KF[ktn & 1] + 4, 4)}, {vr(Q[qp] + 4, 4)}, {vr(nxt, 16)}"
        PV0 = f"{MF32} {vr(O[q], 16)}, {vr(VF[kt & 1], 4)}, {vr(P[q], 4)}, {vr(O[q], 16)}"
        PV1 = f"{MF32} {vr(O[qp], 16)}, {vr(VF[ktp & 1] + 4, 4)}, {vr(P[qp] + 4, 4)}, {vr(O[qp], 16)}"
        SP = f"v_smfmac_f32_16x16x64_bf16 {vr(L[qp], 4)}, {vr(ONES, 4)}, {vr(P[qp], 8)}, v{IDX}"
        if q == 0:
            rd = vread(kt + 1)
            pre_qk, pre_pv = [], ["s_waitcnt lgkmcnt(4)"]
            r1, r2 = rd, []
        else:
            rd = kread(kt + 2)
            pre_qk, pre_pv = ["s_waitcnt lgkmcnt(2)"], []
            r1, r2 = [], rd
        seq = [E(0), E(1), PV1] + r1[:1] + [E(2), E(3)] + r1[1:] + [E(4), SP, E(5)] + pre_qk + [QK0, E(6), E(7), E(8), QK1] + r2[:1] + \
              [C(0), E(9), C(1)] + r2[1:] + [E(10), C(2), E(11), C(3), E(12), E(13)] + pre_pv + [PV0, E(14), E(15), C(4), C(5), C(6), C(7)]
        return seq

    a.raw(".p2align 3")
    a.label("L_attn_loop")
    for u in range(2 * TILES):
        if u == 2 * (TILES - 2) + 1:
            a("s_waitcnt vmcnt(0)")
            a("s_barrier")
            a(f"s_cmp_ge_u32 s{sST}, {NSTG - 2}")
            a("s_cbranch_scc1 L_attn_nodma")
            dma()
            a.label("L_attn_nodma")
        for x in step(u):
            a(x)
    a(f"v_mov_b32 v{vK}, v{vKN}")
    a(f"s_add_u32 s{sSL}, s{sSL}, {STG}")
    a(f"s_cmp_ge_u32 s{sSL}, {NSLOT * STG}")
    a(f"s_cselect_b32 s{sSL}, 0, s{sSL}")
    a(f"v_add_u32 v{vKN}, s{sSL}, v{vL16}")
    a(f"s_add_u32 s{sST}, s{sST}, 1")
    a(f"s_cmp_lt_u32 s{sST}, {NSTG}")
    a("s_cbranch_scc1 L_attn_loop")
    a("s_nop 1")
    a(f"{MF32} {vr(O[1], 16)}, {vr(VF[1] + 4, 4)}, {vr(P[1] + 4, 4)}, {vr(O[1], 16)}")
    a(f"v_smfmac_f32_16x16x64_bf16 {vr(L[1], 4)}, {vr(ONES, 4)}, {vr(P[1], 8)}, v{IDX}")
    a("s_waitcnt lgkmcnt(0)")
    a("s_nop 7")
    a("s_nop 7")
    a(f"v_mov_b32 v{T2}, 0")
    for q in range(2):
        a(f"v_add_f32 v{L[q]}, v{L[q]}, v{L[q] + 1}")
        for r in range(16):
            a(f"v_fmac_f32 v{T2}, 0, v{O[q] + r}")
    a(f"v_max_f32 v{T3}, v{L[0]}, v{L[1]}")
    a(f"v_fmac_f32 v{T2}, 0, v{L[0]}")
    a(f"v_fmac_f32 v{T2}, 0, v{L[1]}")
    a(f"v_add_f32 v{T3}, v{T3}, v{T2}")
    a(f"v_mov_b32 v{T2}, {f32bits(2.0 ** 40):#x}")
    a(f"v_cmp_nle_f32 vcc, v{T3}, v{T2}")
    a("s_nop 4")
    a("s_cbranch_vccnz L_attn_slow")

    def finish(q, lreg):
        a(f"v_rcp_f32 v{T0}, v{lreg}")
        a("s_nop 0")
        for r in range(16):
            a(f"v_mul_f32 v{O[q] + r}, v{O[q] + r}, v{T0}")
        for r in range(8):
            a(f"v_cvt_pk_bf16_f32 v{P[q] + r}, v{O[q] + 2 * r}, v{O[q] + 2 * r + 1}")
        a(f"s_add_u32 s{t0}, s{sOB}, {65536 * q}")
        for c in range(2):
            a(f"buffer_store_dwordx4 {vr(P[q] + 4 * c, 4)}, v{vL16}, {sr(SRD, 4)}, s{t0} offen offset:{1024 * c}")

    for q in range(2):
        finish(q, L[q])
    a("s_endpgm")

    a.label("L_attn_slow")
    M, LS, AL = 9, 10, 11
    for q in range(2):
        s = S[0]
        a(f"v_mov_b32 v{M}, 0xff7fffff")
        a(f"v_mov_b32 v{LS}, 0")
        for r in range(16):
            a(f"v_mov_b32 v{O[q] + r}, 0")
        a(f"s_mov_b32 s{sGO}, s{sKV}")
        a(f"s_mov_b32 s{sST}, 0")
        a.label(f"L_attn_slow_{q}")
        for c in range(2):
            a(f"buffer_load_dwordx4 {vr(KF[0] + 4 * c, 4)}, v{vL16}, {sr(SRD, 4)}, s{sGO} offen offset:{1024 * c}")
        for c in range(2):
            a(f"buffer_load_dwordx4 {vr(VF[0] + 4 * c, 4)}, v{vL16}, {sr(SRD, 4)}, s{sGO} offen offset:{2048 + 1024 * c}")
        a("s_waitcnt vmcnt(0)")
        a(f"{MF32} {vr(s, 16)}, {vr(KF[0], 4)}, {vr(Q[q], 4)}, 0")
        a(f"{MF32} {vr(s, 16)}, {vr(KF[0] + 4, 4)}, {vr(Q[q] + 4, 4)}, {vr(s, 16)}")
        a("s_nop 7")
        a("s_nop 7")
        a(f"v_max3_f32 v{T0}, v{s}, v{s + 1}, v{M}")
        for r in range(2, 16, 2):
            a(f"v_max3_f32 v{T0}, v{s + r}, v{s + r + 1}, v{T0}")
        a(f"v_mov_b32 v{T1}, v{T0}")
        a("s_nop 1")
        a(f"v_permlane32_swap_b32 v{T0}, v{T1}")
        a("s_nop 1")
        a(f"v_max_f32 v{T0}, v{T0}, v{T1}")
        a(f"v_sub_f32 v{AL}, v{M}, v{T0}")
        a(f"v_exp_f32 v{AL}, v{AL}")
        a(f"v_mov_b32 v{M}, v{T0}")
        for r in range(16):
            a(f"v_sub_f32 v{s + r}, v{s + r}, v{T0}")
        for r in range(16):
            a(f"v_exp_f32 v{s + r}, v{s + r}")
        a(f"v_mul_f32 v{LS}, v{LS}, v{AL}")
        for r in range(16):
            a(f"v_mul_f32 v{O[q] + r}, v{O[q] + r}, v{AL}")
        for r in range(16):
            a(f"v_add_f32 v{LS}, v{LS}, v{s + r}")
        for r in range(8):
            a(f"v_cvt_pk_bf16_f32 v{P[0] + r}, v{s + 2 * r}, v{s + 2 * r + 1}")
        a("s_nop 1")
        a(f"{MF32} {vr(O[q], 16)}, {vr(VF[0], 4)}, {vr(P[0], 4)}, {vr(O[q], 16)}")
        a(f"{MF32} {vr(O[q], 16)}, {vr(VF[0] + 4, 4)}, {vr(P[0] + 4, 4)}, {vr(O[q], 16)}")
        a("s_nop 7")
        a("s_nop 7")
        a(f"s_add_u32 s{sGO}, s{sGO}, 4096")
        a(f"s_add_u32 s{sST}, s{sST}, 1")
        a(f"s_cmp_lt_u32 s{sST}, 64")
        a(f"s_cbranch_scc1 L_attn_slow_{q}")
        a(f"v_mov_b32 v{T1}, v{LS}")
        a("s_nop 1")
        a(f"v_permlane32_swap_b32 v{LS}, v{T1}")
        a("s_nop 1")
        a(f"v_add_f32 v{LS}, v{LS}, v{T1}")
        finish(q, LS)
        a("s_waitcnt vmcnt(0)")
    a.label("L_attn_end")
    a("s_endpgm")
    return a.text(), kernel_desc(name, NV), lds


HEADER = """; Fused MQA (branch A) + MHA (branch B) attention block, three launches:
;   proj_kernel : Q/K/V projections -> MFMA-fragment-ordered tiles in d_ws
;   attn_kernel : softmax(Q K^T) V per (branch, head, 512 rows)
;   outp_kernel : output projections -> d_out
"""


def main(path, which=("proj", "attn", "outp")):
    pt, pd, pl = gen_proj()
    at, ad, al = gen_attn()
    ot, od, ol = gen_outp()
    s = HEADER
    if "proj" in which:
        s += f"; @launch kernel=proj_kernel grid=(256,1,1) block=(512,1,1) lds={pl}\n"
    if "attn" in which:
        s += f"; @launch kernel=attn_kernel grid=(256,1,1) block=(512,1,1) lds={al}\n"
    if "outp" in which:
        s += f"; @launch kernel=outp_kernel grid=(256,1,1) block=(512,1,1) lds={ol}\n"
    s += '.amdgcn_target "amdgcn-amd-amdhsa--gfx950"\n'
    s += pt + at + ot + pd + ad + od
    open(path, "w").write(s)


if __name__ == "__main__":
    main(sys.argv[1] if len(sys.argv) > 1 else f"cdna_kernels/{NAME}.s")
```

```python
import sys, math, struct

NAME = "concat_heads__grouped_kv_mqa__softmax_full_mha__prompt"

WS_QA = 0x0000000
WS_QB = 0x0400000
WS_KVA = 0x0800000
WS_KVB = 0x1000000
WS_OA = 0x2000000
WS_OB = 0x2400000
WS_SIZE = 268435456

QSCALE = (32 ** -0.5) * math.log2(math.e)


def f32bits(x):
    return struct.unpack("<I", struct.pack("<f", x))[0]


class A:
    def __init__(self):
        self.l = []

    def __call__(self, s):
        self.l.append("    " + s)

    def label(self, s):
        self.l.append(s + ":")

    def raw(self, s):
        self.l.append(s)

    def text(self):
        return "\n".join(self.l) + "\n"


def vr(b, n):
    return f"v[{b}:{b + n - 1}]"


def sr(b, n):
    return f"s[{b}:{b + n - 1}]"


def srd(a, d, lo, hi, size):
    a(f"s_mov_b32 s{d}, s{lo}")
    a(f"s_mov_b32 s{d+1}, s{hi}")
    a(f"s_mov_b32 s{d+2}, {size:#x}")
    a(f"s_mov_b32 s{d+3}, 0x00020000")


def csel(a, d, x, y):
    a(f"s_mov_b32 s{d}, {y}")
    a(f"s_cmov_b32 s{d}, {x}")


def kernel_head(a, name):
    a.raw(".text")
    a.raw(f".globl {name}")
    a.raw(".p2align 8")
    a.raw(f".type {name},@function")
    a.label(name)


def kernel_desc(name, nvgpr, nsgpr=102):
    acc = (nvgpr + 3) // 4 * 4
    return f""".section .rodata,"a"
.p2align 6
.amdhsa_kernel {name}
  .amdhsa_next_free_vgpr {nvgpr}
  .amdhsa_next_free_sgpr {nsgpr}
  .amdhsa_accum_offset {acc}
  .amdhsa_group_segment_fixed_size 0
  .amdhsa_kernarg_size 88
  .amdhsa_user_sgpr_count 2
  .amdhsa_user_sgpr_kernarg_segment_ptr 1
  .amdhsa_system_sgpr_workgroup_id_x 1
.end_amdhsa_kernel
"""


STAMP = False
OPT = dict(pf=1, pre=6, st1=" sc0 sc1", st2="", ld1=" nt", ld3="", pf0=0, pfd=2, tlb=1, pfb=" nt", k2start=1, wopf=1, remap=1, align=0, nowait=0, prio=1, order=0, nods=0)
WS_STAMP = 0x8000000


def stamp_begin(a):
    if STAMP:
        a("s_memtime s[82:83]")
        a("s_memrealtime s[84:85]")
        for n in range(6):
            a(f"s_mov_b32 s{90 + 2 * n}, 0")


def stamp_mid(a, n):
    if STAMP:
        a(f"s_memtime s[{90 + 2 * n}:{91 + 2 * n}]")


def stamp_end(a, kidx, wave_sgpr):
    if not STAMP:
        return
    a("s_waitcnt vmcnt(0)")
    a("s_memtime s[86:87]")
    a("s_memrealtime s[88:89]")
    a("s_waitcnt lgkmcnt(0)")
    srd(a, 4, S_WS, S_WS + 1, WS_SIZE)
    a(f"s_lshl_b32 s8, s2, 3")
    a(f"s_add_u32 s8, s8, s{wave_sgpr}")
    a(f"s_lshl_b32 s8, s8, 6")
    a(f"s_add_u32 s8, s8, {WS_STAMP + kidx * 0x20000:#x}")
    for i, r in enumerate((82, 84, 86, 88, 90, 92, 94, 96, 98, 100, 100, 100)):
        a(f"v_mov_b32 v{4 + i}, s{r}")
    a("v_mov_b32 v1, 0")
    a("s_mov_b64 exec, 1")
    for i in range(3):
        a(f"buffer_store_dwordx4 v[{4 + 4 * i}:{7 + 4 * i}], v1, s[4:7], s8 offen offset:{16 * i}")


MF32 = "v_mfma_f32_32x32x16_bf16"
MF16 = "v_mfma_f32_16x16x32_bf16"

S_IN = 16
S_OUT = 32
S_WS = 34
SRD_X = 36
SRD_W = 40
SRD_O = 44
SRD_WK = 48
SRD_WV = 52
sWAVE = 56
sT0, sT1, sT2, sT3 = 57, 58, 59, 60
sXOFF, sWOFF, sW16, sWSTG, sSLOT, sCNT, sDELTA = 61, 62, 63, 64, 65, 66, 67
sOBASE, sOJ, sOI, sSCALE = 68, 69, 70, 72
sSEC, sM0, sCOL0, sWSTR, sNT, sEXO, sEXS = 74, 75, 76, 77, 78, 79, 80
sRSLOT = 81
SRD_PF = 4
sPFO, sPFS, sPFN = 8, 9, 10


class G:
    def __init__(self, kind):
        self.kind = kind
        if kind == "proj":
            self.NI, self.NJ = 4, 2
            self.XB = 32768
            self.NSLOT = 3
        else:
            self.NI, self.NJ = 2, 2
            self.XB = 16384
            self.NSLOT = 4
        self.SLOT = self.XB + 16384
        self.XP = self.XB // 1024 // 4
        self.WP = 4
        self.NST = 16
        self.EXB = self.NSLOT * self.SLOT
        self.lds = self.NSLOT * self.SLOT + (16384 if kind == "proj" else 0)
        self.ACC = 128 if kind == "proj" else 64
        self.nacc = self.NI * self.NJ * 16
        fsz = self.NI * 4 + self.NJ * 4
        self.F = [16, 16 + fsz]
        self.fsz = fsz
        self.vXA = 4
        self.vWA = 8
        self.vEXX = 10
        self.vEXW = 12
        self.vLANE16 = 13
        self.EXF = 16 + 2 * fsz
        self.EXACC = self.EXF + 12
        self.TMP = self.EXACC + 8
        self.nvgpr = self.ACC + self.nacc

    def fx(self, b, i):
        return self.F[b] + 4 * i

    def fw(self, b, j):
        return self.F[b] + self.NI * 4 + 4 * j

    def acc(self, i, j):
        return self.ACC + (i * self.NJ + j) * 16


def gemm_reads(g, t, buf):
    r = []
    wr = []
    for j in range(g.NJ):
        for u in range(2):
            off = 4096 * t + (1024 if g.kind == "proj" else 2048) * u
            wr.append(f"ds_read_b64_tr_b16 {vr(g.fw(buf, j) + 2 * u, 2)}, v{g.vWA + j} offset:{off}")
    xr = []
    for i in range(g.NI):
        if g.kind == "proj":
            xr.append(f"ds_read_b128 {vr(g.fx(buf, i), 4)}, v{g.vXA + t} offset:{4096 * i}")
        else:
            xr.append(f"ds_read_b128 {vr(g.fx(buf, i), 4)}, v{g.vXA} offset:{4096 * i + 1024 * t}")
    r = [xr[0]] + wr + xr[1:]
    return r


def gemm_extra_reads(g, e):
    r = []
    for u in range(2):
        r.append(f"ds_read_b64_tr_b16 {vr(g.EXF + 2 * u, 2)}, v{g.vEXW} offset:{2048 * e + 256 * u}")
    for th in range(2):
        r.append(f"ds_read_b128 {vr(g.EXF + 4 + 4 * th, 4)}, v{g.vEXX + e} offset:{2048 * th}")
    return r


def gemm_step(a, g, t, swap, reads, pre=(), extra_mfma=(), post_valu=()):
    buf = t & 1
    for p in pre:
        a(p)
    mf = []
    for i in range(g.NI):
        for j in range(g.NJ):
            x, w = vr(g.fx(buf, i), 4), vr(g.fw(buf, j), 4)
            c = vr(g.acc(i, j), 16)
            if swap:
                mf.append(f"{MF32} {c}, {x}, {w}, {c}")
            else:
                mf.append(f"{MF32} {c}, {w}, {x}, {c}")
    mf = mf + list(extra_mfma)
    reads = list(reads)
    post_valu = list(post_valu)
    per = 2
    for k, m in enumerate(mf):
        a(m)
        for _ in range(per):
            if reads:
                a(reads.pop(0))
        if not reads and post_valu:
            a(post_valu.pop(0))
            if post_valu:
                a(post_valu.pop(0))
    for x in reads + post_valu:
        a(x)


def gemm_compute(a, g, tag, swap, extras):
    exm = []
    if extras:
        pass

    def ex_mfma():
        w = vr(g.EXF, 4)
        out = []
        for th in range(2):
            x = vr(g.EXF + 4 + 4 * th, 4)
            c = vr(g.EXACC + 4 * th, 4)
            if extras == "V":
                out.append(f"{MF16} {c}, {x}, {w}, {c}")
            else:
                out.append(f"{MF16} {c}, {w}, {x}, {c}")
        return out

    def adv(reg):
        return f"v_add_u32 v{reg}, s{sDELTA}, v{reg}"

    def stage(last):
        for t in range(4):
            pre = ["s_waitcnt lgkmcnt(0)"]
            reads, post, em = [], [], []
            if t < 3:
                reads = gemm_reads(g, t + 1, (t + 1) & 1)
                if extras and t == 1:
                    reads += gemm_extra_reads(g, 1)
                if not last:
                    if g.kind == "proj":
                        post.append(adv(g.vXA + t + 1))
                    if t == 2:
                        post += [adv(g.vWA), adv(g.vWA + 1)]
                        if g.kind == "proj":
                            post.append(adv(g.vXA))
                        else:
                            post.append(adv(g.vXA))
                        if extras:
                            post += [adv(g.vEXX), adv(g.vEXX + 1),
                                     f"v_xor_b32 v{g.vEXW}, 0x2000, v{g.vEXW}"]
            elif not last:
                pre.append("s_barrier")
                reads = gemm_reads(g, 0, 0)
                if extras:
                    reads += gemm_extra_reads(g, 0)
            if extras and t in (0, 2):
                em = ex_mfma()
            gemm_step(a, g, t, swap, reads, pre, em, post)

    stamp_mid(a, 4)
    a("s_barrier")
    stamp_mid(a, 0)
    for x in gemm_reads(g, 0, 0):
        a(x)
    if extras:
        for x in gemm_extra_reads(g, 0):
            a(x)
    a(f"s_mov_b32 s{sCNT}, 0")
    a(f"s_mov_b32 s{sRSLOT}, 0")
    a.raw(".p2align 3")
    a.label(f"L_{tag}_loop")
    a(f"s_add_u32 s{sRSLOT}, s{sRSLOT}, 1")
    a(f"s_cmp_eq_u32 s{sRSLOT}, {g.NSLOT}")
    csel(a, sDELTA, f"{-(g.NSLOT - 1) * g.SLOT & 0xffffffff:#x}", g.SLOT)
    a(f"s_cselect_b32 s{sRSLOT}, 0, s{sRSLOT}")
    stage(False)
    a(f"s_add_u32 s{sCNT}, s{sCNT}, 1")
    a(f"s_cmp_lt_u32 s{sCNT}, {g.NST - 1}")
    a(f"s_cbranch_scc1 L_{tag}_loop")
    stage(True)
    stamp_mid(a, 1)


def gemm_loader(a, g, tag):
    proj = g.kind == "proj"
    per = g.XP + g.WP
    LA = g.NSLOT
    lb = OPT["ld1"] if proj else OPT["ld3"]
    pf = proj and OPT["pf"]

    def prefetch():
        a(f"buffer_load_dword v9, v8, {sr(SRD_PF, 4)}, s{sPFO} offen{OPT['pfb']}")
        a(f"s_add_u32 s{sPFO}, s{sPFO}, s{sPFS}")

    def prefetch_if(hi_waves, lbl):
        a(f"s_cmp_ge_u32 s{sWAVE}, 6")
        a(f"s_cbranch_scc{0 if hi_waves else 1} {lbl}")
        prefetch()
        a.label(lbl)

    def issue(lo=0, hi=None):
        hi = per if hi is None else hi
        for n in range(lo, hi):
            if n < g.XP:
                a(f"s_add_u32 m0, s{sSLOT}, {n * 4096}")
                a(f"s_add_u32 s{sT0}, s{sXOFF}, {n * 65536}")
                a(f"buffer_load_dwordx4 v4, {sr(SRD_X, 4)}, s{sT0} offen{lb} lds")
            else:
                i = n - g.XP
                a(f"s_add_u32 m0, s{sSLOT}, {g.XB + i * 4096}")
                if i:
                    a(f"s_add_u32 s{sT2}, s{sT2}, s{sW16}")
                else:
                    a(f"s_mov_b32 s{sT2}, s{sWOFF}")
                a(f"buffer_load_dwordx4 v5, {sr(SRD_W, 4)}, s{sT2} offen{lb} lds")
        if hi == per:
            a(f"s_add_u32 s{sXOFF}, s{sXOFF}, {128 if proj else 4096}")
            a(f"s_add_u32 s{sWOFF}, s{sWOFF}, s{sWSTG}")
            a(f"s_add_u32 s{sSLOT}, s{sSLOT}, {g.SLOT}")
            a(f"s_cmp_ge_u32 s{sSLOT}, {g.NSLOT * g.SLOT}")
            a(f"s_cselect_b32 s{sT1}, {g.NSLOT * g.SLOT}, 0")
            a(f"s_sub_u32 s{sSLOT}, s{sSLOT}, s{sT1}")

    def issue_extra():
        a(f"s_mov_b32 m0, s{sEXS}")
        a("s_nop 0")
        a(f"buffer_load_dwordx4 v6, {sr(SRD_WK, 4)}, s{sEXO} offen lds")
        a(f"s_add_u32 m0, s{sEXS}, 4096")
        a("s_nop 0")
        a(f"buffer_load_dwordx4 v6, {sr(SRD_WV, 4)}, s{sEXO} offen lds")
        a(f"s_add_u32 s{sEXO}, s{sEXO}, 4096")
        a(f"s_xor_b32 s{sEXS}, s{sEXS}, 0x2000")

    def maybe_extra(lbl):
        if proj:
            a(f"s_cmp_lg_u32 s{sSEC}, 0")
            a(f"s_cbranch_scc1 {lbl}")
            issue_extra()
            a.label(lbl)

    stamp_mid(a, 3)
    if pf:
        prefetch_if(False, f"L_{tag}_p0")
        a(f"s_cmp_lg_u32 s{sSEC}, 0")
        a(f"s_cbranch_scc1 L_{tag}_p0x")
        a(f"s_lshr_b32 s{sT0}, s2, 3")
        a(f"s_lshl_b32 s{sT0}, s{sT0}, 11")
        a("v_and_b32 v10, 15, v0")
        a("v_lshlrev_b32 v10, 7, v10")
        a(f"s_cmp_eq_u32 s{sWAVE}, 6")
        a(f"s_cbranch_scc0 L_{tag}_p0y")
        a(f"buffer_load_dword v9, v10, {sr(SRD_WK, 4)}, s{sT0} offen{OPT['pfb']}")
        a.label(f"L_{tag}_p0y")
        a(f"s_cmp_eq_u32 s{sWAVE}, 7")
        a(f"s_cbranch_scc0 L_{tag}_p0x")
        a(f"buffer_load_dword v9, v10, {sr(SRD_WV, 4)}, s{sT0} offen{OPT['pfb']}")
        a.label(f"L_{tag}_p0x")
    maybe_extra(f"L_{tag}_x0")
    issue()
    maybe_extra(f"L_{tag}_x1")
    if pf:
        prefetch_if(True, f"L_{tag}_p1")
    pre = min(OPT["pre"], per)
    issue(0, pre)
    stamp_mid(a, 4)
    if pf:
        a(f"s_cmp_ge_u32 s{sWAVE}, 6")
        a(f"s_cbranch_scc0 L_{tag}_w0")
        a(f"s_waitcnt vmcnt({pre + 1})")
        a(f"s_branch L_{tag}_w1")
        a.label(f"L_{tag}_w0")
    a(f"s_waitcnt vmcnt({pre})")
    if pf:
        a.label(f"L_{tag}_w1")
    stamp_mid(a, 5)
    a("s_barrier")
    stamp_mid(a, 0)
    if pre < per:
        issue(pre, per)
    if pf:
        prefetch_if(False, f"L_{tag}_p2")
        a(f"s_cmp_ge_u32 s{sWAVE}, 6")
        a(f"s_cselect_b32 s{sPFN}, {OPT['pf0']}, {OPT['pf0'] + OPT['pfd']}")
    for _ in range(LA - 2):
        issue()
    a(f"s_mov_b32 s{sCNT}, 0")
    a.label(f"L_{tag}_lloop")
    a(f"s_waitcnt vmcnt({(LA - 2) * per})")
    a("s_barrier")
    if OPT.get("lstamp") and STAMP:
        for k_, n_ in ((1, 2), (4, 3), (8, 4), (11, 5)):
            a(f"s_cmp_lg_u32 s{sCNT}, {k_}")
            a(f"s_cbranch_scc1 L_{tag}_ls{k_}")
            stamp_mid(a, n_)
            a.label(f"L_{tag}_ls{k_}")
    maybe_extra(f"L_{tag}_x2")
    issue()
    if pf:
        a(f"s_cmp_eq_u32 s{sCNT}, s{sPFN}")
        a(f"s_cbranch_scc0 L_{tag}_nopf")
        prefetch()
        a(f"s_add_u32 s{sPFN}, s{sPFN}, {2 * OPT['pfd']}")
        a(f"s_cmp_gt_u32 s{sPFN}, {OPT['pf0'] + 4 * OPT['pfd']}")
        a(f"s_cselect_b32 s{sPFN}, 64, s{sPFN}")
        a.label(f"L_{tag}_nopf")
    if proj and OPT["tlb"]:
        a(f"s_cmp_eq_u32 s{sCNT}, 3")
        a(f"s_cbranch_scc0 L_{tag}_notlb")
        a(f"s_cmp_eq_u32 s{sWAVE}, 4")
        a(f"s_cbranch_scc0 L_{tag}_notlb")
        a(f"s_lshr_b32 s{sT0}, s2, 3")
        a(f"s_lshl_b32 s{sT0}, s{sT0}, 21")
        a("v_mov_b32 v10, 0")
        a(f"buffer_load_dword v9, v10, {sr(SRD_O, 4)}, s{sT0} offen")
        a.label(f"L_{tag}_notlb")
    a(f"s_add_u32 s{sCNT}, s{sCNT}, 1")
    a(f"s_cmp_lt_u32 s{sCNT}, {g.NST - LA}")
    a(f"s_cbranch_scc1 L_{tag}_lloop")
    for s in range(g.NST - LA, g.NST - 1):
        left = (g.NST - 1) - (s + 1)
        a(f"s_waitcnt vmcnt({left * per})")
        a("s_barrier")
        if proj and s + 2 <= g.NST - 1:
            maybe_extra(f"L_{tag}_x3_{s}")
            if s + 1 < g.NST - 1:
                pass
    stamp_mid(a, 1)
    stamp_end(a, 0 if proj else 2, sWAVE)
    a("s_endpgm")


def gen_proj():
    g = G("proj")
    a = A()
    name = "proj_kernel"
    kernel_head(a, name)
    a("s_cmp_ge_u32 s2, 256")
    a("s_cbranch_scc1 L_proj_end")
    stamp_begin(a)
    a(f"s_load_dwordx16 {sr(S_IN, 16)}, s[0:1], 0")
    a(f"s_load_dwordx2 {sr(S_WS, 2)}, s[0:1], 80")
    a("v_lshrrev_b32 v1, 6, v0")
    a("v_and_b32 v0, 63, v0")
    a(f"v_readfirstlane_b32 s{sWAVE}, v1")
    a(f"s_and_b32 s{sT0}, s2, 7")
    a(f"s_lshr_b32 s{sT1}, s2, 3")
    a(f"s_lshr_b32 s{sSEC}, s{sT0}, 1")
    a(f"s_and_b32 s{sT0}, s{sT0}, 1")
    a(f"s_lshl_b32 s{sM0}, s{sT0}, 10")
    a(f"s_and_b32 s{sT2}, s{sT1}, 3")
    a(f"s_lshl_b32 s{sT2}, s{sT2}, 8")
    a(f"s_add_u32 s{sM0}, s{sM0}, s{sT2}")
    a(f"s_lshr_b32 s{sNT}, s{sT1}, 2")
    a(f"s_sub_u32 s{sT2}, s{sSEC}, 1")
    a(f"s_max_i32 s{sT2}, s{sT2}, 0")
    a(f"s_lshl_b32 s{sCOL0}, s{sT2}, 10")
    a(f"s_lshl_b32 s{sT2}, s{sNT}, 7")
    a(f"s_add_u32 s{sCOL0}, s{sCOL0}, s{sT2}")
    a(f"s_cmp_eq_u32 s{sSEC}, 0")
    csel(a, sWSTR, 2048, 6144)
    a("s_waitcnt lgkmcnt(0)")
    stamp_mid(a, 2)
    a(f"s_cmp_eq_u32 s{sSEC}, 0")
    a(f"s_cselect_b32 s{SRD_X}, s16, s26")
    a(f"s_cselect_b32 s{SRD_X+1}, s17, s27")
    a(f"s_mov_b32 s{SRD_X+2}, 0x400000")
    a(f"s_mov_b32 s{SRD_X+3}, 0x00020000")
    a(f"s_cselect_b32 s{SRD_W}, s18, s28")
    a(f"s_cselect_b32 s{SRD_W+1}, s19, s29")
    csel(a, SRD_W + 2, 0x200000, 0x600000)
    a(f"s_mov_b32 s{SRD_W+3}, 0x00020000")
    srd(a, SRD_O, S_WS, S_WS + 1, WS_SIZE)
    srd(a, SRD_WK, 20, 21, 0x10000)
    srd(a, SRD_WV, 22, 23, 0x10000)
    a(f"s_cmp_ge_u32 s{sWAVE}, 4")
    a("s_cbranch_scc1 L_proj_loader")

    a(f"s_lshr_b32 s{sT0}, s{sWAVE}, 1")
    a(f"s_and_b32 s{sT1}, s{sWAVE}, 1")
    a("v_and_b32 v1, 31, v0")
    a("v_lshlrev_b32 v1, 7, v1")
    a(f"s_lshl_b32 s{sT2}, s{sT0}, 14")
    a(f"v_add_u32 v1, s{sT2}, v1")
    a("v_bfe_u32 v2, v0, 1, 3")
    a("v_lshrrev_b32 v3, 5, v0")
    for t in range(4):
        a(f"v_add_u32 v14, {2 * t}, v3")
        a("v_xor_b32 v14, v14, v2")
        a(f"v_lshl_add_u32 v{g.vXA + t}, v14, 4, v1")
    a("v_bfe_u32 v2, v0, 2, 2")
    a("v_lshl_add_u32 v1, v3, 3, v2")
    a("v_lshlrev_b32 v1, 8, v1")
    a("v_bfe_u32 v14, v0, 4, 1")
    a("v_lshl_add_u32 v1, v14, 5, v1")
    a("v_and_b32 v14, 3, v0")
    a("v_lshl_add_u32 v1, v14, 3, v1")
    a(f"v_add_u32 v1, {g.XB}, v1")
    a(f"s_lshl_b32 s{sT2}, s{sT1}, 1")
    for j in range(2):
        a(f"s_add_u32 s{sT3}, s{sT2}, {j}")
        a(f"v_xor_b32 v14, s{sT3}, v2")
        a(f"v_lshl_add_u32 v{g.vWA + j}, v14, 6, v1")
    a(f"v_lshlrev_b32 v{g.vLANE16}, 4, v0")
    a("v_and_b32 v1, 15, v0")
    a("v_lshlrev_b32 v1, 7, v1")
    a(f"s_lshl_b32 s{sT2}, s{sNT}, 12")
    a(f"v_add_u32 v1, s{sT2}, v1")
    a("v_bfe_u32 v2, v0, 1, 3")
    a("v_lshrrev_b32 v3, 4, v0")
    for e in range(2):
        a(f"v_add_u32 v14, {4 * e}, v3")
        a("v_xor_b32 v14, v14, v2")
        a(f"v_lshl_add_u32 v{g.vEXX + e}, v14, 4, v1")
    a("v_bfe_u32 v2, v0, 2, 2")
    a("v_lshl_add_u32 v1, v3, 3, v2")
    a("v_lshlrev_b32 v1, 6, v1")
    a("v_and_b32 v14, 3, v0")
    a("v_lshl_add_u32 v1, v14, 3, v1")
    a(f"s_lshl_b32 s{sT2}, s{sT0}, 12")
    a(f"s_lshl_b32 s{sT3}, s{sT1}, 5")
    a(f"s_add_u32 s{sT2}, s{sT2}, s{sT3}")
    a(f"s_add_u32 s{sT2}, s{sT2}, {g.EXB}")
    a(f"v_add_u32 v{g.vEXW}, s{sT2}, v1")
    a(f"s_lshl_b32 s{sT2}, s{sNT}, 2")
    a(f"s_lshl_b32 s{sT3}, s{sT1}, 1")
    a(f"s_add_u32 s{sT2}, s{sT2}, s{sT3}")
    a(f"s_lshr_b32 s{sT3}, s{sM0}, 5")
    a(f"s_lshl_b32 s{sOBASE}, s{sT0}, 2")
    a(f"s_add_u32 s{sT3}, s{sT3}, s{sOBASE}")
    a(f"s_cmp_le_u32 s{sSEC}, 1")
    csel(a, sOJ, 0x20000, 0x40000)
    csel(a, sOI, 2048, 4096)
    a(f"s_cselect_b32 s{sSCALE}, {f32bits(QSCALE):#x}, 1.0")
    a(f"s_mov_b32 s{sSCALE+1}, s{sSCALE}")
    a(f"s_mul_i32 s{sOBASE}, s{sT2}, s{sOJ}")
    a(f"s_mul_i32 s{sT3}, s{sT3}, s{sOI}")
    a(f"s_add_u32 s{sOBASE}, s{sOBASE}, s{sT3}")
    a(f"s_mov_b32 s{sT2}, {WS_QA:#x}")
    a(f"s_cmp_eq_u32 s{sSEC}, 1")
    a(f"s_cselect_b32 s{sT2}, {WS_QB:#x}, s{sT2}")
    a(f"s_cmp_eq_u32 s{sSEC}, 2")
    a(f"s_cselect_b32 s{sT2}, {WS_KVB:#x}, s{sT2}")
    a(f"s_cmp_eq_u32 s{sSEC}, 3")
    a(f"s_cselect_b32 s{sT2}, {WS_KVB + 2048:#x}, s{sT2}")
    a(f"s_add_u32 s{sOBASE}, s{sOBASE}, s{sT2}")
    for r in range(g.nacc):
        a(f"v_mov_b32 v{g.ACC + r}, 0")
    for r in range(8):
        a(f"v_mov_b32 v{g.EXACC + r}, 0")
    a(f"s_cmp_eq_u32 s{sSEC}, 3")
    a("s_cbranch_scc1 L_proj_V")
    a(f"s_cmp_eq_u32 s{sSEC}, 0")
    a("s_cbranch_scc0 L_proj_QK")
    a(f"s_cmp_ge_u32 s{sWAVE}, 2")
    a("s_cbranch_scc1 L_proj_AV")

    def epi(scale):
        a("s_nop 7")
        a("s_nop 7")
        for i in range(g.NI):
            for j in range(g.NJ):
                c = g.acc(i, j)
                t = g.F[0] + ((i * g.NJ + j) & 1) * 8
                if scale:
                    for r in range(0, 16, 2):
                        a(f"v_pk_mul_f32 {vr(c + r, 2)}, {vr(c + r, 2)}, {sr(sSCALE, 2)}")
                for r in range(8):
                    a(f"v_cvt_pk_bf16_f32 v{t + r}, v{c + 2 * r}, v{c + 2 * r + 1}")
                a(f"s_mul_i32 s{sT0}, s{sOJ}, {j}")
                a(f"s_mul_i32 s{sT1}, s{sOI}, {i}")
                a(f"s_add_u32 s{sT0}, s{sT0}, s{sT1}")
                a(f"s_add_u32 s{sT0}, s{sT0}, s{sOBASE}")
                a(f"buffer_store_dwordx4 {vr(t, 4)}, v{g.vLANE16}, {sr(SRD_O, 4)}, s{sT0} offen{OPT['st1']}")
                a(f"buffer_store_dwordx4 {vr(t + 4, 4)}, v{g.vLANE16}, {sr(SRD_O, 4)}, s{sT0} offen offset:1024{OPT['st1']}")

    def epi_extra(part):
        a("v_and_b32 v1, 15, v0")
        a("v_lshlrev_b32 v1, 4, v1")
        a("v_bfe_u32 v2, v0, 4, 1")
        a("v_lshl_add_u32 v1, v2, 9, v1")
        a("v_lshrrev_b32 v2, 5, v0")
        a("v_lshl_add_u32 v1, v2, 3, v1")
        a(f"s_lshr_b32 s{sT0}, s{sM0}, 5")
        a(f"s_add_u32 s{sT0}, s{sT0}, s{sNT}")
        a(f"s_lshl_b32 s{sT0}, s{sT0}, 12")
        a(f"s_add_u32 s{sT0}, s{sT0}, {WS_KVA + (2048 if part == 'V' else 0):#x}")
        a(f"s_and_b32 s{sT1}, s{sWAVE}, 1")
        a(f"s_lshl_b32 s{sT1}, s{sT1}, {10 if part == 'K' else 8}")
        a(f"s_add_u32 s{sT0}, s{sT0}, s{sT1}")
        for th in range(2):
            c = g.EXACC + 4 * th
            a(f"v_cvt_pk_bf16_f32 v{g.EXF + 2 * th}, v{c}, v{c + 1}")
            a(f"v_cvt_pk_bf16_f32 v{g.EXF + 2 * th + 1}, v{c + 2}, v{c + 3}")
            off = th * (256 if part == 'K' else 1024)
            a(f"buffer_store_dwordx2 {vr(g.EXF + 2 * th, 2)}, v1, {sr(SRD_O, 4)}, s{sT0} offen offset:{off}{OPT['st1']}")

    gemm_compute(a, g, "proj_AK", False, "K")
    epi(True)
    epi_extra("K")
    stamp_end(a, 0, sWAVE)
    a("s_endpgm")
    a.label("L_proj_AV")
    gemm_compute(a, g, "proj_AV", False, "V")
    epi(True)
    epi_extra("V")
    stamp_end(a, 0, sWAVE)
    a("s_endpgm")
    a.label("L_proj_QK")
    gemm_compute(a, g, "proj_QK", False, None)
    epi(True)
    stamp_end(a, 0, sWAVE)
    a("s_endpgm")
    a.label("L_proj_V")
    gemm_compute(a, g, "proj_V", True, None)
    epi(False)
    stamp_end(a, 0, sWAVE)
    a("s_endpgm")

    a.label("L_proj_loader")
    a(f"s_sub_u32 s{sT3}, s{sWAVE}, 4")
    a("v_lshrrev_b32 v1, 3, v0")
    a("v_lshlrev_b32 v1, 11, v1")
    a("v_lshrrev_b32 v2, 4, v0")
    a(f"s_and_b32 s{sT0}, s{sT3}, 1")
    a(f"s_lshl_b32 s{sT0}, s{sT0}, 2")
    a(f"v_add_u32 v3, s{sT0}, v2")
    a("v_and_b32 v7, 7, v0")
    a("v_xor_b32 v3, v3, v7")
    a("v_lshl_add_u32 v4, v3, 4, v1")
    a(f"v_mul_lo_u32 v1, v2, s{sWSTR}")
    a("v_lshlrev_b32 v3, 2, v2")
    a("v_and_b32 v7, 15, v0")
    a("v_xor_b32 v3, v3, v7")
    a("v_lshl_add_u32 v5, v3, 4, v1")
    a("v_lshlrev_b32 v6, 4, v0")
    a(f"s_lshl_b32 s{sT0}, s{sT3}, 3")
    a(f"s_add_u32 s{sT0}, s{sT0}, s{sM0}")
    a(f"s_lshl_b32 s{sXOFF}, s{sT0}, 11")
    a(f"s_mul_i32 s{sT0}, s{sT3}, s{sWSTR}")
    a(f"s_lshl_b32 s{sT0}, s{sT0}, 2")
    a(f"s_lshl_b32 s{sT1}, s{sCOL0}, 1")
    a(f"s_add_u32 s{sWOFF}, s{sT0}, s{sT1}")
    a(f"s_lshl_b32 s{sW16}, s{sWSTR}, 4")
    a(f"s_lshl_b32 s{sWSTG}, s{sWSTR}, 6")
    a(f"s_lshl_b32 s{sSLOT}, s{sT3}, 10")
    a(f"s_lshl_b32 s{sEXO}, s{sT3}, 10")
    a(f"s_add_u32 s{sEXS}, s{sEXO}, {g.EXB}")
    if OPT["pf"]:
        a(f"s_lshr_b32 s{sT0}, s2, 3")
        a(f"s_bitcmp1_b32 s{sT3}, 0")
        for i in range(3):
            a(f"s_cselect_b32 s{SRD_PF + i}, s{SRD_W + i}, s{SRD_X + i}")
        a(f"s_mov_b32 s{SRD_PF + 3}, 0x00020000")
        a("s_cbranch_scc1 L_proj_pfw")
        a("v_and_b32 v1, 31, v0")
        a("v_lshlrev_b32 v1, 11, v1")
        a("v_lshrrev_b32 v2, 5, v0")
        a("v_lshl_add_u32 v8, v2, 7, v1")
        a(f"s_and_b32 s{sT1}, s{sM0}, 0x400")
        a(f"s_lshl_b32 s{sT2}, s{sT0}, 5")
        a(f"s_add_u32 s{sT1}, s{sT1}, s{sT2}")
        a(f"s_lshl_b32 s{sT1}, s{sT1}, 11")
        a(f"s_lshl_b32 s{sT2}, s{sT3}, 7")
        a(f"s_add_u32 s{sPFO}, s{sT1}, s{sT2}")
        a(f"s_mov_b32 s{sPFS}, 512")
        a("s_branch L_proj_pfdone")
        a.label("L_proj_pfw")
        a("v_lshrrev_b32 v2, 5, v0")
        a("v_lshlrev_b32 v2, 6, v2")
        a("v_bfe_u32 v3, v0, 4, 1")
        a("v_add_u32 v2, v2, v3")
        a(f"v_mul_lo_u32 v2, v2, s{sWSTR}")
        a("v_and_b32 v3, 15, v0")
        a("v_lshl_add_u32 v8, v3, 7, v2")
        a(f"s_lshr_b32 s{sT2}, s{sT3}, 1")
        a(f"s_lshl_b32 s{sT2}, s{sT2}, 7")
        a(f"s_lshl_b32 s{sT0}, s{sT0}, 1")
        a(f"s_add_u32 s{sT2}, s{sT2}, s{sT0}")
        a(f"s_mul_i32 s{sT2}, s{sT2}, s{sWSTR}")
        a(f"s_and_b32 s{sT0}, s{sCOL0}, 0xc00")
        a(f"s_lshl_b32 s{sT0}, s{sT0}, 1")
        a(f"s_add_u32 s{sPFO}, s{sT2}, s{sT0}")
        a(f"s_lshl_b32 s{sPFS}, s{sWSTR}, 8")
        a.label("L_proj_pfdone")
    gemm_loader(a, g, "proj")
    a.label("L_proj_end")
    a("s_endpgm")
    return a.text(), kernel_desc(name, g.nvgpr), g.lds


def gen_outp():
    g = G("outp")
    a = A()
    name = "outp_kernel"
    kernel_head(a, name)
    a("s_cmp_ge_u32 s2, 256")
    a("s_cbranch_scc1 L_outp_end")
    stamp_begin(a)
    a(f"s_load_dwordx16 {sr(S_IN, 16)}, s[0:1], 0")
    a(f"s_load_dwordx2 {sr(S_OUT, 2)}, s[0:1], 64")
    a(f"s_load_dwordx2 {sr(S_WS, 2)}, s[0:1], 80")
    a("v_lshrrev_b32 v1, 6, v0")
    a("v_and_b32 v0, 63, v0")
    a(f"v_readfirstlane_b32 s{sWAVE}, v1")
    a(f"s_and_b32 s{sT0}, s2, 7")
    a(f"s_lshr_b32 s{sT1}, s2, 3")
    a(f"s_lshr_b32 s{sSEC}, s{sT0}, 2")
    a(f"s_and_b32 s{sT0}, s{sT0}, 3")
    a(f"s_lshl_b32 s{sM0}, s{sT0}, 9")
    a(f"s_and_b32 s{sT2}, s{sT1}, 3")
    a(f"s_lshl_b32 s{sT2}, s{sT2}, 7")
    a(f"s_add_u32 s{sM0}, s{sM0}, s{sT2}")
    a(f"s_lshr_b32 s{sNT}, s{sT1}, 2")
    a(f"s_lshl_b32 s{sCOL0}, s{sNT}, 7")
    a("s_waitcnt lgkmcnt(0)")
    stamp_mid(a, 2)
    srd(a, SRD_X, S_WS, S_WS + 1, WS_SIZE)
    a(f"s_cmp_eq_u32 s{sSEC}, 0")
    a(f"s_cselect_b32 s{SRD_W}, s24, s30")
    a(f"s_cselect_b32 s{SRD_W+1}, s25, s31")
    a(f"s_mov_b32 s{SRD_W+2}, 0x200000")
    a(f"s_mov_b32 s{SRD_W+3}, 0x00020000")
    srd(a, SRD_O, S_OUT, S_OUT + 1, 0x800000)
    a(f"s_cmp_ge_u32 s{sWAVE}, 4")
    a("s_cbranch_scc1 L_outp_loader")
    a(f"s_lshr_b32 s{sT0}, s{sWAVE}, 1")
    a(f"s_and_b32 s{sT1}, s{sWAVE}, 1")
    a(f"s_lshl_b32 s{sT2}, s{sT0}, 13")
    a("v_lshlrev_b32 v1, 4, v0")
    a(f"v_add_u32 v{g.vXA}, s{sT2}, v1")
    a("v_lshrrev_b32 v3, 5, v0")
    a("v_bfe_u32 v2, v0, 2, 2")
    a("v_lshl_add_u32 v1, v3, 2, v2")
    a("v_lshlrev_b32 v1, 8, v1")
    a("v_and_b32 v14, 1, v0")
    a("v_lshl_add_u32 v1, v14, 5, v1")
    a("v_bfe_u32 v14, v0, 4, 1")
    a("v_lshl_add_u32 v1, v14, 4, v1")
    a("v_bfe_u32 v14, v0, 1, 1")
    a("v_lshl_add_u32 v1, v14, 3, v1")
    a(f"v_add_u32 v1, {g.XB}, v1")
    a(f"s_lshl_b32 s{sT2}, s{sT1}, 1")
    for j in range(2):
        a(f"s_add_u32 s{sT3}, s{sT2}, {j}")
        a(f"v_xor_b32 v14, s{sT3}, v2")
        a(f"v_lshl_add_u32 v{g.vWA + j}, v14, 6, v1")
    a("v_and_b32 v1, 31, v0")
    a("v_lshlrev_b32 v1, 12, v1")
    a(f"v_lshl_add_u32 v{g.vLANE16}, v3, 5, v1")
    a(f"s_lshl_b32 s{sT2}, s{sT0}, 6")
    a(f"s_add_u32 s{sT2}, s{sT2}, s{sM0}")
    a(f"s_lshl_b32 s{sOBASE}, s{sT2}, 12")
    a(f"s_lshl_b32 s{sT2}, s{sSEC}, 10")
    a(f"s_add_u32 s{sT2}, s{sT2}, s{sCOL0}")
    a(f"s_lshl_b32 s{sT3}, s{sT1}, 6")
    a(f"s_add_u32 s{sT2}, s{sT2}, s{sT3}")
    a(f"s_lshl_b32 s{sT2}, s{sT2}, 1")
    a(f"s_add_u32 s{sOBASE}, s{sOBASE}, s{sT2}")
    for r in range(g.nacc):
        a(f"v_mov_b32 v{g.ACC + r}, 0")
    gemm_compute(a, g, "outp", False, None)
    a("s_nop 7")
    a("s_nop 7")
    for i in range(g.NI):
        for j in range(g.NJ):
            c = g.acc(i, j)
            t = g.F[0] + ((i * g.NJ + j) & 1) * 8
            for r in range(8):
                a(f"v_cvt_pk_bf16_f32 v{t + r}, v{c + 2 * r}, v{c + 2 * r + 1}")
            a(f"s_add_u32 s{sT0}, s{sOBASE}, {i * 32 * 4096}")
            a(f"buffer_store_dwordx4 {vr(t, 4)}, v{g.vLANE16}, {sr(SRD_O, 4)}, s{sT0} offen offset:{64 * j}")
            a(f"buffer_store_dwordx4 {vr(t + 4, 4)}, v{g.vLANE16}, {sr(SRD_O, 4)}, s{sT0} offen offset:{64 * j + 16}")
    stamp_end(a, 2, sWAVE)
    a("s_endpgm")
    a.label("L_outp_loader")
    a(f"s_sub_u32 s{sT3}, s{sWAVE}, 4")
    a("v_lshlrev_b32 v4, 4, v0")
    a("v_lshrrev_b32 v2, 4, v0")
    a("v_lshlrev_b32 v1, 11, v2")
    a("v_lshlrev_b32 v3, 2, v2")
    a("v_and_b32 v7, 15, v0")
    a("v_xor_b32 v3, v3, v7")
    a("v_lshl_add_u32 v5, v3, 4, v1")
    a(f"s_cmp_eq_u32 s{sSEC}, 0")
    csel(a, sT0, WS_OA, WS_OB)
    a(f"s_lshl_b32 s{sT1}, s{sM0}, 11")
    a(f"s_add_u32 s{sT0}, s{sT0}, s{sT1}")
    a(f"s_lshl_b32 s{sT1}, s{sT3}, 10")
    a(f"s_add_u32 s{sXOFF}, s{sT0}, s{sT1}")
    a(f"s_lshl_b32 s{sT0}, s{sT3}, 13")
    a(f"s_lshl_b32 s{sT1}, s{sCOL0}, 1")
    a(f"s_add_u32 s{sWOFF}, s{sT0}, s{sT1}")
    a(f"s_mov_b32 s{sW16}, {16 * 2048}")
    a(f"s_mov_b32 s{sWSTG}, {64 * 2048}")
    a(f"s_lshl_b32 s{sSLOT}, s{sT3}, 10")
    gemm_loader(a, g, "outp")
    a.label("L_outp_end")
    a("s_endpgm")
    return a.text(), kernel_desc(name, g.nvgpr), g.lds


def gen_attn():
    a = A()
    name = "attn_kernel"
    kernel_head(a, name)
    vL16, vK, vKN, IDX = 1, 2, 3, 4
    T0, T1, T2, T3 = 5, 6, 7, 8
    ONES = 12
    Q = [16, 24]
    P = [32, 40]
    KF = [48, 56]
    VF = [64, 72]
    L = [80, 84]
    S = [96, 112]
    NEG = [128, 144]
    O = [160, 176]
    NV = 192
    SRD = 36
    sW, sQB, sKV, sOB, sST, sSL, sDM, sGO = 40, 41, 42, 43, 44, 45, 46, 47
    t0, t1, t2, t3 = 48, 49, 50, 51
    sBR, sPF, sFIRST, SRDW, SRDO = 52, 53, 54, 56, 60
    vPF, vPFD = 9, 10
    TILES = 8
    STG = TILES * 4096
    NSLOT = 3
    NSTG = 64 // TILES
    lds = NSLOT * STG

    a("s_cmp_ge_u32 s2, 256")
    a("s_cbranch_scc1 L_attn_end")
    stamp_begin(a)
    a(f"s_load_dwordx2 {sr(S_WS, 2)}, s[0:1], 80")
    a("s_load_dwordx2 s[24:25], s[0:1], 32")
    a("s_load_dwordx2 s[30:31], s[0:1], 56")
    a("s_load_dwordx2 s[32:33], s[0:1], 64")
    a("v_lshrrev_b32 v1, 6, v0")
    a("v_and_b32 v0, 63, v0")
    a(f"v_readfirstlane_b32 s{sW}, v1")
    a(f"v_lshlrev_b32 v{vL16}, 4, v0")
    if OPT["remap"]:
        a(f"s_lshr_b32 s{t0}, s2, 3")
        a(f"s_and_b32 s{t2}, s2, 3")
        a(f"s_bfe_u32 s{t1}, s2, 0x10002")
    else:
        a(f"s_and_b32 s{t0}, s2, 7")
        a(f"s_lshr_b32 s{t1}, s2, 3")
        a(f"s_lshl_b32 s{t0}, s{t0}, 2")
        a(f"s_bfe_u32 s{t2}, s{t1}, 0x20002")
        a(f"s_add_u32 s{t0}, s{t0}, s{t2}")
        a(f"s_and_b32 s{t2}, s{t1}, 3")
        a(f"s_lshr_b32 s{t1}, s{t1}, 4")
    a(f"s_lshl_b32 s{t2}, s{t2}, 4")
    a(f"s_lshl_b32 s{t3}, s{sW}, 1")
    a(f"s_add_u32 s{t2}, s{t2}, s{t3}")
    a(f"s_mov_b32 s{sBR}, s{t1}")
    a(f"s_lshl_b32 s{sQB}, s{t0}, 17")
    a(f"s_lshl_b32 s{t3}, s{t2}, 11")
    a(f"s_add_u32 s{sQB}, s{sQB}, s{t3}")
    a(f"s_lshl_b32 s{sOB}, s{t2}, 16")
    a(f"s_lshl_b32 s{t3}, s{t0}, 11")
    a(f"s_add_u32 s{sOB}, s{sOB}, s{t3}")
    a(f"s_lshl_b32 s{sKV}, s{t0}, 18")
    a(f"s_add_u32 s{sKV}, s{sKV}, {WS_KVB:#x}")
    a(f"s_cmp_eq_u32 s{t1}, 0")
    a(f"s_cselect_b32 s{sKV}, {WS_KVA:#x}, s{sKV}")
    a(f"s_cselect_b32 s{t3}, {WS_QA:#x}, {WS_QB:#x}")
    a(f"s_add_u32 s{sQB}, s{sQB}, s{t3}")
    a(f"s_cmp_eq_u32 s{t1}, 0")
    csel(a, t3, WS_OA, WS_OB)
    a(f"s_add_u32 s{sOB}, s{sOB}, s{t3}")
    a("s_waitcnt lgkmcnt(0)")
    stamp_mid(a, 2)
    srd(a, SRD, S_WS, S_WS + 1, WS_SIZE)
    def dma():
        a(f"s_mov_b32 m0, s{sDM}")
        a("s_nop 0")
        for c in range(4):
            a(f"buffer_load_dwordx4 v{vL16}, {sr(SRD, 4)}, s{sGO} offen offset:{1024 * c} lds")
        a(f"s_add_u32 s{sGO}, s{sGO}, {STG}")
        a(f"s_add_u32 s{sDM}, s{sDM}, {STG}")
        a(f"s_cmp_ge_u32 s{sDM}, {NSLOT * STG}")
        a(f"s_cselect_b32 s{t0}, {NSLOT * STG}, 0")
        a(f"s_sub_u32 s{sDM}, s{sDM}, s{t0}")

    def qloads():
        for q in range(2):
            for c in range(2):
                a(f"buffer_load_dwordx4 {vr(Q[q] + 4 * c, 4)}, v{vL16}, {sr(SRD, 4)}, s{sQB} offen offset:{2048 * q + 1024 * c}")

    stamp_mid(a, 3)
    a(f"s_and_b32 s{t0}, s{sW}, 3")
    a(f"s_lshl_b32 s{t0}, s{t0}, 11")
    a(f"s_add_u32 s{t1}, s{sKV}, s{t0}")

    def grp_dma(grp):
        a(f"s_add_u32 m0, s{t0}, {8192 * grp}")
        a(f"s_add_u32 s{t2}, s{t1}, {8192 * grp}")
        for c in range(2):
            a(f"buffer_load_dwordx4 v{vL16}, {sr(SRD, 4)}, s{t2} offen offset:{1024 * c} lds")

    a(f"s_cmp_ge_u32 s{sW}, 4")
    a("s_cbranch_scc1 L_attn_young")
    grp_dma(0)
    qloads()
    a("s_branch L_attn_issued")
    a.label("L_attn_young")
    for grp in range(1, 4):
        grp_dma(grp)
    qloads()
    a.label("L_attn_issued")
    a(f"s_lshl_b32 s{sDM}, s{sW}, 12")
    a(f"s_add_u32 s{sDM}, s{sDM}, {STG}")
    a(f"s_add_u32 s{sGO}, s{sKV}, s{sDM}")
    stamp_mid(a, 4)
    a(f"s_cmp_eq_u32 s{sBR}, 0")
    a(f"s_cselect_b32 s{SRDW}, s24, s30")
    a(f"s_cselect_b32 s{SRDW + 1}, s25, s31")
    a(f"s_mov_b32 s{SRDW + 2}, 0x200000")
    a(f"s_mov_b32 s{SRDW + 3}, 0x00020000")
    srd(a, SRDO, 32, 33, 0x800000)
    a(f"s_lshr_b32 s{sPF}, s2, 3")
    a(f"s_lshl_b32 s{sPF}, s{sPF}, 3")
    a(f"s_add_u32 s{sPF}, s{sPF}, s{sW}")
    a(f"s_lshl_b32 s{sPF}, s{sPF}, 13")
    a(f"v_lshlrev_b32 v{vPF}, 7, v0")
    a(f"v_and_b32 v{T0}, 2, v0")
    a(f"v_bfe_u32 v{T1}, v0, 2, 1")
    a(f"v_or_b32 v{T2}, v{T0}, v{T1}")
    a(f"v_xor_b32 v{T1}, 1, v{T1}")
    a(f"v_or_b32 v{T3}, v{T0}, v{T1}")
    a(f"v_mov_b32 v{T0}, 0x3f803f80")
    a(f"v_cmp_eq_u32 vcc, 0, v{T2}")
    a("s_nop 1")
    a(f"v_cndmask_b32 v{ONES}, 0, v{T0}, vcc")
    a(f"v_cndmask_b32 v{ONES + 1}, 0, v{T0}, vcc")
    a(f"v_cmp_eq_u32 vcc, 0, v{T3}")
    a("s_nop 1")
    a(f"v_cndmask_b32 v{ONES + 2}, 0, v{T0}, vcc")
    a(f"v_cndmask_b32 v{ONES + 3}, 0, v{T0}, vcc")
    a(f"v_and_b32 v{T0}, 1, v0")
    a(f"v_mov_b32 v{T1}, 0x44444444")
    a(f"v_mov_b32 v{T2}, 0xeeeeeeee")
    a(f"v_cmp_eq_u32 vcc, 1, v{T0}")
    a("s_nop 1")
    a(f"v_cndmask_b32 v{IDX}, v{T1}, v{T2}, vcc")
    for q in range(2):
        for r in range(16):
            a(f"v_mov_b32 v{O[q] + r}, 0")
        for r in range(4):
            a(f"v_mov_b32 v{L[q] + r}, 0")
        for r in range(8):
            a(f"v_mov_b32 v{P[q] + r}, 0")
    for r in range(8):
        a(f"v_mov_b32 v{VF[1] + r}, 0")
    a(f"v_mov_b32 v{vK}, v{vL16}")
    a(f"v_add_u32 v{vKN}, {STG}, v{vL16}")
    a(f"s_cmp_lt_u32 s{sW}, 4")
    a(f"s_cselect_b32 s{sFIRST}, 1, 0")
    a("s_cbranch_scc0 L_attn_b0y")
    a("s_waitcnt vmcnt(4)")
    a("s_barrier")
    a("s_branch L_attn_b0")
    a.label("L_attn_b0y")
    a("s_barrier")
    for k_ in range(3):
        a(f"s_waitcnt vmcnt({8 - 2 * k_})")
        a("s_barrier")
    a.label("L_attn_b0")
    stamp_mid(a, 0)

    def kread(kt):
        reg, k = (vK, kt) if kt < TILES else (vKN, kt - TILES)
        return [f"ds_read_b128 {vr(KF[kt & 1] + 4 * c, 4)}, v{reg} offset:{4096 * k + 1024 * c}" for c in range(2)]

    def vread(kt):
        reg, k = (vK, kt) if kt < TILES else (vKN, kt - TILES)
        return [f"ds_read_b128 {vr(VF[kt & 1] + 4 * c, 4)}, v{reg} offset:{4096 * k + 2048 + 1024 * c}" for c in range(2)]

    for x in kread(0) + vread(0) + kread(1):
        a(x)
    a("s_waitcnt vmcnt(0)")
    stamp_mid(a, 5)
    dma()
    a("s_waitcnt lgkmcnt(4)")
    for q in range(2):
        a(f"{MF32} {vr(S[q], 16)}, {vr(KF[0], 4)}, {vr(Q[q], 4)}, 0")
        a(f"{MF32} {vr(S[q], 16)}, {vr(KF[0] + 4, 4)}, {vr(Q[q] + 4, 4)}, {vr(S[q], 16)}")
    a("s_nop 7")
    a("s_nop 7")
    for q in range(2):
        s = S[q]
        t = T0 + 2 * q
        a(f"v_max3_f32 v{t}, v{s}, v{s + 1}, v{s + 2}")
        for r in range(3, 15, 2):
            a(f"v_max3_f32 v{t}, v{s + r}, v{s + r + 1}, v{t}")
        a(f"v_max_f32 v{t}, v{s + 15}, v{t}")
        a(f"v_mov_b32 v{t + 1}, v{t}")
    a("s_nop 1")
    for q in range(2):
        t = T0 + 2 * q
        a(f"v_permlane32_swap_b32 v{t}, v{t + 1}")
    a("s_nop 1")
    for q in range(2):
        t = T0 + 2 * q
        a(f"v_max_f32 v{t}, v{t}, v{t + 1}")
        for r in range(16):
            a(f"v_sub_f32 v{NEG[q] + r}, 0, v{t}")
    a("s_nop 1")
    a(f"{MF32} {vr(S[0], 16)}, {vr(KF[0], 4)}, {vr(Q[0], 4)}, {vr(NEG[0], 16)}")
    a(f"{MF32} {vr(S[0], 16)}, {vr(KF[0] + 4, 4)}, {vr(Q[0] + 4, 4)}, {vr(S[0], 16)}")
    a(f"s_mov_b32 s{sST}, 0")
    a(f"s_mov_b32 s{sSL}, {STG}")
    a("s_nop 7")
    a("s_nop 3")

    def step(u):
        q, kt = u & 1, u >> 1
        qp = q ^ 1
        ktn = (u + 1) >> 1
        ktp = (u - 1) >> 1
        cur, nxt = S[q], S[qp]
        E = lambda i: f"v_exp_f32 v{cur + i}, v{cur + i}"
        C = lambda i: f"v_cvt_pk_bf16_f32 v{P[q] + i}, v{cur + 2 * i}, v{cur + 2 * i + 1}"
        QK0 = f"{MF32} {vr(nxt, 16)}, {vr(KF[ktn & 1], 4)}, {vr(Q[qp], 4)}, {vr(NEG[qp], 16)}"
        QK1 = f"{MF32} {vr(nxt, 16)}, {vr(KF[ktn & 1] + 4, 4)}, {vr(Q[qp] + 4, 4)}, {vr(nxt, 16)}"
        PV0 = f"{MF32} {vr(O[q], 16)}, {vr(VF[kt & 1], 4)}, {vr(P[q], 4)}, {vr(O[q], 16)}"
        PV1 = f"{MF32} {vr(O[qp], 16)}, {vr(VF[ktp & 1] + 4, 4)}, {vr(P[qp] + 4, 4)}, {vr(O[qp], 16)}"
        SP = f"v_smfmac_f32_16x16x64_bf16 {vr(L[qp], 4)}, {vr(ONES, 4)}, {vr(P[qp], 8)}, v{IDX}"
        rd = vread(kt + 1) if q == 0 else kread(kt + 2)
        d = dict(QK0=QK0, QK1=QK1, PV0=PV0, PV1=PV1, SP=SP, R0=rd[0], R1=rd[1],
                 Wq="s_waitcnt lgkmcnt(2)" if q == 1 else None, Wp="s_waitcnt lgkmcnt(4)" if q == 0 else None)
        if OPT["order"] == 1:
            d["Wq"] = "s_waitcnt lgkmcnt(0)" if q == 1 else None
            d["Wp"] = None
        for i in range(16):
            d[f"E{i}"] = E(i)
        for i in range(8):
            d[f"C{i}"] = C(i)
        o = "E0 E1 PV1 Wq E2 E3 E4 QK0 E5 E6 E7 QK1 R0 C0 E8 C1 E9 SP R1 C2 E10 C3 E11 E12 Wp PV0 E13 C4 E14 C5 E15 C6 C7"
        seq = [d[t] for t in o.split() if d[t]]
        return seq

    def isz(x):
        return 4 if (x.startswith("v_exp_f32 ") or x.startswith("s_waitcnt") or x.startswith("s_nop")) else 8

    def fix_align(seq):
        if OPT["nowait"]:
            seq = [x for x in seq if not x.startswith("s_waitcnt")]
        if OPT["nods"]:
            seq = [x for x in seq if not x.startswith("s_waitcnt") and not x.startswith("ds_read")]
        if OPT["align"] == 1:
            seq = [x.replace("v_exp_f32 ", "v_exp_f32_e64 ") for x in seq]
            out = []
            for x in seq:
                out.append(x)
                if x.startswith("s_waitcnt"):
                    out.append("s_nop 0")
            return out
        if OPT["align"] == 2:
            out, run = [], []
            def flush():
                if len(run) & 1:
                    k = [i for i, y in enumerate(run) if y.startswith("v_exp_f32 ")]
                    run[k[-1]] = run[k[-1]].replace("v_exp_f32 ", "v_exp_f32_e64 ")
                out.extend(run)
                run.clear()
            for x in seq:
                if isz(x) == 4:
                    run.append(x)
                else:
                    flush()
                    out.append(x)
            flush()
            return out
        return seq

    if OPT.get("lstamp"):
        stamp_mid(a, 2)
    a.raw(".p2align 3")
    a.label("L_attn_loop")
    a(f"s_cmp_lg_u32 s{sFIRST}, 0")
    for u in range(2 * TILES):
        if u in (1, 5, 9):
            a(f"s_cbranch_scc1 L_attn_first{u}")
            a.label(f"L_attn_back{u}")
        if u == 2 * (TILES - 2) + 1:
            a("s_waitcnt vmcnt(0)")
            a("s_barrier")
            a(f"s_cmp_ge_u32 s{sST}, {NSTG - 2}")
            a("s_cbranch_scc1 L_attn_nodma")
            dma()
            if OPT["wopf"]:
                a("s_branch L_attn_nopf")
            a.label("L_attn_nodma")
            if OPT["wopf"]:
                a(f"s_cmp_eq_u32 s{sST}, {NSTG - 2}")
                a("s_cbranch_scc0 L_attn_nopf")
                a(f"buffer_load_dword v{vPFD}, v{vPF}, {sr(SRDW, 4)}, s{sPF} offen")
                if OPT["tlb"]:
                    a(f"v_lshlrev_b32 v{T0}, 14, v{vPF}")
                    a(f"buffer_load_dword v{vPFD}, v{T0}, {sr(SRDO, 4)}, 0 offen")
                a.label("L_attn_nopf")
        if OPT["prio"] and (u - (2 * TILES - 3)) % 4 == 0:
            a(f"s_setprio {3 - ((u - (2 * TILES - 3)) % (2 * TILES)) // 4}")
        for x in fix_align(step(u)):
            a(x)
    a(f"s_mov_b32 s{sFIRST}, 0")
    a(f"v_mov_b32 v{vK}, v{vKN}")
    a(f"s_add_u32 s{sSL}, s{sSL}, {STG}")
    a(f"s_cmp_ge_u32 s{sSL}, {NSLOT * STG}")
    a(f"s_cselect_b32 s{sSL}, 0, s{sSL}")
    a(f"v_add_u32 v{vKN}, s{sSL}, v{vL16}")
    if OPT.get("lstamp") and STAMP:
        for k_, n_ in ((0, 3), (1, 4), (6, 5)):
            a(f"s_cmp_lg_u32 s{sST}, {k_}")
            a(f"s_cbranch_scc1 L_attn_ls{k_}")
            stamp_mid(a, n_)
            a.label(f"L_attn_ls{k_}")
    a(f"s_add_u32 s{sST}, s{sST}, 1")
    a(f"s_cmp_lt_u32 s{sST}, {NSTG}")
    a("s_cbranch_scc1 L_attn_loop")
    stamp_mid(a, 1)
    a("s_nop 1")
    a(f"{MF32} {vr(O[1], 16)}, {vr(VF[1] + 4, 4)}, {vr(P[1] + 4, 4)}, {vr(O[1], 16)}")
    a(f"v_smfmac_f32_16x16x64_bf16 {vr(L[1], 4)}, {vr(ONES, 4)}, {vr(P[1], 8)}, v{IDX}")
    a("s_waitcnt lgkmcnt(0)")
    a("s_nop 7")
    a("s_nop 7")
    a(f"v_mov_b32 v{T2}, 0")
    for q in range(2):
        a(f"v_add_f32 v{L[q]}, v{L[q]}, v{L[q] + 1}")
        for r in range(16):
            a(f"v_fmac_f32 v{T2}, 0, v{O[q] + r}")
    a(f"v_max_f32 v{T3}, v{L[0]}, v{L[1]}")
    a(f"v_fmac_f32 v{T2}, 0, v{L[0]}")
    a(f"v_fmac_f32 v{T2}, 0, v{L[1]}")
    a(f"v_add_f32 v{T3}, v{T3}, v{T2}")
    a(f"v_mov_b32 v{T2}, {f32bits(2.0 ** 40):#x}")
    a(f"v_cmp_nle_f32 vcc, v{T3}, v{T2}")
    a("s_nop 4")
    a("s_cbranch_vccnz L_attn_slow")

    def finish(q, lreg):
        a(f"v_rcp_f32 v{T0}, v{lreg}")
        a("s_nop 0")
        for r in range(16):
            a(f"v_mul_f32 v{O[q] + r}, v{O[q] + r}, v{T0}")
        for r in range(8):
            a(f"v_cvt_pk_bf16_f32 v{P[q] + r}, v{O[q] + 2 * r}, v{O[q] + 2 * r + 1}")
        a(f"s_add_u32 s{t0}, s{sOB}, {65536 * q}")
        for c in range(2):
            a(f"buffer_store_dwordx4 {vr(P[q] + 4 * c, 4)}, v{vL16}, {sr(SRD, 4)}, s{t0} offen offset:{1024 * c}{OPT['st2']}")

    for q in range(2):
        finish(q, L[q])
    stamp_end(a, 1, sW)
    a("s_endpgm")

    for k_, u in enumerate((1, 5, 9)):
        a.label(f"L_attn_first{u}")
        a("s_barrier")
        a(f"s_branch L_attn_back{u}")

    a.label("L_attn_slow")
    M, LS, AL = 88, 89, 90
    for q in range(2):
        s = S[0]
        a(f"v_mov_b32 v{M}, 0xff7fffff")
        a(f"v_mov_b32 v{LS}, 0")
        for r in range(16):
            a(f"v_mov_b32 v{O[q] + r}, 0")
        a(f"s_mov_b32 s{sGO}, s{sKV}")
        a(f"s_mov_b32 s{sST}, 0")
        a.label(f"L_attn_slow_{q}")
        for c in range(2):
            a(f"buffer_load_dwordx4 {vr(KF[0] + 4 * c, 4)}, v{vL16}, {sr(SRD, 4)}, s{sGO} offen offset:{1024 * c}")
        for c in range(2):
            a(f"buffer_load_dwordx4 {vr(VF[0] + 4 * c, 4)}, v{vL16}, {sr(SRD, 4)}, s{sGO} offen offset:{2048 + 1024 * c}")
        a("s_waitcnt vmcnt(0)")
        a(f"{MF32} {vr(s, 16)}, {vr(KF[0], 4)}, {vr(Q[q], 4)}, 0")
        a(f"{MF32} {vr(s, 16)}, {vr(KF[0] + 4, 4)}, {vr(Q[q] + 4, 4)}, {vr(s, 16)}")
        a("s_nop 7")
        a("s_nop 7")
        a(f"v_max3_f32 v{T0}, v{s}, v{s + 1}, v{M}")
        for r in range(2, 16, 2):
            a(f"v_max3_f32 v{T0}, v{s + r}, v{s + r + 1}, v{T0}")
        a(f"v_mov_b32 v{T1}, v{T0}")
        a("s_nop 1")
        a(f"v_permlane32_swap_b32 v{T0}, v{T1}")
        a("s_nop 1")
        a(f"v_max_f32 v{T0}, v{T0}, v{T1}")
        a(f"v_sub_f32 v{AL}, v{M}, v{T0}")
        a(f"v_exp_f32 v{AL}, v{AL}")
        a(f"v_mov_b32 v{M}, v{T0}")
        for r in range(16):
            a(f"v_sub_f32 v{s + r}, v{s + r}, v{T0}")
        for r in range(16):
            a(f"v_exp_f32 v{s + r}, v{s + r}")
        a(f"v_mul_f32 v{LS}, v{LS}, v{AL}")
        for r in range(16):
            a(f"v_mul_f32 v{O[q] + r}, v{O[q] + r}, v{AL}")
        for r in range(16):
            a(f"v_add_f32 v{LS}, v{LS}, v{s + r}")
        for r in range(8):
            a(f"v_cvt_pk_bf16_f32 v{P[0] + r}, v{s + 2 * r}, v{s + 2 * r + 1}")
        a("s_nop 1")
        a(f"{MF32} {vr(O[q], 16)}, {vr(VF[0], 4)}, {vr(P[0], 4)}, {vr(O[q], 16)}")
        a(f"{MF32} {vr(O[q], 16)}, {vr(VF[0] + 4, 4)}, {vr(P[0] + 4, 4)}, {vr(O[q], 16)}")
        a("s_nop 7")
        a("s_nop 7")
        a(f"s_add_u32 s{sGO}, s{sGO}, 4096")
        a(f"s_add_u32 s{sST}, s{sST}, 1")
        a(f"s_cmp_lt_u32 s{sST}, 64")
        a(f"s_cbranch_scc1 L_attn_slow_{q}")
        a(f"v_mov_b32 v{T1}, v{LS}")
        a("s_nop 1")
        a(f"v_permlane32_swap_b32 v{LS}, v{T1}")
        a("s_nop 1")
        a(f"v_add_f32 v{LS}, v{LS}, v{T1}")
        finish(q, LS)
        a("s_waitcnt vmcnt(0)")
    a.label("L_attn_end")
    a("s_endpgm")
    return a.text(), kernel_desc(name, NV), lds


HEADER = """; Fused MQA (branch A) + MHA (branch B) attention block, three launches:
;   proj_kernel : Q/K/V projections -> MFMA-fragment-ordered tiles in d_ws
;   attn_kernel : softmax(Q K^T) V per (branch, head, 512 rows)
;   outp_kernel : output projections -> d_out
"""


def main(path, which=("proj", "attn", "outp")):
    pt, pd, pl = gen_proj()
    at, ad, al = gen_attn()
    ot, od, ol = gen_outp()
    s = HEADER
    if "proj" in which:
        s += f"; @launch kernel=proj_kernel grid=(256,1,1) block=(512,1,1) lds={pl}\n"
    if "attn" in which:
        s += f"; @launch kernel=attn_kernel grid=(256,1,1) block=(512,1,1) lds={al}\n"
    if "outp" in which:
        s += f"; @launch kernel=outp_kernel grid=(256,1,1) block=(512,1,1) lds={ol}\n"
    s += '.amdgcn_target "amdgcn-amd-amdhsa--gfx950"\n'
    s += pt + at + ot + pd + ad + od
    open(path, "w").write(s)


if __name__ == "__main__":
    if "--stamp" in sys.argv:
        STAMP = True
        sys.argv.remove("--stamp")
    for x in list(sys.argv):
        if "=" in x:
            k_, v_ = x.split("=")
            OPT[k_] = int(v_) if v_.lstrip("-").isdigit() else (v_ if "," in v_ else (" " + v_.replace("+", " ")).rstrip() if v_ != "none" else "")
            sys.argv.remove(x)
    main(sys.argv[1] if len(sys.argv) > 1 else f"cdna_kernels/{NAME}.s")
```

```python
import sys, math, struct

NAME = "concat_heads__grouped_kv_mqa__softmax_full_mha__prompt"

WS_QA = 0x0000000
WS_QB = 0x0400000
WS_KVA = 0x0800000
WS_KVB = 0x1000000
WS_OA = 0x2000000
WS_OB = 0x2400000
WS_SIZE = 268435456

QSCALE = (32 ** -0.5) * math.log2(math.e)


def f32bits(x):
    return struct.unpack("<I", struct.pack("<f", x))[0]


class A:
    def __init__(self):
        self.l = []

    def __call__(self, s):
        self.l.append("    " + s)

    def label(self, s):
        self.l.append(s + ":")

    def raw(self, s):
        self.l.append(s)

    def text(self):
        return "\n".join(self.l) + "\n"


def vr(b, n):
    return f"v[{b}:{b + n - 1}]"


def sr(b, n):
    return f"s[{b}:{b + n - 1}]"


def srd(a, d, lo, hi, size):
    a(f"s_mov_b32 s{d}, s{lo}")
    a(f"s_mov_b32 s{d+1}, s{hi}")
    a(f"s_mov_b32 s{d+2}, {size:#x}")
    a(f"s_mov_b32 s{d+3}, 0x00020000")


def csel(a, d, x, y):
    a(f"s_mov_b32 s{d}, {y}")
    a(f"s_cmov_b32 s{d}, {x}")


def scramble(a):
    if OPT["scramble"]:
        a("s_and_b32 s3, s2, 31")
        a("s_lshl_b32 s3, s3, 3")
        a("s_lshr_b32 s2, s2, 5")
        a("s_or_b32 s2, s2, s3")


def kernel_head(a, name):
    a.raw(".text")
    a.raw(f".globl {name}")
    a.raw(".p2align 8")
    a.raw(f".type {name},@function")
    a.label(name)


def kernel_desc(name, nvgpr, nsgpr=102):
    acc = (nvgpr + 3) // 4 * 4
    return f""".section .rodata,"a"
.p2align 6
.amdhsa_kernel {name}
  .amdhsa_next_free_vgpr {nvgpr}
  .amdhsa_next_free_sgpr {nsgpr}
  .amdhsa_accum_offset {acc}
  .amdhsa_group_segment_fixed_size 0
  .amdhsa_kernarg_size 88
  .amdhsa_user_sgpr_count 2
  .amdhsa_user_sgpr_kernarg_segment_ptr 1
  .amdhsa_system_sgpr_workgroup_id_x 1
.end_amdhsa_kernel
"""


STAMP = False
OPT = dict(pf=1, pre=6, st1=" sc0 sc1", st2="", ld1=" nt", ld3="", pf0=0, pfd=2, scramble=0, tlb=1, pfb=" nt", k2start=1, wopf=1, remap=1, align=0, nowait=0, prio=1, order=0, nods=0)
WS_STAMP = 0x8000000


def stamp_begin(a):
    if STAMP:
        a("s_memtime s[82:83]")
        a("s_memrealtime s[84:85]")
        for n in range(6):
            a(f"s_mov_b32 s{90 + 2 * n}, 0")


def stamp_mid(a, n):
    if STAMP:
        a(f"s_memtime s[{90 + 2 * n}:{91 + 2 * n}]")


def stamp_end(a, kidx, wave_sgpr):
    if not STAMP:
        return
    a("s_waitcnt vmcnt(0)")
    a("s_memtime s[86:87]")
    a("s_memrealtime s[88:89]")
    a("s_waitcnt lgkmcnt(0)")
    srd(a, 4, S_WS, S_WS + 1, WS_SIZE)
    a(f"s_lshl_b32 s8, s2, 3")
    a(f"s_add_u32 s8, s8, s{wave_sgpr}")
    a(f"s_lshl_b32 s8, s8, 6")
    a(f"s_add_u32 s8, s8, {WS_STAMP + kidx * 0x20000:#x}")
    for i, r in enumerate((82, 84, 86, 88, 90, 92, 94, 96, 98, 100, 100, 100)):
        a(f"v_mov_b32 v{4 + i}, s{r}")
    a("v_mov_b32 v1, 0")
    a("s_mov_b64 exec, 1")
    for i in range(3):
        a(f"buffer_store_dwordx4 v[{4 + 4 * i}:{7 + 4 * i}], v1, s[4:7], s8 offen offset:{16 * i}")


MF32 = "v_mfma_f32_32x32x16_bf16"
MF16 = "v_mfma_f32_16x16x32_bf16"

S_IN = 16
S_OUT = 32
S_WS = 34
SRD_X = 36
SRD_W = 40
SRD_O = 44
SRD_WK = 48
SRD_WV = 52
sWAVE = 56
sT0, sT1, sT2, sT3 = 57, 58, 59, 60
sXOFF, sWOFF, sW16, sWSTG, sSLOT, sCNT, sDELTA = 61, 62, 63, 64, 65, 66, 67
sOBASE, sOJ, sOI, sSCALE = 68, 69, 70, 72
sSEC, sM0, sCOL0, sWSTR, sNT, sEXO, sEXS = 74, 75, 76, 77, 78, 79, 80
sRSLOT = 81
SRD_PF = 4
sPFO, sPFS, sPFN = 8, 9, 10


class G:
    def __init__(self, kind):
        self.kind = kind
        if kind == "proj":
            self.NI, self.NJ = 4, 2
            self.XB = 32768
            self.NSLOT = 3
        else:
            self.NI, self.NJ = 2, 2
            self.XB = 16384
            self.NSLOT = 4
        self.SLOT = self.XB + 16384
        self.XP = self.XB // 1024 // 4
        self.WP = 4
        self.NST = 16
        self.EXB = self.NSLOT * self.SLOT
        self.lds = self.NSLOT * self.SLOT + (16384 if kind == "proj" else 0)
        self.ACC = 128 if kind == "proj" else 64
        self.nacc = self.NI * self.NJ * 16
        fsz = self.NI * 4 + self.NJ * 4
        self.F = [16, 16 + fsz]
        self.fsz = fsz
        self.vXA = 4
        self.vWA = 8
        self.vEXX = 10
        self.vEXW = 12
        self.vLANE16 = 13
        self.EXF = 16 + 2 * fsz
        self.EXACC = self.EXF + 12
        self.TMP = self.EXACC + 8
        self.nvgpr = self.ACC + self.nacc

    def fx(self, b, i):
        return self.F[b] + 4 * i

    def fw(self, b, j):
        return self.F[b] + self.NI * 4 + 4 * j

    def acc(self, i, j):
        return self.ACC + (i * self.NJ + j) * 16


def gemm_reads(g, t, buf):
    r = []
    wr = []
    for j in range(g.NJ):
        for u in range(2):
            off = 4096 * t + (1024 if g.kind == "proj" else 2048) * u
            wr.append(f"ds_read_b64_tr_b16 {vr(g.fw(buf, j) + 2 * u, 2)}, v{g.vWA + j} offset:{off}")
    xr = []
    for i in range(g.NI):
        if g.kind == "proj":
            xr.append(f"ds_read_b128 {vr(g.fx(buf, i), 4)}, v{g.vXA + t} offset:{4096 * i}")
        else:
            xr.append(f"ds_read_b128 {vr(g.fx(buf, i), 4)}, v{g.vXA} offset:{4096 * i + 1024 * t}")
    r = [xr[0]] + wr + xr[1:]
    return r


def gemm_extra_reads(g, e):
    r = []
    for u in range(2):
        r.append(f"ds_read_b64_tr_b16 {vr(g.EXF + 2 * u, 2)}, v{g.vEXW} offset:{2048 * e + 256 * u}")
    for th in range(2):
        r.append(f"ds_read_b128 {vr(g.EXF + 4 + 4 * th, 4)}, v{g.vEXX + e} offset:{2048 * th}")
    return r


def gemm_step(a, g, t, swap, reads, pre=(), extra_mfma=(), post_valu=()):
    buf = t & 1
    for p in pre:
        a(p)
    mf = []
    for i in range(g.NI):
        for j in range(g.NJ):
            x, w = vr(g.fx(buf, i), 4), vr(g.fw(buf, j), 4)
            c = vr(g.acc(i, j), 16)
            if swap:
                mf.append(f"{MF32} {c}, {x}, {w}, {c}")
            else:
                mf.append(f"{MF32} {c}, {w}, {x}, {c}")
    mf = mf + list(extra_mfma)
    reads = list(reads)
    post_valu = list(post_valu)
    per = 2
    for k, m in enumerate(mf):
        a(m)
        for _ in range(per):
            if reads:
                a(reads.pop(0))
        if not reads and post_valu:
            a(post_valu.pop(0))
            if post_valu:
                a(post_valu.pop(0))
    for x in reads + post_valu:
        a(x)


def gemm_compute(a, g, tag, swap, extras):
    exm = []
    if extras:
        pass

    def ex_mfma():
        w = vr(g.EXF, 4)
        out = []
        for th in range(2):
            x = vr(g.EXF + 4 + 4 * th, 4)
            c = vr(g.EXACC + 4 * th, 4)
            if extras == "V":
                out.append(f"{MF16} {c}, {x}, {w}, {c}")
            else:
                out.append(f"{MF16} {c}, {w}, {x}, {c}")
        return out

    def adv(reg):
        return f"v_add_u32 v{reg}, s{sDELTA}, v{reg}"

    def stage(last):
        for t in range(4):
            pre = ["s_waitcnt lgkmcnt(0)"]
            reads, post, em = [], [], []
            if t < 3:
                reads = gemm_reads(g, t + 1, (t + 1) & 1)
                if extras and t == 1:
                    reads += gemm_extra_reads(g, 1)
                if not last:
                    if g.kind == "proj":
                        post.append(adv(g.vXA + t + 1))
                    if t == 2:
                        post += [adv(g.vWA), adv(g.vWA + 1)]
                        if g.kind == "proj":
                            post.append(adv(g.vXA))
                        else:
                            post.append(adv(g.vXA))
                        if extras:
                            post += [adv(g.vEXX), adv(g.vEXX + 1),
                                     f"v_xor_b32 v{g.vEXW}, 0x2000, v{g.vEXW}"]
            elif not last:
                pre.append("s_barrier")
                reads = gemm_reads(g, 0, 0)
                if extras:
                    reads += gemm_extra_reads(g, 0)
            if extras and t in (0, 2):
                em = ex_mfma()
            gemm_step(a, g, t, swap, reads, pre, em, post)

    stamp_mid(a, 4)
    a("s_barrier")
    stamp_mid(a, 0)
    for x in gemm_reads(g, 0, 0):
        a(x)
    if extras:
        for x in gemm_extra_reads(g, 0):
            a(x)
    a(f"s_mov_b32 s{sCNT}, 0")
    a(f"s_mov_b32 s{sRSLOT}, 0")
    a.raw(".p2align 3")
    a.label(f"L_{tag}_loop")
    a(f"s_add_u32 s{sRSLOT}, s{sRSLOT}, 1")
    a(f"s_cmp_eq_u32 s{sRSLOT}, {g.NSLOT}")
    csel(a, sDELTA, f"{-(g.NSLOT - 1) * g.SLOT & 0xffffffff:#x}", g.SLOT)
    a(f"s_cselect_b32 s{sRSLOT}, 0, s{sRSLOT}")
    stage(False)
    a(f"s_add_u32 s{sCNT}, s{sCNT}, 1")
    a(f"s_cmp_lt_u32 s{sCNT}, {g.NST - 1}")
    a(f"s_cbranch_scc1 L_{tag}_loop")
    stage(True)
    stamp_mid(a, 1)


def gemm_loader(a, g, tag):
    proj = g.kind == "proj"
    per = g.XP + g.WP
    LA = g.NSLOT
    lb = OPT["ld1"] if proj else OPT["ld3"]
    pf = proj and OPT["pf"]

    def prefetch():
        a(f"buffer_load_dword v9, v8, {sr(SRD_PF, 4)}, s{sPFO} offen{OPT['pfb']}")
        a(f"s_add_u32 s{sPFO}, s{sPFO}, s{sPFS}")

    def prefetch_if(hi_waves, lbl):
        a(f"s_cmp_ge_u32 s{sWAVE}, 6")
        a(f"s_cbranch_scc{0 if hi_waves else 1} {lbl}")
        prefetch()
        a.label(lbl)

    def issue(lo=0, hi=None):
        hi = per if hi is None else hi
        for n in range(lo, hi):
            if n < g.XP:
                a(f"s_add_u32 m0, s{sSLOT}, {n * 4096}")
                a(f"s_add_u32 s{sT0}, s{sXOFF}, {n * 65536}")
                a(f"buffer_load_dwordx4 v4, {sr(SRD_X, 4)}, s{sT0} offen{lb} lds")
            else:
                i = n - g.XP
                a(f"s_add_u32 m0, s{sSLOT}, {g.XB + i * 4096}")
                if i:
                    a(f"s_add_u32 s{sT2}, s{sT2}, s{sW16}")
                else:
                    a(f"s_mov_b32 s{sT2}, s{sWOFF}")
                a(f"buffer_load_dwordx4 v5, {sr(SRD_W, 4)}, s{sT2} offen{lb} lds")
        if hi == per:
            a(f"s_add_u32 s{sXOFF}, s{sXOFF}, {128 if proj else 4096}")
            a(f"s_add_u32 s{sWOFF}, s{sWOFF}, s{sWSTG}")
            a(f"s_add_u32 s{sSLOT}, s{sSLOT}, {g.SLOT}")
            a(f"s_cmp_ge_u32 s{sSLOT}, {g.NSLOT * g.SLOT}")
            a(f"s_cselect_b32 s{sT1}, {g.NSLOT * g.SLOT}, 0")
            a(f"s_sub_u32 s{sSLOT}, s{sSLOT}, s{sT1}")

    def issue_extra():
        a(f"s_mov_b32 m0, s{sEXS}")
        a("s_nop 0")
        a(f"buffer_load_dwordx4 v6, {sr(SRD_WK, 4)}, s{sEXO} offen lds")
        a(f"s_add_u32 m0, s{sEXS}, 4096")
        a("s_nop 0")
        a(f"buffer_load_dwordx4 v6, {sr(SRD_WV, 4)}, s{sEXO} offen lds")
        a(f"s_add_u32 s{sEXO}, s{sEXO}, 4096")
        a(f"s_xor_b32 s{sEXS}, s{sEXS}, 0x2000")

    def maybe_extra(lbl):
        if proj:
            a(f"s_cmp_lg_u32 s{sSEC}, 0")
            a(f"s_cbranch_scc1 {lbl}")
            issue_extra()
            a.label(lbl)

    stamp_mid(a, 3)
    if pf:
        prefetch_if(False, f"L_{tag}_p0")
        a(f"s_cmp_lg_u32 s{sSEC}, 0")
        a(f"s_cbranch_scc1 L_{tag}_p0x")
        a(f"s_lshr_b32 s{sT0}, s2, 3")
        a(f"s_lshl_b32 s{sT0}, s{sT0}, 11")
        a("v_and_b32 v10, 15, v0")
        a("v_lshlrev_b32 v10, 7, v10")
        a(f"s_cmp_eq_u32 s{sWAVE}, 6")
        a(f"s_cbranch_scc0 L_{tag}_p0y")
        a(f"buffer_load_dword v9, v10, {sr(SRD_WK, 4)}, s{sT0} offen{OPT['pfb']}")
        a.label(f"L_{tag}_p0y")
        a(f"s_cmp_eq_u32 s{sWAVE}, 7")
        a(f"s_cbranch_scc0 L_{tag}_p0x")
        a(f"buffer_load_dword v9, v10, {sr(SRD_WV, 4)}, s{sT0} offen{OPT['pfb']}")
        a.label(f"L_{tag}_p0x")
    maybe_extra(f"L_{tag}_x0")
    issue()
    maybe_extra(f"L_{tag}_x1")
    if pf:
        prefetch_if(True, f"L_{tag}_p1")
    pre = min(OPT["pre"], per)
    issue(0, pre)
    stamp_mid(a, 4)
    if pf:
        a(f"s_cmp_ge_u32 s{sWAVE}, 6")
        a(f"s_cbranch_scc0 L_{tag}_w0")
        a(f"s_waitcnt vmcnt({pre + 1})")
        a(f"s_branch L_{tag}_w1")
        a.label(f"L_{tag}_w0")
    a(f"s_waitcnt vmcnt({pre})")
    if pf:
        a.label(f"L_{tag}_w1")
    stamp_mid(a, 5)
    a("s_barrier")
    stamp_mid(a, 0)
    if pre < per:
        issue(pre, per)
    if pf:
        prefetch_if(False, f"L_{tag}_p2")
        a(f"s_cmp_ge_u32 s{sWAVE}, 6")
        a(f"s_cselect_b32 s{sPFN}, {OPT['pf0']}, {OPT['pf0'] + OPT['pfd']}")
    for _ in range(LA - 2):
        issue()
    a(f"s_mov_b32 s{sCNT}, 0")
    a.label(f"L_{tag}_lloop")
    a(f"s_waitcnt vmcnt({(LA - 2) * per})")
    a("s_barrier")
    if OPT.get("lstamp") and STAMP:
        for k_, n_ in ((1, 2), (4, 3), (8, 4), (11, 5)):
            a(f"s_cmp_lg_u32 s{sCNT}, {k_}")
            a(f"s_cbranch_scc1 L_{tag}_ls{k_}")
            stamp_mid(a, n_)
            a.label(f"L_{tag}_ls{k_}")
    maybe_extra(f"L_{tag}_x2")
    issue()
    if pf:
        a(f"s_cmp_eq_u32 s{sCNT}, s{sPFN}")
        a(f"s_cbranch_scc0 L_{tag}_nopf")
        prefetch()
        a(f"s_add_u32 s{sPFN}, s{sPFN}, {2 * OPT['pfd']}")
        a(f"s_cmp_gt_u32 s{sPFN}, {OPT['pf0'] + 4 * OPT['pfd']}")
        a(f"s_cselect_b32 s{sPFN}, 64, s{sPFN}")
        a.label(f"L_{tag}_nopf")
    if proj and OPT["tlb"]:
        a(f"s_cmp_eq_u32 s{sCNT}, 3")
        a(f"s_cbranch_scc0 L_{tag}_notlb")
        a(f"s_cmp_eq_u32 s{sWAVE}, 4")
        a(f"s_cbranch_scc0 L_{tag}_notlb")
        a(f"s_lshr_b32 s{sT0}, s2, 3")
        a(f"s_lshl_b32 s{sT0}, s{sT0}, 21")
        a("v_mov_b32 v10, 0")
        a(f"buffer_load_dword v9, v10, {sr(SRD_O, 4)}, s{sT0} offen")
        a.label(f"L_{tag}_notlb")
    a(f"s_add_u32 s{sCNT}, s{sCNT}, 1")
    a(f"s_cmp_lt_u32 s{sCNT}, {g.NST - LA}")
    a(f"s_cbranch_scc1 L_{tag}_lloop")
    for s in range(g.NST - LA, g.NST - 1):
        left = (g.NST - 1) - (s + 1)
        a(f"s_waitcnt vmcnt({left * per})")
        a("s_barrier")
        if proj and s + 2 <= g.NST - 1:
            maybe_extra(f"L_{tag}_x3_{s}")
            if s + 1 < g.NST - 1:
                pass
    stamp_mid(a, 1)
    stamp_end(a, 0 if proj else 2, sWAVE)
    a("s_endpgm")


def gen_proj():
    g = G("proj")
    a = A()
    name = "proj_kernel"
    kernel_head(a, name)
    a("s_cmp_ge_u32 s2, 256")
    a("s_cbranch_scc1 L_proj_end")
    stamp_begin(a)
    scramble(a)
    a(f"s_load_dwordx16 {sr(S_IN, 16)}, s[0:1], 0")
    a(f"s_load_dwordx2 {sr(S_WS, 2)}, s[0:1], 80")
    a("v_lshrrev_b32 v1, 6, v0")
    a("v_and_b32 v0, 63, v0")
    a(f"v_readfirstlane_b32 s{sWAVE}, v1")
    a(f"s_and_b32 s{sT0}, s2, 7")
    a(f"s_lshr_b32 s{sT1}, s2, 3")
    a(f"s_lshr_b32 s{sSEC}, s{sT0}, 1")
    a(f"s_and_b32 s{sT0}, s{sT0}, 1")
    a(f"s_lshl_b32 s{sM0}, s{sT0}, 10")
    a(f"s_and_b32 s{sT2}, s{sT1}, 3")
    a(f"s_lshl_b32 s{sT2}, s{sT2}, 8")
    a(f"s_add_u32 s{sM0}, s{sM0}, s{sT2}")
    a(f"s_lshr_b32 s{sNT}, s{sT1}, 2")
    a(f"s_sub_u32 s{sT2}, s{sSEC}, 1")
    a(f"s_max_i32 s{sT2}, s{sT2}, 0")
    a(f"s_lshl_b32 s{sCOL0}, s{sT2}, 10")
    a(f"s_lshl_b32 s{sT2}, s{sNT}, 7")
    a(f"s_add_u32 s{sCOL0}, s{sCOL0}, s{sT2}")
    a(f"s_cmp_eq_u32 s{sSEC}, 0")
    csel(a, sWSTR, 2048, 6144)
    a("s_waitcnt lgkmcnt(0)")
    stamp_mid(a, 2)
    a(f"s_cmp_eq_u32 s{sSEC}, 0")
    a(f"s_cselect_b32 s{SRD_X}, s16, s26")
    a(f"s_cselect_b32 s{SRD_X+1}, s17, s27")
    a(f"s_mov_b32 s{SRD_X+2}, 0x400000")
    a(f"s_mov_b32 s{SRD_X+3}, 0x00020000")
    a(f"s_cselect_b32 s{SRD_W}, s18, s28")
    a(f"s_cselect_b32 s{SRD_W+1}, s19, s29")
    csel(a, SRD_W + 2, 0x200000, 0x600000)
    a(f"s_mov_b32 s{SRD_W+3}, 0x00020000")
    srd(a, SRD_O, S_WS, S_WS + 1, WS_SIZE)
    srd(a, SRD_WK, 20, 21, 0x10000)
    srd(a, SRD_WV, 22, 23, 0x10000)
    a(f"s_cmp_ge_u32 s{sWAVE}, 4")
    a("s_cbranch_scc1 L_proj_loader")

    a(f"s_lshr_b32 s{sT0}, s{sWAVE}, 1")
    a(f"s_and_b32 s{sT1}, s{sWAVE}, 1")
    a("v_and_b32 v1, 31, v0")
    a("v_lshlrev_b32 v1, 7, v1")
    a(f"s_lshl_b32 s{sT2}, s{sT0}, 14")
    a(f"v_add_u32 v1, s{sT2}, v1")
    a("v_bfe_u32 v2, v0, 1, 3")
    a("v_lshrrev_b32 v3, 5, v0")
    for t in range(4):
        a(f"v_add_u32 v14, {2 * t}, v3")
        a("v_xor_b32 v14, v14, v2")
        a(f"v_lshl_add_u32 v{g.vXA + t}, v14, 4, v1")
    a("v_bfe_u32 v2, v0, 2, 2")
    a("v_lshl_add_u32 v1, v3, 3, v2")
    a("v_lshlrev_b32 v1, 8, v1")
    a("v_bfe_u32 v14, v0, 4, 1")
    a("v_lshl_add_u32 v1, v14, 5, v1")
    a("v_and_b32 v14, 3, v0")
    a("v_lshl_add_u32 v1, v14, 3, v1")
    a(f"v_add_u32 v1, {g.XB}, v1")
    a(f"s_lshl_b32 s{sT2}, s{sT1}, 1")
    for j in range(2):
        a(f"s_add_u32 s{sT3}, s{sT2}, {j}")
        a(f"v_xor_b32 v14, s{sT3}, v2")
        a(f"v_lshl_add_u32 v{g.vWA + j}, v14, 6, v1")
    a(f"v_lshlrev_b32 v{g.vLANE16}, 4, v0")
    a("v_and_b32 v1, 15, v0")
    a("v_lshlrev_b32 v1, 7, v1")
    a(f"s_lshl_b32 s{sT2}, s{sNT}, 12")
    a(f"v_add_u32 v1, s{sT2}, v1")
    a("v_bfe_u32 v2, v0, 1, 3")
    a("v_lshrrev_b32 v3, 4, v0")
    for e in range(2):
        a(f"v_add_u32 v14, {4 * e}, v3")
        a("v_xor_b32 v14, v14, v2")
        a(f"v_lshl_add_u32 v{g.vEXX + e}, v14, 4, v1")
    a("v_bfe_u32 v2, v0, 2, 2")
    a("v_lshl_add_u32 v1, v3, 3, v2")
    a("v_lshlrev_b32 v1, 6, v1")
    a("v_and_b32 v14, 3, v0")
    a("v_lshl_add_u32 v1, v14, 3, v1")
    a(f"s_lshl_b32 s{sT2}, s{sT0}, 12")
    a(f"s_lshl_b32 s{sT3}, s{sT1}, 5")
    a(f"s_add_u32 s{sT2}, s{sT2}, s{sT3}")
    a(f"s_add_u32 s{sT2}, s{sT2}, {g.EXB}")
    a(f"v_add_u32 v{g.vEXW}, s{sT2}, v1")
    a(f"s_lshl_b32 s{sT2}, s{sNT}, 2")
    a(f"s_lshl_b32 s{sT3}, s{sT1}, 1")
    a(f"s_add_u32 s{sT2}, s{sT2}, s{sT3}")
    a(f"s_lshr_b32 s{sT3}, s{sM0}, 5")
    a(f"s_lshl_b32 s{sOBASE}, s{sT0}, 2")
    a(f"s_add_u32 s{sT3}, s{sT3}, s{sOBASE}")
    a(f"s_cmp_le_u32 s{sSEC}, 1")
    csel(a, sOJ, 0x20000, 0x40000)
    csel(a, sOI, 2048, 4096)
    a(f"s_cselect_b32 s{sSCALE}, {f32bits(QSCALE):#x}, 1.0")
    a(f"s_mov_b32 s{sSCALE+1}, s{sSCALE}")
    a(f"s_mul_i32 s{sOBASE}, s{sT2}, s{sOJ}")
    a(f"s_mul_i32 s{sT3}, s{sT3}, s{sOI}")
    a(f"s_add_u32 s{sOBASE}, s{sOBASE}, s{sT3}")
    a(f"s_mov_b32 s{sT2}, {WS_QA:#x}")
    a(f"s_cmp_eq_u32 s{sSEC}, 1")
    a(f"s_cselect_b32 s{sT2}, {WS_QB:#x}, s{sT2}")
    a(f"s_cmp_eq_u32 s{sSEC}, 2")
    a(f"s_cselect_b32 s{sT2}, {WS_KVB:#x}, s{sT2}")
    a(f"s_cmp_eq_u32 s{sSEC}, 3")
    a(f"s_cselect_b32 s{sT2}, {WS_KVB + 2048:#x}, s{sT2}")
    a(f"s_add_u32 s{sOBASE}, s{sOBASE}, s{sT2}")
    for r in range(g.nacc):
        a(f"v_mov_b32 v{g.ACC + r}, 0")
    for r in range(8):
        a(f"v_mov_b32 v{g.EXACC + r}, 0")
    a(f"s_cmp_eq_u32 s{sSEC}, 3")
    a("s_cbranch_scc1 L_proj_V")
    a(f"s_cmp_eq_u32 s{sSEC}, 0")
    a("s_cbranch_scc0 L_proj_QK")
    a(f"s_cmp_ge_u32 s{sWAVE}, 2")
    a("s_cbranch_scc1 L_proj_AV")

    def epi(scale):
        a("s_nop 7")
        a("s_nop 7")
        for i in range(g.NI):
            for j in range(g.NJ):
                c = g.acc(i, j)
                t = g.F[0] + ((i * g.NJ + j) & 1) * 8
                if scale:
                    for r in range(0, 16, 2):
                        a(f"v_pk_mul_f32 {vr(c + r, 2)}, {vr(c + r, 2)}, {sr(sSCALE, 2)}")
                for r in range(8):
                    a(f"v_cvt_pk_bf16_f32 v{t + r}, v{c + 2 * r}, v{c + 2 * r + 1}")
                a(f"s_mul_i32 s{sT0}, s{sOJ}, {j}")
                a(f"s_mul_i32 s{sT1}, s{sOI}, {i}")
                a(f"s_add_u32 s{sT0}, s{sT0}, s{sT1}")
                a(f"s_add_u32 s{sT0}, s{sT0}, s{sOBASE}")
                a(f"buffer_store_dwordx4 {vr(t, 4)}, v{g.vLANE16}, {sr(SRD_O, 4)}, s{sT0} offen{OPT['st1']}")
                a(f"buffer_store_dwordx4 {vr(t + 4, 4)}, v{g.vLANE16}, {sr(SRD_O, 4)}, s{sT0} offen offset:1024{OPT['st1']}")

    def epi_extra(part):
        a("v_and_b32 v1, 15, v0")
        a("v_lshlrev_b32 v1, 4, v1")
        a("v_bfe_u32 v2, v0, 4, 1")
        a("v_lshl_add_u32 v1, v2, 9, v1")
        a("v_lshrrev_b32 v2, 5, v0")
        a("v_lshl_add_u32 v1, v2, 3, v1")
        a(f"s_lshr_b32 s{sT0}, s{sM0}, 5")
        a(f"s_add_u32 s{sT0}, s{sT0}, s{sNT}")
        a(f"s_lshl_b32 s{sT0}, s{sT0}, 12")
        a(f"s_add_u32 s{sT0}, s{sT0}, {WS_KVA + (2048 if part == 'V' else 0):#x}")
        a(f"s_and_b32 s{sT1}, s{sWAVE}, 1")
        a(f"s_lshl_b32 s{sT1}, s{sT1}, {10 if part == 'K' else 8}")
        a(f"s_add_u32 s{sT0}, s{sT0}, s{sT1}")
        for th in range(2):
            c = g.EXACC + 4 * th
            a(f"v_cvt_pk_bf16_f32 v{g.EXF + 2 * th}, v{c}, v{c + 1}")
            a(f"v_cvt_pk_bf16_f32 v{g.EXF + 2 * th + 1}, v{c + 2}, v{c + 3}")
            off = th * (256 if part == 'K' else 1024)
            a(f"buffer_store_dwordx2 {vr(g.EXF + 2 * th, 2)}, v1, {sr(SRD_O, 4)}, s{sT0} offen offset:{off}{OPT['st1']}")

    gemm_compute(a, g, "proj_AK", False, "K")
    epi(True)
    epi_extra("K")
    stamp_end(a, 0, sWAVE)
    a("s_endpgm")
    a.label("L_proj_AV")
    gemm_compute(a, g, "proj_AV", False, "V")
    epi(True)
    epi_extra("V")
    stamp_end(a, 0, sWAVE)
    a("s_endpgm")
    a.label("L_proj_QK")
    gemm_compute(a, g, "proj_QK", False, None)
    epi(True)
    stamp_end(a, 0, sWAVE)
    a("s_endpgm")
    a.label("L_proj_V")
    gemm_compute(a, g, "proj_V", True, None)
    epi(False)
    stamp_end(a, 0, sWAVE)
    a("s_endpgm")

    a.label("L_proj_loader")
    a(f"s_sub_u32 s{sT3}, s{sWAVE}, 4")
    a("v_lshrrev_b32 v1, 3, v0")
    a("v_lshlrev_b32 v1, 11, v1")
    a("v_lshrrev_b32 v2, 4, v0")
    a(f"s_and_b32 s{sT0}, s{sT3}, 1")
    a(f"s_lshl_b32 s{sT0}, s{sT0}, 2")
    a(f"v_add_u32 v3, s{sT0}, v2")
    a("v_and_b32 v7, 7, v0")
    a("v_xor_b32 v3, v3, v7")
    a("v_lshl_add_u32 v4, v3, 4, v1")
    a(f"v_mul_lo_u32 v1, v2, s{sWSTR}")
    a("v_lshlrev_b32 v3, 2, v2")
    a("v_and_b32 v7, 15, v0")
    a("v_xor_b32 v3, v3, v7")
    a("v_lshl_add_u32 v5, v3, 4, v1")
    a("v_lshlrev_b32 v6, 4, v0")
    a(f"s_lshl_b32 s{sT0}, s{sT3}, 3")
    a(f"s_add_u32 s{sT0}, s{sT0}, s{sM0}")
    a(f"s_lshl_b32 s{sXOFF}, s{sT0}, 11")
    a(f"s_mul_i32 s{sT0}, s{sT3}, s{sWSTR}")
    a(f"s_lshl_b32 s{sT0}, s{sT0}, 2")
    a(f"s_lshl_b32 s{sT1}, s{sCOL0}, 1")
    a(f"s_add_u32 s{sWOFF}, s{sT0}, s{sT1}")
    a(f"s_lshl_b32 s{sW16}, s{sWSTR}, 4")
    a(f"s_lshl_b32 s{sWSTG}, s{sWSTR}, 6")
    a(f"s_lshl_b32 s{sSLOT}, s{sT3}, 10")
    a(f"s_lshl_b32 s{sEXO}, s{sT3}, 10")
    a(f"s_add_u32 s{sEXS}, s{sEXO}, {g.EXB}")
    if OPT["pf"]:
        a(f"s_lshr_b32 s{sT0}, s2, 3")
        a(f"s_bitcmp1_b32 s{sT3}, 0")
        for i in range(3):
            a(f"s_cselect_b32 s{SRD_PF + i}, s{SRD_W + i}, s{SRD_X + i}")
        a(f"s_mov_b32 s{SRD_PF + 3}, 0x00020000")
        a("s_cbranch_scc1 L_proj_pfw")
        a("v_and_b32 v1, 31, v0")
        a("v_lshlrev_b32 v1, 11, v1")
        a("v_lshrrev_b32 v2, 5, v0")
        a("v_lshl_add_u32 v8, v2, 7, v1")
        a(f"s_and_b32 s{sT1}, s{sM0}, 0x400")
        a(f"s_lshl_b32 s{sT2}, s{sT0}, 5")
        a(f"s_add_u32 s{sT1}, s{sT1}, s{sT2}")
        a(f"s_lshl_b32 s{sT1}, s{sT1}, 11")
        a(f"s_lshl_b32 s{sT2}, s{sT3}, 7")
        a(f"s_add_u32 s{sPFO}, s{sT1}, s{sT2}")
        a(f"s_mov_b32 s{sPFS}, 512")
        a("s_branch L_proj_pfdone")
        a.label("L_proj_pfw")
        a("v_lshrrev_b32 v2, 5, v0")
        a("v_lshlrev_b32 v2, 6, v2")
        a("v_bfe_u32 v3, v0, 4, 1")
        a("v_add_u32 v2, v2, v3")
        a(f"v_mul_lo_u32 v2, v2, s{sWSTR}")
        a("v_and_b32 v3, 15, v0")
        a("v_lshl_add_u32 v8, v3, 7, v2")
        a(f"s_lshr_b32 s{sT2}, s{sT3}, 1")
        a(f"s_lshl_b32 s{sT2}, s{sT2}, 7")
        a(f"s_lshl_b32 s{sT0}, s{sT0}, 1")
        a(f"s_add_u32 s{sT2}, s{sT2}, s{sT0}")
        a(f"s_mul_i32 s{sT2}, s{sT2}, s{sWSTR}")
        a(f"s_and_b32 s{sT0}, s{sCOL0}, 0xc00")
        a(f"s_lshl_b32 s{sT0}, s{sT0}, 1")
        a(f"s_add_u32 s{sPFO}, s{sT2}, s{sT0}")
        a(f"s_lshl_b32 s{sPFS}, s{sWSTR}, 8")
        a.label("L_proj_pfdone")
    gemm_loader(a, g, "proj")
    a.label("L_proj_end")
    a("s_endpgm")
    return a.text(), kernel_desc(name, g.nvgpr), g.lds


def gen_outp():
    g = G("outp")
    a = A()
    name = "outp_kernel"
    kernel_head(a, name)
    a("s_cmp_ge_u32 s2, 256")
    a("s_cbranch_scc1 L_outp_end")
    stamp_begin(a)
    scramble(a)
    a(f"s_load_dwordx16 {sr(S_IN, 16)}, s[0:1], 0")
    a(f"s_load_dwordx2 {sr(S_OUT, 2)}, s[0:1], 64")
    a(f"s_load_dwordx2 {sr(S_WS, 2)}, s[0:1], 80")
    a("v_lshrrev_b32 v1, 6, v0")
    a("v_and_b32 v0, 63, v0")
    a(f"v_readfirstlane_b32 s{sWAVE}, v1")
    a(f"s_and_b32 s{sT0}, s2, 7")
    a(f"s_lshr_b32 s{sT1}, s2, 3")
    a(f"s_lshr_b32 s{sSEC}, s{sT0}, 2")
    a(f"s_and_b32 s{sT0}, s{sT0}, 3")
    a(f"s_lshl_b32 s{sM0}, s{sT0}, 9")
    a(f"s_and_b32 s{sT2}, s{sT1}, 3")
    a(f"s_lshl_b32 s{sT2}, s{sT2}, 7")
    a(f"s_add_u32 s{sM0}, s{sM0}, s{sT2}")
    a(f"s_lshr_b32 s{sNT}, s{sT1}, 2")
    a(f"s_lshl_b32 s{sCOL0}, s{sNT}, 7")
    a("s_waitcnt lgkmcnt(0)")
    stamp_mid(a, 2)
    srd(a, SRD_X, S_WS, S_WS + 1, WS_SIZE)
    a(f"s_cmp_eq_u32 s{sSEC}, 0")
    a(f"s_cselect_b32 s{SRD_W}, s24, s30")
    a(f"s_cselect_b32 s{SRD_W+1}, s25, s31")
    a(f"s_mov_b32 s{SRD_W+2}, 0x200000")
    a(f"s_mov_b32 s{SRD_W+3}, 0x00020000")
    srd(a, SRD_O, S_OUT, S_OUT + 1, 0x800000)
    a(f"s_cmp_ge_u32 s{sWAVE}, 4")
    a("s_cbranch_scc1 L_outp_loader")
    a(f"s_lshr_b32 s{sT0}, s{sWAVE}, 1")
    a(f"s_and_b32 s{sT1}, s{sWAVE}, 1")
    a(f"s_lshl_b32 s{sT2}, s{sT0}, 13")
    a("v_lshlrev_b32 v1, 4, v0")
    a(f"v_add_u32 v{g.vXA}, s{sT2}, v1")
    a("v_lshrrev_b32 v3, 5, v0")
    a("v_bfe_u32 v2, v0, 2, 2")
    a("v_lshl_add_u32 v1, v3, 2, v2")
    a("v_lshlrev_b32 v1, 8, v1")
    a("v_and_b32 v14, 1, v0")
    a("v_lshl_add_u32 v1, v14, 5, v1")
    a("v_bfe_u32 v14, v0, 4, 1")
    a("v_lshl_add_u32 v1, v14, 4, v1")
    a("v_bfe_u32 v14, v0, 1, 1")
    a("v_lshl_add_u32 v1, v14, 3, v1")
    a(f"v_add_u32 v1, {g.XB}, v1")
    a(f"s_lshl_b32 s{sT2}, s{sT1}, 1")
    for j in range(2):
        a(f"s_add_u32 s{sT3}, s{sT2}, {j}")
        a(f"v_xor_b32 v14, s{sT3}, v2")
        a(f"v_lshl_add_u32 v{g.vWA + j}, v14, 6, v1")
    a("v_and_b32 v1, 31, v0")
    a("v_lshlrev_b32 v1, 12, v1")
    a(f"v_lshl_add_u32 v{g.vLANE16}, v3, 5, v1")
    a(f"s_lshl_b32 s{sT2}, s{sT0}, 6")
    a(f"s_add_u32 s{sT2}, s{sT2}, s{sM0}")
    a(f"s_lshl_b32 s{sOBASE}, s{sT2}, 12")
    a(f"s_lshl_b32 s{sT2}, s{sSEC}, 10")
    a(f"s_add_u32 s{sT2}, s{sT2}, s{sCOL0}")
    a(f"s_lshl_b32 s{sT3}, s{sT1}, 6")
    a(f"s_add_u32 s{sT2}, s{sT2}, s{sT3}")
    a(f"s_lshl_b32 s{sT2}, s{sT2}, 1")
    a(f"s_add_u32 s{sOBASE}, s{sOBASE}, s{sT2}")
    for r in range(g.nacc):
        a(f"v_mov_b32 v{g.ACC + r}, 0")
    gemm_compute(a, g, "outp", False, None)
    a("s_nop 7")
    a("s_nop 7")
    for i in range(g.NI):
        for j in range(g.NJ):
            c = g.acc(i, j)
            t = g.F[0] + ((i * g.NJ + j) & 1) * 8
            for r in range(8):
                a(f"v_cvt_pk_bf16_f32 v{t + r}, v{c + 2 * r}, v{c + 2 * r + 1}")
            a(f"s_add_u32 s{sT0}, s{sOBASE}, {i * 32 * 4096}")
            a(f"buffer_store_dwordx4 {vr(t, 4)}, v{g.vLANE16}, {sr(SRD_O, 4)}, s{sT0} offen offset:{64 * j}")
            a(f"buffer_store_dwordx4 {vr(t + 4, 4)}, v{g.vLANE16}, {sr(SRD_O, 4)}, s{sT0} offen offset:{64 * j + 16}")
    stamp_end(a, 2, sWAVE)
    a("s_endpgm")
    a.label("L_outp_loader")
    a(f"s_sub_u32 s{sT3}, s{sWAVE}, 4")
    a("v_lshlrev_b32 v4, 4, v0")
    a("v_lshrrev_b32 v2, 4, v0")
    a("v_lshlrev_b32 v1, 11, v2")
    a("v_lshlrev_b32 v3, 2, v2")
    a("v_and_b32 v7, 15, v0")
    a("v_xor_b32 v3, v3, v7")
    a("v_lshl_add_u32 v5, v3, 4, v1")
    a(f"s_cmp_eq_u32 s{sSEC}, 0")
    csel(a, sT0, WS_OA, WS_OB)
    a(f"s_lshl_b32 s{sT1}, s{sM0}, 11")
    a(f"s_add_u32 s{sT0}, s{sT0}, s{sT1}")
    a(f"s_lshl_b32 s{sT1}, s{sT3}, 10")
    a(f"s_add_u32 s{sXOFF}, s{sT0}, s{sT1}")
    a(f"s_lshl_b32 s{sT0}, s{sT3}, 13")
    a(f"s_lshl_b32 s{sT1}, s{sCOL0}, 1")
    a(f"s_add_u32 s{sWOFF}, s{sT0}, s{sT1}")
    a(f"s_mov_b32 s{sW16}, {16 * 2048}")
    a(f"s_mov_b32 s{sWSTG}, {64 * 2048}")
    a(f"s_lshl_b32 s{sSLOT}, s{sT3}, 10")
    gemm_loader(a, g, "outp")
    a.label("L_outp_end")
    a("s_endpgm")
    return a.text(), kernel_desc(name, g.nvgpr), g.lds


def gen_attn():
    a = A()
    name = "attn_kernel"
    kernel_head(a, name)
    vL16, vK, vKN, IDX = 1, 2, 3, 4
    T0, T1, T2, T3 = 5, 6, 7, 8
    ONES = 12
    Q = [16, 24]
    P = [32, 40]
    KF = [48, 56]
    VF = [64, 72]
    L = [80, 84]
    S = [96, 112]
    NEG = [128, 144]
    O = [160, 176]
    NV = 192
    SRD = 36
    sW, sQB, sKV, sOB, sST, sSL, sDM, sGO = 40, 41, 42, 43, 44, 45, 46, 47
    t0, t1, t2, t3 = 48, 49, 50, 51
    sBR, sPF, sFIRST, SRDW, SRDO = 52, 53, 54, 56, 60
    vPF, vPFD = 9, 10
    TILES = 8
    STG = TILES * 4096
    NSLOT = 3
    NSTG = 64 // TILES
    lds = NSLOT * STG

    a("s_cmp_ge_u32 s2, 256")
    a("s_cbranch_scc1 L_attn_end")
    stamp_begin(a)
    scramble(a)
    a(f"s_load_dwordx2 {sr(S_WS, 2)}, s[0:1], 80")
    a("s_load_dwordx2 s[24:25], s[0:1], 32")
    a("s_load_dwordx2 s[30:31], s[0:1], 56")
    a("s_load_dwordx2 s[32:33], s[0:1], 64")
    a("v_lshrrev_b32 v1, 6, v0")
    a("v_and_b32 v0, 63, v0")
    a(f"v_readfirstlane_b32 s{sW}, v1")
    a(f"v_lshlrev_b32 v{vL16}, 4, v0")
    if OPT["remap"]:
        a(f"s_lshr_b32 s{t0}, s2, 3")
        a(f"s_and_b32 s{t2}, s2, 3")
        a(f"s_bfe_u32 s{t1}, s2, 0x10002")
    else:
        a(f"s_and_b32 s{t0}, s2, 7")
        a(f"s_lshr_b32 s{t1}, s2, 3")
        a(f"s_lshl_b32 s{t0}, s{t0}, 2")
        a(f"s_bfe_u32 s{t2}, s{t1}, 0x20002")
        a(f"s_add_u32 s{t0}, s{t0}, s{t2}")
        a(f"s_and_b32 s{t2}, s{t1}, 3")
        a(f"s_lshr_b32 s{t1}, s{t1}, 4")
    a(f"s_lshl_b32 s{t2}, s{t2}, 4")
    a(f"s_lshl_b32 s{t3}, s{sW}, 1")
    a(f"s_add_u32 s{t2}, s{t2}, s{t3}")
    a(f"s_mov_b32 s{sBR}, s{t1}")
    a(f"s_lshl_b32 s{sQB}, s{t0}, 17")
    a(f"s_lshl_b32 s{t3}, s{t2}, 11")
    a(f"s_add_u32 s{sQB}, s{sQB}, s{t3}")
    a(f"s_lshl_b32 s{sOB}, s{t2}, 16")
    a(f"s_lshl_b32 s{t3}, s{t0}, 11")
    a(f"s_add_u32 s{sOB}, s{sOB}, s{t3}")
    a(f"s_lshl_b32 s{sKV}, s{t0}, 18")
    a(f"s_add_u32 s{sKV}, s{sKV}, {WS_KVB:#x}")
    a(f"s_cmp_eq_u32 s{t1}, 0")
    a(f"s_cselect_b32 s{sKV}, {WS_KVA:#x}, s{sKV}")
    a(f"s_cselect_b32 s{t3}, {WS_QA:#x}, {WS_QB:#x}")
    a(f"s_add_u32 s{sQB}, s{sQB}, s{t3}")
    a(f"s_cmp_eq_u32 s{t1}, 0")
    csel(a, t3, WS_OA, WS_OB)
    a(f"s_add_u32 s{sOB}, s{sOB}, s{t3}")
    a("s_waitcnt lgkmcnt(0)")
    stamp_mid(a, 2)
    srd(a, SRD, S_WS, S_WS + 1, WS_SIZE)
    def dma():
        a(f"s_mov_b32 m0, s{sDM}")
        a("s_nop 0")
        for c in range(4):
            a(f"buffer_load_dwordx4 v{vL16}, {sr(SRD, 4)}, s{sGO} offen offset:{1024 * c} lds")
        a(f"s_add_u32 s{sGO}, s{sGO}, {STG}")
        a(f"s_add_u32 s{sDM}, s{sDM}, {STG}")
        a(f"s_cmp_ge_u32 s{sDM}, {NSLOT * STG}")
        a(f"s_cselect_b32 s{t0}, {NSLOT * STG}, 0")
        a(f"s_sub_u32 s{sDM}, s{sDM}, s{t0}")

    def qloads():
        for q in range(2):
            for c in range(2):
                a(f"buffer_load_dwordx4 {vr(Q[q] + 4 * c, 4)}, v{vL16}, {sr(SRD, 4)}, s{sQB} offen offset:{2048 * q + 1024 * c}")

    stamp_mid(a, 3)
    a(f"s_and_b32 s{t0}, s{sW}, 3")
    a(f"s_lshl_b32 s{t0}, s{t0}, 11")
    a(f"s_add_u32 s{t1}, s{sKV}, s{t0}")

    def grp_dma(grp):
        a(f"s_add_u32 m0, s{t0}, {8192 * grp}")
        a(f"s_add_u32 s{t2}, s{t1}, {8192 * grp}")
        for c in range(2):
            a(f"buffer_load_dwordx4 v{vL16}, {sr(SRD, 4)}, s{t2} offen offset:{1024 * c} lds")

    a(f"s_cmp_ge_u32 s{sW}, 4")
    a("s_cbranch_scc1 L_attn_young")
    grp_dma(0)
    qloads()
    a("s_branch L_attn_issued")
    a.label("L_attn_young")
    for grp in range(1, 4):
        grp_dma(grp)
    qloads()
    a.label("L_attn_issued")
    a(f"s_lshl_b32 s{sDM}, s{sW}, 12")
    a(f"s_add_u32 s{sDM}, s{sDM}, {STG}")
    a(f"s_add_u32 s{sGO}, s{sKV}, s{sDM}")
    stamp_mid(a, 4)
    a(f"s_cmp_eq_u32 s{sBR}, 0")
    a(f"s_cselect_b32 s{SRDW}, s24, s30")
    a(f"s_cselect_b32 s{SRDW + 1}, s25, s31")
    a(f"s_mov_b32 s{SRDW + 2}, 0x200000")
    a(f"s_mov_b32 s{SRDW + 3}, 0x00020000")
    srd(a, SRDO, 32, 33, 0x800000)
    a(f"s_lshr_b32 s{sPF}, s2, 3")
    a(f"s_lshl_b32 s{sPF}, s{sPF}, 3")
    a(f"s_add_u32 s{sPF}, s{sPF}, s{sW}")
    a(f"s_lshl_b32 s{sPF}, s{sPF}, 13")
    a(f"v_lshlrev_b32 v{vPF}, 7, v0")
    a(f"v_and_b32 v{T0}, 2, v0")
    a(f"v_bfe_u32 v{T1}, v0, 2, 1")
    a(f"v_or_b32 v{T2}, v{T0}, v{T1}")
    a(f"v_xor_b32 v{T1}, 1, v{T1}")
    a(f"v_or_b32 v{T3}, v{T0}, v{T1}")
    a(f"v_mov_b32 v{T0}, 0x3f803f80")
    a(f"v_cmp_eq_u32 vcc, 0, v{T2}")
    a("s_nop 1")
    a(f"v_cndmask_b32 v{ONES}, 0, v{T0}, vcc")
    a(f"v_cndmask_b32 v{ONES + 1}, 0, v{T0}, vcc")
    a(f"v_cmp_eq_u32 vcc, 0, v{T3}")
    a("s_nop 1")
    a(f"v_cndmask_b32 v{ONES + 2}, 0, v{T0}, vcc")
    a(f"v_cndmask_b32 v{ONES + 3}, 0, v{T0}, vcc")
    a(f"v_and_b32 v{T0}, 1, v0")
    a(f"v_mov_b32 v{T1}, 0x44444444")
    a(f"v_mov_b32 v{T2}, 0xeeeeeeee")
    a(f"v_cmp_eq_u32 vcc, 1, v{T0}")
    a("s_nop 1")
    a(f"v_cndmask_b32 v{IDX}, v{T1}, v{T2}, vcc")
    for q in range(2):
        for r in range(16):
            a(f"v_mov_b32 v{O[q] + r}, 0")
        for r in range(4):
            a(f"v_mov_b32 v{L[q] + r}, 0")
        for r in range(8):
            a(f"v_mov_b32 v{P[q] + r}, 0")
    for r in range(8):
        a(f"v_mov_b32 v{VF[1] + r}, 0")
    a(f"v_mov_b32 v{vK}, v{vL16}")
    a(f"v_add_u32 v{vKN}, {STG}, v{vL16}")
    a(f"s_cmp_lt_u32 s{sW}, 4")
    a(f"s_cselect_b32 s{sFIRST}, 1, 0")
    a("s_cbranch_scc0 L_attn_b0y")
    a("s_waitcnt vmcnt(4)")
    a("s_barrier")
    a("s_branch L_attn_b0")
    a.label("L_attn_b0y")
    a("s_barrier")
    for k_ in range(3):
        a(f"s_waitcnt vmcnt({8 - 2 * k_})")
        a("s_barrier")
    a.label("L_attn_b0")
    stamp_mid(a, 0)

    def kread(kt):
        reg, k = (vK, kt) if kt < TILES else (vKN, kt - TILES)
        return [f"ds_read_b128 {vr(KF[kt & 1] + 4 * c, 4)}, v{reg} offset:{4096 * k + 1024 * c}" for c in range(2)]

    def vread(kt):
        reg, k = (vK, kt) if kt < TILES else (vKN, kt - TILES)
        return [f"ds_read_b128 {vr(VF[kt & 1] + 4 * c, 4)}, v{reg} offset:{4096 * k + 2048 + 1024 * c}" for c in range(2)]

    for x in kread(0) + vread(0) + kread(1):
        a(x)
    a("s_waitcnt vmcnt(0)")
    stamp_mid(a, 5)
    dma()
    a("s_waitcnt lgkmcnt(4)")
    for q in range(2):
        a(f"{MF32} {vr(S[q], 16)}, {vr(KF[0], 4)}, {vr(Q[q], 4)}, 0")
        a(f"{MF32} {vr(S[q], 16)}, {vr(KF[0] + 4, 4)}, {vr(Q[q] + 4, 4)}, {vr(S[q], 16)}")
    a("s_nop 7")
    a("s_nop 7")
    for q in range(2):
        s = S[q]
        t = T0 + 2 * q
        a(f"v_max3_f32 v{t}, v{s}, v{s + 1}, v{s + 2}")
        for r in range(3, 15, 2):
            a(f"v_max3_f32 v{t}, v{s + r}, v{s + r + 1}, v{t}")
        a(f"v_max_f32 v{t}, v{s + 15}, v{t}")
        a(f"v_mov_b32 v{t + 1}, v{t}")
    a("s_nop 1")
    for q in range(2):
        t = T0 + 2 * q
        a(f"v_permlane32_swap_b32 v{t}, v{t + 1}")
    a("s_nop 1")
    for q in range(2):
        t = T0 + 2 * q
        a(f"v_max_f32 v{t}, v{t}, v{t + 1}")
        for r in range(16):
            a(f"v_sub_f32 v{NEG[q] + r}, 0, v{t}")
    a("s_nop 1")
    a(f"{MF32} {vr(S[0], 16)}, {vr(KF[0], 4)}, {vr(Q[0], 4)}, {vr(NEG[0], 16)}")
    a(f"{MF32} {vr(S[0], 16)}, {vr(KF[0] + 4, 4)}, {vr(Q[0] + 4, 4)}, {vr(S[0], 16)}")
    a(f"s_mov_b32 s{sST}, 0")
    a(f"s_mov_b32 s{sSL}, {STG}")
    a("s_nop 7")
    a("s_nop 3")

    def step(u):
        q, kt = u & 1, u >> 1
        qp = q ^ 1
        ktn = (u + 1) >> 1
        ktp = (u - 1) >> 1
        cur, nxt = S[q], S[qp]
        E = lambda i: f"v_exp_f32 v{cur + i}, v{cur + i}"
        C = lambda i: f"v_cvt_pk_bf16_f32 v{P[q] + i}, v{cur + 2 * i}, v{cur + 2 * i + 1}"
        QK0 = f"{MF32} {vr(nxt, 16)}, {vr(KF[ktn & 1], 4)}, {vr(Q[qp], 4)}, {vr(NEG[qp], 16)}"
        QK1 = f"{MF32} {vr(nxt, 16)}, {vr(KF[ktn & 1] + 4, 4)}, {vr(Q[qp] + 4, 4)}, {vr(nxt, 16)}"
        PV0 = f"{MF32} {vr(O[q], 16)}, {vr(VF[kt & 1], 4)}, {vr(P[q], 4)}, {vr(O[q], 16)}"
        PV1 = f"{MF32} {vr(O[qp], 16)}, {vr(VF[ktp & 1] + 4, 4)}, {vr(P[qp] + 4, 4)}, {vr(O[qp], 16)}"
        SP = f"v_smfmac_f32_16x16x64_bf16 {vr(L[qp], 4)}, {vr(ONES, 4)}, {vr(P[qp], 8)}, v{IDX}"
        rd = vread(kt + 1) if q == 0 else kread(kt + 2)
        d = dict(QK0=QK0, QK1=QK1, PV0=PV0, PV1=PV1, SP=SP, R0=rd[0], R1=rd[1],
                 Wq="s_waitcnt lgkmcnt(2)" if q == 1 else None, Wp="s_waitcnt lgkmcnt(4)" if q == 0 else None)
        if OPT["order"] == 1:
            d["Wq"] = "s_waitcnt lgkmcnt(0)" if q == 1 else None
            d["Wp"] = None
        for i in range(16):
            d[f"E{i}"] = E(i)
        for i in range(8):
            d[f"C{i}"] = C(i)
        o = "E0 E1 PV1 Wq E2 E3 E4 QK0 E5 E6 E7 QK1 R0 C0 E8 C1 E9 SP R1 C2 E10 C3 E11 E12 Wp PV0 E13 C4 E14 C5 E15 C6 C7"
        seq = [d[t] for t in o.split() if d[t]]
        return seq

    def isz(x):
        return 4 if (x.startswith("v_exp_f32 ") or x.startswith("s_waitcnt") or x.startswith("s_nop")) else 8

    def fix_align(seq):
        if OPT["nowait"]:
            seq = [x for x in seq if not x.startswith("s_waitcnt")]
        if OPT["nods"]:
            seq = [x for x in seq if not x.startswith("s_waitcnt") and not x.startswith("ds_read")]
        if OPT["align"] == 1:
            seq = [x.replace("v_exp_f32 ", "v_exp_f32_e64 ") for x in seq]
            out = []
            for x in seq:
                out.append(x)
                if x.startswith("s_waitcnt"):
                    out.append("s_nop 0")
            return out
        if OPT["align"] == 2:
            out, run = [], []
            def flush():
                if len(run) & 1:
                    k = [i for i, y in enumerate(run) if y.startswith("v_exp_f32 ")]
                    run[k[-1]] = run[k[-1]].replace("v_exp_f32 ", "v_exp_f32_e64 ")
                out.extend(run)
                run.clear()
            for x in seq:
                if isz(x) == 4:
                    run.append(x)
                else:
                    flush()
                    out.append(x)
            flush()
            return out
        return seq

    if OPT.get("lstamp"):
        stamp_mid(a, 2)
    a.raw(".p2align 3")
    a.label("L_attn_loop")
    a(f"s_cmp_lg_u32 s{sFIRST}, 0")
    for u in range(2 * TILES):
        if u in (1, 5, 9):
            a(f"s_cbranch_scc1 L_attn_first{u}")
            a.label(f"L_attn_back{u}")
        if u == 2 * (TILES - 2) + 1:
            a("s_waitcnt vmcnt(0)")
            a("s_barrier")
            a(f"s_cmp_ge_u32 s{sST}, {NSTG - 2}")
            a("s_cbranch_scc1 L_attn_nodma")
            dma()
            if OPT["wopf"]:
                a("s_branch L_attn_nopf")
            a.label("L_attn_nodma")
            if OPT["wopf"]:
                a(f"s_cmp_eq_u32 s{sST}, {NSTG - 2}")
                a("s_cbranch_scc0 L_attn_nopf")
                a(f"buffer_load_dword v{vPFD}, v{vPF}, {sr(SRDW, 4)}, s{sPF} offen")
                if OPT["tlb"]:
                    a(f"v_lshlrev_b32 v{T0}, 14, v{vPF}")
                    a(f"buffer_load_dword v{vPFD}, v{T0}, {sr(SRDO, 4)}, 0 offen")
                a.label("L_attn_nopf")
        if OPT["prio"] and (u - (2 * TILES - 3)) % 4 == 0:
            a(f"s_setprio {3 - ((u - (2 * TILES - 3)) % (2 * TILES)) // 4}")
        for x in fix_align(step(u)):
            a(x)
    a(f"s_mov_b32 s{sFIRST}, 0")
    a(f"v_mov_b32 v{vK}, v{vKN}")
    a(f"s_add_u32 s{sSL}, s{sSL}, {STG}")
    a(f"s_cmp_ge_u32 s{sSL}, {NSLOT * STG}")
    a(f"s_cselect_b32 s{sSL}, 0, s{sSL}")
    a(f"v_add_u32 v{vKN}, s{sSL}, v{vL16}")
    if OPT.get("lstamp") and STAMP:
        for k_, n_ in ((0, 3), (1, 4), (6, 5)):
            a(f"s_cmp_lg_u32 s{sST}, {k_}")
            a(f"s_cbranch_scc1 L_attn_ls{k_}")
            stamp_mid(a, n_)
            a.label(f"L_attn_ls{k_}")
    a(f"s_add_u32 s{sST}, s{sST}, 1")
    a(f"s_cmp_lt_u32 s{sST}, {NSTG}")
    a("s_cbranch_scc1 L_attn_loop")
    stamp_mid(a, 1)
    a("s_nop 1")
    a(f"{MF32} {vr(O[1], 16)}, {vr(VF[1] + 4, 4)}, {vr(P[1] + 4, 4)}, {vr(O[1], 16)}")
    a(f"v_smfmac_f32_16x16x64_bf16 {vr(L[1], 4)}, {vr(ONES, 4)}, {vr(P[1], 8)}, v{IDX}")
    a("s_waitcnt lgkmcnt(0)")
    a("s_nop 7")
    a("s_nop 7")
    a(f"v_mov_b32 v{T2}, 0")
    for q in range(2):
        a(f"v_add_f32 v{L[q]}, v{L[q]}, v{L[q] + 1}")
        for r in range(16):
            a(f"v_fmac_f32 v{T2}, 0, v{O[q] + r}")
    a(f"v_max_f32 v{T3}, v{L[0]}, v{L[1]}")
    a(f"v_fmac_f32 v{T2}, 0, v{L[0]}")
    a(f"v_fmac_f32 v{T2}, 0, v{L[1]}")
    a(f"v_add_f32 v{T3}, v{T3}, v{T2}")
    a(f"v_mov_b32 v{T2}, {f32bits(2.0 ** 40):#x}")
    a(f"v_cmp_nle_f32 vcc, v{T3}, v{T2}")
    a("s_nop 4")
    a("s_cbranch_vccnz L_attn_slow")

    def finish(q, lreg):
        a(f"v_rcp_f32 v{T0}, v{lreg}")
        a("s_nop 0")
        for r in range(16):
            a(f"v_mul_f32 v{O[q] + r}, v{O[q] + r}, v{T0}")
        for r in range(8):
            a(f"v_cvt_pk_bf16_f32 v{P[q] + r}, v{O[q] + 2 * r}, v{O[q] + 2 * r + 1}")
        a(f"s_add_u32 s{t0}, s{sOB}, {65536 * q}")
        for c in range(2):
            a(f"buffer_store_dwordx4 {vr(P[q] + 4 * c, 4)}, v{vL16}, {sr(SRD, 4)}, s{t0} offen offset:{1024 * c}{OPT['st2']}")

    for q in range(2):
        finish(q, L[q])
    stamp_end(a, 1, sW)
    a("s_endpgm")

    for k_, u in enumerate((1, 5, 9)):
        a.label(f"L_attn_first{u}")
        a("s_barrier")
        a(f"s_branch L_attn_back{u}")

    a.label("L_attn_slow")
    M, LS, AL = 88, 89, 90
    for q in range(2):
        s = S[0]
        a(f"v_mov_b32 v{M}, 0xff7fffff")
        a(f"v_mov_b32 v{LS}, 0")
        for r in range(16):
            a(f"v_mov_b32 v{O[q] + r}, 0")
        a(f"s_mov_b32 s{sGO}, s{sKV}")
        a(f"s_mov_b32 s{sST}, 0")
        a.label(f"L_attn_slow_{q}")
        for c in range(2):
            a(f"buffer_load_dwordx4 {vr(KF[0] + 4 * c, 4)}, v{vL16}, {sr(SRD, 4)}, s{sGO} offen offset:{1024 * c}")
        for c in range(2):
            a(f"buffer_load_dwordx4 {vr(VF[0] + 4 * c, 4)}, v{vL16}, {sr(SRD, 4)}, s{sGO} offen offset:{2048 + 1024 * c}")
        a("s_waitcnt vmcnt(0)")
        a(f"{MF32} {vr(s, 16)}, {vr(KF[0], 4)}, {vr(Q[q], 4)}, 0")
        a(f"{MF32} {vr(s, 16)}, {vr(KF[0] + 4, 4)}, {vr(Q[q] + 4, 4)}, {vr(s, 16)}")
        a("s_nop 7")
        a("s_nop 7")
        a(f"v_max3_f32 v{T0}, v{s}, v{s + 1}, v{M}")
        for r in range(2, 16, 2):
            a(f"v_max3_f32 v{T0}, v{s + r}, v{s + r + 1}, v{T0}")
        a(f"v_mov_b32 v{T1}, v{T0}")
        a("s_nop 1")
        a(f"v_permlane32_swap_b32 v{T0}, v{T1}")
        a("s_nop 1")
        a(f"v_max_f32 v{T0}, v{T0}, v{T1}")
        a(f"v_sub_f32 v{AL}, v{M}, v{T0}")
        a(f"v_exp_f32 v{AL}, v{AL}")
        a(f"v_mov_b32 v{M}, v{T0}")
        for r in range(16):
            a(f"v_sub_f32 v{s + r}, v{s + r}, v{T0}")
        for r in range(16):
            a(f"v_exp_f32 v{s + r}, v{s + r}")
        a(f"v_mul_f32 v{LS}, v{LS}, v{AL}")
        for r in range(16):
            a(f"v_mul_f32 v{O[q] + r}, v{O[q] + r}, v{AL}")
        for r in range(16):
            a(f"v_add_f32 v{LS}, v{LS}, v{s + r}")
        for r in range(8):
            a(f"v_cvt_pk_bf16_f32 v{P[0] + r}, v{s + 2 * r}, v{s + 2 * r + 1}")
        a("s_nop 1")
        a(f"{MF32} {vr(O[q], 16)}, {vr(VF[0], 4)}, {vr(P[0], 4)}, {vr(O[q], 16)}")
        a(f"{MF32} {vr(O[q], 16)}, {vr(VF[0] + 4, 4)}, {vr(P[0] + 4, 4)}, {vr(O[q], 16)}")
        a("s_nop 7")
        a("s_nop 7")
        a(f"s_add_u32 s{sGO}, s{sGO}, 4096")
        a(f"s_add_u32 s{sST}, s{sST}, 1")
        a(f"s_cmp_lt_u32 s{sST}, 64")
        a(f"s_cbranch_scc1 L_attn_slow_{q}")
        a(f"v_mov_b32 v{T1}, v{LS}")
        a("s_nop 1")
        a(f"v_permlane32_swap_b32 v{LS}, v{T1}")
        a("s_nop 1")
        a(f"v_add_f32 v{LS}, v{LS}, v{T1}")
        finish(q, LS)
        a("s_waitcnt vmcnt(0)")
    a.label("L_attn_end")
    a("s_endpgm")
    return a.text(), kernel_desc(name, NV), lds


HEADER = """; Fused MQA (branch A) + MHA (branch B) attention block, three launches:
;   proj_kernel : Q/K/V projections -> MFMA-fragment-ordered tiles in d_ws
;   attn_kernel : softmax(Q K^T) V per (branch, head, 512 rows)
;   outp_kernel : output projections -> d_out
"""


def main(path, which=("proj", "attn", "outp")):
    pt, pd, pl = gen_proj()
    at, ad, al = gen_attn()
    ot, od, ol = gen_outp()
    s = HEADER
    if "proj" in which:
        s += f"; @launch kernel=proj_kernel grid=(256,1,1) block=(512,1,1) lds={pl}\n"
    if "attn" in which:
        s += f"; @launch kernel=attn_kernel grid=(256,1,1) block=(512,1,1) lds={al}\n"
    if "outp" in which:
        s += f"; @launch kernel=outp_kernel grid=(256,1,1) block=(512,1,1) lds={ol}\n"
    s += '.amdgcn_target "amdgcn-amd-amdhsa--gfx950"\n'
    s += pt + at + ot + pd + ad + od
    open(path, "w").write(s)


if __name__ == "__main__":
    if "--stamp" in sys.argv:
        STAMP = True
        sys.argv.remove("--stamp")
    for x in list(sys.argv):
        if "=" in x:
            k_, v_ = x.split("=")
            OPT[k_] = int(v_) if v_.lstrip("-").isdigit() else (v_ if "," in v_ else (" " + v_.replace("+", " ")).rstrip() if v_ != "none" else "")
            sys.argv.remove(x)
    main(sys.argv[1] if len(sys.argv) > 1 else f"cdna_kernels/{NAME}.s")
```

```python
import sys, math, struct

NAME = "concat_heads__grouped_kv_mqa__softmax_full_mha__prompt"

WS_QA = 0x0000000
WS_QB = 0x0400000
WS_KVA = 0x0800000
WS_TBL = 0x0900000
WS_CLM = 0x0910000
WS_KVB = 0x1000000
WS_OA = 0x2000000
WS_OB = 0x2400000
WS_STAMP = 0x8000000
WS_SIZE = 268435456

QSCALE = (32 ** -0.5) * math.log2(math.e)
STAMP = False
OPT = dict(pre=6, st1=" sc0 sc1", st2="", ld1=" nt", pfb=" nt", pf=1, pf0=0, pfd=2, badtbl=0, lstamp=0, epi3=1, nl3=4)

MF32 = "v_mfma_f32_32x32x16_bf16"
MF16 = "v_mfma_f32_16x16x32_bf16"


def f32bits(x):
    return struct.unpack("<I", struct.pack("<f", x))[0]


class A:
    def __init__(self):
        self.l = []

    def __call__(self, s):
        self.l.append("    " + s)

    def many(self, xs):
        for x in xs:
            self(x)

    def label(self, s):
        self.l.append(s + ":")

    def raw(self, s):
        self.l.append(s)

    def text(self):
        return "\n".join(self.l) + "\n"


def vr(b, n):
    return f"v[{b}:{b + n - 1}]"


def sr(b, n=4):
    return f"s[{b}:{b + n - 1}]"


def srd(a, d, lo, size):
    a(f"s_mov_b32 s{d}, s{lo}")
    a(f"s_mov_b32 s{d+1}, s{lo + 1}")
    a(f"s_mov_b32 s{d+2}, {size:#x}")
    a(f"s_mov_b32 s{d+3}, 0x00020000")


def srd_sel(a, d, lo1, lo0, size1, size0=None):
    a(f"s_cselect_b32 s{d}, s{lo1}, s{lo0}")
    a(f"s_cselect_b32 s{d+1}, s{lo1 + 1}, s{lo0 + 1}")
    if size0 is None:
        a(f"s_mov_b32 s{d+2}, {size1:#x}")
    else:
        csel(a, d + 2, size1, size0)
    a(f"s_mov_b32 s{d+3}, 0x00020000")


def csel(a, d, x, y):
    a(f"s_mov_b32 s{d}, {y}")
    a(f"s_cmov_b32 s{d}, {x}")


def kernel_head(a, name):
    a.raw(".text")
    a.raw(f".globl {name}")
    a.raw(".p2align 8")
    a.raw(f".type {name},@function")
    a.label(name)


def kernel_desc(name, nvgpr, nsgpr=102):
    acc = (nvgpr + 3) // 4 * 4
    return f""".section .rodata,"a"
.p2align 6
.amdhsa_kernel {name}
  .amdhsa_next_free_vgpr {nvgpr}
  .amdhsa_next_free_sgpr {nsgpr}
  .amdhsa_accum_offset {acc}
  .amdhsa_group_segment_fixed_size 0
  .amdhsa_kernarg_size 88
  .amdhsa_user_sgpr_count 2
  .amdhsa_user_sgpr_kernarg_segment_ptr 1
  .amdhsa_system_sgpr_workgroup_id_x 1
.end_amdhsa_kernel
"""


sXCC, sHW, sTRY, sTK = 3, 8, 9, 10
SRD_DBG = 12
S_IN = 16
S_OUT = 32
S_WS = 34
SRD_WS = 44
sWAVE = 56
sT0, sT1, sT2, sT3 = 57, 58, 59, 60
sOK = 81


def stamp_begin(a):
    if STAMP:
        a("s_memtime s[82:83]")
        a("s_memrealtime s[84:85]")
        for n in range(6):
            a(f"s_mov_b32 s{90 + 2 * n}, 0")


def stamp_mid(a, n):
    if STAMP:
        a(f"s_memtime s[{90 + 2 * n}:{91 + 2 * n}]")


def stamp_end(a, kidx):
    if not STAMP:
        return
    a("s_waitcnt vmcnt(0)")
    a("s_memtime s[86:87]")
    a("s_memrealtime s[88:89]")
    a("s_waitcnt lgkmcnt(0)")
    a(f"s_min_u32 s9, s{sWAVE}, 7")
    a("s_lshl_b32 s8, s2, 3")
    a("s_add_u32 s8, s8, s9")
    a("s_lshl_b32 s8, s8, 6")
    a(f"s_add_u32 s8, s8, {WS_STAMP + kidx * 0x20000:#x}")
    for i, r in enumerate((82, 84, 86, 88, 90, 92, 94, 96, 98, 100, 100, 100)):
        a(f"v_mov_b32 v{4 + i}, s{r}")
    a("v_mov_b32 v1, 0")
    a("s_mov_b64 exec, 1")
    for i in range(3):
        a(f"buffer_store_dwordx4 v[{4 + 4 * i}:{7 + 4 * i}], v1, {sr(SRD_WS)}, s8 offen offset:{16 * i}")


def entry(a, tag):
    a("s_cmp_ge_u32 s2, 256")
    a(f"s_cbranch_scc1 L_{tag}_end")
    stamp_begin(a)
    a(f"s_load_dwordx16 {sr(S_IN, 16)}, s[0:1], 0")
    a(f"s_load_dwordx2 {sr(S_OUT, 2)}, s[0:1], 64")
    a(f"s_load_dwordx2 {sr(SRD_DBG, 2)}, s[0:1], 72")
    a(f"s_load_dwordx2 {sr(S_WS, 2)}, s[0:1], 80")
    a("v_lshrrev_b32 v1, 6, v0")
    a("v_and_b32 v0, 63, v0")
    a(f"v_readfirstlane_b32 s{sWAVE}, v1")
    a(f"s_getreg_b32 s{sXCC}, hwreg(HW_REG_XCC_ID, 0, 3)")
    a(f"s_getreg_b32 s{sHW}, hwreg(HW_REG_HW_ID, 8, 8)")
    a(f"s_mov_b32 s{SRD_DBG + 2}, 256")
    a(f"s_mov_b32 s{SRD_DBG + 3}, 0x00020000")


def tbl_offset(a, d):
    a(f"s_lshl_b32 s{d}, s{sXCC}, 8")
    a(f"s_or_b32 s{d}, s{d}, s{sHW}")
    a(f"s_lshl_b32 s{d}, s{d}, 2")
    a(f"s_add_u32 s{d}, s{d}, {WS_TBL:#x}")


def ticket_issue(a, tag, who):
    a(f"s_cmp_lg_u32 s{sWAVE}, {who}")
    a(f"s_cbranch_scc1 L_{tag}_cl0")
    a("s_mov_b64 exec, 1")
    a(f"s_lshl_b32 s{sTK}, s{sXCC}, 5")
    a(f"v_mov_b32 v2, s{sTK}")
    a("v_mov_b32 v3, 1")
    a(f"buffer_atomic_add v3, v2, {sr(SRD_DBG)}, 0 offen sc0 sc1")
    a("s_mov_b64 exec, -1")
    a.label(f"L_{tag}_cl0")


def ticket_end(a, tag, who, ldsoff):
    a(f"v_mov_b32 v2, {ldsoff}")
    a(f"s_cmp_lg_u32 s{sWAVE}, {who}")
    a(f"s_cbranch_scc1 L_{tag}_cl3")
    a("s_mov_b64 exec, 1")
    a(f"s_mov_b32 s{sTRY}, 0")
    a(f"s_mov_b32 s{sTK + 1}, s{sXCC}")
    a.label(f"L_{tag}_cl1")
    a("s_waitcnt vmcnt(0)")
    a(f"v_readfirstlane_b32 s{sTK}, v3")
    a("s_nop 3")
    a(f"s_cmp_lt_u32 s{sTK}, 32")
    a(f"s_cbranch_scc1 L_{tag}_cl2")
    a(f"s_add_u32 s{sTRY}, s{sTRY}, 1")
    a(f"s_cmp_ge_u32 s{sTRY}, 8")
    a(f"s_cbranch_scc1 L_{tag}_cl2")
    a(f"s_add_u32 s{sTK + 1}, s{sTK + 1}, 1")
    a(f"s_and_b32 s{sTK + 1}, s{sTK + 1}, 7")
    a(f"s_lshl_b32 s{sTK}, s{sTK + 1}, 5")
    a(f"v_mov_b32 v1, s{sTK}")
    a("v_mov_b32 v3, 1")
    a(f"buffer_atomic_add v3, v1, {sr(SRD_DBG)}, 0 offen sc0 sc1")
    a(f"s_branch L_{tag}_cl1")
    a.label(f"L_{tag}_cl2")
    a(f"s_lshl_b32 s{sTK}, s{sTK}, 3")
    a(f"s_or_b32 s{sTK}, s{sTK}, s{sTK + 1}")
    a(f"v_mov_b32 v3, s{sTK}")
    a("ds_write_b32 v2, v3")
    a("v_mov_b32 v1, 0")
    a(f"s_and_b32 s{sTK + 1}, s{sTK}, 255")
    a(f"s_lshl_b32 s{sTK + 1}, s{sTK + 1}, 7")
    a(f"s_add_u32 s{sTK + 1}, s{sTK + 1}, {WS_CLM:#x}")
    a(f"s_cmp_ge_u32 s{sTK}, 256")
    a(f"s_cbranch_scc1 L_{tag}_cl4")
    a(f"buffer_store_dword v1, v1, {sr(SRD_WS)}, s{sTK + 1} offen")
    a(f"s_add_u32 s{sTK + 1}, s{sTK + 1}, 0x8000")
    a(f"buffer_store_dword v1, v1, {sr(SRD_WS)}, s{sTK + 1} offen")
    tbl_offset(a, sTK)
    a(f"buffer_store_dword v3, v1, {sr(SRD_WS)}, s{sTK} offen")
    a.label(f"L_{tag}_cl4")
    a("s_mov_b64 exec, -1")
    a("s_waitcnt lgkmcnt(0)")
    a.label(f"L_{tag}_cl3")


def ticket_wait(a, tag, ldsoff):
    a(f"v_mov_b32 v2, {ldsoff}")
    a("s_barrier")
    a("ds_read_b32 v3, v2")
    a("s_waitcnt lgkmcnt(0)")
    a("v_readfirstlane_b32 s2, v3")
    a("s_nop 3")
    a("s_cmp_ge_u32 s2, 256")
    a(f"s_cbranch_scc1 L_{tag}_end")


def hint_load(a, tag):
    tbl_offset(a, sTK)
    a("s_waitcnt lgkmcnt(0)")
    a(f"s_load_dword s2, {sr(S_WS, 2)}, s{sTK}")
    srd(a, SRD_WS, S_WS, WS_SIZE)
    a(f"s_mov_b32 s{sOK}, 0")
    a("s_waitcnt lgkmcnt(0)")
    if OPT["badtbl"]:
        a(f"s_and_b32 s2, s2, {OPT['badtbl']}")
    a("s_and_b32 s2, s2, 255")
    a.label(f"L_{tag}_item")


def clm_base(tag):
    return WS_CLM + (0 if tag == "attn" else 0x8000)


def hint_claim(a, tag, vA, vD):
    a("s_mov_b64 exec, 1")
    a(f"s_lshl_b32 s{sTK}, s2, 7")
    a(f"s_add_u32 s{sTK}, s{sTK}, {clm_base(tag):#x}")
    a(f"v_mov_b32 v{vA}, 0")
    a(f"v_mov_b32 v{vD}, 1")
    a(f"buffer_atomic_or v{vD}, v{vA}, {sr(SRD_WS)}, s{sTK} offen sc0 sc1")
    a("s_mov_b64 exec, -1")


def hint_verdict(a, tag, vA, vD, ldsoff):
    a(f"v_readfirstlane_b32 s{sTK}, v{vD}")
    a("s_nop 3")
    a(f"s_andn2_b32 s{sTK}, s{sTK}, s{sOK}")
    a(f"s_cmp_lg_u32 s{sTK}, 0")
    a(f"s_mov_b32 s{sTRY}, s2")
    a(f"s_cbranch_scc1 L_{tag}_hslow")
    a.label(f"L_{tag}_hback")
    a(f"v_mov_b32 v{vA}, {ldsoff}")
    a(f"v_mov_b32 v{vD}, s{sTRY}")
    a(f"ds_write_b32 v{vA}, v{vD}")
    a("s_waitcnt lgkmcnt(0)")


def hint_slow(a, tag, vA, vD):
    sN = 4
    a.label(f"L_{tag}_hslow")
    a("s_mov_b64 exec, 1")
    a(f"s_mov_b32 s{sN}, 0")
    a.label(f"L_{tag}_hs1")
    a(f"s_add_u32 s{sN}, s{sN}, 1")
    a(f"s_add_u32 s{sTRY}, s{sTRY}, 9")
    a(f"s_and_b32 s{sTRY}, s{sTRY}, 255")
    a(f"s_cmp_gt_u32 s{sN}, 256")
    a(f"s_cbranch_scc1 L_{tag}_hs2")
    a(f"s_lshl_b32 s{sTK}, s{sTRY}, 7")
    a(f"s_add_u32 s{sTK}, s{sTK}, {clm_base(tag):#x}")
    a(f"v_mov_b32 v{vA}, 0")
    a(f"v_mov_b32 v{vD}, 1")
    a(f"buffer_atomic_or v{vD}, v{vA}, {sr(SRD_WS)}, s{sTK} offen sc0 sc1")
    a("s_waitcnt vmcnt(0)")
    a(f"v_readfirstlane_b32 s{sTK}, v{vD}")
    a("s_nop 3")
    a(f"s_cmp_lg_u32 s{sTK}, 0")
    a(f"s_cbranch_scc1 L_{tag}_hs1")
    a(f"s_branch L_{tag}_hs3")
    a.label(f"L_{tag}_hs2")
    a(f"s_mov_b32 s{sTRY}, 0x8000")
    a.label(f"L_{tag}_hs3")
    a("s_mov_b64 exec, -1")
    a(f"s_branch L_{tag}_hback")
    a.label(f"L_{tag}_restart")
    a("s_waitcnt vmcnt(0) lgkmcnt(0)")
    a("s_barrier")
    a(f"s_mov_b32 s2, s{sTRY}")
    a(f"s_mov_b32 s{sOK}, 1")
    a("s_setprio 0")
    a("s_cmp_ge_u32 s2, 256")
    a(f"s_cbranch_scc1 L_{tag}_end")
    a(f"s_branch L_{tag}_item")


def hint_read(a, vA, vD, ldsoff):
    a(f"v_mov_b32 v{vA}, {ldsoff}")
    a(f"ds_read_b32 v{vD}, v{vA}")


def hint_check(a, tag, vD):
    a(f"v_readfirstlane_b32 s{sTRY}, v{vD}")
    a("s_nop 3")
    a(f"s_cmp_lg_u32 s{sTRY}, s2")
    a(f"s_cbranch_scc1 L_{tag}_restart")


SRD_X, SRD_W, SRD_WK, SRD_WV, SRD_PF, SRD_OUT = 36, 40, 48, 52, 4, 48
sXOFF, sWOFF, sWSTG, sSLOT, sCNT, sDELTA = 61, 62, 64, 65, 66, 67
sOBASE, sOJ, sOI, sSCALE = 68, 69, 70, 72
sSEC, sM0, sCOL0, sWSTR, sNT, sEXO, sEXS, sRSLOT = 74, 75, 76, 77, 78, 79, 80, 63
sPFO, sPFS, sPFN = 9, 10, 11


class G:
    def __init__(self, kind):
        self.kind = kind
        proj = kind == "proj"
        self.NI, self.NJ = (4, 2) if proj else (2, 2)
        self.XB = 32768 if proj else 16384
        self.NSLOT = 3 if proj else 4
        self.NL = 4 if proj else OPT["nl3"]
        self.SLOT = self.XB + 16384
        self.XP = self.XB // 1024 // self.NL
        self.WP = 16 // self.NL
        self.NST = 16
        self.EXB = self.NSLOT * self.SLOT
        self.lds = self.NSLOT * self.SLOT + (16384 if proj else 64)
        self.ACC = 128 if proj else 64
        self.nacc = self.NI * self.NJ * 16
        fsz = self.NI * 4 + self.NJ * 4
        self.F = [16, 16 + fsz]
        self.vXA, self.vWA, self.vEXX, self.vEXW, self.vST = 4, 8, 10, 12, 13
        self.EXF = 16 + 2 * fsz
        self.EXACC = self.EXF + 12
        self.nvgpr = self.ACC + self.nacc

    def fx(self, b, i):
        return self.F[b] + 4 * i

    def fw(self, b, j):
        return self.F[b] + self.NI * 4 + 4 * j

    def acc(self, i, j):
        return self.ACC + (i * self.NJ + j) * 16


def gemm_reads(g, t, buf):
    proj = g.kind == "proj"
    wr = [f"ds_read_b64_tr_b16 {vr(g.fw(buf, j) + 2 * u, 2)}, v{g.vWA + j} offset:{4096 * t + (1024 if proj else 2048) * u}"
          for j in range(g.NJ) for u in range(2)]
    if proj:
        xr = [f"ds_read_b128 {vr(g.fx(buf, i), 4)}, v{g.vXA + t} offset:{4096 * i}" for i in range(g.NI)]
    else:
        xr = [f"ds_read_b128 {vr(g.fx(buf, i), 4)}, v{g.vXA} offset:{4096 * i + 1024 * t}" for i in range(g.NI)]
    return [xr[0]] + wr + xr[1:]


def gemm_extra_reads(g, e):
    return [f"ds_read_b64_tr_b16 {vr(g.EXF + 2 * u, 2)}, v{g.vEXW} offset:{2048 * e + 256 * u}" for u in range(2)] + \
           [f"ds_read_b128 {vr(g.EXF + 4 + 4 * th, 4)}, v{g.vEXX + e} offset:{2048 * th}" for th in range(2)]


def gemm_step(a, g, t, swap, reads, pre=(), extra_mfma=(), post_valu=()):
    buf = t & 1
    a.many(pre)
    mf = []
    for i in range(g.NI):
        for j in range(g.NJ):
            x, w, c = vr(g.fx(buf, i), 4), vr(g.fw(buf, j), 4), vr(g.acc(i, j), 16)
            mf.append(f"{MF32} {c}, {x}, {w}, {c}" if swap else f"{MF32} {c}, {w}, {x}, {c}")
    mf += list(extra_mfma)
    reads, post_valu = list(reads), list(post_valu)
    for m in mf:
        a(m)
        for _ in range(2):
            if reads:
                a(reads.pop(0))
        if not reads:
            for _ in range(2):
                if post_valu:
                    a(post_valu.pop(0))
    a.many(reads + post_valu)


def gemm_compute(a, g, tag, swap, extras, check=None):
    proj = g.kind == "proj"

    def ex_mfma():
        w = vr(g.EXF, 4)
        out = []
        for th in range(2):
            x, c = vr(g.EXF + 4 + 4 * th, 4), vr(g.EXACC + 4 * th, 4)
            out.append(f"{MF16} {c}, {x}, {w}, {c}" if extras == "V" else f"{MF16} {c}, {w}, {x}, {c}")
        return out

    def adv(reg):
        return f"v_add_u32 v{reg}, s{sDELTA}, v{reg}"

    def stage(last):
        for t in range(4):
            pre = ["s_waitcnt lgkmcnt(0)"]
            reads, post, em = [], [], []
            if t < 3:
                reads = gemm_reads(g, t + 1, (t + 1) & 1)
                if extras and t == 1:
                    reads += gemm_extra_reads(g, 1)
                if not last:
                    if proj:
                        post.append(adv(g.vXA + t + 1))
                    if t == 2:
                        post += [adv(g.vWA), adv(g.vWA + 1), adv(g.vXA)]
                        if extras:
                            post += [adv(g.vEXX), adv(g.vEXX + 1), f"v_xor_b32 v{g.vEXW}, 0x2000, v{g.vEXW}"]
            elif not last:
                pre.append("s_barrier")
                reads = gemm_reads(g, 0, 0)
                if extras:
                    reads += gemm_extra_reads(g, 0)
            if extras and t in (0, 2):
                em = ex_mfma()
            gemm_step(a, g, t, swap, reads, pre, em, post)

    stamp_mid(a, 4)
    a("s_barrier")
    stamp_mid(a, 0)
    a.many(gemm_reads(g, 0, 0))
    if extras:
        a.many(gemm_extra_reads(g, 0))
    a(f"s_mov_b32 s{sCNT}, 0")
    a(f"s_mov_b32 s{sRSLOT}, 0")
    a.raw(".p2align 3")
    a.label(f"L_{tag}_loop")
    a(f"s_add_u32 s{sRSLOT}, s{sRSLOT}, 1")
    a(f"s_cmp_eq_u32 s{sRSLOT}, {g.NSLOT}")
    csel(a, sDELTA, f"{-(g.NSLOT - 1) * g.SLOT & 0xffffffff:#x}", g.SLOT)
    a(f"s_cselect_b32 s{sRSLOT}, 0, s{sRSLOT}")
    stage(False)
    a(f"s_add_u32 s{sCNT}, s{sCNT}, 1")
    a(f"s_cmp_lt_u32 s{sCNT}, {g.NST - 1}")
    a(f"s_cbranch_scc1 L_{tag}_loop")
    if check:
        hint_read(a, 14, 15, g.EXB)
    stage(True)
    if check:
        hint_check(a, check, 15)
    stamp_mid(a, 1)


def gemm_loader(a, g, tag, vX, vW):
    proj = g.kind == "proj"
    per, LA = g.XP + g.WP, g.NSLOT
    lb = OPT["ld1"] if proj else ""
    pf = proj and OPT["pf"]

    def prefetch():
        a(f"buffer_load_dword v9, v8, {sr(SRD_PF)}, s{sPFO} offen{OPT['pfb']}")
        a(f"s_add_u32 s{sPFO}, s{sPFO}, s{sPFS}")

    def prefetch_if(hi, lbl):
        a(f"s_cmp_ge_u32 s{sWAVE}, 6")
        a(f"s_cbranch_scc{0 if hi else 1} {lbl}")
        prefetch()
        a.label(lbl)

    def issue(lo=0, hi=None):
        hi = per if hi is None else hi
        for n in range(lo, hi):
            isx = n < g.XP
            i = n if isx else n - g.XP
            if i % 4 == 0 or n == lo:
                base = (i // 4) * 4096 if isx else 0
                a(f"s_add_u32 m0, s{sSLOT if isx else sEXS + 0}, {base}" if isx else f"s_add_u32 m0, s{sT3}, 0")
                a("s_nop 0")
            if isx:
                a(f"buffer_load_dwordx4 v{vX[i]}, {sr(SRD_X)}, s{sXOFF} offen offset:{(i % 4) * 1024}{lb} lds")
            else:
                a(f"buffer_load_dwordx4 v{vW[i]}, {sr(SRD_W)}, s{sWOFF} offen offset:{(i % 4) * 1024}{lb} lds")
        if hi == per:
            a(f"s_add_u32 s{sXOFF}, s{sXOFF}, {128 if proj else 16384}")
            a(f"s_add_u32 s{sWOFF}, s{sWOFF}, s{sWSTG}")
            a(f"s_add_u32 s{sRSLOT}, s{sRSLOT}, 1")
            a(f"s_cmp_eq_u32 s{sRSLOT}, {g.NSLOT}")
            csel(a, sDELTA, f"{-(g.NSLOT - 1) * g.SLOT & 0xffffffff:#x}", g.SLOT)
            a(f"s_cselect_b32 s{sRSLOT}, 0, s{sRSLOT}")
            a(f"s_add_u32 s{sSLOT}, s{sSLOT}, s{sDELTA}")
            a(f"s_add_u32 s{sT3}, s{sT3}, s{sDELTA}")

    def maybe_extra(lbl):
        if not proj:
            return
        a(f"s_cmp_lg_u32 s{sSEC}, 0")
        a(f"s_cbranch_scc1 {lbl}")
        a(f"s_mov_b32 m0, s{sEXS}")
        a("s_nop 0")
        a(f"buffer_load_dwordx4 v6, {sr(SRD_WK)}, s{sEXO} offen lds")
        a(f"s_add_u32 m0, s{sEXS}, 4096")
        a("s_nop 0")
        a(f"buffer_load_dwordx4 v6, {sr(SRD_WV)}, s{sEXO} offen lds")
        a(f"s_add_u32 s{sEXO}, s{sEXO}, 4096")
        a(f"s_xor_b32 s{sEXS}, s{sEXS}, 0x2000")
        a.label(lbl)

    a(f"s_mov_b32 s{sRSLOT}, 0")
    stamp_mid(a, 3)
    maybe_extra(f"L_{tag}_x0")
    issue()
    maybe_extra(f"L_{tag}_x1")
    pre = min(OPT["pre"], per)
    pre = pre if proj else min(pre * 4 // g.NL, per)
    issue(0, pre)
    stamp_mid(a, 4)
    a(f"s_waitcnt vmcnt({pre})")
    stamp_mid(a, 5)
    a("s_barrier")
    stamp_mid(a, 0)
    if pre < per:
        issue(pre, per)
    if pf:
        prefetch_if(False, f"L_{tag}_p2")
        a(f"s_cmp_ge_u32 s{sWAVE}, 6")
        a(f"s_cselect_b32 s{sPFN}, {OPT['pf0']}, {OPT['pf0'] + OPT['pfd']}")
    for _ in range(LA - 2):
        issue()
    if not proj:
        a(f"s_cmp_lg_u32 s{sWAVE}, 4")
        a(f"s_cbranch_scc1 L_{tag}_noc")
        hint_claim(a, tag, 14, 15)
        a.label(f"L_{tag}_noc")
    a(f"s_mov_b32 s{sCNT}, 0")
    a.label(f"L_{tag}_lloop")
    a(f"s_waitcnt vmcnt({(LA - 2) * per})")
    a("s_barrier")
    if OPT["lstamp"] and STAMP:
        for k_, n_ in ((1, 2), (4, 3), (8, 4), (11, 5)):
            a(f"s_cmp_lg_u32 s{sCNT}, {k_}")
            a(f"s_cbranch_scc1 L_{tag}_ls{k_}")
            stamp_mid(a, n_)
            a.label(f"L_{tag}_ls{k_}")
    maybe_extra(f"L_{tag}_x2")
    issue()
    if pf:
        a(f"s_cmp_eq_u32 s{sCNT}, s{sPFN}")
        a(f"s_cbranch_scc0 L_{tag}_nopf")
        prefetch()
        a(f"s_add_u32 s{sPFN}, s{sPFN}, {2 * OPT['pfd']}")
        a(f"s_cmp_gt_u32 s{sPFN}, {OPT['pf0'] + 4 * OPT['pfd']}")
        a(f"s_cselect_b32 s{sPFN}, 64, s{sPFN}")
        a.label(f"L_{tag}_nopf")
    a(f"s_add_u32 s{sCNT}, s{sCNT}, 1")
    a(f"s_cmp_lt_u32 s{sCNT}, {g.NST - LA}")
    a(f"s_cbranch_scc1 L_{tag}_lloop")
    for s in range(g.NST - LA, g.NST - 1):
        a(f"s_waitcnt vmcnt({(g.NST - 2 - s) * per})")
        if not proj and s == g.NST - LA:
            a(f"s_cmp_lg_u32 s{sWAVE}, 4")
            a(f"s_cbranch_scc1 L_{tag}_nov")
            hint_verdict(a, tag, 14, 15, g.EXB)
            a.label(f"L_{tag}_nov")
        a("s_barrier")
        if s + 2 <= g.NST - 1:
            maybe_extra(f"L_{tag}_x3_{s}")
    if not proj:
        hint_read(a, 14, 15, g.EXB)
        a("s_waitcnt lgkmcnt(0)")
        hint_check(a, tag, 15)
    stamp_mid(a, 1)
    stamp_end(a, 0 if proj else 2)
    a("s_endpgm")


def proj_group(a, sg):
    a(f"s_lshr_b32 s{sSEC}, s{sg}, 1")
    a(f"s_cmp_eq_u32 s{sSEC}, 0")
    csel(a, sWSTR, 2048, 6144)
    srd_sel(a, SRD_X, 16, 26, 0x400000)
    srd_sel(a, SRD_W, 18, 28, 0x200000, 0x600000)


def proj_pf_setup(a, tag, sg, sidx, sw2):
    a(f"s_bitcmp1_b32 s{sw2}, 0")
    for i in range(3):
        a(f"s_cselect_b32 s{SRD_PF + i}, s{SRD_W + i}, s{SRD_X + i}")
    a(f"s_mov_b32 s{SRD_PF + 3}, 0x00020000")
    a(f"s_cbranch_scc1 L_{tag}_pfw")
    a("v_and_b32 v1, 31, v0")
    a("v_lshlrev_b32 v1, 11, v1")
    a("v_lshrrev_b32 v8, 5, v0")
    a("v_lshl_add_u32 v8, v8, 7, v1")
    a(f"s_and_b32 s{sT1}, s{sg}, 1")
    a(f"s_lshl_b32 s{sT1}, s{sT1}, 5")
    a(f"s_add_u32 s{sT1}, s{sT1}, s{sidx}")
    a(f"s_lshl_b32 s{sT1}, s{sT1}, 16")
    a(f"s_lshl_b32 s{sT2}, s{sw2}, 7")
    a(f"s_add_u32 s{sPFO}, s{sT1}, s{sT2}")
    a(f"s_mov_b32 s{sPFS}, 512")
    a(f"s_branch L_{tag}_pfdone")
    a.label(f"L_{tag}_pfw")
    a("v_lshrrev_b32 v8, 5, v0")
    a("v_lshlrev_b32 v8, 6, v8")
    a("v_bfe_u32 v1, v0, 4, 1")
    a("v_add_u32 v8, v8, v1")
    a(f"v_mul_lo_u32 v8, v8, s{sWSTR}")
    a("v_and_b32 v1, 15, v0")
    a("v_lshl_add_u32 v8, v1, 7, v8")
    a(f"s_lshr_b32 s{sT2}, s{sw2}, 1")
    a(f"s_lshl_b32 s{sT2}, s{sT2}, 6")
    a(f"s_add_u32 s{sT2}, s{sT2}, s{sidx}")
    a(f"s_lshl_b32 s{sT2}, s{sT2}, 1")
    a(f"s_mul_i32 s{sT2}, s{sT2}, s{sWSTR}")
    a(f"s_sub_u32 s{sT1}, s{sSEC}, 1")
    a(f"s_max_i32 s{sT1}, s{sT1}, 0")
    a(f"s_lshl_b32 s{sT1}, s{sT1}, 11")
    a(f"s_add_u32 s{sPFO}, s{sT2}, s{sT1}")
    a(f"s_lshl_b32 s{sPFS}, s{sWSTR}, 8")
    a.label(f"L_{tag}_pfdone")


def gen_proj():
    g = G("proj")
    a = A()
    kernel_head(a, "proj_kernel")
    entry(a, "proj")
    a("s_waitcnt lgkmcnt(0)")
    ticket_issue(a, "proj", 4)
    srd(a, SRD_WS, S_WS, WS_SIZE)
    srd(a, SRD_WK, 20, 0x10000)
    srd(a, SRD_WV, 22, 0x10000)
    a(f"s_cmp_ge_u32 s{sWAVE}, 4")
    a("s_cbranch_scc1 L_proj_pre_l")
    if OPT["pf"]:
        proj_group(a, sXCC)
        a(f"s_lshr_b32 s{sT0}, s{sHW}, 2")
        a(f"s_and_b32 s{sT0}, s{sT0}, 0x18")
        a(f"s_and_b32 s{sT3}, s{sHW}, 7")
        a(f"s_or_b32 s{sT0}, s{sT0}, s{sT3}")
        proj_pf_setup(a, "projA", sXCC, sT0, sWAVE)
        a(f"buffer_load_dword v15, v8, {sr(SRD_PF)}, s{sPFO} offen{OPT['pfb']}")
        a(f"s_cmp_lg_u32 s{sSEC}, 0")
        a("s_cbranch_scc1 L_proj_nokv")
        a(f"s_lshl_b32 s{sT0}, s{sT0}, 11")
        a("v_and_b32 v1, 15, v0")
        a("v_lshlrev_b32 v1, 7, v1")
        a(f"s_cmp_eq_u32 s{sWAVE}, 2")
        a("s_cbranch_scc0 L_proj_nok")
        a(f"buffer_load_dword v15, v1, {sr(SRD_WK)}, s{sT0} offen{OPT['pfb']}")
        a.label("L_proj_nok")
        a(f"s_cmp_eq_u32 s{sWAVE}, 3")
        a("s_cbranch_scc0 L_proj_nokv")
        a(f"buffer_load_dword v15, v1, {sr(SRD_WV)}, s{sT0} offen{OPT['pfb']}")
        a.label("L_proj_nokv")
    a(f"s_lshr_b32 s{sT0}, s{sWAVE}, 1")
    a(f"s_and_b32 s{sT1}, s{sWAVE}, 1")
    a("v_and_b32 v1, 31, v0")
    a("v_lshlrev_b32 v1, 7, v1")
    a(f"s_lshl_b32 s{sT2}, s{sT0}, 14")
    a(f"v_add_u32 v1, s{sT2}, v1")
    a("v_bfe_u32 v2, v0, 1, 3")
    a("v_lshrrev_b32 v3, 5, v0")
    for t in range(4):
        a(f"v_add_u32 v14, {2 * t}, v3")
        a("v_xor_b32 v14, v14, v2")
        a(f"v_lshl_add_u32 v{g.vXA + t}, v14, 4, v1")
    a("v_bfe_u32 v2, v0, 2, 2")
    a("v_lshl_add_u32 v1, v3, 3, v2")
    a("v_lshlrev_b32 v1, 8, v1")
    a("v_bfe_u32 v14, v0, 4, 1")
    a("v_lshl_add_u32 v1, v14, 5, v1")
    a("v_and_b32 v14, 3, v0")
    a("v_lshl_add_u32 v1, v14, 3, v1")
    a(f"v_add_u32 v1, {g.XB}, v1")
    a(f"s_lshl_b32 s{sT2}, s{sT1}, 1")
    for j in range(2):
        a(f"s_add_u32 s{sT3}, s{sT2}, {j}")
        a(f"v_xor_b32 v14, s{sT3}, v2")
        a(f"v_lshl_add_u32 v{g.vWA + j}, v14, 6, v1")
    a(f"v_lshlrev_b32 v{g.vST}, 4, v0")
    a("v_and_b32 v1, 15, v0")
    a("v_lshlrev_b32 v1, 7, v1")
    a("v_bfe_u32 v2, v0, 1, 3")
    a("v_lshrrev_b32 v3, 4, v0")
    for e in range(2):
        a(f"v_add_u32 v14, {4 * e}, v3")
        a("v_xor_b32 v14, v14, v2")
        a(f"v_lshl_add_u32 v{g.vEXX + e}, v14, 4, v1")
    a("v_bfe_u32 v2, v0, 2, 2")
    a("v_lshl_add_u32 v1, v3, 3, v2")
    a("v_lshlrev_b32 v1, 6, v1")
    a("v_and_b32 v14, 3, v0")
    a("v_lshl_add_u32 v1, v14, 3, v1")
    a(f"s_lshl_b32 s{sT2}, s{sT0}, 12")
    a(f"s_lshl_b32 s{sT3}, s{sT1}, 5")
    a(f"s_add_u32 s{sT2}, s{sT2}, s{sT3}")
    a(f"s_add_u32 s{sT2}, s{sT2}, {g.EXB}")
    a(f"v_add_u32 v{g.vEXW}, s{sT2}, v1")
    for r in range(g.nacc):
        a(f"v_mov_b32 v{g.ACC + r}, 0")
    for r in range(8):
        a(f"v_mov_b32 v{g.EXACC + r}, 0")

    def decode():
        stamp_mid(a, 2)
        a(f"s_and_b32 s{sT0}, s2, 7")
        proj_group(a, sT0)
        a(f"s_lshr_b32 s{sT1}, s2, 3")
        a(f"s_and_b32 s{sT0}, s{sT0}, 1")
        a(f"s_lshl_b32 s{sM0}, s{sT0}, 10")
        a(f"s_and_b32 s{sT2}, s{sT1}, 3")
        a(f"s_lshl_b32 s{sT2}, s{sT2}, 8")
        a(f"s_add_u32 s{sM0}, s{sM0}, s{sT2}")
        a(f"s_lshr_b32 s{sNT}, s{sT1}, 2")

    ticket_wait(a, "proj", 2 * g.SLOT)
    decode()

    a(f"s_lshr_b32 s{sT0}, s{sWAVE}, 1")
    a(f"s_and_b32 s{sT1}, s{sWAVE}, 1")
    a(f"s_lshl_b32 s{sT2}, s{sNT}, 12")
    for e in range(2):
        a(f"v_add_u32 v{g.vEXX + e}, s{sT2}, v{g.vEXX + e}")
    a(f"s_lshl_b32 s{sT2}, s{sNT}, 2")
    a(f"s_lshl_b32 s{sT3}, s{sT1}, 1")
    a(f"s_add_u32 s{sT2}, s{sT2}, s{sT3}")
    a(f"s_lshr_b32 s{sT3}, s{sM0}, 5")
    a(f"s_lshl_b32 s{sOBASE}, s{sT0}, 2")
    a(f"s_add_u32 s{sT3}, s{sT3}, s{sOBASE}")
    a(f"s_cmp_le_u32 s{sSEC}, 1")
    csel(a, sOJ, 0x20000, 0x40000)
    csel(a, sOI, 2048, 4096)
    a(f"s_cselect_b32 s{sSCALE}, {f32bits(QSCALE):#x}, 1.0")
    a(f"s_mov_b32 s{sSCALE+1}, s{sSCALE}")
    a(f"s_mul_i32 s{sOBASE}, s{sT2}, s{sOJ}")
    a(f"s_mul_i32 s{sT3}, s{sT3}, s{sOI}")
    a(f"s_add_u32 s{sOBASE}, s{sOBASE}, s{sT3}")
    a(f"s_mov_b32 s{sT2}, {WS_QA:#x}")
    for sec, base in ((1, WS_QB), (2, WS_KVB), (3, WS_KVB + 2048)):
        a(f"s_cmp_eq_u32 s{sSEC}, {sec}")
        a(f"s_cmov_b32 s{sT2}, {base:#x}")
    a(f"s_add_u32 s{sOBASE}, s{sOBASE}, s{sT2}")
    a(f"s_cmp_eq_u32 s{sSEC}, 3")
    a("s_cbranch_scc1 L_proj_V")
    a(f"s_cmp_eq_u32 s{sSEC}, 0")
    a("s_cbranch_scc0 L_proj_QK")
    a(f"s_cmp_ge_u32 s{sWAVE}, 2")
    a("s_cbranch_scc1 L_proj_AV")

    st = OPT["st1"]

    def epi(scale):
        a("s_nop 7")
        a("s_nop 7")
        for i in range(g.NI):
            for j in range(g.NJ):
                c = g.acc(i, j)
                t = g.F[0] + ((i * g.NJ + j) & 1) * 8
                if scale:
                    for r in range(0, 16, 2):
                        a(f"v_pk_mul_f32 {vr(c + r, 2)}, {vr(c + r, 2)}, {sr(sSCALE, 2)}")
                for r in range(8):
                    a(f"v_cvt_pk_bf16_f32 v{t + r}, v{c + 2 * r}, v{c + 2 * r + 1}")
                a(f"s_mul_i32 s{sT0}, s{sOJ}, {j}")
                a(f"s_mul_i32 s{sT1}, s{sOI}, {i}")
                a(f"s_add_u32 s{sT0}, s{sT0}, s{sT1}")
                a(f"s_add_u32 s{sT0}, s{sT0}, s{sOBASE}")
                a(f"buffer_store_dwordx4 {vr(t, 4)}, v{g.vST}, {sr(SRD_WS)}, s{sT0} offen{st}")
                a(f"buffer_store_dwordx4 {vr(t + 4, 4)}, v{g.vST}, {sr(SRD_WS)}, s{sT0} offen offset:1024{st}")

    def epi_extra(part):
        a("v_and_b32 v1, 15, v0")
        a("v_lshlrev_b32 v1, 4, v1")
        a("v_bfe_u32 v2, v0, 4, 1")
        a("v_lshl_add_u32 v1, v2, 9, v1")
        a("v_lshrrev_b32 v2, 5, v0")
        a("v_lshl_add_u32 v1, v2, 3, v1")
        a(f"s_lshr_b32 s{sT0}, s{sM0}, 5")
        a(f"s_add_u32 s{sT0}, s{sT0}, s{sNT}")
        a(f"s_lshl_b32 s{sT0}, s{sT0}, 12")
        a(f"s_add_u32 s{sT0}, s{sT0}, {WS_KVA + (2048 if part == 'V' else 0):#x}")
        a(f"s_and_b32 s{sT1}, s{sWAVE}, 1")
        a(f"s_lshl_b32 s{sT1}, s{sT1}, {10 if part == 'K' else 8}")
        a(f"s_add_u32 s{sT0}, s{sT0}, s{sT1}")
        for th in range(2):
            c = g.EXACC + 4 * th
            a(f"v_cvt_pk_bf16_f32 v{g.EXF + 2 * th}, v{c}, v{c + 1}")
            a(f"v_cvt_pk_bf16_f32 v{g.EXF + 2 * th + 1}, v{c + 2}, v{c + 3}")
            a(f"buffer_store_dwordx2 {vr(g.EXF + 2 * th, 2)}, v1, {sr(SRD_WS)}, s{sT0} offen offset:{th * (256 if part == 'K' else 1024)}{st}")

    for lbl, tag, swap, ex, scale in ((None, "proj_AK", False, "K", True), ("L_proj_AV", "proj_AV", False, "V", True),
                                      ("L_proj_QK", "proj_QK", False, None, True), ("L_proj_V", "proj_V", True, None, False)):
        if lbl:
            a.label(lbl)
        gemm_compute(a, g, tag, swap, ex)
        if ex:
            a("s_nop 7")
            epi_extra(ex)
        epi(scale)
        stamp_end(a, 0)
        a("s_endpgm")

    a.label("L_proj_pre_l")
    vX = list(range(16, 24))
    vW = list(range(24, 28))
    a("v_lshrrev_b32 v1, 3, v0")
    a("v_lshlrev_b32 v1, 11, v1")
    a("v_lshrrev_b32 v10, 4, v0")
    a("v_and_b32 v7, 7, v0")
    a("v_xor_b32 v11, v10, v7")
    a("v_xor_b32 v12, 4, v11")
    a("v_lshl_add_u32 v11, v11, 4, v1")
    a("v_lshl_add_u32 v12, v12, 4, v1")
    for i in range(8):
        a(f"v_add_u32 v{vX[i]}, {i * 16384 - (i % 4) * 1024}, v{11 + (i & 1)}")
    a("v_lshlrev_b32 v6, 4, v0")
    ticket_end(a, "proj", 4, 2 * g.SLOT)
    ticket_wait(a, "proj", 2 * g.SLOT)
    decode()
    a(f"s_sub_u32 s{sT0}, s{sWAVE}, 4")
    a(f"v_mul_lo_u32 v1, v10, s{sWSTR}")
    a("v_lshlrev_b32 v3, 2, v10")
    a("v_and_b32 v7, 15, v0")
    a("v_xor_b32 v3, v3, v7")
    a(f"v_lshl_add_u32 v{vW[0]}, v3, 4, v1")
    a(f"s_lshl_b32 s{sT1}, s{sWSTR}, 2")
    a(f"s_sub_u32 s{sT1}, s{sT1}, 1024")
    for i in range(1, 4):
        a(f"v_add_u32 v{vW[i]}, s{sT1}, v{vW[i - 1]}")
    a(f"s_lshl_b32 s{sT1}, s{sT0}, 6")
    a(f"s_add_u32 s{sT1}, s{sT1}, s{sM0}")
    a(f"s_lshl_b32 s{sXOFF}, s{sT1}, 11")
    a(f"s_sub_u32 s{sT2}, s{sSEC}, 1")
    a(f"s_max_i32 s{sT2}, s{sT2}, 0")
    a(f"s_lshl_b32 s{sT2}, s{sT2}, 11")
    a(f"s_lshl_b32 s{sT1}, s{sNT}, 8")
    a(f"s_add_u32 s{sT2}, s{sT2}, s{sT1}")
    a(f"s_mul_i32 s{sT1}, s{sT0}, s{sWSTR}")
    a(f"s_lshl_b32 s{sT1}, s{sT1}, 4")
    a(f"s_add_u32 s{sWOFF}, s{sT1}, s{sT2}")
    a(f"s_lshl_b32 s{sWSTG}, s{sWSTR}, 6")
    a(f"s_lshl_b32 s{sSLOT}, s{sT0}, 13")
    a(f"s_lshl_b32 s{sEXO}, s{sT0}, 10")
    a(f"s_add_u32 s{sEXS}, s{sEXO}, {g.EXB}")
    if OPT["pf"]:
        a(f"s_and_b32 s{sOJ}, s2, 7")
        a(f"s_lshr_b32 s{sOI}, s2, 3")
        proj_pf_setup(a, "projB", sOJ, sOI, sT0)
        a(f"s_add_u32 s{sPFO}, s{sPFO}, s{sPFS}")
    a(f"s_lshl_b32 s{sT3}, s{sT0}, 12")
    a(f"s_add_u32 s{sT3}, s{sT3}, {g.XB}")
    gemm_loader(a, g, "proj", vX, vW)
    a.label("L_proj_end")
    a("s_endpgm")
    return a.text(), kernel_desc("proj_kernel", g.nvgpr), g.lds, 512


def gen_outp():
    g = G("outp")
    a = A()
    kernel_head(a, "outp_kernel")
    entry(a, "outp")
    hint_load(a, "outp")
    stamp_mid(a, 2)
    a(f"s_bfe_u32 s{sSEC}, s2, 0x10002")
    a(f"s_and_b32 s{sT0}, s2, 3")
    a(f"s_lshl_b32 s{sT0}, s{sT0}, 2")
    a(f"s_bfe_u32 s{sT1}, s2, 0x20003")
    a(f"s_add_u32 s{sM0}, s{sT0}, s{sT1}")
    a(f"s_lshr_b32 s{sNT}, s2, 5")
    a(f"s_cmp_ge_u32 s{sWAVE}, 4")
    a("s_cbranch_scc1 L_outp_loader")
    srd(a, SRD_OUT, S_OUT, 0x800000)
    a(f"s_lshr_b32 s{sT0}, s{sWAVE}, 1")
    a(f"s_and_b32 s{sT1}, s{sWAVE}, 1")
    a(f"s_lshl_b32 s{sT2}, s{sT0}, 13")
    a("v_lshlrev_b32 v1, 4, v0")
    a(f"v_add_u32 v{g.vXA}, s{sT2}, v1")
    a("v_lshrrev_b32 v3, 5, v0")
    a("v_bfe_u32 v2, v0, 2, 2")
    a("v_lshl_add_u32 v1, v3, 2, v2")
    a("v_lshlrev_b32 v1, 8, v1")
    a("v_and_b32 v14, 1, v0")
    a("v_lshl_add_u32 v1, v14, 5, v1")
    a("v_bfe_u32 v14, v0, 4, 1")
    a("v_lshl_add_u32 v1, v14, 4, v1")
    a("v_bfe_u32 v14, v0, 1, 1")
    a("v_lshl_add_u32 v1, v14, 3, v1")
    a(f"v_add_u32 v1, {g.XB}, v1")
    a(f"s_lshl_b32 s{sT2}, s{sT1}, 1")
    for j in range(2):
        a(f"s_add_u32 s{sT3}, s{sT2}, {j}")
        a(f"v_xor_b32 v14, s{sT3}, v2")
        a(f"v_lshl_add_u32 v{g.vWA + j}, v14, 6, v1")
    a(f"s_lshl_b32 s{sT2}, s{sM0}, 1")
    a(f"s_add_u32 s{sT2}, s{sT2}, s{sT0}")
    a(f"s_lshl_b32 s{sOBASE}, s{sT2}, 18")
    a(f"s_lshl_b32 s{sT2}, s{sSEC}, 11")
    a(f"s_add_u32 s{sOBASE}, s{sOBASE}, s{sT2}")
    a(f"s_lshl_b32 s{sT2}, s{sNT}, 8")
    a(f"s_add_u32 s{sOBASE}, s{sOBASE}, s{sT2}")
    a(f"s_lshl_b32 s{sT2}, s{sT1}, 7")
    a(f"s_add_u32 s{sOBASE}, s{sOBASE}, s{sT2}")
    vWR, vRD = 10, 11
    if OPT["epi3"]:
        a("v_and_b32 v1, 31, v0")
        a("v_lshlrev_b32 v2, 7, v1")
        a(f"s_lshl_b32 s{sT2}, s{sWAVE}, 13")
        a(f"v_add_u32 v2, s{sT2}, v2")
        a("v_and_b32 v1, 7, v0")
        a("v_lshlrev_b32 v14, 1, v3")
        a("v_xor_b32 v14, v14, v1")
        a(f"v_lshl_add_u32 v{vWR}, v14, 4, v2")
        a("v_lshrrev_b32 v2, 3, v0")
        a("v_xor_b32 v14, v2, v1")
        a("v_lshlrev_b32 v14, 4, v14")
        a("v_lshl_add_u32 v14, v2, 7, v14")
        a(f"v_add_u32 v{vRD}, s{sT2}, v14")
        a("v_lshlrev_b32 v2, 12, v2")
        a(f"v_lshl_add_u32 v{g.vST}, v1, 4, v2")
    else:
        a("v_and_b32 v1, 31, v0")
        a("v_lshlrev_b32 v1, 12, v1")
        a(f"v_lshl_add_u32 v{g.vST}, v3, 5, v1")
    for r in range(g.nacc):
        a(f"v_mov_b32 v{g.ACC + r}, 0")
    gemm_compute(a, g, "outp", False, None, check="outp")
    a("s_nop 7")
    a("s_nop 7")
    if OPT["epi3"]:
        for j in range(2):
            for e in range(2):
                a(f"v_xor_b32 v{4 + 2 * j + e}, {(4 * j + e) * 16}, v{vWR}")
        for i in range(g.NI):
            for j in range(g.NJ):
                c = g.acc(i, j)
                t = g.F[0] + (i * g.NJ + j) * 8
                for r in range(8):
                    a(f"v_cvt_pk_bf16_f32 v{t + r}, v{c + 2 * r}, v{c + 2 * r + 1}")
                for e in range(2):
                    a(f"ds_write_b128 v{4 + 2 * j + e}, {vr(t + 4 * e, 4)} offset:{4096 * i}")
        a("s_waitcnt lgkmcnt(0)")
        for k in range(8):
            a(f"ds_read_b128 {vr(g.ACC + 4 * k, 4)}, v{vRD} offset:{1024 * k}")
        for k in range(8):
            a(f"s_add_u32 s{sT0}, s{sOBASE}, {k * 8 * 4096}")
            a(f"s_waitcnt lgkmcnt({7 - k})")
            a(f"buffer_store_dwordx4 {vr(g.ACC + 4 * k, 4)}, v{g.vST}, {sr(SRD_OUT)}, s{sT0} offen")
    else:
        for i in range(g.NI):
            for j in range(g.NJ):
                c = g.acc(i, j)
                t = g.F[0] + ((i * g.NJ + j) & 1) * 8
                for r in range(8):
                    a(f"v_cvt_pk_bf16_f32 v{t + r}, v{c + 2 * r}, v{c + 2 * r + 1}")
                a(f"s_add_u32 s{sT0}, s{sOBASE}, {i * 32 * 4096}")
                a(f"buffer_store_dwordx4 {vr(t, 4)}, v{g.vST}, {sr(SRD_OUT)}, s{sT0} offen offset:{64 * j}")
                a(f"buffer_store_dwordx4 {vr(t + 4, 4)}, v{g.vST}, {sr(SRD_OUT)}, s{sT0} offen offset:{64 * j + 16}")
    stamp_end(a, 2)
    a("s_endpgm")
    a.label("L_outp_loader")
    vX = [4] * g.XP
    vW = list(range(24, 24 + g.WP))
    srd(a, SRD_X, S_WS, WS_SIZE)
    a(f"s_cmp_eq_u32 s{sSEC}, 0")
    srd_sel(a, SRD_W, 24, 30, 0x200000)
    csel(a, sXOFF, WS_OA, WS_OB)
    a(f"s_sub_u32 s{sT0}, s{sWAVE}, 4")
    a("v_lshlrev_b32 v4, 4, v0")
    a("v_lshrrev_b32 v2, 4, v0")
    a("v_lshlrev_b32 v1, 11, v2")
    a("v_lshlrev_b32 v3, 2, v2")
    a("v_and_b32 v7, 15, v0")
    a("v_xor_b32 v3, v3, v7")
    a(f"v_lshl_add_u32 v{vW[0]}, v3, 4, v1")
    for i in range(1, g.WP):
        a(f"v_add_u32 v{vW[i]}, {i * (8192 - 1024)}, v{vW[0]}")
    a(f"s_lshl_b32 s{sT1}, s{sM0}, 18")
    a(f"s_add_u32 s{sXOFF}, s{sXOFF}, s{sT1}")
    a(f"s_mul_i32 s{sSLOT}, s{sT0}, {g.XP * 1024}")
    a(f"s_add_u32 s{sXOFF}, s{sXOFF}, s{sSLOT}")
    a(f"s_mul_i32 s{sWOFF}, s{sT0}, {g.WP * 8192}")
    a(f"s_lshl_b32 s{sT1}, s{sNT}, 8")
    a(f"s_add_u32 s{sWOFF}, s{sWOFF}, s{sT1}")
    a(f"s_mov_b32 s{sWSTG}, {64 * 2048}")
    a(f"s_mul_i32 s{sT3}, s{sT0}, {g.WP * 1024}")
    a(f"s_add_u32 s{sT3}, s{sT3}, {g.XB}")
    gemm_loader(a, g, "outp", vX, vW)
    hint_slow(a, "outp", 14, 15)
    a.label("L_outp_end")
    a("s_endpgm")
    return a.text(), kernel_desc("outp_kernel", g.nvgpr), g.lds, 256 + 64 * g.NL


def gen_attn():
    a = A()
    kernel_head(a, "attn_kernel")
    vL16, vK, vKN, IDX = 1, 2, 3, 4
    T0, T1, T2, T3 = 5, 6, 7, 8
    vPF, vPFD, vHD = 9, 10, 11
    ONES = 12
    Q, P, KF, VF, L = [16, 24], [32, 40], [48, 56], [64, 72], [80, 84]
    S, NEG, O = [96, 112], [128, 144], [160, 176]
    NV = 192
    SRD, SRDW = SRD_WS, 36
    sQB, sKV, sOB, sST, sSL, sDM, sGO, sPF, sPFC, sFIRST = 61, 62, 63, 64, 65, 66, 67, 68, 69, 70
    t0, t1, t2, t3 = sT0, sT1, sT2, sT3
    TILES = 8
    STG = TILES * 4096
    NSLOT = 3
    NSTG = 64 // TILES
    FLAG = NSLOT * STG
    lds = FLAG + 64

    entry(a, "attn")
    a(f"v_lshlrev_b32 v{vL16}, 4, v0")
    hint_load(a, "attn")
    stamp_mid(a, 2)
    a(f"s_lshr_b32 s{t0}, s2, 3")
    a(f"s_and_b32 s{t2}, s2, 3")
    a(f"s_lshl_b32 s{t2}, s{t2}, 4")
    a(f"s_lshl_b32 s{t3}, s{sWAVE}, 1")
    a(f"s_add_u32 s{t2}, s{t2}, s{t3}")
    a(f"s_lshl_b32 s{sKV}, s{t0}, 18")
    a(f"s_add_u32 s{sKV}, s{sKV}, {WS_KVB:#x}")
    a(f"s_lshl_b32 s{sQB}, s{t0}, 17")
    a(f"s_lshl_b32 s{t3}, s{t2}, 11")
    a(f"s_add_u32 s{sQB}, s{sQB}, s{t3}")
    a("s_bitcmp0_b32 s2, 2")
    a(f"s_cmov_b32 s{sKV}, {WS_KVA:#x}")
    a(f"s_cselect_b32 s{t3}, {WS_QA:#x}, {WS_QB:#x}")
    a(f"s_or_b32 s{sQB}, s{sQB}, s{t3}")

    def qloads():
        for q in range(2):
            for c in range(2):
                a(f"buffer_load_dwordx4 {vr(Q[q] + 4 * c, 4)}, v{vL16}, {sr(SRD)}, s{sQB} offen offset:{2048 * q + 1024 * c}")

    stamp_mid(a, 3)
    a(f"s_and_b32 s{t3}, s{sWAVE}, 3")
    a(f"s_lshl_b32 s{t3}, s{t3}, 11")
    a(f"s_add_u32 s{t1}, s{sKV}, s{t3}")

    def grp_dma(grp):
        a(f"s_add_u32 m0, s{t3}, {8192 * grp}")
        a(f"s_add_u32 s{sGO}, s{t1}, {8192 * grp}")
        for c in range(2):
            a(f"buffer_load_dwordx4 v{vL16}, {sr(SRD)}, s{sGO} offen offset:{1024 * c} lds")

    a(f"s_cmp_ge_u32 s{sWAVE}, 4")
    a("s_cbranch_scc1 L_attn_young")
    grp_dma(0)
    qloads()
    a("s_branch L_attn_issued")
    a.label("L_attn_young")
    for grp in range(1, 4):
        grp_dma(grp)
    qloads()
    a.label("L_attn_issued")
    stamp_mid(a, 4)
    a(f"s_lshr_b32 s{t3}, s{t2}, 2")
    a(f"s_lshl_b32 s{sOB}, s{t3}, 18")
    a(f"s_and_b32 s{t3}, s{t2}, 3")
    a(f"s_lshl_b32 s{t3}, s{t3}, 12")
    a(f"s_add_u32 s{sOB}, s{sOB}, s{t3}")
    a(f"s_lshr_b32 s{t3}, s{t0}, 1")
    a(f"s_lshl_b32 s{t3}, s{t3}, 14")
    a(f"s_add_u32 s{sOB}, s{sOB}, s{t3}")
    a(f"s_and_b32 s{t3}, s{t0}, 1")
    a(f"s_lshl_b32 s{t3}, s{t3}, 11")
    a(f"s_add_u32 s{sOB}, s{sOB}, s{t3}")
    a("s_bitcmp0_b32 s2, 2")
    csel(a, t3, WS_OA, WS_OB)
    srd_sel(a, SRDW, 24, 30, 0x200000)
    a(f"s_add_u32 s{sOB}, s{sOB}, s{t3}")
    a(f"s_lshl_b32 s{sPF}, s{t0}, 3")
    a(f"s_add_u32 s{sPF}, s{sPF}, s{sWAVE}")
    a(f"s_lshl_b32 s{sPF}, s{sPF}, 13")
    a(f"v_lshlrev_b32 v{vPF}, 7, v0")
    a(f"s_lshl_b32 s{sDM}, s{sWAVE}, 12")
    a(f"s_add_u32 s{sDM}, s{sDM}, {STG}")
    a(f"s_add_u32 s{sGO}, s{sKV}, s{sDM}")
    a(f"v_and_b32 v{T0}, 2, v0")
    a(f"v_bfe_u32 v{T1}, v0, 2, 1")
    a(f"v_or_b32 v{T2}, v{T0}, v{T1}")
    a(f"v_xor_b32 v{T1}, 1, v{T1}")
    a(f"v_or_b32 v{T3}, v{T0}, v{T1}")
    a(f"v_mov_b32 v{T0}, 0x3f803f80")
    a(f"v_cmp_eq_u32 vcc, 0, v{T2}")
    a("s_nop 1")
    a(f"v_cndmask_b32 v{ONES}, 0, v{T0}, vcc")
    a(f"v_cndmask_b32 v{ONES + 1}, 0, v{T0}, vcc")
    a(f"v_cmp_eq_u32 vcc, 0, v{T3}")
    a("s_nop 1")
    a(f"v_cndmask_b32 v{ONES + 2}, 0, v{T0}, vcc")
    a(f"v_cndmask_b32 v{ONES + 3}, 0, v{T0}, vcc")
    a(f"v_and_b32 v{T0}, 1, v0")
    a(f"v_mov_b32 v{T1}, 0x44444444")
    a(f"v_mov_b32 v{T2}, 0xeeeeeeee")
    a(f"v_cmp_eq_u32 vcc, 1, v{T0}")
    a("s_nop 1")
    a(f"v_cndmask_b32 v{IDX}, v{T1}, v{T2}, vcc")
    for q in range(2):
        for r in range(16):
            a(f"v_mov_b32 v{O[q] + r}, 0")
        for r in range(4):
            a(f"v_mov_b32 v{L[q] + r}, 0")
    for r in range(8):
        a(f"v_mov_b32 v{P[1] + r}, 0")
        a(f"v_mov_b32 v{VF[1] + r}, 0")
    a(f"v_mov_b32 v{vK}, v{vL16}")
    a(f"v_add_u32 v{vKN}, {STG}, v{vL16}")

    def kread(kt):
        reg, k = (vK, kt) if kt < TILES else (vKN, kt - TILES)
        return [f"ds_read_b128 {vr(KF[kt & 1] + 4 * c, 4)}, v{reg} offset:{4096 * k + 1024 * c}" for c in range(2)]

    def vread(kt):
        reg, k = (vK, kt) if kt < TILES else (vKN, kt - TILES)
        return [f"ds_read_b128 {vr(VF[kt & 1] + 4 * c, 4)}, v{reg} offset:{4096 * k + 2048 + 1024 * c}" for c in range(2)]

    dma_ins = [f"buffer_load_dwordx4 v{vL16}, {sr(SRD)}, s{sGO} offen offset:{1024 * c} lds" for c in range(4)]

    def dma_adv():
        a(f"s_add_u32 s{sGO}, s{sGO}, {STG}")
        a(f"s_add_u32 s{sDM}, s{sDM}, {STG}")
        a(f"s_cmp_ge_u32 s{sDM}, {NSLOT * STG}")
        a(f"s_cselect_b32 s{t0}, {NSLOT * STG}, 0")
        a(f"s_sub_u32 s{sDM}, s{sDM}, s{t0}")

    a(f"s_cmp_lt_u32 s{sWAVE}, 4")
    a(f"s_cselect_b32 s{sFIRST}, 1, 0")
    a("s_cbranch_scc0 L_attn_b0y")
    a("s_waitcnt vmcnt(4)")
    a("s_barrier")
    a("s_branch L_attn_b0")
    a.label("L_attn_b0y")
    a("s_barrier")
    for k_ in range(3):
        a(f"s_waitcnt vmcnt({8 - 2 * k_})")
        a("s_barrier")
    hint_read(a, T0, vHD, FLAG)
    a("s_waitcnt lgkmcnt(0)")
    hint_check(a, "attn", vHD)
    a.label("L_attn_b0")
    a.many(kread(0) + vread(0) + kread(1))
    stamp_mid(a, 0)
    a("s_waitcnt vmcnt(0)")
    stamp_mid(a, 5)
    a(f"s_cmp_lg_u32 s{sWAVE}, 0")
    a("s_cbranch_scc1 L_attn_noc")
    hint_claim(a, "attn", vPFD, vHD)
    a.label("L_attn_noc")
    a(f"s_mov_b32 m0, s{sDM}")
    a("s_waitcnt lgkmcnt(4)")
    for q in range(2):
        a(f"{MF32} {vr(S[q], 16)}, {vr(KF[0], 4)}, {vr(Q[q], 4)}, 0")
        a(dma_ins[2 * q])
        a(f"{MF32} {vr(S[q], 16)}, {vr(KF[0] + 4, 4)}, {vr(Q[q] + 4, 4)}, {vr(S[q], 16)}")
        a(dma_ins[2 * q + 1])
    dma_adv()
    a(f"s_mov_b32 s{sST}, 0")
    a(f"s_mov_b32 s{sSL}, {STG}")
    a("s_nop 5")
    for q in range(2):
        s, t = S[q], T0 + 2 * q
        a(f"v_max3_f32 v{t}, v{s}, v{s + 1}, v{s + 2}")
        for r in range(3, 15, 2):
            a(f"v_max3_f32 v{t}, v{s + r}, v{s + r + 1}, v{t}")
        a(f"v_max_f32 v{t}, v{s + 15}, v{t}")
        a(f"v_mov_b32 v{t + 1}, v{t}")
    a("s_nop 1")
    for q in range(2):
        a(f"v_permlane32_swap_b32 v{T0 + 2 * q}, v{T0 + 2 * q + 1}")
    a("s_nop 1")
    for q in (1, 0):
        t = T0 + 2 * q
        a(f"v_max_f32 v{t}, v{t}, v{t + 1}")
        for r in range(16):
            a(f"v_sub_f32 v{NEG[q] + r}, 0, v{t}")
    for r in range(16):
        a(f"v_sub_f32 v{S[0] + r}, v{S[0] + r}, v{T0}")

    def step(u, fill=()):
        q, kt = u & 1, u >> 1
        qp, ktn, ktp = q ^ 1, (u + 1) >> 1, (u - 1) >> 1
        cur, nxt = S[q], S[qp]
        rd = vread(kt + 1) if q == 0 else kread(kt + 2)
        d = dict(
            QK0=f"{MF32} {vr(nxt, 16)}, {vr(KF[ktn & 1], 4)}, {vr(Q[qp], 4)}, {vr(NEG[qp], 16)}",
            QK1=f"{MF32} {vr(nxt, 16)}, {vr(KF[ktn & 1] + 4, 4)}, {vr(Q[qp] + 4, 4)}, {vr(nxt, 16)}",
            PV0=f"{MF32} {vr(O[q], 16)}, {vr(VF[kt & 1], 4)}, {vr(P[q], 4)}, {vr(O[q], 16)}",
            PV1=f"{MF32} {vr(O[qp], 16)}, {vr(VF[ktp & 1] + 4, 4)}, {vr(P[qp] + 4, 4)}, {vr(O[qp], 16)}",
            SP=f"v_smfmac_f32_16x16x64_bf16 {vr(L[qp], 4)}, {vr(ONES, 4)}, {vr(P[qp], 8)}, v{IDX}",
            R0=rd[0], R1=rd[1],
            Wq="s_waitcnt lgkmcnt(2)" if q == 1 else None, Wp="s_waitcnt lgkmcnt(4)" if q == 0 else None)
        for i in range(16):
            d[f"E{i}"] = f"v_exp_f32 v{cur + i}, v{cur + i}"
        for i in range(8):
            d[f"C{i}"] = f"v_cvt_pk_bf16_f32 v{P[q] + i}, v{cur + 2 * i}, v{cur + 2 * i + 1}"
        fill = list(fill) + [None] * 2
        d["F0"], d["F1"] = fill[0], fill[1]
        o = "E0 E1 PV1 Wq E2 E3 E4 QK0 F0 E5 E6 E7 QK1 R0 C0 E8 C1 E9 SP R1 C2 E10 C3 E11 E12 Wp PV0 F1 E13 C4 E14 C5 E15 C6 C7"
        for t in o.split():
            x = d[t]
            if x:
                a.many(x if isinstance(x, list) else [x])

    if OPT["lstamp"]:
        stamp_mid(a, 2)
    UB = 2 * TILES - 3
    a.raw(".p2align 3")
    a.label("L_attn_loop")
    a(f"s_cmp_lg_u32 s{sFIRST}, 0")
    for u in range(2 * TILES):
        fill = ()
        if u in (1, 5, 9):
            a(f"s_cbranch_scc1 L_attn_first{u}")
            a.label(f"L_attn_back{u}")
        if u == UB:
            a("s_waitcnt vmcnt(0)")
            a("s_barrier")
            a(f"s_mov_b32 m0, s{sDM}")
            fill = (dma_ins[0], dma_ins[1])
        if u == UB + 1:
            fill = (dma_ins[2], dma_ins[3])
        if u == UB + 2:
            fill = ([f"s_cmp_eq_u32 s{sST}, {NSTG - 2}", f"s_cselect_b32 s{sPFC}, s{sPF}, 0x7ff00000",
                     f"buffer_load_dword v{vPFD}, v{vPF}, {sr(SRDW)}, s{sPFC} offen"],
                    [f"s_add_u32 s{sGO}, s{sGO}, {STG}", f"s_add_u32 s{sDM}, s{sDM}, {STG}"])
        if (u - UB) % 4 == 0:
            a(f"s_setprio {3 - ((u - UB) % (2 * TILES)) // 4}")
        step(u, fill)
    a(f"s_cmp_ge_u32 s{sDM}, {NSLOT * STG}")
    a(f"s_cselect_b32 s{t0}, {NSLOT * STG}, 0")
    a(f"s_sub_u32 s{sDM}, s{sDM}, s{t0}")
    a(f"s_mov_b32 s{sFIRST}, 0")
    a(f"v_mov_b32 v{vK}, v{vKN}")
    a(f"s_add_u32 s{sSL}, s{sSL}, {STG}")
    a(f"s_cmp_ge_u32 s{sSL}, {NSLOT * STG}")
    a(f"s_cselect_b32 s{sSL}, 0, s{sSL}")
    a(f"v_add_u32 v{vKN}, s{sSL}, v{vL16}")
    if OPT["lstamp"] and STAMP:
        for k_, n_ in ((0, 3), (1, 4), (6, 5)):
            a(f"s_cmp_lg_u32 s{sST}, {k_}")
            a(f"s_cbranch_scc1 L_attn_ls{k_}")
            stamp_mid(a, n_)
            a.label(f"L_attn_ls{k_}")
    a(f"s_add_u32 s{sST}, s{sST}, 1")
    a(f"s_cmp_lt_u32 s{sST}, {NSTG}")
    a("s_cbranch_scc1 L_attn_loop")
    stamp_mid(a, 1)
    a("s_nop 1")
    a(f"{MF32} {vr(O[1], 16)}, {vr(VF[1] + 4, 4)}, {vr(P[1] + 4, 4)}, {vr(O[1], 16)}")
    a(f"v_smfmac_f32_16x16x64_bf16 {vr(L[1], 4)}, {vr(ONES, 4)}, {vr(P[1], 8)}, v{IDX}")
    a(f"v_mov_b32 v{T2}, 0")
    for q in range(2):
        for r in range(16):
            a(f"v_fmac_f32 v{T2}, 0, v{O[q] + r}")
        a(f"v_add_f32 v{L[q]}, v{L[q]}, v{L[q] + 1}")
    a(f"v_max_f32 v{T3}, v{L[0]}, v{L[1]}")
    a(f"v_fmac_f32 v{T2}, 0, v{L[0]}")
    a(f"v_fmac_f32 v{T2}, 0, v{L[1]}")
    a(f"v_add_f32 v{T3}, v{T3}, v{T2}")
    a(f"v_mov_b32 v{T2}, {f32bits(2.0 ** 40):#x}")
    a(f"v_cmp_nle_f32 vcc, v{T3}, v{T2}")
    a("s_waitcnt lgkmcnt(0)")
    a("s_nop 3")
    a("s_cbranch_vccnz L_attn_slow")

    def finish(q, lreg):
        a(f"v_rcp_f32 v{T0}, v{lreg}")
        a("s_nop 0")
        for r in range(16):
            a(f"v_mul_f32 v{O[q] + r}, v{O[q] + r}, v{T0}")
        for r in range(8):
            a(f"v_cvt_pk_bf16_f32 v{P[q] + r}, v{O[q] + 2 * r}, v{O[q] + 2 * r + 1}")
        a(f"s_add_u32 s{t0}, s{sOB}, {4096 * q}")
        for c in range(2):
            a(f"buffer_store_dwordx4 {vr(P[q] + 4 * c, 4)}, v{vL16}, {sr(SRD)}, s{t0} offen offset:{1024 * c}{OPT['st2']}")

    for q in range(2):
        finish(q, L[q])
    stamp_end(a, 1)
    a("s_endpgm")

    for u in (1, 5, 9):
        a.label(f"L_attn_first{u}")
        if u == 9:
            a(f"s_cmp_lg_u32 s{sWAVE}, 0")
            a("s_cbranch_scc1 L_attn_nov")
            a("s_waitcnt vmcnt(4)")
            hint_verdict(a, "attn", T0, vHD, FLAG)
            a.label("L_attn_nov")
        a("s_barrier")
        if u == 9:
            hint_read(a, T0, vHD, FLAG)
            a("s_waitcnt lgkmcnt(0)")
            hint_check(a, "attn", vHD)
        a(f"s_branch L_attn_back{u}")

    a.label("L_attn_slow")
    M, LS, AL = 88, 89, 90
    for q in range(2):
        s = S[0]
        a(f"v_mov_b32 v{M}, 0xff7fffff")
        a(f"v_mov_b32 v{LS}, 0")
        for r in range(16):
            a(f"v_mov_b32 v{O[q] + r}, 0")
        a(f"s_mov_b32 s{sGO}, s{sKV}")
        a(f"s_mov_b32 s{sST}, 0")
        a.label(f"L_attn_slow_{q}")
        for c in range(2):
            a(f"buffer_load_dwordx4 {vr(KF[0] + 4 * c, 4)}, v{vL16}, {sr(SRD)}, s{sGO} offen offset:{1024 * c}")
        for c in range(2):
            a(f"buffer_load_dwordx4 {vr(VF[0] + 4 * c, 4)}, v{vL16}, {sr(SRD)}, s{sGO} offen offset:{2048 + 1024 * c}")
        a("s_waitcnt vmcnt(0)")
        a(f"{MF32} {vr(s, 16)}, {vr(KF[0], 4)}, {vr(Q[q], 4)}, 0")
        a(f"{MF32} {vr(s, 16)}, {vr(KF[0] + 4, 4)}, {vr(Q[q] + 4, 4)}, {vr(s, 16)}")
        a("s_nop 7")
        a("s_nop 7")
        a(f"v_max3_f32 v{T0}, v{s}, v{s + 1}, v{M}")
        for r in range(2, 16, 2):
            a(f"v_max3_f32 v{T0}, v{s + r}, v{s + r + 1}, v{T0}")
        a(f"v_mov_b32 v{T1}, v{T0}")
        a("s_nop 1")
        a(f"v_permlane32_swap_b32 v{T0}, v{T1}")
        a("s_nop 1")
        a(f"v_max_f32 v{T0}, v{T0}, v{T1}")
        a(f"v_sub_f32 v{AL}, v{M}, v{T0}")
        a(f"v_exp_f32 v{AL}, v{AL}")
        a(f"v_mov_b32 v{M}, v{T0}")
        for r in range(16):
            a(f"v_sub_f32 v{s + r}, v{s + r}, v{T0}")
        for r in range(16):
            a(f"v_exp_f32 v{s + r}, v{s + r}")
        a(f"v_mul_f32 v{LS}, v{LS}, v{AL}")
        for r in range(16):
            a(f"v_mul_f32 v{O[q] + r}, v{O[q] + r}, v{AL}")
        for r in range(16):
            a(f"v_add_f32 v{LS}, v{LS}, v{s + r}")
        for r in range(8):
            a(f"v_cvt_pk_bf16_f32 v{P[0] + r}, v{s + 2 * r}, v{s + 2 * r + 1}")
        a("s_nop 1")
        a(f"{MF32} {vr(O[q], 16)}, {vr(VF[0], 4)}, {vr(P[0], 4)}, {vr(O[q], 16)}")
        a(f"{MF32} {vr(O[q], 16)}, {vr(VF[0] + 4, 4)}, {vr(P[0] + 4, 4)}, {vr(O[q], 16)}")
        a("s_nop 7")
        a("s_nop 7")
        a(f"s_add_u32 s{sGO}, s{sGO}, 4096")
        a(f"s_add_u32 s{sST}, s{sST}, 1")
        a(f"s_cmp_lt_u32 s{sST}, 64")
        a(f"s_cbranch_scc1 L_attn_slow_{q}")
        a(f"v_mov_b32 v{T1}, v{LS}")
        a("s_nop 1")
        a(f"v_permlane32_swap_b32 v{LS}, v{T1}")
        a("s_nop 1")
        a(f"v_add_f32 v{LS}, v{LS}, v{T1}")
        finish(q, LS)
        a("s_waitcnt vmcnt(0)")
    stamp_end(a, 1)
    a("s_endpgm")
    hint_slow(a, "attn", T0, vHD)
    a.label("L_attn_end")
    a("s_endpgm")
    return a.text(), kernel_desc("attn_kernel", NV), lds, 512


HEADER = """; Fused MQA (branch A) + MHA (branch B) attention block, three launches:
;   proj_kernel : Q/K/V projections -> MFMA-fragment-ordered tiles in d_ws
;   attn_kernel : softmax(Q K^T) V per (branch, head, 512 rows)
;   outp_kernel : output projections -> d_out
"""


def main(path):
    ks = [("proj_kernel",) + gen_proj(), ("attn_kernel",) + gen_attn(), ("outp_kernel",) + gen_outp()]
    s = HEADER
    for n, t, d, lds, blk in ks:
        s += f"; @launch kernel={n} grid=(256,1,1) block=({blk},1,1) lds={lds}\n"
    s += '.amdgcn_target "amdgcn-amd-amdhsa--gfx950"\n'
    s += "".join(k[1] for k in ks) + "".join(k[2] for k in ks)
    open(path, "w").write(s)


if __name__ == "__main__":
    args = sys.argv[1:]
    if "--stamp" in args:
        STAMP = True
        args.remove("--stamp")
    for x in list(args):
        if "=" in x:
            k_, v_ = x.split("=")
            assert k_ in OPT, k_
            OPT[k_] = int(v_) if v_.lstrip("-").isdigit() else ("" if v_ == "none" else " " + v_.replace("+", " "))
            args.remove(x)
    main(args[0] if args else f"cdna_kernels/{NAME}.s")
```

```python
import sys, math, struct

NAME = "concat_heads__grouped_kv_mqa__softmax_full_mha__prompt"

WS_QA = 0x0000000
WS_QB = 0x0400000
WS_KVA = 0x0800000
WS_TBL = 0x0900000
WS_CLM = 0x0910000
WS_KVB = 0x1000000
WS_OA = 0x2000000
WS_OB = 0x2400000
WS_STAMP = 0x8000000
WS_SIZE = 268435456

QSCALE = (32 ** -0.5) * math.log2(math.e)
STAMP = False
OPT = dict(pre=6, st1=" sc0 sc1", st2="", ld1="", pfb="", pf=1, pf0=0, pfd=2, badtbl=0, lstamp=0, epi3=1, nl3=4, fake16=0, badtk=0, pfirst=0, pwait=0, wsb=0)

MF32 = "v_mfma_f32_32x32x16_bf16"
MF16 = "v_mfma_f32_16x16x32_bf16"


def f32bits(x):
    return struct.unpack("<I", struct.pack("<f", x))[0]


class A:
    def __init__(self):
        self.l = []

    def __call__(self, s):
        self.l.append("    " + s)

    def many(self, xs):
        for x in xs:
            self(x)

    def label(self, s):
        self.l.append(s + ":")

    def raw(self, s):
        self.l.append(s)

    def text(self):
        return "\n".join(self.l) + "\n"


def vr(b, n):
    return f"v[{b}:{b + n - 1}]"


def sr(b, n=4):
    return f"s[{b}:{b + n - 1}]"


def srd(a, d, lo, size):
    a(f"s_mov_b32 s{d}, s{lo}")
    a(f"s_mov_b32 s{d+1}, s{lo + 1}")
    a(f"s_mov_b32 s{d+2}, {size:#x}")
    a(f"s_mov_b32 s{d+3}, 0x00020000")


def srd_sel(a, d, lo1, lo0, size1, size0=None):
    a(f"s_cselect_b32 s{d}, s{lo1}, s{lo0}")
    a(f"s_cselect_b32 s{d+1}, s{lo1 + 1}, s{lo0 + 1}")
    if size0 is None:
        a(f"s_mov_b32 s{d+2}, {size1:#x}")
    else:
        csel(a, d + 2, size1, size0)
    a(f"s_mov_b32 s{d+3}, 0x00020000")


def csel(a, d, x, y):
    a(f"s_mov_b32 s{d}, {y}")
    a(f"s_cmov_b32 s{d}, {x}")


def kernel_head(a, name):
    a.raw(".text")
    a.raw(f".globl {name}")
    a.raw(".p2align 8")
    a.raw(f".type {name},@function")
    a.label(name)


def kernel_desc(name, nvgpr, nsgpr=102):
    acc = (nvgpr + 3) // 4 * 4
    return f""".section .rodata,"a"
.p2align 6
.amdhsa_kernel {name}
  .amdhsa_next_free_vgpr {nvgpr}
  .amdhsa_next_free_sgpr {nsgpr}
  .amdhsa_accum_offset {acc}
  .amdhsa_group_segment_fixed_size 0
  .amdhsa_kernarg_size 88
  .amdhsa_user_sgpr_count 2
  .amdhsa_user_sgpr_kernarg_segment_ptr 1
  .amdhsa_system_sgpr_workgroup_id_x 1
.end_amdhsa_kernel
"""


sXCC, sHW, sTRY, sTK = 3, 8, 9, 10
SRD_DBG = 12
S_IN = 16
S_OUT = 32
S_WS = 34
SRD_WS = 44
sWAVE = 56
sT0, sT1, sT2, sT3 = 57, 58, 59, 60
sOK = 81


def stamp_begin(a):
    if STAMP:
        a("s_memtime s[82:83]")
        a("s_memrealtime s[84:85]")
        for n in range(6):
            a(f"s_mov_b32 s{90 + 2 * n}, 0")


def stamp_mid(a, n):
    if STAMP:
        a(f"s_memtime s[{90 + 2 * n}:{91 + 2 * n}]")


def stamp_end(a, kidx):
    if not STAMP:
        return
    a("s_waitcnt vmcnt(0)")
    a("s_memtime s[86:87]")
    a("s_memrealtime s[88:89]")
    a("s_waitcnt lgkmcnt(0)")
    a(f"s_min_u32 s9, s{sWAVE}, 7")
    a("s_lshl_b32 s8, s2, 3")
    a("s_add_u32 s8, s8, s9")
    a("s_lshl_b32 s8, s8, 6")
    a(f"s_add_u32 s8, s8, {WS_STAMP + kidx * 0x20000:#x}")
    for i, r in enumerate((82, 84, 86, 88, 90, 92, 94, 96, 98, 100, 100, 100)):
        a(f"v_mov_b32 v{4 + i}, s{r}")
    a("v_mov_b32 v1, 0")
    a("s_mov_b64 exec, 1")
    for i in range(3):
        a(f"buffer_store_dwordx4 v[{4 + 4 * i}:{7 + 4 * i}], v1, {sr(SRD_WS)}, s8 offen offset:{16 * i}")


def entry(a, tag):
    a("s_cmp_ge_u32 s2, 256")
    a(f"s_cbranch_scc1 L_{tag}_end")
    stamp_begin(a)
    a(f"s_load_dwordx16 {sr(S_IN, 16)}, s[0:1], 0")
    a(f"s_load_dwordx2 {sr(S_OUT, 2)}, s[0:1], 64")
    a(f"s_load_dwordx2 {sr(SRD_DBG, 2)}, s[0:1], 72")
    a(f"s_load_dwordx2 {sr(S_WS, 2)}, s[0:1], 80")
    a("v_lshrrev_b32 v1, 6, v0")
    a("v_and_b32 v0, 63, v0")
    a(f"v_readfirstlane_b32 s{sWAVE}, v1")
    a(f"s_getreg_b32 s{sXCC}, hwreg(HW_REG_XCC_ID, 0, 3)")
    a(f"s_getreg_b32 s{sHW}, hwreg(HW_REG_HW_ID, 8, 8)")
    a(f"s_mov_b32 s{SRD_DBG + 2}, 256")
    a(f"s_mov_b32 s{SRD_DBG + 3}, 0x00020000")


def ws_reloc(a):
    if OPT["wsb"]:
        a(f"s_add_u32 s{S_WS}, s{S_WS}, {OPT['wsb'] << 20:#x}")
        a(f"s_addc_u32 s{S_WS + 1}, s{S_WS + 1}, 0")


def tbl_offset(a, d):
    a(f"s_lshl_b32 s{d}, s{sXCC}, 8")
    a(f"s_or_b32 s{d}, s{d}, s{sHW}")
    a(f"s_lshl_b32 s{d}, s{d}, 2")
    a(f"s_add_u32 s{d}, s{d}, {WS_TBL:#x}")


sG, sMT = 32, 33


def ticket_issue(a, tag, who):
    a(f"s_mov_b32 s{sG}, s{sXCC}")
    a(f"s_bfe_u32 s{sMT}, s{sHW}, 0x20005")
    if OPT["badtk"]:
        a(f"s_and_b32 s{sMT}, s{sMT}, 1")
        a(f"s_and_b32 s{sG}, s{sG}, 5")
    a(f"s_mov_b32 s{sOK}, 0")
    a(f"s_cmp_lg_u32 s{sWAVE}, {who}")
    a(f"s_cbranch_scc1 L_{tag}_cl0")
    a(f"s_lshl_b32 s{sTK + 1}, s{sG}, 2")
    a(f"s_or_b32 s{sTK + 1}, s{sTK + 1}, s{sMT}")
    a(f"s_lshl_b32 s{sTRY}, s{sTK + 1}, 3")
    a(f"s_mov_b32 s{sTK}, 1")
    a(f"s_atomic_add s{sTK}, {sr(SRD_DBG, 2)}, s{sTRY} glc")
    a.label(f"L_{tag}_cl0")


def ticket_end(a, tag, who, ldsoff):
    a(f"s_cmp_lg_u32 s{sWAVE}, {who}")
    a(f"s_cbranch_scc1 L_{tag}_cl3")
    a(f"s_cmp_lg_u32 s{sOK}, 0")
    a(f"s_cbranch_scc1 L_{tag}_cl3")
    a(f"s_mov_b32 s{sCNT}, 0")
    a.label(f"L_{tag}_cl1")
    a("s_waitcnt lgkmcnt(0)")
    a(f"s_cmp_lt_u32 s{sTK}, 8")
    a(f"s_cbranch_scc1 L_{tag}_cl2")
    a(f"s_add_u32 s{sCNT}, s{sCNT}, 1")
    a(f"s_cmp_ge_u32 s{sCNT}, 32")
    a(f"s_cbranch_scc1 L_{tag}_cl2")
    a(f"s_add_u32 s{sTK + 1}, s{sTK + 1}, 1")
    a(f"s_and_b32 s{sTK + 1}, s{sTK + 1}, 31")
    a(f"s_lshl_b32 s{sTRY}, s{sTK + 1}, 3")
    a(f"s_mov_b32 s{sTK}, 1")
    a(f"s_atomic_add s{sTK}, {sr(SRD_DBG, 2)}, s{sTRY} glc")
    a(f"s_branch L_{tag}_cl1")
    a.label(f"L_{tag}_cl2")
    a(f"s_min_u32 s{sTK}, s{sTK}, 8")
    a(f"s_lshl_b32 s{sTK}, s{sTK}, 5")
    a(f"s_and_b32 s{sTRY}, s{sTK + 1}, 3")
    a(f"s_lshl_b32 s{sTRY}, s{sTRY}, 3")
    a(f"s_or_b32 s{sTK}, s{sTK}, s{sTRY}")
    a(f"s_lshr_b32 s{sTRY}, s{sTK + 1}, 2")
    a(f"s_or_b32 s{sTK}, s{sTK}, s{sTRY}")
    a("s_mov_b64 exec, 1")
    a(f"v_mov_b32 v2, {ldsoff}")
    a(f"v_mov_b32 v3, s{sTK}")
    a("ds_write_b32 v2, v3")
    a("s_mov_b64 exec, -1")
    a("s_waitcnt lgkmcnt(0)")
    a.label(f"L_{tag}_cl3")


def ticket_notes(a, tag, who):
    a(f"s_cmp_lg_u32 s{sWAVE}, {who}")
    a(f"s_cbranch_scc1 L_{tag}_cl4")
    a("s_mov_b64 exec, 1")
    a("v_mov_b32 v1, 0")
    a("v_mov_b32 v3, s2")
    a(f"s_lshl_b32 s{sT1}, s2, 7")
    a(f"s_add_u32 s{sT1}, s{sT1}, {WS_CLM:#x}")
    a(f"buffer_store_dword v1, v1, {sr(SRD_WS)}, s{sT1} offen")
    a(f"s_add_u32 s{sT1}, s{sT1}, 0x8000")
    a(f"buffer_store_dword v1, v1, {sr(SRD_WS)}, s{sT1} offen")
    tbl_offset(a, sT1)
    a(f"buffer_store_dword v3, v1, {sr(SRD_WS)}, s{sT1} offen")
    a("s_mov_b64 exec, -1")
    a.label(f"L_{tag}_cl4")


def ticket_wait(a, tag, ldsoff, redo):
    a(f"v_mov_b32 v2, {ldsoff}")
    a("s_barrier")
    a("ds_read_b32 v3, v2")
    a(f"s_lshl_b32 s{sT1}, s{sMT}, 3")
    a(f"s_or_b32 s{sT1}, s{sT1}, s{sG}")
    a("s_waitcnt lgkmcnt(0)")
    a("v_readfirstlane_b32 s2, v3")
    a("s_nop 3")
    a(f"s_and_b32 s{sT2}, s2, 0x31f")
    a(f"s_cmp_lg_u32 s{sT2}, s{sT1}")
    a(f"s_cbranch_scc1 {redo}")
    a(f"s_lshr_b32 s{sNT}, s2, 5")


def ticket_redo(a, tag, lbl, back):
    a.label(lbl)
    a("s_waitcnt vmcnt(0)")
    a("s_cmp_ge_u32 s2, 256")
    a(f"s_cbranch_scc1 L_{tag}_end")
    a(f"s_and_b32 s{sG}, s2, 7")
    a(f"s_bfe_u32 s{sMT}, s2, 0x20003")
    a(f"s_mov_b32 s{sOK}, 1")
    a(f"s_branch {back}")


def hint_load(a, tag):
    tbl_offset(a, sTK)
    a("s_waitcnt lgkmcnt(0)")
    ws_reloc(a)
    a(f"s_load_dword s2, {sr(S_WS, 2)}, s{sTK}")
    srd(a, SRD_WS, S_WS, WS_SIZE - (OPT["wsb"] << 20))
    a(f"s_mov_b32 s{sOK}, 0")
    a("s_waitcnt lgkmcnt(0)")
    if OPT["badtbl"]:
        a(f"s_and_b32 s2, s2, {OPT['badtbl']}")
    a("s_and_b32 s2, s2, 255")
    a.label(f"L_{tag}_item")


def clm_base(tag):
    return WS_CLM + (0 if tag == "attn" else 0x8000)


def hint_claim(a, tag, who):
    a(f"s_cmp_lg_u32 s{sWAVE}, {who}")
    a(f"s_cbranch_scc1 L_{tag}_noc")
    a(f"s_lshl_b32 s{sTK + 1}, s2, 7")
    a(f"s_add_u32 s{sTK + 1}, s{sTK + 1}, {clm_base(tag):#x}")
    a(f"s_mov_b32 s{sTK}, 1")
    a(f"s_atomic_or s{sTK}, {sr(S_WS, 2)}, s{sTK + 1} glc")
    a.label(f"L_{tag}_noc")


def hint_verdict(a, tag, vA, vD, ldsoff):
    a("s_waitcnt lgkmcnt(0)")
    a(f"s_andn2_b32 s{sTK}, s{sTK}, s{sOK}")
    a(f"s_cmp_lg_u32 s{sTK}, 0")
    a(f"s_mov_b32 s{sTRY}, s2")
    a(f"s_cbranch_scc1 L_{tag}_hslow")
    a.label(f"L_{tag}_hback")
    a(f"v_mov_b32 v{vA}, {ldsoff}")
    a(f"v_mov_b32 v{vD}, s{sTRY}")
    a(f"ds_write_b32 v{vA}, v{vD}")
    a("s_waitcnt lgkmcnt(0)")


def hint_slow(a, tag):
    sN = 4
    a.label(f"L_{tag}_hslow")
    a(f"s_mov_b32 s{sN}, 0")
    a.label(f"L_{tag}_hs1")
    a(f"s_add_u32 s{sN}, s{sN}, 1")
    a(f"s_add_u32 s{sTRY}, s{sTRY}, 9")
    a(f"s_and_b32 s{sTRY}, s{sTRY}, 255")
    a(f"s_cmp_gt_u32 s{sN}, 256")
    a(f"s_cbranch_scc1 L_{tag}_hs2")
    a(f"s_lshl_b32 s{sTK + 1}, s{sTRY}, 7")
    a(f"s_add_u32 s{sTK + 1}, s{sTK + 1}, {clm_base(tag):#x}")
    a(f"s_mov_b32 s{sTK}, 1")
    a(f"s_atomic_or s{sTK}, {sr(S_WS, 2)}, s{sTK + 1} glc")
    a("s_waitcnt lgkmcnt(0)")
    a(f"s_cmp_lg_u32 s{sTK}, 0")
    a(f"s_cbranch_scc1 L_{tag}_hs1")
    a(f"s_branch L_{tag}_hback")
    a.label(f"L_{tag}_hs2")
    a(f"s_mov_b32 s{sTRY}, 0x8000")
    a(f"s_branch L_{tag}_hback")
    a.label(f"L_{tag}_restart")
    a("s_waitcnt vmcnt(0) lgkmcnt(0)")
    a("s_barrier")
    a(f"s_mov_b32 s2, s{sTRY}")
    a(f"s_mov_b32 s{sOK}, 1")
    a("s_setprio 0")
    a("s_cmp_ge_u32 s2, 256")
    a(f"s_cbranch_scc1 L_{tag}_end")
    a(f"s_branch L_{tag}_item")


def hint_read(a, vA, vD, ldsoff):
    a(f"v_mov_b32 v{vA}, {ldsoff}")
    a(f"ds_read_b32 v{vD}, v{vA}")


def hint_check(a, tag, vD):
    a(f"v_readfirstlane_b32 s{sTRY}, v{vD}")
    a("s_nop 3")
    a(f"s_cmp_lg_u32 s{sTRY}, s2")
    a(f"s_cbranch_scc1 L_{tag}_restart")


SRD_X, SRD_W, SRD_WK, SRD_WV, SRD_PF, SRD_OUT = 36, 40, 48, 52, 4, 48
sXOFF, sWOFF, sWSTG, sSLOT, sCNT, sDELTA = 61, 62, 64, 65, 66, 67
sOBASE, sOJ, sOI, sSCALE = 68, 69, 70, 72
sSEC, sM0, sCOL0, sWSTR, sNT, sEXO, sEXS, sRSLOT = 74, 75, 76, 77, 78, 79, 80, 63
sPFO, sPFS, sPFN = 9, 10, 11


class G:
    def __init__(self, kind):
        self.kind = kind
        proj = kind == "proj"
        self.NI, self.NJ = (4, 2) if proj else (2, 2)
        self.XB = 32768 if proj else 16384
        self.NSLOT = 3 if proj else 4
        self.NL = 4 if proj else OPT["nl3"]
        self.SLOT = self.XB + 16384
        self.XP = self.XB // 1024 // self.NL
        self.WP = 16 // self.NL
        self.NST = 16
        self.EXB = self.NSLOT * self.SLOT
        self.lds = self.NSLOT * self.SLOT + (16384 if proj else 64)
        self.ACC = 128 if proj else 64
        self.nacc = self.NI * self.NJ * 16
        fsz = self.NI * 4 + self.NJ * 4
        self.F = [16, 16 + fsz]
        self.vXA, self.vWA, self.vEXX, self.vEXW, self.vST = 4, 8, 10, 12, 13
        self.EXF = 16 + 2 * fsz
        self.EXACC = self.EXF + 12
        self.nvgpr = self.ACC + self.nacc

    def fx(self, b, i):
        return self.F[b] + 4 * i

    def fw(self, b, j):
        return self.F[b] + self.NI * 4 + 4 * j

    def acc(self, i, j):
        return self.ACC + (i * self.NJ + j) * 16


def gemm_reads(g, t, buf):
    proj = g.kind == "proj"
    wr = [f"ds_read_b64_tr_b16 {vr(g.fw(buf, j) + 2 * u, 2)}, v{g.vWA + j} offset:{4096 * t + (1024 if proj else 2048) * u}"
          for j in range(g.NJ) for u in range(2)]
    if proj:
        xr = [f"ds_read_b128 {vr(g.fx(buf, i), 4)}, v{g.vXA + t} offset:{4096 * i}" for i in range(g.NI)]
    else:
        xr = [f"ds_read_b128 {vr(g.fx(buf, i), 4)}, v{g.vXA} offset:{4096 * i + 1024 * t}" for i in range(g.NI)]
    return [xr[0]] + wr + xr[1:]


def gemm_extra_reads(g, e):
    return [f"ds_read_b64_tr_b16 {vr(g.EXF + 2 * u, 2)}, v{g.vEXW} offset:{2048 * e + 256 * u}" for u in range(2)] + \
           [f"ds_read_b128 {vr(g.EXF + 4 + 4 * th, 4)}, v{g.vEXX + e} offset:{2048 * th}" for th in range(2)]


def gemm_step(a, g, t, swap, reads, pre=(), extra_mfma=(), post_valu=()):
    buf = t & 1
    a.many(pre)
    mf = []
    for i in range(g.NI):
        for j in range(g.NJ):
            x, w, c = vr(g.fx(buf, i), 4), vr(g.fw(buf, j), 4), vr(g.acc(i, j), 16)
            mf.append(f"{MF32} {c}, {x}, {w}, {c}" if swap else f"{MF32} {c}, {w}, {x}, {c}")
    mf += list(extra_mfma)
    reads, post_valu = list(reads), list(post_valu)
    for m in mf:
        if OPT["fake16"] and m.startswith(MF32):
            import re as _re
            c0 = int(_re.search(r"v\[(\d+):", m).group(1))
            ops = m.split(", ")
            for h in range(2):
                cc = vr(c0 + 4 * h + 8 * (t & 1), 4)
                a(f"{MF16} {cc}, {ops[1 + h]}, {ops[2 - h]}, {cc}")
        else:
            a(m)
        for _ in range(2):
            if reads:
                a(reads.pop(0))
        if not reads:
            for _ in range(2):
                if post_valu:
                    a(post_valu.pop(0))
    a.many(reads + post_valu)


def gemm_compute(a, g, tag, swap, extras, check=None):
    proj = g.kind == "proj"

    def ex_mfma():
        w = vr(g.EXF, 4)
        out = []
        for th in range(2):
            x, c = vr(g.EXF + 4 + 4 * th, 4), vr(g.EXACC + 4 * th, 4)
            out.append(f"{MF16} {c}, {x}, {w}, {c}" if extras == "V" else f"{MF16} {c}, {w}, {x}, {c}")
        return out

    def adv(reg):
        return f"v_add_u32 v{reg}, s{sDELTA}, v{reg}"

    def stage(last):
        for t in range(4):
            pre = ["s_waitcnt lgkmcnt(0)"]
            reads, post, em = [], [], []
            if t < 3:
                reads = gemm_reads(g, t + 1, (t + 1) & 1)
                if extras and t == 1:
                    reads += gemm_extra_reads(g, 1)
                if not last:
                    if proj:
                        post.append(adv(g.vXA + t + 1))
                    if t == 2:
                        post += [adv(g.vWA), adv(g.vWA + 1), adv(g.vXA)]
                        if extras:
                            post += [adv(g.vEXX), adv(g.vEXX + 1), f"v_xor_b32 v{g.vEXW}, 0x2000, v{g.vEXW}"]
            elif not last:
                pre.append("s_barrier")
                reads = gemm_reads(g, 0, 0)
                if extras:
                    reads += gemm_extra_reads(g, 0)
            if extras and t in (0, 2):
                em = ex_mfma()
            gemm_step(a, g, t, swap, reads, pre, em, post)

    stamp_mid(a, 4)
    a("s_barrier")
    stamp_mid(a, 0)
    a.many(gemm_reads(g, 0, 0))
    if extras:
        a.many(gemm_extra_reads(g, 0))
    a(f"s_mov_b32 s{sCNT}, 0")
    a(f"s_mov_b32 s{sRSLOT}, 0")
    a.raw(".p2align 3")
    a.label(f"L_{tag}_loop")
    a(f"s_add_u32 s{sRSLOT}, s{sRSLOT}, 1")
    a(f"s_cmp_eq_u32 s{sRSLOT}, {g.NSLOT}")
    csel(a, sDELTA, f"{-(g.NSLOT - 1) * g.SLOT & 0xffffffff:#x}", g.SLOT)
    a(f"s_cselect_b32 s{sRSLOT}, 0, s{sRSLOT}")
    stage(False)
    a(f"s_add_u32 s{sCNT}, s{sCNT}, 1")
    a(f"s_cmp_lt_u32 s{sCNT}, {g.NST - 1}")
    a(f"s_cbranch_scc1 L_{tag}_loop")
    if check:
        hint_read(a, 14, 15, g.EXB)
    stage(True)
    if check:
        hint_check(a, check, 15)
    stamp_mid(a, 1)


def gemm_loader(a, g, tag, vX, vW):
    proj = g.kind == "proj"
    per, LA = g.XP + g.WP, g.NSLOT
    lb = OPT["ld1"] if proj else ""
    pf = proj and OPT["pf"]

    def prefetch():
        a(f"buffer_load_dword v9, v8, {sr(SRD_PF)}, s{sPFO} offen{OPT['pfb']}")
        a(f"s_add_u32 s{sPFO}, s{sPFO}, s{sPFS}")

    def prefetch_if(hi, lbl):
        a(f"s_cmp_ge_u32 s{sWAVE}, 6")
        a(f"s_cbranch_scc{0 if hi else 1} {lbl}")
        prefetch()
        a.label(lbl)

    def issue(lo=0, hi=None):
        hi = per if hi is None else hi
        for n in range(lo, hi):
            isx = n < g.XP
            i = n if isx else n - g.XP
            if i % 4 == 0 or n == lo:
                base = (i // 4) * 4096 if isx else 0
                a(f"s_add_u32 m0, s{sSLOT if isx else sEXS + 0}, {base}" if isx else f"s_add_u32 m0, s{sT3}, 0")
                a("s_nop 0")
            if isx:
                a(f"buffer_load_dwordx4 v{vX[i]}, {sr(SRD_X)}, s{sXOFF} offen offset:{(i % 4) * 1024}{lb} lds")
            else:
                a(f"buffer_load_dwordx4 v{vW[i]}, {sr(SRD_W)}, s{sWOFF} offen offset:{(i % 4) * 1024}{lb} lds")
        if hi == per:
            a(f"s_add_u32 s{sXOFF}, s{sXOFF}, {128 if proj else 16384}")
            a(f"s_add_u32 s{sWOFF}, s{sWOFF}, s{sWSTG}")
            a(f"s_add_u32 s{sRSLOT}, s{sRSLOT}, 1")
            a(f"s_cmp_eq_u32 s{sRSLOT}, {g.NSLOT}")
            csel(a, sDELTA, f"{-(g.NSLOT - 1) * g.SLOT & 0xffffffff:#x}", g.SLOT)
            a(f"s_cselect_b32 s{sRSLOT}, 0, s{sRSLOT}")
            a(f"s_add_u32 s{sSLOT}, s{sSLOT}, s{sDELTA}")
            a(f"s_add_u32 s{sT3}, s{sT3}, s{sDELTA}")

    def maybe_extra(lbl):
        if not proj:
            return
        a(f"s_cmp_lg_u32 s{sSEC}, 0")
        a(f"s_cbranch_scc1 {lbl}")
        a(f"s_mov_b32 m0, s{sEXS}")
        a("s_nop 0")
        a(f"buffer_load_dwordx4 v6, {sr(SRD_WK)}, s{sEXO} offen lds")
        a(f"s_add_u32 m0, s{sEXS}, 4096")
        a("s_nop 0")
        a(f"buffer_load_dwordx4 v6, {sr(SRD_WV)}, s{sEXO} offen lds")
        a(f"s_add_u32 s{sEXO}, s{sEXO}, 4096")
        a(f"s_xor_b32 s{sEXS}, s{sEXS}, 0x2000")
        a.label(lbl)

    a(f"s_mov_b32 s{sRSLOT}, 0")
    stamp_mid(a, 3)
    if proj:
        for st in range(2):
            maybe_extra(f"L_{tag}_x{st}")
            a(f"s_add_u32 s{sDELTA}, s{sXOFF}, {128 * st}")
            for i in range(g.XP):
                if i % 4 == 0:
                    a(f"s_add_u32 m0, s{sSLOT}, {st * g.SLOT + (i // 4) * 4096}")
                    a("s_nop 0")
                a(f"buffer_load_dwordx4 v{vX[i]}, {sr(SRD_X)}, s{sDELTA} offen offset:{(i % 4) * 1024}{lb} lds")
        g.mid()
        for st in range(2):
            a(f"s_add_u32 m0, s{sT3}, {st * g.SLOT}")
            a("s_nop 0")
            for i in range(g.WP):
                a(f"buffer_load_dwordx4 v{vW[i]}, {sr(SRD_W)}, s{sWOFF} offen offset:{i * 1024}{lb} lds")
            a(f"s_add_u32 s{sWOFF}, s{sWOFF}, s{sWSTG}")
        stamp_mid(a, 4)
        a(f"s_add_u32 s{sXOFF}, s{sXOFF}, 256")
        a(f"s_add_u32 s{sSLOT}, s{sSLOT}, {2 * g.SLOT}")
        a(f"s_add_u32 s{sT3}, s{sT3}, {2 * g.SLOT}")
        a(f"s_mov_b32 s{sRSLOT}, 2")
        a(f"s_waitcnt vmcnt({g.WP})")
        stamp_mid(a, 5)
        a("s_barrier")
        stamp_mid(a, 0)
        issue()
        g.after_bar0()
        if pf:
            prefetch_if(False, f"L_{tag}_p2")
            a(f"s_cmp_ge_u32 s{sWAVE}, 6")
            a(f"s_cselect_b32 s{sPFN}, {OPT['pf0']}, {OPT['pf0'] + OPT['pfd']}")
    else:
        issue()
        pre = min(OPT["pre"] * 4 // g.NL, per)
        issue(0, pre)
        stamp_mid(a, 4)
        a(f"s_waitcnt vmcnt({pre})")
        stamp_mid(a, 5)
        a("s_barrier")
        stamp_mid(a, 0)
        if pre < per:
            issue(pre, per)
        for _ in range(LA - 2):
            issue()
    a(f"s_mov_b32 s{sCNT}, 0")
    a.label(f"L_{tag}_lloop")
    a(f"s_waitcnt vmcnt({(LA - 2) * per})")
    a("s_barrier")
    if OPT["lstamp"] and STAMP:
        for k_, n_ in ((1, 2), (4, 3), (8, 4), (11, 5)):
            a(f"s_cmp_lg_u32 s{sCNT}, {k_}")
            a(f"s_cbranch_scc1 L_{tag}_ls{k_}")
            stamp_mid(a, n_)
            a.label(f"L_{tag}_ls{k_}")
    maybe_extra(f"L_{tag}_x2")
    issue()
    if pf:
        a(f"s_cmp_eq_u32 s{sCNT}, s{sPFN}")
        a(f"s_cbranch_scc0 L_{tag}_nopf")
        prefetch()
        a(f"s_add_u32 s{sPFN}, s{sPFN}, {2 * OPT['pfd']}")
        a(f"s_cmp_gt_u32 s{sPFN}, {OPT['pf0'] + 4 * OPT['pfd']}")
        a(f"s_cselect_b32 s{sPFN}, 64, s{sPFN}")
        a.label(f"L_{tag}_nopf")
    a(f"s_add_u32 s{sCNT}, s{sCNT}, 1")
    a(f"s_cmp_lt_u32 s{sCNT}, {g.NST - LA}")
    a(f"s_cbranch_scc1 L_{tag}_lloop")
    for s in range(g.NST - LA, g.NST - 1):
        a(f"s_waitcnt vmcnt({(g.NST - 2 - s) * per})")
        if not proj and s == g.NST - LA:
            a(f"s_cmp_lg_u32 s{sWAVE}, 4")
            a(f"s_cbranch_scc1 L_{tag}_nov")
            hint_verdict(a, tag, 14, 15, g.EXB)
            a.label(f"L_{tag}_nov")
        a("s_barrier")
        if s + 2 <= g.NST - 1:
            maybe_extra(f"L_{tag}_x3_{s}")
    if not proj:
        hint_read(a, 14, 15, g.EXB)
        a("s_waitcnt lgkmcnt(0)")
        hint_check(a, tag, 15)
    stamp_mid(a, 1)
    stamp_end(a, 0 if proj else 2)
    a("s_endpgm")


def proj_group(a, sg):
    a(f"s_lshr_b32 s{sSEC}, s{sg}, 1")
    a(f"s_cmp_eq_u32 s{sSEC}, 0")
    csel(a, sWSTR, 2048, 6144)
    srd_sel(a, SRD_X, 16, 26, 0x400000)
    srd_sel(a, SRD_W, 18, 28, 0x200000, 0x600000)


def proj_pf_setup(a, tag, sg, sidx, sw2):
    a(f"s_bitcmp1_b32 s{sw2}, 0")
    for i in range(3):
        a(f"s_cselect_b32 s{SRD_PF + i}, s{SRD_W + i}, s{SRD_X + i}")
    a(f"s_mov_b32 s{SRD_PF + 3}, 0x00020000")
    a(f"s_cbranch_scc1 L_{tag}_pfw")
    a("v_and_b32 v1, 31, v0")
    a("v_lshlrev_b32 v1, 11, v1")
    a("v_lshrrev_b32 v8, 5, v0")
    a("v_lshl_add_u32 v8, v8, 7, v1")
    a(f"s_and_b32 s{sT1}, s{sg}, 1")
    a(f"s_lshl_b32 s{sT1}, s{sT1}, 5")
    a(f"s_add_u32 s{sT1}, s{sT1}, s{sidx}")
    a(f"s_lshl_b32 s{sT1}, s{sT1}, 16")
    a(f"s_lshl_b32 s{sT2}, s{sw2}, 7")
    a(f"s_add_u32 s{sPFO}, s{sT1}, s{sT2}")
    a(f"s_mov_b32 s{sPFS}, 512")
    a(f"s_branch L_{tag}_pfdone")
    a.label(f"L_{tag}_pfw")
    a("v_lshrrev_b32 v8, 5, v0")
    a("v_lshlrev_b32 v8, 6, v8")
    a("v_bfe_u32 v1, v0, 4, 1")
    a("v_add_u32 v8, v8, v1")
    a(f"v_mul_lo_u32 v8, v8, s{sWSTR}")
    a("v_and_b32 v1, 15, v0")
    a("v_lshl_add_u32 v8, v1, 7, v8")
    a(f"s_lshr_b32 s{sT2}, s{sw2}, 1")
    a(f"s_lshl_b32 s{sT2}, s{sT2}, 6")
    a(f"s_add_u32 s{sT2}, s{sT2}, s{sidx}")
    a(f"s_lshl_b32 s{sT2}, s{sT2}, 1")
    a(f"s_mul_i32 s{sT2}, s{sT2}, s{sWSTR}")
    a(f"s_sub_u32 s{sT1}, s{sSEC}, 1")
    a(f"s_max_i32 s{sT1}, s{sT1}, 0")
    a(f"s_lshl_b32 s{sT1}, s{sT1}, 11")
    a(f"s_add_u32 s{sPFO}, s{sT2}, s{sT1}")
    a(f"s_lshl_b32 s{sPFS}, s{sWSTR}, 8")
    a.label(f"L_{tag}_pfdone")


def gen_proj():
    g = G("proj")
    a = A()
    kernel_head(a, "proj_kernel")
    entry(a, "proj")
    a("s_waitcnt lgkmcnt(0)")
    ws_reloc(a)
    ticket_issue(a, "proj", 4)
    srd(a, SRD_WS, S_WS, WS_SIZE - (OPT["wsb"] << 20))
    srd(a, SRD_WK, 20, 0x10000)
    srd(a, SRD_WV, 22, 0x10000)
    a(f"s_cmp_ge_u32 s{sWAVE}, 4")
    a("s_cbranch_scc1 L_proj_pre_l")
    if OPT["pf"]:
        proj_group(a, sXCC)
        a(f"s_lshr_b32 s{sT0}, s{sHW}, 2")
        a(f"s_and_b32 s{sT0}, s{sT0}, 0x18")
        a(f"s_and_b32 s{sT3}, s{sHW}, 7")
        a(f"s_or_b32 s{sT0}, s{sT0}, s{sT3}")
        proj_pf_setup(a, "projA", sXCC, sT0, sWAVE)
        a(f"buffer_load_dword v15, v8, {sr(SRD_PF)}, s{sPFO} offen{OPT['pfb']}")
        a(f"s_cmp_lg_u32 s{sSEC}, 0")
        a("s_cbranch_scc1 L_proj_nokv")
        a(f"s_lshl_b32 s{sT0}, s{sT0}, 11")
        a("v_and_b32 v1, 15, v0")
        a("v_lshlrev_b32 v1, 7, v1")
        a(f"s_cmp_eq_u32 s{sWAVE}, 2")
        a("s_cbranch_scc0 L_proj_nok")
        a(f"buffer_load_dword v15, v1, {sr(SRD_WK)}, s{sT0} offen{OPT['pfb']}")
        a.label("L_proj_nok")
        a(f"s_cmp_eq_u32 s{sWAVE}, 3")
        a("s_cbranch_scc0 L_proj_nokv")
        a(f"buffer_load_dword v15, v1, {sr(SRD_WV)}, s{sT0} offen{OPT['pfb']}")
        a.label("L_proj_nokv")
        if OPT["pfirst"]:
            if OPT["pwait"]:
                a("s_waitcnt vmcnt(0)")
            stamp_mid(a, 3)
            a("s_barrier")
    a(f"s_lshr_b32 s{sT0}, s{sWAVE}, 1")
    a(f"s_and_b32 s{sT1}, s{sWAVE}, 1")
    a("v_and_b32 v1, 31, v0")
    a("v_lshlrev_b32 v1, 7, v1")
    a(f"s_lshl_b32 s{sT2}, s{sT0}, 14")
    a(f"v_add_u32 v1, s{sT2}, v1")
    a("v_bfe_u32 v2, v0, 1, 3")
    a("v_lshrrev_b32 v3, 5, v0")
    for t in range(4):
        a(f"v_add_u32 v14, {2 * t}, v3")
        a("v_xor_b32 v14, v14, v2")
        a(f"v_lshl_add_u32 v{g.vXA + t}, v14, 4, v1")
    a("v_bfe_u32 v2, v0, 2, 2")
    a("v_lshl_add_u32 v1, v3, 3, v2")
    a("v_lshlrev_b32 v1, 8, v1")
    a("v_bfe_u32 v14, v0, 4, 1")
    a("v_lshl_add_u32 v1, v14, 5, v1")
    a("v_and_b32 v14, 3, v0")
    a("v_lshl_add_u32 v1, v14, 3, v1")
    a(f"v_add_u32 v1, {g.XB}, v1")
    a(f"s_lshl_b32 s{sT2}, s{sT1}, 1")
    for j in range(2):
        a(f"s_add_u32 s{sT3}, s{sT2}, {j}")
        a(f"v_xor_b32 v14, s{sT3}, v2")
        a(f"v_lshl_add_u32 v{g.vWA + j}, v14, 6, v1")
    a(f"v_lshlrev_b32 v{g.vST}, 4, v0")
    a("v_and_b32 v1, 15, v0")
    a("v_lshlrev_b32 v1, 7, v1")
    a("v_bfe_u32 v2, v0, 1, 3")
    a("v_lshrrev_b32 v3, 4, v0")
    for e in range(2):
        a(f"v_add_u32 v14, {4 * e}, v3")
        a("v_xor_b32 v14, v14, v2")
        a(f"v_lshl_add_u32 v{g.vEXX + e}, v14, 4, v1")
    a("v_bfe_u32 v2, v0, 2, 2")
    a("v_lshl_add_u32 v1, v3, 3, v2")
    a("v_lshlrev_b32 v1, 6, v1")
    a("v_and_b32 v14, 3, v0")
    a("v_lshl_add_u32 v1, v14, 3, v1")
    a(f"s_lshl_b32 s{sT2}, s{sT0}, 12")
    a(f"s_lshl_b32 s{sT3}, s{sT1}, 5")
    a(f"s_add_u32 s{sT2}, s{sT2}, s{sT3}")
    a(f"s_add_u32 s{sT2}, s{sT2}, {g.EXB}")
    a(f"v_add_u32 v{g.vEXW}, s{sT2}, v1")
    for r in range(g.nacc):
        a(f"v_mov_b32 v{g.ACC + r}, 0")
    for r in range(8):
        a(f"v_mov_b32 v{g.EXACC + r}, 0")

    def decode():
        proj_group(a, sG)
        a(f"s_and_b32 s{sT0}, s{sG}, 1")
        a(f"s_lshl_b32 s{sM0}, s{sT0}, 10")
        a(f"s_lshl_b32 s{sT0}, s{sMT}, 8")
        a(f"s_add_u32 s{sM0}, s{sM0}, s{sT0}")

    TKT = 2 * g.SLOT + g.XB
    a.label("L_proj_cstart")
    ticket_wait(a, "proj", TKT, "L_proj_credo")
    stamp_mid(a, 2)
    decode()

    a(f"s_lshr_b32 s{sT0}, s{sWAVE}, 1")
    a(f"s_and_b32 s{sT1}, s{sWAVE}, 1")
    a(f"s_lshl_b32 s{sT2}, s{sNT}, 12")
    for e in range(2):
        a(f"v_add_u32 v{g.vEXX + e}, s{sT2}, v{g.vEXX + e}")
    a(f"s_lshl_b32 s{sT2}, s{sNT}, 2")
    a(f"s_lshl_b32 s{sT3}, s{sT1}, 1")
    a(f"s_add_u32 s{sT2}, s{sT2}, s{sT3}")
    a(f"s_lshr_b32 s{sT3}, s{sM0}, 5")
    a(f"s_lshl_b32 s{sOBASE}, s{sT0}, 2")
    a(f"s_add_u32 s{sT3}, s{sT3}, s{sOBASE}")
    a(f"s_cmp_le_u32 s{sSEC}, 1")
    csel(a, sOJ, 0x20000, 0x40000)
    csel(a, sOI, 2048, 4096)
    a(f"s_cselect_b32 s{sSCALE}, {f32bits(QSCALE):#x}, 1.0")
    a(f"s_mov_b32 s{sSCALE+1}, s{sSCALE}")
    a(f"s_mul_i32 s{sOBASE}, s{sT2}, s{sOJ}")
    a(f"s_mul_i32 s{sT3}, s{sT3}, s{sOI}")
    a(f"s_add_u32 s{sOBASE}, s{sOBASE}, s{sT3}")
    a(f"s_mov_b32 s{sT2}, {WS_QA:#x}")
    for sec, base in ((1, WS_QB), (2, WS_KVB), (3, WS_KVB + 2048)):
        a(f"s_cmp_eq_u32 s{sSEC}, {sec}")
        a(f"s_cmov_b32 s{sT2}, {base:#x}")
    a(f"s_add_u32 s{sOBASE}, s{sOBASE}, s{sT2}")
    a(f"s_cmp_eq_u32 s{sSEC}, 3")
    a("s_cbranch_scc1 L_proj_V")
    a(f"s_cmp_eq_u32 s{sSEC}, 0")
    a("s_cbranch_scc0 L_proj_QK")
    a(f"s_cmp_ge_u32 s{sWAVE}, 2")
    a("s_cbranch_scc1 L_proj_AV")

    st = OPT["st1"]

    def epi(scale):
        a("s_nop 7")
        a("s_nop 7")
        for i in range(g.NI):
            for j in range(g.NJ):
                c = g.acc(i, j)
                t = g.F[0] + ((i * g.NJ + j) & 1) * 8
                if scale:
                    for r in range(0, 16, 2):
                        a(f"v_pk_mul_f32 {vr(c + r, 2)}, {vr(c + r, 2)}, {sr(sSCALE, 2)}")
                for r in range(8):
                    a(f"v_cvt_pk_bf16_f32 v{t + r}, v{c + 2 * r}, v{c + 2 * r + 1}")
                a(f"s_mul_i32 s{sT0}, s{sOJ}, {j}")
                a(f"s_mul_i32 s{sT1}, s{sOI}, {i}")
                a(f"s_add_u32 s{sT0}, s{sT0}, s{sT1}")
                a(f"s_add_u32 s{sT0}, s{sT0}, s{sOBASE}")
                a(f"buffer_store_dwordx4 {vr(t, 4)}, v{g.vST}, {sr(SRD_WS)}, s{sT0} offen{st}")
                a(f"buffer_store_dwordx4 {vr(t + 4, 4)}, v{g.vST}, {sr(SRD_WS)}, s{sT0} offen offset:1024{st}")

    def epi_extra(part):
        a("v_and_b32 v1, 15, v0")
        a("v_lshlrev_b32 v1, 4, v1")
        a("v_bfe_u32 v2, v0, 4, 1")
        a("v_lshl_add_u32 v1, v2, 9, v1")
        a("v_lshrrev_b32 v2, 5, v0")
        a("v_lshl_add_u32 v1, v2, 3, v1")
        a(f"s_lshr_b32 s{sT0}, s{sM0}, 5")
        a(f"s_add_u32 s{sT0}, s{sT0}, s{sNT}")
        a(f"s_lshl_b32 s{sT0}, s{sT0}, 12")
        a(f"s_add_u32 s{sT0}, s{sT0}, {WS_KVA + (2048 if part == 'V' else 0):#x}")
        a(f"s_and_b32 s{sT1}, s{sWAVE}, 1")
        a(f"s_lshl_b32 s{sT1}, s{sT1}, {10 if part == 'K' else 8}")
        a(f"s_add_u32 s{sT0}, s{sT0}, s{sT1}")
        for th in range(2):
            c = g.EXACC + 4 * th
            a(f"v_cvt_pk_bf16_f32 v{g.EXF + 2 * th}, v{c}, v{c + 1}")
            a(f"v_cvt_pk_bf16_f32 v{g.EXF + 2 * th + 1}, v{c + 2}, v{c + 3}")
            a(f"buffer_store_dwordx2 {vr(g.EXF + 2 * th, 2)}, v1, {sr(SRD_WS)}, s{sT0} offen offset:{th * (256 if part == 'K' else 1024)}{st}")

    for lbl, tag, swap, ex, scale in ((None, "proj_AK", False, "K", True), ("L_proj_AV", "proj_AV", False, "V", True),
                                      ("L_proj_QK", "proj_QK", False, None, True), ("L_proj_V", "proj_V", True, None, False)):
        if lbl:
            a.label(lbl)
        gemm_compute(a, g, tag, swap, ex)
        if ex:
            a("s_nop 7")
            epi_extra(ex)
        epi(scale)
        stamp_end(a, 0)
        a("s_endpgm")

    a.label("L_proj_pre_l")
    vX = list(range(16, 24))
    vW = list(range(24, 28))
    a("v_lshrrev_b32 v1, 3, v0")
    a("v_lshlrev_b32 v1, 11, v1")
    a("v_lshrrev_b32 v10, 4, v0")
    a("v_and_b32 v7, 7, v0")
    a("v_xor_b32 v11, v10, v7")
    a("v_xor_b32 v12, 4, v11")
    a("v_lshl_add_u32 v11, v11, 4, v1")
    a("v_lshl_add_u32 v12, v12, 4, v1")
    for i in range(8):
        a(f"v_add_u32 v{vX[i]}, {i * 16384 - (i % 4) * 1024}, v{11 + (i & 1)}")
    a("v_lshlrev_b32 v6, 4, v0")
    if OPT["pfirst"]:
        a("s_barrier")
    a.label("L_proj_lstart")
    decode()
    a(f"s_sub_u32 s{sT0}, s{sWAVE}, 4")
    a(f"s_lshl_b32 s{sT1}, s{sT0}, 6")
    a(f"s_add_u32 s{sT1}, s{sT1}, s{sM0}")
    a(f"s_lshl_b32 s{sXOFF}, s{sT1}, 11")
    a(f"s_lshl_b32 s{sSLOT}, s{sT0}, 13")
    a(f"s_lshl_b32 s{sEXO}, s{sT0}, 10")
    a(f"s_add_u32 s{sEXS}, s{sEXO}, {g.EXB}")
    a(f"s_lshl_b32 s{sT3}, s{sT0}, 12")
    a(f"s_add_u32 s{sT3}, s{sT3}, {g.XB}")

    def mid():
        ticket_end(a, "proj", 4, TKT)
        a(f"v_mul_lo_u32 v1, v10, s{sWSTR}")
        a("v_lshlrev_b32 v3, 2, v10")
        a("v_and_b32 v7, 15, v0")
        a("v_xor_b32 v3, v3, v7")
        a(f"v_lshl_add_u32 v{vW[0]}, v3, 4, v1")
        a(f"s_lshl_b32 s{sT1}, s{sWSTR}, 2")
        a(f"s_sub_u32 s{sT1}, s{sT1}, 1024")
        for i in range(1, 4):
            a(f"v_add_u32 v{vW[i]}, s{sT1}, v{vW[i - 1]}")
        a(f"s_sub_u32 s{sWOFF}, s{sSEC}, 1")
        a(f"s_max_i32 s{sWOFF}, s{sWOFF}, 0")
        a(f"s_lshl_b32 s{sWOFF}, s{sWOFF}, 11")
        a(f"s_mul_i32 s{sT1}, s{sT0}, s{sWSTR}")
        a(f"s_lshl_b32 s{sT1}, s{sT1}, 4")
        a(f"s_add_u32 s{sWOFF}, s{sWOFF}, s{sT1}")
        a(f"s_lshl_b32 s{sWSTG}, s{sWSTR}, 6")
        ticket_wait(a, "proj", TKT, "L_proj_lredo")
        stamp_mid(a, 2)
        a(f"s_lshl_b32 s{sT1}, s{sNT}, 8")
        a(f"s_add_u32 s{sWOFF}, s{sWOFF}, s{sT1}")

    def after_bar0():
        ticket_notes(a, "proj", 4)
        if OPT["pf"]:
            a(f"s_lshr_b32 s{sOI}, s2, 3")
            proj_pf_setup(a, "projB", sG, sOI, sT0)
            a(f"s_add_u32 s{sPFO}, s{sPFO}, s{sPFS}")

    g.mid, g.after_bar0 = mid, after_bar0
    gemm_loader(a, g, "proj", vX, vW)
    ticket_redo(a, "proj", "L_proj_credo", "L_proj_cstart")
    ticket_redo(a, "proj", "L_proj_lredo", "L_proj_lstart")
    a.label("L_proj_end")
    a("s_endpgm")
    return a.text(), kernel_desc("proj_kernel", g.nvgpr), g.lds, 512


def gen_outp():
    g = G("outp")
    a = A()
    kernel_head(a, "outp_kernel")
    entry(a, "outp")
    hint_load(a, "outp")
    stamp_mid(a, 2)
    hint_claim(a, "outp", 4)
    a(f"s_bfe_u32 s{sSEC}, s2, 0x10002")
    a(f"s_and_b32 s{sT0}, s2, 3")
    a(f"s_lshl_b32 s{sT0}, s{sT0}, 2")
    a(f"s_bfe_u32 s{sT1}, s2, 0x20003")
    a(f"s_add_u32 s{sM0}, s{sT0}, s{sT1}")
    a(f"s_lshr_b32 s{sNT}, s2, 5")
    a(f"s_cmp_ge_u32 s{sWAVE}, 4")
    a("s_cbranch_scc1 L_outp_loader")
    srd(a, SRD_OUT, S_OUT, 0x800000)
    a(f"s_lshr_b32 s{sT0}, s{sWAVE}, 1")
    a(f"s_and_b32 s{sT1}, s{sWAVE}, 1")
    a(f"s_lshl_b32 s{sT2}, s{sT0}, 13")
    a("v_lshlrev_b32 v1, 4, v0")
    a(f"v_add_u32 v{g.vXA}, s{sT2}, v1")
    a("v_lshrrev_b32 v3, 5, v0")
    a("v_bfe_u32 v2, v0, 2, 2")
    a("v_lshl_add_u32 v1, v3, 2, v2")
    a("v_lshlrev_b32 v1, 8, v1")
    a("v_and_b32 v14, 1, v0")
    a("v_lshl_add_u32 v1, v14, 5, v1")
    a("v_bfe_u32 v14, v0, 4, 1")
    a("v_lshl_add_u32 v1, v14, 4, v1")
    a("v_bfe_u32 v14, v0, 1, 1")
    a("v_lshl_add_u32 v1, v14, 3, v1")
    a(f"v_add_u32 v1, {g.XB}, v1")
    a(f"s_lshl_b32 s{sT2}, s{sT1}, 1")
    for j in range(2):
        a(f"s_add_u32 s{sT3}, s{sT2}, {j}")
        a(f"v_xor_b32 v14, s{sT3}, v2")
        a(f"v_lshl_add_u32 v{g.vWA + j}, v14, 6, v1")
    a(f"s_lshl_b32 s{sT2}, s{sM0}, 1")
    a(f"s_add_u32 s{sT2}, s{sT2}, s{sT0}")
    a(f"s_lshl_b32 s{sOBASE}, s{sT2}, 18")
    a(f"s_lshl_b32 s{sT2}, s{sSEC}, 11")
    a(f"s_add_u32 s{sOBASE}, s{sOBASE}, s{sT2}")
    a(f"s_lshl_b32 s{sT2}, s{sNT}, 8")
    a(f"s_add_u32 s{sOBASE}, s{sOBASE}, s{sT2}")
    a(f"s_lshl_b32 s{sT2}, s{sT1}, 7")
    a(f"s_add_u32 s{sOBASE}, s{sOBASE}, s{sT2}")
    vWR, vRD = 10, 11
    if OPT["epi3"]:
        a("v_and_b32 v1, 31, v0")
        a("v_lshlrev_b32 v2, 7, v1")
        a(f"s_lshl_b32 s{sT2}, s{sWAVE}, 13")
        a(f"v_add_u32 v2, s{sT2}, v2")
        a("v_and_b32 v1, 7, v0")
        a("v_lshlrev_b32 v14, 1, v3")
        a("v_xor_b32 v14, v14, v1")
        a(f"v_lshl_add_u32 v{vWR}, v14, 4, v2")
        a("v_lshrrev_b32 v2, 3, v0")
        a("v_xor_b32 v14, v2, v1")
        a("v_lshlrev_b32 v14, 4, v14")
        a("v_lshl_add_u32 v14, v2, 7, v14")
        a(f"v_add_u32 v{vRD}, s{sT2}, v14")
        a("v_lshlrev_b32 v2, 12, v2")
        a(f"v_lshl_add_u32 v{g.vST}, v1, 4, v2")
    else:
        a("v_and_b32 v1, 31, v0")
        a("v_lshlrev_b32 v1, 12, v1")
        a(f"v_lshl_add_u32 v{g.vST}, v3, 5, v1")
    for r in range(g.nacc):
        a(f"v_mov_b32 v{g.ACC + r}, 0")
    gemm_compute(a, g, "outp", False, None, check="outp")
    a("s_nop 7")
    a("s_nop 7")
    if OPT["epi3"]:
        for j in range(2):
            for e in range(2):
                a(f"v_xor_b32 v{4 + 2 * j + e}, {(4 * j + e) * 16}, v{vWR}")
        for i in range(g.NI):
            for j in range(g.NJ):
                c = g.acc(i, j)
                t = g.F[0] + (i * g.NJ + j) * 8
                for r in range(8):
                    a(f"v_cvt_pk_bf16_f32 v{t + r}, v{c + 2 * r}, v{c + 2 * r + 1}")
                for e in range(2):
                    a(f"ds_write_b128 v{4 + 2 * j + e}, {vr(t + 4 * e, 4)} offset:{4096 * i}")
        a("s_waitcnt lgkmcnt(0)")
        for k in range(8):
            a(f"ds_read_b128 {vr(g.ACC + 4 * k, 4)}, v{vRD} offset:{1024 * k}")
        for k in range(8):
            a(f"s_add_u32 s{sT0}, s{sOBASE}, {k * 8 * 4096}")
            a(f"s_waitcnt lgkmcnt({7 - k})")
            a(f"buffer_store_dwordx4 {vr(g.ACC + 4 * k, 4)}, v{g.vST}, {sr(SRD_OUT)}, s{sT0} offen")
    else:
        for i in range(g.NI):
            for j in range(g.NJ):
                c = g.acc(i, j)
                t = g.F[0] + ((i * g.NJ + j) & 1) * 8
                for r in range(8):
                    a(f"v_cvt_pk_bf16_f32 v{t + r}, v{c + 2 * r}, v{c + 2 * r + 1}")
                a(f"s_add_u32 s{sT0}, s{sOBASE}, {i * 32 * 4096}")
                a(f"buffer_store_dwordx4 {vr(t, 4)}, v{g.vST}, {sr(SRD_OUT)}, s{sT0} offen offset:{64 * j}")
                a(f"buffer_store_dwordx4 {vr(t + 4, 4)}, v{g.vST}, {sr(SRD_OUT)}, s{sT0} offen offset:{64 * j + 16}")
    stamp_end(a, 2)
    a("s_endpgm")
    a.label("L_outp_loader")
    vX = [4] * g.XP
    vW = list(range(24, 24 + g.WP))
    srd(a, SRD_X, S_WS, WS_SIZE - (OPT["wsb"] << 20))
    a(f"s_cmp_eq_u32 s{sSEC}, 0")
    srd_sel(a, SRD_W, 24, 30, 0x200000)
    csel(a, sXOFF, WS_OA, WS_OB)
    a(f"s_sub_u32 s{sT0}, s{sWAVE}, 4")
    a("v_lshlrev_b32 v4, 4, v0")
    a("v_lshrrev_b32 v2, 4, v0")
    a("v_lshlrev_b32 v1, 11, v2")
    a("v_lshlrev_b32 v3, 2, v2")
    a("v_and_b32 v7, 15, v0")
    a("v_xor_b32 v3, v3, v7")
    a(f"v_lshl_add_u32 v{vW[0]}, v3, 4, v1")
    for i in range(1, g.WP):
        a(f"v_add_u32 v{vW[i]}, {i * (8192 - 1024)}, v{vW[0]}")
    a(f"s_lshl_b32 s{sT1}, s{sM0}, 18")
    a(f"s_add_u32 s{sXOFF}, s{sXOFF}, s{sT1}")
    a(f"s_mul_i32 s{sSLOT}, s{sT0}, {g.XP * 1024}")
    a(f"s_add_u32 s{sXOFF}, s{sXOFF}, s{sSLOT}")
    a(f"s_mul_i32 s{sWOFF}, s{sT0}, {g.WP * 8192}")
    a(f"s_lshl_b32 s{sT1}, s{sNT}, 8")
    a(f"s_add_u32 s{sWOFF}, s{sWOFF}, s{sT1}")
    a(f"s_mov_b32 s{sWSTG}, {64 * 2048}")
    a(f"s_mul_i32 s{sT3}, s{sT0}, {g.WP * 1024}")
    a(f"s_add_u32 s{sT3}, s{sT3}, {g.XB}")
    gemm_loader(a, g, "outp", vX, vW)
    hint_slow(a, "outp")
    a.label("L_outp_end")
    a("s_endpgm")
    return a.text(), kernel_desc("outp_kernel", g.nvgpr), g.lds, 256 + 64 * g.NL


def gen_attn():
    a = A()
    kernel_head(a, "attn_kernel")
    vL16, vK, vKN, IDX = 1, 2, 3, 4
    T0, T1, T2, T3 = 5, 6, 7, 8
    vPF, vPFD, vHD = 9, 10, 11
    ONES = 12
    Q, P, KF, VF, L = [16, 24], [32, 40], [48, 56], [64, 72], [80, 84]
    S, NEG, O = [96, 112], [128, 144], [160, 176]
    NV = 192
    SRD, SRDW = SRD_WS, 36
    sQB, sKV, sOB, sST, sSL, sDM, sGO, sPF, sPFC, sFIRST = 61, 62, 63, 64, 65, 66, 67, 68, 69, 70
    t0, t1, t2, t3 = sT0, sT1, sT2, sT3
    TILES = 8
    STG = TILES * 4096
    NSLOT = 3
    NSTG = 64 // TILES
    FLAG = NSLOT * STG
    lds = FLAG + 64

    entry(a, "attn")
    a(f"v_lshlrev_b32 v{vL16}, 4, v0")
    hint_load(a, "attn")
    stamp_mid(a, 2)
    hint_claim(a, "attn", 0)
    a(f"s_lshr_b32 s{t0}, s2, 3")
    a(f"s_and_b32 s{t2}, s2, 3")
    a(f"s_lshl_b32 s{t2}, s{t2}, 4")
    a(f"s_lshl_b32 s{t3}, s{sWAVE}, 1")
    a(f"s_add_u32 s{t2}, s{t2}, s{t3}")
    a(f"s_lshl_b32 s{sKV}, s{t0}, 18")
    a(f"s_add_u32 s{sKV}, s{sKV}, {WS_KVB:#x}")
    a(f"s_lshl_b32 s{sQB}, s{t0}, 17")
    a(f"s_lshl_b32 s{t3}, s{t2}, 11")
    a(f"s_add_u32 s{sQB}, s{sQB}, s{t3}")
    a("s_bitcmp0_b32 s2, 2")
    a(f"s_cmov_b32 s{sKV}, {WS_KVA:#x}")
    a(f"s_cselect_b32 s{t3}, {WS_QA:#x}, {WS_QB:#x}")
    a(f"s_or_b32 s{sQB}, s{sQB}, s{t3}")

    def qloads():
        for q in range(2):
            for c in range(2):
                a(f"buffer_load_dwordx4 {vr(Q[q] + 4 * c, 4)}, v{vL16}, {sr(SRD)}, s{sQB} offen offset:{2048 * q + 1024 * c}")

    stamp_mid(a, 3)
    a(f"s_and_b32 s{t3}, s{sWAVE}, 3")
    a(f"s_lshl_b32 s{t3}, s{t3}, 11")
    a(f"s_add_u32 s{t1}, s{sKV}, s{t3}")

    def grp_dma(grp):
        a(f"s_add_u32 m0, s{t3}, {8192 * grp}")
        a(f"s_add_u32 s{sGO}, s{t1}, {8192 * grp}")
        for c in range(2):
            a(f"buffer_load_dwordx4 v{vL16}, {sr(SRD)}, s{sGO} offen offset:{1024 * c} lds")

    a(f"s_cmp_ge_u32 s{sWAVE}, 4")
    a("s_cbranch_scc1 L_attn_young")
    grp_dma(0)
    qloads()
    a("s_branch L_attn_issued")
    a.label("L_attn_young")
    grp_dma(1)
    qloads()
    grp_dma(2)
    grp_dma(3)
    a.label("L_attn_issued")
    stamp_mid(a, 4)
    a(f"s_lshr_b32 s{t3}, s{t2}, 2")
    a(f"s_lshl_b32 s{sOB}, s{t3}, 18")
    a(f"s_and_b32 s{t3}, s{t2}, 3")
    a(f"s_lshl_b32 s{t3}, s{t3}, 12")
    a(f"s_add_u32 s{sOB}, s{sOB}, s{t3}")
    a(f"s_lshr_b32 s{t3}, s{t0}, 1")
    a(f"s_lshl_b32 s{t3}, s{t3}, 14")
    a(f"s_add_u32 s{sOB}, s{sOB}, s{t3}")
    a(f"s_and_b32 s{t3}, s{t0}, 1")
    a(f"s_lshl_b32 s{t3}, s{t3}, 11")
    a(f"s_add_u32 s{sOB}, s{sOB}, s{t3}")
    a("s_bitcmp0_b32 s2, 2")
    csel(a, t3, WS_OA, WS_OB)
    srd_sel(a, SRDW, 24, 30, 0x200000)
    a(f"s_add_u32 s{sOB}, s{sOB}, s{t3}")
    a(f"s_lshl_b32 s{sPF}, s{t0}, 3")
    a(f"s_add_u32 s{sPF}, s{sPF}, s{sWAVE}")
    a(f"s_lshl_b32 s{sPF}, s{sPF}, 13")
    a(f"v_lshlrev_b32 v{vPF}, 7, v0")
    a(f"s_lshl_b32 s{sDM}, s{sWAVE}, 12")
    a(f"s_add_u32 s{sDM}, s{sDM}, {STG}")
    a(f"s_add_u32 s{sGO}, s{sKV}, s{sDM}")
    a(f"v_and_b32 v{T0}, 2, v0")
    a(f"v_bfe_u32 v{T1}, v0, 2, 1")
    a(f"v_or_b32 v{T2}, v{T0}, v{T1}")
    a(f"v_xor_b32 v{T1}, 1, v{T1}")
    a(f"v_or_b32 v{T3}, v{T0}, v{T1}")
    a(f"v_mov_b32 v{T0}, 0x3f803f80")
    a(f"v_cmp_eq_u32 vcc, 0, v{T2}")
    a("s_nop 1")
    a(f"v_cndmask_b32 v{ONES}, 0, v{T0}, vcc")
    a(f"v_cndmask_b32 v{ONES + 1}, 0, v{T0}, vcc")
    a(f"v_cmp_eq_u32 vcc, 0, v{T3}")
    a("s_nop 1")
    a(f"v_cndmask_b32 v{ONES + 2}, 0, v{T0}, vcc")
    a(f"v_cndmask_b32 v{ONES + 3}, 0, v{T0}, vcc")
    a(f"v_and_b32 v{T0}, 1, v0")
    a(f"v_mov_b32 v{T1}, 0x44444444")
    a(f"v_mov_b32 v{T2}, 0xeeeeeeee")
    a(f"v_cmp_eq_u32 vcc, 1, v{T0}")
    a("s_nop 1")
    a(f"v_cndmask_b32 v{IDX}, v{T1}, v{T2}, vcc")
    for q in range(2):
        for r in range(16):
            a(f"v_mov_b32 v{O[q] + r}, 0")
        for r in range(4):
            a(f"v_mov_b32 v{L[q] + r}, 0")
    for r in range(8):
        a(f"v_mov_b32 v{P[1] + r}, 0")
        a(f"v_mov_b32 v{VF[1] + r}, 0")
    a(f"v_mov_b32 v{vK}, v{vL16}")
    a(f"v_add_u32 v{vKN}, {STG}, v{vL16}")

    def kread(kt):
        reg, k = (vK, kt) if kt < TILES else (vKN, kt - TILES)
        return [f"ds_read_b128 {vr(KF[kt & 1] + 4 * c, 4)}, v{reg} offset:{4096 * k + 1024 * c}" for c in range(2)]

    def vread(kt):
        reg, k = (vK, kt) if kt < TILES else (vKN, kt - TILES)
        return [f"ds_read_b128 {vr(VF[kt & 1] + 4 * c, 4)}, v{reg} offset:{4096 * k + 2048 + 1024 * c}" for c in range(2)]

    dma_ins = [f"buffer_load_dwordx4 v{vL16}, {sr(SRD)}, s{sGO} offen offset:{1024 * c} lds" for c in range(4)]

    def dma_adv():
        a(f"s_add_u32 s{sGO}, s{sGO}, {STG}")
        a(f"s_add_u32 s{sDM}, s{sDM}, {STG}")
        a(f"s_cmp_ge_u32 s{sDM}, {NSLOT * STG}")
        a(f"s_cselect_b32 s{t0}, {NSLOT * STG}, 0")
        a(f"s_sub_u32 s{sDM}, s{sDM}, s{t0}")

    a(f"s_cmp_lt_u32 s{sWAVE}, 4")
    a(f"s_cselect_b32 s{sFIRST}, 1, 2")
    a("s_cbranch_scc0 L_attn_b0y")
    a("s_waitcnt vmcnt(4)")
    a("s_barrier")
    a.many(kread(0) + vread(0) + kread(1))
    stamp_mid(a, 0)
    a("s_waitcnt vmcnt(0)")
    a("s_branch L_attn_b0")
    a.label("L_attn_b0y")
    a("s_barrier")
    a("s_waitcnt vmcnt(8)")
    a("s_barrier")
    a.many(kread(0) + vread(0) + kread(1))
    stamp_mid(a, 0)
    a("s_waitcnt vmcnt(4)")
    a.label("L_attn_b0")
    stamp_mid(a, 5)
    a(f"s_mov_b32 m0, s{sDM}")
    a("s_waitcnt lgkmcnt(4)")
    for q in range(2):
        a(f"{MF32} {vr(S[q], 16)}, {vr(KF[0], 4)}, {vr(Q[q], 4)}, 0")
        a(dma_ins[2 * q])
        a(f"{MF32} {vr(S[q], 16)}, {vr(KF[0] + 4, 4)}, {vr(Q[q] + 4, 4)}, {vr(S[q], 16)}")
        a(dma_ins[2 * q + 1])
    dma_adv()
    a(f"s_mov_b32 s{sST}, 0")
    a(f"s_mov_b32 s{sSL}, {STG}")
    a("s_nop 5")
    for q in range(2):
        s, t = S[q], T0 + 2 * q
        a(f"v_max3_f32 v{t}, v{s}, v{s + 1}, v{s + 2}")
        for r in range(3, 15, 2):
            a(f"v_max3_f32 v{t}, v{s + r}, v{s + r + 1}, v{t}")
        a(f"v_max_f32 v{t}, v{s + 15}, v{t}")
        a(f"v_mov_b32 v{t + 1}, v{t}")
    a("s_nop 1")
    for q in range(2):
        a(f"v_permlane32_swap_b32 v{T0 + 2 * q}, v{T0 + 2 * q + 1}")
    a("s_nop 1")
    for q in (1, 0):
        t = T0 + 2 * q
        a(f"v_max_f32 v{t}, v{t}, v{t + 1}")
        for r in range(16):
            a(f"v_sub_f32 v{NEG[q] + r}, 0, v{t}")
    for r in range(16):
        a(f"v_sub_f32 v{S[0] + r}, v{S[0] + r}, v{T0}")

    def step(u, fill=()):
        q, kt = u & 1, u >> 1
        qp, ktn, ktp = q ^ 1, (u + 1) >> 1, (u - 1) >> 1
        cur, nxt = S[q], S[qp]
        rd = vread(kt + 1) if q == 0 else kread(kt + 2)
        d = dict(
            QK0=f"{MF32} {vr(nxt, 16)}, {vr(KF[ktn & 1], 4)}, {vr(Q[qp], 4)}, {vr(NEG[qp], 16)}",
            QK1=f"{MF32} {vr(nxt, 16)}, {vr(KF[ktn & 1] + 4, 4)}, {vr(Q[qp] + 4, 4)}, {vr(nxt, 16)}",
            PV0=f"{MF32} {vr(O[q], 16)}, {vr(VF[kt & 1], 4)}, {vr(P[q], 4)}, {vr(O[q], 16)}",
            PV1=f"{MF32} {vr(O[qp], 16)}, {vr(VF[ktp & 1] + 4, 4)}, {vr(P[qp] + 4, 4)}, {vr(O[qp], 16)}",
            SP=f"v_smfmac_f32_16x16x64_bf16 {vr(L[qp], 4)}, {vr(ONES, 4)}, {vr(P[qp], 8)}, v{IDX}",
            R0=rd[0], R1=rd[1],
            Wq="s_waitcnt lgkmcnt(2)" if q == 1 else None, Wp="s_waitcnt lgkmcnt(4)" if q == 0 else None)
        for i in range(16):
            d[f"E{i}"] = f"v_exp_f32 v{cur + i}, v{cur + i}"
        for i in range(8):
            d[f"C{i}"] = f"v_cvt_pk_bf16_f32 v{P[q] + i}, v{cur + 2 * i}, v{cur + 2 * i + 1}"
        fill = list(fill) + [None] * 2
        d["F0"], d["F1"] = fill[0], fill[1]
        o = "E0 E1 PV1 Wq E2 E3 E4 QK0 F0 E5 E6 E7 QK1 R0 C0 E8 C1 E9 SP R1 C2 E10 C3 E11 E12 Wp PV0 F1 E13 C4 E14 C5 E15 C6 C7"
        for t in o.split():
            x = d[t]
            if x:
                a.many(x if isinstance(x, list) else [x])

    if OPT["lstamp"]:
        stamp_mid(a, 2)
    UB = 2 * TILES - 3
    a.raw(".p2align 3")
    a.label("L_attn_loop")
    a(f"s_cmp_eq_u32 s{sFIRST}, 1")
    for u in range(2 * TILES):
        fill = ()
        if u in (1, 5, 9):
            a(f"s_cbranch_scc1 L_attn_first{u}")
            a.label(f"L_attn_back{u}")
            if u == 1:
                a(f"s_cmp_lg_u32 s{sFIRST}, 0")
        if u == UB:
            a("s_waitcnt vmcnt(0)")
            a("s_barrier")
            a(f"s_mov_b32 m0, s{sDM}")
            fill = (dma_ins[0], dma_ins[1])
        if u == UB + 1:
            fill = (dma_ins[2], dma_ins[3])
        if u == UB + 2:
            fill = ([f"s_cmp_eq_u32 s{sST}, {NSTG - 2}", f"s_cselect_b32 s{sPFC}, s{sPF}, 0x7ff00000",
                     f"buffer_load_dword v{vPFD}, v{vPF}, {sr(SRDW)}, s{sPFC} offen"],
                    [f"s_add_u32 s{sGO}, s{sGO}, {STG}", f"s_add_u32 s{sDM}, s{sDM}, {STG}"])
        if (u - UB) % 4 == 0:
            a(f"s_setprio {3 - ((u - UB) % (2 * TILES)) // 4}")
        step(u, fill)
    a(f"s_cmp_ge_u32 s{sDM}, {NSLOT * STG}")
    a(f"s_cselect_b32 s{t0}, {NSLOT * STG}, 0")
    a(f"s_sub_u32 s{sDM}, s{sDM}, s{t0}")
    a(f"s_mov_b32 s{sFIRST}, 0")
    a(f"v_mov_b32 v{vK}, v{vKN}")
    a(f"s_add_u32 s{sSL}, s{sSL}, {STG}")
    a(f"s_cmp_ge_u32 s{sSL}, {NSLOT * STG}")
    a(f"s_cselect_b32 s{sSL}, 0, s{sSL}")
    a(f"v_add_u32 v{vKN}, s{sSL}, v{vL16}")
    if OPT["lstamp"] and STAMP:
        for k_, n_ in ((0, 3), (1, 4), (6, 5)):
            a(f"s_cmp_lg_u32 s{sST}, {k_}")
            a(f"s_cbranch_scc1 L_attn_ls{k_}")
            stamp_mid(a, n_)
            a.label(f"L_attn_ls{k_}")
    a(f"s_add_u32 s{sST}, s{sST}, 1")
    a(f"s_cmp_lt_u32 s{sST}, {NSTG}")
    a("s_cbranch_scc1 L_attn_loop")
    stamp_mid(a, 1)
    a("s_nop 1")
    a(f"{MF32} {vr(O[1], 16)}, {vr(VF[1] + 4, 4)}, {vr(P[1] + 4, 4)}, {vr(O[1], 16)}")
    a(f"v_smfmac_f32_16x16x64_bf16 {vr(L[1], 4)}, {vr(ONES, 4)}, {vr(P[1], 8)}, v{IDX}")
    a(f"v_mov_b32 v{T2}, 0")
    for q in range(2):
        for r in range(16):
            a(f"v_fmac_f32 v{T2}, 0, v{O[q] + r}")
        a(f"v_add_f32 v{L[q]}, v{L[q]}, v{L[q] + 1}")
    a(f"v_max_f32 v{T3}, v{L[0]}, v{L[1]}")
    a(f"v_fmac_f32 v{T2}, 0, v{L[0]}")
    a(f"v_fmac_f32 v{T2}, 0, v{L[1]}")
    a(f"v_add_f32 v{T3}, v{T3}, v{T2}")
    a(f"v_mov_b32 v{T2}, {f32bits(2.0 ** 40):#x}")
    a(f"v_cmp_nle_f32 vcc, v{T3}, v{T2}")
    a("s_waitcnt lgkmcnt(0)")
    a("s_nop 3")
    a("s_cbranch_vccnz L_attn_slow")

    def finish(q, lreg):
        a(f"v_rcp_f32 v{T0}, v{lreg}")
        a("s_nop 0")
        for r in range(16):
            a(f"v_mul_f32 v{O[q] + r}, v{O[q] + r}, v{T0}")
        for r in range(8):
            a(f"v_cvt_pk_bf16_f32 v{P[q] + r}, v{O[q] + 2 * r}, v{O[q] + 2 * r + 1}")
        a(f"s_add_u32 s{t0}, s{sOB}, {4096 * q}")
        for c in range(2):
            a(f"buffer_store_dwordx4 {vr(P[q] + 4 * c, 4)}, v{vL16}, {sr(SRD)}, s{t0} offen offset:{1024 * c}{OPT['st2']}")

    for q in range(2):
        finish(q, L[q])
    stamp_end(a, 1)
    a("s_endpgm")

    for u in (1, 5, 9):
        a.label(f"L_attn_first{u}")
        if u > 1:
            a(f"s_waitcnt vmcnt({6 if u == 5 else 4})")
        if u == 9:
            a(f"s_cmp_lg_u32 s{sWAVE}, 0")
            a("s_cbranch_scc1 L_attn_nov")
            hint_verdict(a, "attn", T0, vHD, FLAG)
            a.label("L_attn_nov")
        a("s_barrier")
        if u == 9:
            hint_read(a, T0, vHD, FLAG)
            a("s_waitcnt lgkmcnt(0)")
            hint_check(a, "attn", vHD)
        a(f"s_branch L_attn_back{u}")

    a.label("L_attn_slow")
    M, LS, AL = 88, 89, 90
    for q in range(2):
        s = S[0]
        a(f"v_mov_b32 v{M}, 0xff7fffff")
        a(f"v_mov_b32 v{LS}, 0")
        for r in range(16):
            a(f"v_mov_b32 v{O[q] + r}, 0")
        a(f"s_mov_b32 s{sGO}, s{sKV}")
        a(f"s_mov_b32 s{sST}, 0")
        a.label(f"L_attn_slow_{q}")
        for c in range(2):
            a(f"buffer_load_dwordx4 {vr(KF[0] + 4 * c, 4)}, v{vL16}, {sr(SRD)}, s{sGO} offen offset:{1024 * c}")
        for c in range(2):
            a(f"buffer_load_dwordx4 {vr(VF[0] + 4 * c, 4)}, v{vL16}, {sr(SRD)}, s{sGO} offen offset:{2048 + 1024 * c}")
        a("s_waitcnt vmcnt(0)")
        a(f"{MF32} {vr(s, 16)}, {vr(KF[0], 4)}, {vr(Q[q], 4)}, 0")
        a(f"{MF32} {vr(s, 16)}, {vr(KF[0] + 4, 4)}, {vr(Q[q] + 4, 4)}, {vr(s, 16)}")
        a("s_nop 7")
        a("s_nop 7")
        a(f"v_max3_f32 v{T0}, v{s}, v{s + 1}, v{M}")
        for r in range(2, 16, 2):
            a(f"v_max3_f32 v{T0}, v{s + r}, v{s + r + 1}, v{T0}")
        a(f"v_mov_b32 v{T1}, v{T0}")
        a("s_nop 1")
        a(f"v_permlane32_swap_b32 v{T0}, v{T1}")
        a("s_nop 1")
        a(f"v_max_f32 v{T0}, v{T0}, v{T1}")
        a(f"v_sub_f32 v{AL}, v{M}, v{T0}")
        a(f"v_exp_f32 v{AL}, v{AL}")
        a(f"v_mov_b32 v{M}, v{T0}")
        for r in range(16):
            a(f"v_sub_f32 v{s + r}, v{s + r}, v{T0}")
        for r in range(16):
            a(f"v_exp_f32 v{s + r}, v{s + r}")
        a(f"v_mul_f32 v{LS}, v{LS}, v{AL}")
        for r in range(16):
            a(f"v_mul_f32 v{O[q] + r}, v{O[q] + r}, v{AL}")
        for r in range(16):
            a(f"v_add_f32 v{LS}, v{LS}, v{s + r}")
        for r in range(8):
            a(f"v_cvt_pk_bf16_f32 v{P[0] + r}, v{s + 2 * r}, v{s + 2 * r + 1}")
        a("s_nop 1")
        a(f"{MF32} {vr(O[q], 16)}, {vr(VF[0], 4)}, {vr(P[0], 4)}, {vr(O[q], 16)}")
        a(f"{MF32} {vr(O[q], 16)}, {vr(VF[0] + 4, 4)}, {vr(P[0] + 4, 4)}, {vr(O[q], 16)}")
        a("s_nop 7")
        a("s_nop 7")
        a(f"s_add_u32 s{sGO}, s{sGO}, 4096")
        a(f"s_add_u32 s{sST}, s{sST}, 1")
        a(f"s_cmp_lt_u32 s{sST}, 64")
        a(f"s_cbranch_scc1 L_attn_slow_{q}")
        a(f"v_mov_b32 v{T1}, v{LS}")
        a("s_nop 1")
        a(f"v_permlane32_swap_b32 v{LS}, v{T1}")
        a("s_nop 1")
        a(f"v_add_f32 v{LS}, v{LS}, v{T1}")
        finish(q, LS)
        a("s_waitcnt vmcnt(0)")
    stamp_end(a, 1)
    a("s_endpgm")
    hint_slow(a, "attn")
    a.label("L_attn_end")
    a("s_endpgm")
    return a.text(), kernel_desc("attn_kernel", NV), lds, 512


HEADER = """; Fused MQA (branch A) + MHA (branch B) attention block, three launches:
;   proj_kernel : Q/K/V projections -> MFMA-fragment-ordered tiles in d_ws
;   attn_kernel : softmax(Q K^T) V per (branch, head, 512 rows)
;   outp_kernel : output projections -> d_out
"""


def main(path):
    ks = [("proj_kernel",) + gen_proj(), ("attn_kernel",) + gen_attn(), ("outp_kernel",) + gen_outp()]
    s = HEADER
    for n, t, d, lds, blk in ks:
        s += f"; @launch kernel={n} grid=(256,1,1) block=({blk},1,1) lds={lds}\n"
    s += '.amdgcn_target "amdgcn-amd-amdhsa--gfx950"\n'
    s += "".join(k[1] for k in ks) + "".join(k[2] for k in ks)
    open(path, "w").write(s)


if __name__ == "__main__":
    args = sys.argv[1:]
    if "--stamp" in args:
        STAMP = True
        args.remove("--stamp")
    for x in list(args):
        if "=" in x:
            k_, v_ = x.split("=")
            assert k_ in OPT, k_
            OPT[k_] = int(v_) if v_.lstrip("-").isdigit() else ("" if v_ == "none" else " " + v_.replace("+", " "))
            args.remove(x)
    main(args[0] if args else f"cdna_kernels/{NAME}.s")
```

```python
import sys, math, struct

NAME = "concat_heads__grouped_kv_mqa__softmax_full_mha__prompt"

WS_QA = 0x0000000
WS_QB = 0x0400000
WS_KVA = 0x0800000
WS_TBL = 0x0900000
WS_CLM = 0x0910000
WS_KVB = 0x1000000
WS_OA = 0x2000000
WS_OB = 0x2400000
WS_STAMP = 0x8000000
WS_SIZE = 268435456

QSCALE = (32 ** -0.5) * math.log2(math.e)
STAMP = False
OPT = dict(pre=6, st1=" sc0 sc1", st2="", ld1="", pfb="", pf=1, pf0=0, pfd=2, badtbl=0, lstamp=0, epi3=1, nl3=4, fake16=0, badtk=0, pfirst=1, pwait=0, wsb=0, st3=" nt", k2s=1, p0=2, xfirst=1, rot=0)

MF32 = "v_mfma_f32_32x32x16_bf16"
MF16 = "v_mfma_f32_16x16x32_bf16"


def f32bits(x):
    return struct.unpack("<I", struct.pack("<f", x))[0]


class A:
    def __init__(self):
        self.l = []

    def __call__(self, s):
        self.l.append("    " + s)

    def many(self, xs):
        for x in xs:
            self(x)

    def label(self, s):
        self.l.append(s + ":")

    def raw(self, s):
        self.l.append(s)

    def text(self):
        return "\n".join(self.l) + "\n"


def vr(b, n):
    return f"v[{b}:{b + n - 1}]"


def sr(b, n=4):
    return f"s[{b}:{b + n - 1}]"


def srd(a, d, lo, size):
    a(f"s_mov_b32 s{d}, s{lo}")
    a(f"s_mov_b32 s{d+1}, s{lo + 1}")
    a(f"s_mov_b32 s{d+2}, {size:#x}")
    a(f"s_mov_b32 s{d+3}, 0x00020000")


def srd_sel(a, d, lo1, lo0, size1, size0=None):
    a(f"s_cselect_b32 s{d}, s{lo1}, s{lo0}")
    a(f"s_cselect_b32 s{d+1}, s{lo1 + 1}, s{lo0 + 1}")
    if size0 is None:
        a(f"s_mov_b32 s{d+2}, {size1:#x}")
    else:
        csel(a, d + 2, size1, size0)
    a(f"s_mov_b32 s{d+3}, 0x00020000")


def csel(a, d, x, y):
    a(f"s_mov_b32 s{d}, {y}")
    a(f"s_cmov_b32 s{d}, {x}")


def kernel_head(a, name):
    a.raw(".text")
    a.raw(f".globl {name}")
    a.raw(".p2align 8")
    a.raw(f".type {name},@function")
    a.label(name)


def kernel_desc(name, nvgpr, nsgpr=102):
    acc = (nvgpr + 3) // 4 * 4
    return f""".section .rodata,"a"
.p2align 6
.amdhsa_kernel {name}
  .amdhsa_next_free_vgpr {nvgpr}
  .amdhsa_next_free_sgpr {nsgpr}
  .amdhsa_accum_offset {acc}
  .amdhsa_group_segment_fixed_size 0
  .amdhsa_kernarg_size 88
  .amdhsa_user_sgpr_count 2
  .amdhsa_user_sgpr_kernarg_segment_ptr 1
  .amdhsa_system_sgpr_workgroup_id_x 1
.end_amdhsa_kernel
"""


sXCC, sHW, sTRY, sTK = 3, 8, 9, 10
SRD_DBG = 12
S_IN = 16
S_OUT = 32
S_WS = 34
SRD_WS = 44
sWAVE = 56
sT0, sT1, sT2, sT3 = 57, 58, 59, 60
sOK = 81


def stamp_begin(a):
    if STAMP:
        a("s_memtime s[82:83]")
        a("s_memrealtime s[84:85]")
        for n in range(6):
            a(f"s_mov_b32 s{90 + 2 * n}, 0")


def stamp_mid(a, n):
    if STAMP:
        a(f"s_memtime s[{90 + 2 * n}:{91 + 2 * n}]")


def stamp_end(a, kidx):
    if not STAMP:
        return
    a("s_waitcnt vmcnt(0)")
    a("s_memtime s[86:87]")
    a("s_memrealtime s[88:89]")
    a("s_waitcnt lgkmcnt(0)")
    a(f"s_min_u32 s9, s{sWAVE}, 7")
    a("s_lshl_b32 s8, s2, 3")
    a("s_add_u32 s8, s8, s9")
    a("s_lshl_b32 s8, s8, 6")
    a(f"s_add_u32 s8, s8, {WS_STAMP + kidx * 0x20000:#x}")
    for i, r in enumerate((82, 84, 86, 88, 90, 92, 94, 96, 98, 100, 100, 100)):
        a(f"v_mov_b32 v{4 + i}, s{r}")
    a("v_mov_b32 v1, 0")
    a("s_mov_b64 exec, 1")
    for i in range(3):
        a(f"buffer_store_dwordx4 v[{4 + 4 * i}:{7 + 4 * i}], v1, {sr(SRD_WS)}, s8 offen offset:{16 * i}")


def entry(a, tag):
    a("s_cmp_ge_u32 s2, 256")
    a(f"s_cbranch_scc1 L_{tag}_end")
    stamp_begin(a)
    a(f"s_load_dwordx16 {sr(S_IN, 16)}, s[0:1], 0")
    a(f"s_load_dwordx2 {sr(S_OUT, 2)}, s[0:1], 64")
    a(f"s_load_dwordx2 {sr(SRD_DBG, 2)}, s[0:1], 72")
    a(f"s_load_dwordx2 {sr(S_WS, 2)}, s[0:1], 80")
    a("v_lshrrev_b32 v1, 6, v0")
    a("v_and_b32 v0, 63, v0")
    a(f"v_readfirstlane_b32 s{sWAVE}, v1")
    a(f"s_getreg_b32 s{sXCC}, hwreg(HW_REG_XCC_ID, 0, 3)")
    a(f"s_getreg_b32 s{sHW}, hwreg(HW_REG_HW_ID, 8, 8)")
    a(f"s_mov_b32 s{SRD_DBG + 2}, 256")
    a(f"s_mov_b32 s{SRD_DBG + 3}, 0x00020000")


def ws_reloc(a):
    if OPT["wsb"]:
        a(f"s_add_u32 s{S_WS}, s{S_WS}, {OPT['wsb'] << 20:#x}")
        a(f"s_addc_u32 s{S_WS + 1}, s{S_WS + 1}, 0")


def tbl_offset(a, d):
    a(f"s_lshl_b32 s{d}, s{sXCC}, 8")
    a(f"s_or_b32 s{d}, s{d}, s{sHW}")
    a(f"s_lshl_b32 s{d}, s{d}, 2")
    a(f"s_add_u32 s{d}, s{d}, {WS_TBL:#x}")


sG, sMT = 32, 33


def ticket_issue(a, tag, who):
    a(f"s_mov_b32 s{sG}, s{sXCC}")
    a(f"s_bfe_u32 s{sMT}, s{sHW}, 0x20005")
    if OPT["badtk"]:
        a(f"s_and_b32 s{sMT}, s{sMT}, 1")
        a(f"s_and_b32 s{sG}, s{sG}, 5")
    a(f"s_mov_b32 s{sOK}, 0")
    a(f"s_cmp_lg_u32 s{sWAVE}, {who}")
    a(f"s_cbranch_scc1 L_{tag}_cl0")
    a(f"s_lshl_b32 s{sTK + 1}, s{sG}, 2")
    a(f"s_or_b32 s{sTK + 1}, s{sTK + 1}, s{sMT}")
    a(f"s_lshl_b32 s{sTRY}, s{sTK + 1}, 3")
    a(f"s_mov_b32 s{sTK}, 1")
    a(f"s_atomic_add s{sTK}, {sr(SRD_DBG, 2)}, s{sTRY} glc")
    a.label(f"L_{tag}_cl0")


def ticket_end(a, tag, who, ldsoff):
    a(f"s_cmp_lg_u32 s{sWAVE}, {who}")
    a(f"s_cbranch_scc1 L_{tag}_cl3")
    a(f"s_cmp_lg_u32 s{sOK}, 0")
    a(f"s_cbranch_scc1 L_{tag}_cl3")
    a(f"s_mov_b32 s{sCNT}, 0")
    a.label(f"L_{tag}_cl1")
    a("s_waitcnt lgkmcnt(0)")
    a(f"s_cmp_lt_u32 s{sTK}, 8")
    a(f"s_cbranch_scc1 L_{tag}_cl2")
    a(f"s_add_u32 s{sCNT}, s{sCNT}, 1")
    a(f"s_cmp_ge_u32 s{sCNT}, 32")
    a(f"s_cbranch_scc1 L_{tag}_cl2")
    a(f"s_add_u32 s{sTK + 1}, s{sTK + 1}, 1")
    a(f"s_and_b32 s{sTK + 1}, s{sTK + 1}, 31")
    a(f"s_lshl_b32 s{sTRY}, s{sTK + 1}, 3")
    a(f"s_mov_b32 s{sTK}, 1")
    a(f"s_atomic_add s{sTK}, {sr(SRD_DBG, 2)}, s{sTRY} glc")
    a(f"s_branch L_{tag}_cl1")
    a.label(f"L_{tag}_cl2")
    a(f"s_min_u32 s{sTK}, s{sTK}, 8")
    a(f"s_lshl_b32 s{sTK}, s{sTK}, 5")
    a(f"s_and_b32 s{sTRY}, s{sTK + 1}, 3")
    a(f"s_lshl_b32 s{sTRY}, s{sTRY}, 3")
    a(f"s_or_b32 s{sTK}, s{sTK}, s{sTRY}")
    a(f"s_lshr_b32 s{sTRY}, s{sTK + 1}, 2")
    a(f"s_or_b32 s{sTK}, s{sTK}, s{sTRY}")
    a("s_mov_b64 exec, 1")
    a(f"v_mov_b32 v2, {ldsoff}")
    a(f"v_mov_b32 v3, s{sTK}")
    a("ds_write_b32 v2, v3")
    a("s_mov_b64 exec, -1")
    a("s_waitcnt lgkmcnt(0)")
    a.label(f"L_{tag}_cl3")


def ticket_notes(a, tag, who):
    a(f"s_cmp_lg_u32 s{sWAVE}, {who}")
    a(f"s_cbranch_scc1 L_{tag}_cl4")
    a("s_mov_b64 exec, 1")
    a("v_mov_b32 v1, 0")
    a("v_mov_b32 v3, s2")
    a(f"s_lshl_b32 s{sT1}, s2, 7")
    a(f"s_add_u32 s{sT1}, s{sT1}, {WS_CLM:#x}")
    a(f"buffer_store_dword v1, v1, {sr(SRD_WS)}, s{sT1} offen")
    a(f"s_add_u32 s{sT1}, s{sT1}, 0x8000")
    a(f"buffer_store_dword v1, v1, {sr(SRD_WS)}, s{sT1} offen")
    tbl_offset(a, sT1)
    a(f"buffer_store_dword v3, v1, {sr(SRD_WS)}, s{sT1} offen")
    a("s_mov_b64 exec, -1")
    a.label(f"L_{tag}_cl4")


def ticket_wait(a, tag, ldsoff, redo):
    a(f"v_mov_b32 v2, {ldsoff}")
    a("s_barrier")
    a("ds_read_b32 v3, v2")
    a(f"s_lshl_b32 s{sT1}, s{sMT}, 3")
    a(f"s_or_b32 s{sT1}, s{sT1}, s{sG}")
    a("s_waitcnt lgkmcnt(0)")
    a("v_readfirstlane_b32 s2, v3")
    a("s_nop 3")
    a(f"s_and_b32 s{sT2}, s2, 0x31f")
    a(f"s_cmp_lg_u32 s{sT2}, s{sT1}")
    a(f"s_cbranch_scc1 {redo}")
    a(f"s_lshr_b32 s{sNT}, s2, 5")


def ticket_redo(a, tag, lbl, back):
    a.label(lbl)
    a("s_waitcnt vmcnt(0)")
    a("s_cmp_ge_u32 s2, 256")
    a(f"s_cbranch_scc1 L_{tag}_end")
    a(f"s_and_b32 s{sG}, s2, 7")
    a(f"s_bfe_u32 s{sMT}, s2, 0x20003")
    a(f"s_mov_b32 s{sOK}, 1")
    a(f"s_branch {back}")


def hint_load(a, tag):
    tbl_offset(a, sTK)
    a("s_waitcnt lgkmcnt(0)")
    ws_reloc(a)
    a(f"s_load_dword s2, {sr(S_WS, 2)}, s{sTK}")
    srd(a, SRD_WS, S_WS, WS_SIZE - (OPT["wsb"] << 20))
    a(f"s_mov_b32 s{sOK}, 0")
    a("s_waitcnt lgkmcnt(0)")
    if OPT["badtbl"]:
        a(f"s_and_b32 s2, s2, {OPT['badtbl']}")
    a("s_and_b32 s2, s2, 255")
    a.label(f"L_{tag}_item")


def clm_base(tag):
    return WS_CLM + (0 if tag == "attn" else 0x8000)


def hint_claim(a, tag, who):
    a(f"s_cmp_lg_u32 s{sWAVE}, {who}")
    a(f"s_cbranch_scc1 L_{tag}_noc")
    a(f"s_lshl_b32 s{sTK + 1}, s2, 7")
    a(f"s_add_u32 s{sTK + 1}, s{sTK + 1}, {clm_base(tag):#x}")
    a(f"s_mov_b32 s{sTK}, 1")
    a(f"s_atomic_or s{sTK}, {sr(S_WS, 2)}, s{sTK + 1} glc")
    a.label(f"L_{tag}_noc")


def hint_verdict(a, tag, vA, vD, ldsoff):
    a("s_waitcnt lgkmcnt(0)")
    a(f"s_andn2_b32 s{sTK}, s{sTK}, s{sOK}")
    a(f"s_cmp_lg_u32 s{sTK}, 0")
    a(f"s_mov_b32 s{sTRY}, s2")
    a(f"s_cbranch_scc1 L_{tag}_hslow")
    a.label(f"L_{tag}_hback")
    a(f"v_mov_b32 v{vA}, {ldsoff}")
    a(f"v_mov_b32 v{vD}, s{sTRY}")
    a(f"ds_write_b32 v{vA}, v{vD}")
    a("s_waitcnt lgkmcnt(0)")


def hint_slow(a, tag):
    sN = 4
    a.label(f"L_{tag}_hslow")
    a(f"s_mov_b32 s{sN}, 0")
    a.label(f"L_{tag}_hs1")
    a(f"s_add_u32 s{sN}, s{sN}, 1")
    a(f"s_add_u32 s{sTRY}, s{sTRY}, 9")
    a(f"s_and_b32 s{sTRY}, s{sTRY}, 255")
    a(f"s_cmp_gt_u32 s{sN}, 256")
    a(f"s_cbranch_scc1 L_{tag}_hs2")
    a(f"s_lshl_b32 s{sTK + 1}, s{sTRY}, 7")
    a(f"s_add_u32 s{sTK + 1}, s{sTK + 1}, {clm_base(tag):#x}")
    a(f"s_mov_b32 s{sTK}, 1")
    a(f"s_atomic_or s{sTK}, {sr(S_WS, 2)}, s{sTK + 1} glc")
    a("s_waitcnt lgkmcnt(0)")
    a(f"s_cmp_lg_u32 s{sTK}, 0")
    a(f"s_cbranch_scc1 L_{tag}_hs1")
    a(f"s_branch L_{tag}_hback")
    a.label(f"L_{tag}_hs2")
    a(f"s_mov_b32 s{sTRY}, 0x8000")
    a(f"s_branch L_{tag}_hback")
    a.label(f"L_{tag}_restart")
    a("s_waitcnt vmcnt(0) lgkmcnt(0)")
    a("s_barrier")
    a(f"s_mov_b32 s2, s{sTRY}")
    a(f"s_mov_b32 s{sOK}, 1")
    a("s_setprio 0")
    a("s_cmp_ge_u32 s2, 256")
    a(f"s_cbranch_scc1 L_{tag}_end")
    a(f"s_branch L_{tag}_item")


def hint_read(a, vA, vD, ldsoff):
    a(f"v_mov_b32 v{vA}, {ldsoff}")
    a(f"ds_read_b32 v{vD}, v{vA}")


def hint_check(a, tag, vD):
    a(f"v_readfirstlane_b32 s{sTRY}, v{vD}")
    a("s_nop 3")
    a(f"s_cmp_lg_u32 s{sTRY}, s2")
    a(f"s_cbranch_scc1 L_{tag}_restart")


SRD_X, SRD_W, SRD_WK, SRD_WV, SRD_PF, SRD_OUT = 36, 40, 48, 52, 4, 48
sXOFF, sWOFF, sWSTG, sSLOT, sCNT, sDELTA = 61, 62, 64, 65, 66, 67
sOBASE, sOJ, sOI, sSCALE = 68, 69, 70, 72
sSEC, sM0, sCOL0, sWSTR, sNT, sEXO, sEXS, sRSLOT = 74, 75, 76, 77, 78, 79, 80, 63
sPFO, sPFS, sPFN = 9, 10, 11
sPFL, sPFW, sK = 68, 69, 71


class G:
    def __init__(self, kind):
        self.kind = kind
        proj = kind == "proj"
        self.NI, self.NJ = (4, 2) if proj else (2, 2)
        self.XB = 32768 if proj else 16384
        self.NSLOT = 3 if proj else 4
        self.NL = 4 if proj else OPT["nl3"]
        self.SLOT = self.XB + 16384 + (2048 if proj else 0)
        self.XP = self.XB // 1024 // self.NL
        self.WP = 16 // self.NL
        self.NST = 16
        self.EXB = self.NSLOT * self.SLOT
        self.lds = self.NSLOT * self.SLOT + 64
        self.ACC = 128 if proj else 64
        self.nacc = self.NI * self.NJ * 16
        fsz = self.NI * 4 + self.NJ * 4
        self.F = [16, 16 + fsz]
        self.vXA, self.vWA, self.vEXX, self.vEXW, self.vST = 4, 8, 10, 12, 13
        self.EXF = 16 + 2 * fsz
        self.EXACC = self.EXF + 12
        self.nvgpr = self.ACC + self.nacc

    def fx(self, b, i):
        return self.F[b] + 4 * i

    def fw(self, b, j):
        return self.F[b] + self.NI * 4 + 4 * j

    def acc(self, i, j):
        return self.ACC + (i * self.NJ + j) * 16


def gemm_reads(g, t, buf):
    proj = g.kind == "proj"
    wr = [f"ds_read_b64_tr_b16 {vr(g.fw(buf, j) + 2 * u, 2)}, v{g.vWA + j} offset:{4096 * t + (1024 if proj else 2048) * u}"
          for j in range(g.NJ) for u in range(2)]
    if proj:
        xr = [f"ds_read_b128 {vr(g.fx(buf, i), 4)}, v{g.vXA + t} offset:{4096 * i}" for i in range(g.NI)]
    else:
        xr = [f"ds_read_b128 {vr(g.fx(buf, i), 4)}, v{g.vXA} offset:{4096 * i + 1024 * t}" for i in range(g.NI)]
    return [xr[0]] + wr + xr[1:]


def gemm_extra_reads(g, e):
    return [f"ds_read_b64_tr_b16 {vr(g.EXF + 2 * u, 2)}, v{g.vEXW} offset:{1024 * e + 128 * u}" for u in range(2)] + \
           [f"ds_read_b128 {vr(g.EXF + 4 + 4 * th, 4)}, v{g.vEXX + e} offset:{2048 * th}" for th in range(2)]


def gemm_step(a, g, t, swap, reads, pre=(), extra_mfma=(), post_valu=()):
    buf = t & 1
    a.many(pre)
    mf = []
    for i in range(g.NI):
        for j in range(g.NJ):
            x, w, c = vr(g.fx(buf, i), 4), vr(g.fw(buf, j), 4), vr(g.acc(i, j), 16)
            mf.append(f"{MF32} {c}, {x}, {w}, {c}" if swap else f"{MF32} {c}, {w}, {x}, {c}")
    mf += list(extra_mfma)
    reads, post_valu = list(reads), list(post_valu)
    for m in mf:
        if OPT["fake16"] and m.startswith(MF32):
            import re as _re
            c0 = int(_re.search(r"v\[(\d+):", m).group(1))
            ops = m.split(", ")
            for h in range(2):
                cc = vr(c0 + 4 * h + 8 * (t & 1), 4)
                a(f"{MF16} {cc}, {ops[1 + h]}, {ops[2 - h]}, {cc}")
        else:
            a(m)
        for _ in range(2):
            if reads:
                a(reads.pop(0))
        if not reads:
            for _ in range(2):
                if post_valu:
                    a(post_valu.pop(0))
    a.many(reads + post_valu)


def gemm_compute(a, g, tag, swap, extras, check=None):
    proj = g.kind == "proj"

    def ex_mfma():
        w = vr(g.EXF, 4)
        out = []
        for th in range(2):
            x, c = vr(g.EXF + 4 + 4 * th, 4), vr(g.EXACC + 4 * th, 4)
            out.append(f"{MF16} {c}, {x}, {w}, {c}" if extras == "V" else f"{MF16} {c}, {w}, {x}, {c}")
        return out

    def adv(reg):
        return f"v_add_u32 v{reg}, s{sDELTA}, v{reg}"

    def stage(last):
        for t in range(4):
            pre = ["s_waitcnt lgkmcnt(0)"]
            reads, post, em = [], [], []
            if t < 3:
                reads = gemm_reads(g, t + 1, (t + 1) & 1)
                if extras and t == 1:
                    reads += gemm_extra_reads(g, 1)
                if not last:
                    if proj:
                        post.append(adv(g.vXA + t + 1))
                    if t == 2:
                        post += [adv(g.vWA), adv(g.vWA + 1), adv(g.vXA)]
                        if extras:
                            post += [adv(g.vEXX), adv(g.vEXX + 1), adv(g.vEXW)]
            elif not last:
                pre.append("s_barrier")
                reads = gemm_reads(g, 0, 0)
                if extras:
                    reads += gemm_extra_reads(g, 0)
            if extras and t in (0, 2):
                em = ex_mfma()
            gemm_step(a, g, t, swap, reads, pre, em, post)

    stamp_mid(a, 4)
    a("s_barrier")
    stamp_mid(a, 0)
    a.many(gemm_reads(g, 0, 0))
    if extras:
        a.many(gemm_extra_reads(g, 0))
    a(f"s_mov_b32 s{sCNT}, 0")
    a(f"s_mov_b32 s{sRSLOT}, 0")
    a.raw(".p2align 3")
    a.label(f"L_{tag}_loop")
    a(f"s_add_u32 s{sRSLOT}, s{sRSLOT}, 1")
    a(f"s_cmp_eq_u32 s{sRSLOT}, {g.NSLOT}")
    csel(a, sDELTA, f"{-(g.NSLOT - 1) * g.SLOT & 0xffffffff:#x}", g.SLOT)
    a(f"s_cselect_b32 s{sRSLOT}, 0, s{sRSLOT}")
    stage(False)
    a(f"s_add_u32 s{sCNT}, s{sCNT}, 1")
    a(f"s_cmp_lt_u32 s{sCNT}, {g.NST - 1}")
    a(f"s_cbranch_scc1 L_{tag}_loop")
    if check:
        hint_read(a, 14, 15, g.EXB)
    stage(True)
    if check:
        hint_check(a, check, 15)
    stamp_mid(a, 1)


def pf_adv(a):
    a(f"s_add_u32 s{sPFO}, s{sPFO}, s{sPFS}")
    a(f"s_cmp_ge_u32 s{sPFO}, s{sPFL}")
    a(f"s_cselect_b32 s{sT1}, s{sPFW}, 0")
    a(f"s_sub_u32 s{sPFO}, s{sPFO}, s{sT1}")


def k_wrap(a, lbl, n):
    a(f"s_add_u32 s{sK}, s{sK}, {n}")
    a(f"s_cmp_lt_u32 s{sK}, 16")
    a(f"s_cbranch_scc1 {lbl}")
    a(f"s_mov_b32 s{sK}, 0")
    a(f"s_sub_u32 s{sXOFF}, s{sXOFF}, 2048")
    a(f"s_lshl_b32 s{sT1}, s{sWSTG}, 4")
    a(f"s_sub_u32 s{sWOFF}, s{sWOFF}, s{sT1}")
    a(f"s_sub_u32 s{sEXO}, s{sEXO}, 0x10000")
    a.label(lbl)


def gemm_loader(a, g, tag, vX, vW):
    proj = g.kind == "proj"
    per, LA = g.XP + g.WP, g.NSLOT
    lb = OPT["ld1"] if proj else ""
    pf = proj and OPT["pf"]

    def prefetch():
        a(f"buffer_load_dword v9, v8, {sr(SRD_PF)}, s{sPFO} offen{OPT['pfb']}")
        pf_adv(a)

    def prefetch_if(hi, lbl):
        a(f"s_cmp_ge_u32 s{sWAVE}, 6")
        a(f"s_cbranch_scc{0 if hi else 1} {lbl}")
        prefetch()
        a.label(lbl)

    nlab = [0]

    def issue(lo=0, hi=None):
        hi = per if hi is None else hi
        for n in range(lo, hi):
            isx = n < g.XP
            i = n if isx else n - g.XP
            if i % 4 == 0 or n == lo:
                base = (i // 4) * 4096 if isx else 0
                a(f"s_add_u32 m0, s{sSLOT if isx else sEXS + 0}, {base}" if isx else f"s_add_u32 m0, s{sT3}, 0")
                a("s_nop 0")
            if isx:
                a(f"buffer_load_dwordx4 v{vX[i]}, {sr(SRD_X)}, s{sXOFF} offen offset:{(i % 4) * 1024}{lb} lds")
            else:
                a(f"buffer_load_dwordx4 v{vW[i]}, {sr(SRD_W)}, s{sWOFF} offen offset:{(i % 4) * 1024}{lb} lds")
        if hi == per:
            a(f"s_add_u32 s{sXOFF}, s{sXOFF}, {128 if proj else 16384}")
            a(f"s_add_u32 s{sWOFF}, s{sWOFF}, s{sWSTG}")
            if proj:
                nlab[0] += 1
                k_wrap(a, f"L_{tag}_kw{nlab[0]}", 1)
            a(f"s_add_u32 s{sRSLOT}, s{sRSLOT}, 1")
            a(f"s_cmp_eq_u32 s{sRSLOT}, {g.NSLOT}")
            csel(a, sDELTA, f"{-(g.NSLOT - 1) * g.SLOT & 0xffffffff:#x}", g.SLOT)
            a(f"s_cselect_b32 s{sRSLOT}, 0, s{sRSLOT}")
            a(f"s_add_u32 s{sSLOT}, s{sSLOT}, s{sDELTA}")
            a(f"s_add_u32 s{sT3}, s{sT3}, s{sDELTA}")

    def maybe_extra(lbl, st=0):
        if not proj:
            return
        a(f"s_cmp_eq_u32 s{sCOL0}, 0")
        a(f"s_cbranch_scc1 {lbl}")
        a(f"s_add_u32 m0, s{sT3}, s{sEXS}")
        if st:
            a(f"s_add_u32 m0, m0, {st * g.SLOT}")
        a("s_nop 0")
        a(f"buffer_load_dwordx4 v6, {sr(SRD_WK)}, s{sEXO} offen lds")
        a(f"s_add_u32 s{sEXO}, s{sEXO}, 4096")
        a.label(lbl)

    a(f"s_mov_b32 s{sRSLOT}, 0")
    stamp_mid(a, 3)
    if proj:
        def xs(st):
            a(f"s_add_u32 s{sDELTA}, s{sXOFF}, {128 * st}")
            for i in range(g.XP):
                if i % 4 == 0:
                    a(f"s_add_u32 m0, s{sSLOT}, {st * g.SLOT + (i // 4) * 4096}")
                    a("s_nop 0")
                a(f"buffer_load_dwordx4 v{vX[i]}, {sr(SRD_X)}, s{sDELTA} offen offset:{(i % 4) * 1024}{lb} lds")

        def ws_(st):
            maybe_extra(f"L_{tag}_x{st}", st)
            a(f"s_add_u32 m0, s{sT3}, {st * g.SLOT}")
            a("s_nop 0")
            for i in range(g.WP):
                a(f"buffer_load_dwordx4 v{vW[i]}, {sr(SRD_W)}, s{sWOFF} offen offset:{i * 1024}{lb} lds")
            a(f"s_add_u32 s{sWOFF}, s{sWOFF}, s{sWSTG}")

        for st in range(OPT["xfirst"]):
            xs(st)
        g.mid()
        ws_(0)
        young = g.WP
        if OPT["xfirst"] == 1:
            young += g.XP
            xs(1)
        ws_(1)
        stamp_mid(a, 4)
        a(f"s_add_u32 s{sXOFF}, s{sXOFF}, 256")
        k_wrap(a, f"L_{tag}_kw0", 2)
        a(f"s_add_u32 s{sSLOT}, s{sSLOT}, {2 * g.SLOT}")
        a(f"s_add_u32 s{sT3}, s{sT3}, {2 * g.SLOT}")
        a(f"s_mov_b32 s{sRSLOT}, 2")
        a(f"s_waitcnt vmcnt({young})")
        stamp_mid(a, 5)
        a("s_barrier")
        stamp_mid(a, 0)
        if pf and OPT["p0"] == 2:
            g.after_bar0()
            a(f"s_cmp_ge_u32 s{sWAVE}, 6")
            a(f"s_cbranch_scc0 L_{tag}_p1b")
            a(f"buffer_load_dword v9, v8, {sr(SRD_PF)}, s{sPFO} offen{OPT['pfb']}")
            a.label(f"L_{tag}_p1b")
            pf_adv(a)
        maybe_extra(f"L_{tag}_x1b")
        issue()
        if not (pf and OPT["p0"] == 2):
            g.after_bar0()
        if pf:
            prefetch_if(False, f"L_{tag}_p2")
            a(f"s_cmp_ge_u32 s{sWAVE}, 6")
            a(f"s_cselect_b32 s{sPFN}, {OPT['pf0']}, {OPT['pf0'] + OPT['pfd']}")
    else:
        issue()
        pre = min(OPT["pre"] * 4 // g.NL, per)
        issue(0, pre)
        stamp_mid(a, 4)
        a(f"s_waitcnt vmcnt({pre})")
        stamp_mid(a, 5)
        a("s_barrier")
        stamp_mid(a, 0)
        if pre < per:
            issue(pre, per)
        for _ in range(LA - 2):
            issue()
    a(f"s_mov_b32 s{sCNT}, 0")
    a.label(f"L_{tag}_lloop")
    a(f"s_waitcnt vmcnt({(LA - 2) * per})")
    a("s_barrier")
    if OPT["lstamp"] and STAMP:
        for k_, n_ in ((1, 2), (4, 3), (8, 4), (11, 5)):
            a(f"s_cmp_lg_u32 s{sCNT}, {k_}")
            a(f"s_cbranch_scc1 L_{tag}_ls{k_}")
            stamp_mid(a, n_)
            a.label(f"L_{tag}_ls{k_}")
    maybe_extra(f"L_{tag}_x2")
    issue()
    if pf:
        a(f"s_cmp_eq_u32 s{sCNT}, s{sPFN}")
        a(f"s_cbranch_scc0 L_{tag}_nopf")
        prefetch()
        a(f"s_add_u32 s{sPFN}, s{sPFN}, {2 * OPT['pfd']}")
        a(f"s_cmp_gt_u32 s{sPFN}, {OPT['pf0'] + 4 * OPT['pfd']}")
        a(f"s_cselect_b32 s{sPFN}, 64, s{sPFN}")
        a.label(f"L_{tag}_nopf")
    a(f"s_add_u32 s{sCNT}, s{sCNT}, 1")
    a(f"s_cmp_lt_u32 s{sCNT}, {g.NST - LA}")
    a(f"s_cbranch_scc1 L_{tag}_lloop")
    for s in range(g.NST - LA, g.NST - 1):
        a(f"s_waitcnt vmcnt({(g.NST - 2 - s) * per})")
        if not proj and s == g.NST - LA:
            a(f"s_cmp_lg_u32 s{sWAVE}, 4")
            a(f"s_cbranch_scc1 L_{tag}_nov")
            hint_verdict(a, tag, 14, 15, g.EXB)
            a.label(f"L_{tag}_nov")
        a("s_barrier")
    if not proj:
        hint_read(a, 14, 15, g.EXB)
        a("s_waitcnt lgkmcnt(0)")
        hint_check(a, tag, 15)
    stamp_mid(a, 1)
    stamp_end(a, 0 if proj else 2)
    a("s_endpgm")


def proj_group(a, sg):
    a(f"s_and_b32 s{sSEC}, s{sg}, 3")
    a(f"s_cmp_eq_u32 s{sSEC}, 0")
    csel(a, sWSTR, 2048, 6144)
    srd_sel(a, SRD_X, 16, 26, 0x400000)
    srd_sel(a, SRD_W, 18, 28, 0x200000, 0x600000)


def proj_pf_setup(a, tag, sg, sidx, sw2):
    a(f"s_lshr_b32 s{sPFW}, s{sw2}, 1")
    if OPT["rot"]:
        a(f"s_add_u32 s{sPFW}, s{sPFW}, s{sg}")
        a(f"s_and_b32 s{sPFW}, s{sPFW}, 7")
    a(f"s_bitcmp1_b32 s{sw2}, 0")
    for i in range(3):
        a(f"s_cselect_b32 s{SRD_PF + i}, s{SRD_W + i}, s{SRD_X + i}")
    a(f"s_mov_b32 s{SRD_PF + 3}, 0x00020000")
    a(f"s_cbranch_scc1 L_{tag}_pfw")
    a("v_and_b32 v1, 31, v0")
    a("v_lshlrev_b32 v1, 11, v1")
    a("v_lshrrev_b32 v8, 5, v0")
    a("v_lshl_add_u32 v8, v8, 7, v1")
    a(f"s_lshr_b32 s{sT1}, s{sg}, 2")
    a(f"s_lshl_b32 s{sT1}, s{sT1}, 5")
    a(f"s_add_u32 s{sT1}, s{sT1}, s{sidx}")
    a(f"s_lshl_b32 s{sT1}, s{sT1}, 16")
    a(f"s_lshl_b32 s{sT2}, s{sPFW}, 8")
    a(f"s_add_u32 s{sPFO}, s{sT1}, s{sT2}")
    a(f"s_mov_b32 s{sPFS}, 512")
    a(f"s_add_u32 s{sPFL}, s{sT1}, 2048")
    a(f"s_mov_b32 s{sPFW}, 2048")
    a(f"s_branch L_{tag}_pfdone")
    a.label(f"L_{tag}_pfw")
    a("v_lshrrev_b32 v8, 5, v0")
    a("v_lshlrev_b32 v8, 6, v8")
    a("v_bfe_u32 v1, v0, 4, 1")
    a("v_add_u32 v8, v8, v1")
    a(f"v_mul_lo_u32 v8, v8, s{sWSTR}")
    a("v_and_b32 v1, 15, v0")
    a("v_lshl_add_u32 v8, v1, 7, v8")
    a(f"s_lshl_b32 s{sT2}, s{sPFW}, 6")
    a(f"s_add_u32 s{sT2}, s{sT2}, s{sidx}")
    a(f"s_lshl_b32 s{sT2}, s{sT2}, 1")
    a(f"s_mul_i32 s{sT2}, s{sT2}, s{sWSTR}")
    a(f"s_sub_u32 s{sT1}, s{sSEC}, 1")
    a(f"s_max_i32 s{sT1}, s{sT1}, 0")
    a(f"s_lshl_b32 s{sT1}, s{sT1}, 11")
    a(f"s_add_u32 s{sPFO}, s{sT2}, s{sT1}")
    a(f"s_lshl_b32 s{sPFS}, s{sWSTR}, 8")
    a(f"s_lshl_b32 s{sPFL}, s{sWSTR}, 10")
    a(f"s_mov_b32 s{sPFW}, s{sPFL}")
    a.label(f"L_{tag}_pfdone")


def gen_proj():
    g = G("proj")
    a = A()
    kernel_head(a, "proj_kernel")
    entry(a, "proj")
    a("s_waitcnt lgkmcnt(0)")
    ws_reloc(a)
    ticket_issue(a, "proj", 4)
    srd(a, SRD_WS, S_WS, WS_SIZE - (OPT["wsb"] << 20))
    srd(a, SRD_WK, 20, 0x10000)
    srd(a, SRD_WV, 22, 0x10000)
    a(f"s_cmp_ge_u32 s{sWAVE}, 4")
    a("s_cbranch_scc1 L_proj_pre_l")
    if OPT["pf"]:
        proj_group(a, sXCC)
        a(f"s_lshr_b32 s{sT0}, s{sHW}, 2")
        a(f"s_and_b32 s{sT0}, s{sT0}, 0x18")
        a(f"s_and_b32 s{sT3}, s{sHW}, 7")
        a(f"s_or_b32 s{sT0}, s{sT0}, s{sT3}")
        proj_pf_setup(a, "projA", sXCC, sT0, sWAVE)
        a(f"s_cmp_ge_u32 s{sWAVE}, {OPT['p0']}")
        a("s_cbranch_scc1 L_proj_nop0")
        a(f"buffer_load_dword v15, v8, {sr(SRD_PF)}, s{sPFO} offen{OPT['pfb']}")
        a.label("L_proj_nop0")
        a(f"s_cmp_lg_u32 s{sSEC}, 0")
        a("s_cbranch_scc1 L_proj_nokv")
        a(f"s_lshl_b32 s{sT0}, s{sT0}, 11")
        a("v_and_b32 v1, 15, v0")
        a("v_lshlrev_b32 v1, 7, v1")
        a(f"s_cmp_eq_u32 s{sWAVE}, 2")
        a("s_cbranch_scc0 L_proj_nok")
        a(f"buffer_load_dword v15, v1, {sr(SRD_WK)}, s{sT0} offen{OPT['pfb']}")
        a.label("L_proj_nok")
        a(f"s_cmp_eq_u32 s{sWAVE}, 3")
        a("s_cbranch_scc0 L_proj_nokv")
        a(f"buffer_load_dword v15, v1, {sr(SRD_WV)}, s{sT0} offen{OPT['pfb']}")
        a.label("L_proj_nokv")
        if OPT["pfirst"]:
            if OPT["pwait"]:
                a("s_waitcnt vmcnt(0)")
            stamp_mid(a, 3)
            a("s_barrier")
    a(f"s_lshr_b32 s{sT0}, s{sWAVE}, 1")
    a(f"s_and_b32 s{sT1}, s{sWAVE}, 1")
    a("v_and_b32 v1, 31, v0")
    a("v_lshlrev_b32 v1, 7, v1")
    a(f"s_lshl_b32 s{sT2}, s{sT0}, 14")
    a(f"v_add_u32 v1, s{sT2}, v1")
    a("v_bfe_u32 v2, v0, 1, 3")
    a("v_lshrrev_b32 v3, 5, v0")
    for t in range(4):
        a(f"v_add_u32 v14, {2 * t}, v3")
        a("v_xor_b32 v14, v14, v2")
        a(f"v_lshl_add_u32 v{g.vXA + t}, v14, 4, v1")
    a("v_bfe_u32 v2, v0, 2, 2")
    a("v_lshl_add_u32 v1, v3, 3, v2")
    a("v_lshlrev_b32 v1, 8, v1")
    a("v_bfe_u32 v14, v0, 4, 1")
    a("v_lshl_add_u32 v1, v14, 5, v1")
    a("v_and_b32 v14, 3, v0")
    a("v_lshl_add_u32 v1, v14, 3, v1")
    a(f"v_add_u32 v1, {g.XB}, v1")
    a(f"s_lshl_b32 s{sT2}, s{sT1}, 1")
    for j in range(2):
        a(f"s_add_u32 s{sT3}, s{sT2}, {j}")
        a(f"v_xor_b32 v14, s{sT3}, v2")
        a(f"v_lshl_add_u32 v{g.vWA + j}, v14, 6, v1")
    a(f"v_lshlrev_b32 v{g.vST}, 4, v0")
    a("v_and_b32 v1, 15, v0")
    a("v_lshlrev_b32 v1, 7, v1")
    a(f"s_lshl_b32 s{sT2}, s{sWAVE}, 12")
    a(f"v_add_u32 v1, s{sT2}, v1")
    a("v_bfe_u32 v2, v0, 1, 3")
    a("v_lshrrev_b32 v3, 4, v0")
    for e in range(2):
        a(f"v_add_u32 v14, {4 * e}, v3")
        a("v_xor_b32 v14, v14, v2")
        a(f"v_lshl_add_u32 v{g.vEXX + e}, v14, 4, v1")
    a("v_bfe_u32 v2, v0, 2, 2")
    a("v_lshl_add_u32 v1, v3, 3, v2")
    a("v_lshlrev_b32 v1, 5, v1")
    a("v_and_b32 v14, 3, v0")
    a("v_lshl_add_u32 v1, v14, 3, v1")
    a(f"v_add_u32 v{g.vEXW}, {g.XB + 16384}, v1")
    for r in range(g.nacc):
        a(f"v_mov_b32 v{g.ACC + r}, 0")
    for r in range(8):
        a(f"v_mov_b32 v{g.EXACC + r}, 0")

    def decode():
        proj_group(a, sG)
        a(f"s_lshr_b32 s{sT0}, s{sG}, 2")
        a(f"s_lshl_b32 s{sM0}, s{sT0}, 10")
        a(f"s_lshl_b32 s{sT0}, s{sMT}, 8")
        a(f"s_add_u32 s{sM0}, s{sM0}, s{sT0}")

    TKT = 2 * g.SLOT + g.XB
    a.label("L_proj_cstart")
    ticket_wait(a, "proj", TKT, "L_proj_credo")
    stamp_mid(a, 2)
    decode()

    a(f"s_lshr_b32 s{sT0}, s{sWAVE}, 1")
    a(f"s_and_b32 s{sT1}, s{sWAVE}, 1")
    a(f"s_and_b32 s{sT2}, s{sNT}, 1")
    a(f"s_lshl_b32 s{sT2}, s{sT2}, 14")
    for e in range(2):
        a(f"v_add_u32 v{g.vEXX + e}, s{sT2}, v{g.vEXX + e}")
    a(f"s_lshl_b32 s{sT2}, s{sNT}, 2")
    a(f"s_lshl_b32 s{sT3}, s{sT1}, 1")
    a(f"s_add_u32 s{sT2}, s{sT2}, s{sT3}")
    a(f"s_lshr_b32 s{sT3}, s{sM0}, 5")
    a(f"s_lshl_b32 s{sOBASE}, s{sT0}, 2")
    a(f"s_add_u32 s{sT3}, s{sT3}, s{sOBASE}")
    a(f"s_cmp_le_u32 s{sSEC}, 1")
    csel(a, sOJ, 0x20000, 0x40000)
    csel(a, sOI, 2048, 4096)
    a(f"s_cselect_b32 s{sSCALE}, {f32bits(QSCALE):#x}, 1.0")
    a(f"s_mov_b32 s{sSCALE+1}, s{sSCALE}")
    a(f"s_mul_i32 s{sOBASE}, s{sT2}, s{sOJ}")
    a(f"s_mul_i32 s{sT3}, s{sT3}, s{sOI}")
    a(f"s_add_u32 s{sOBASE}, s{sOBASE}, s{sT3}")
    a(f"s_mov_b32 s{sT2}, {WS_QA:#x}")
    for sec, base in ((1, WS_QB), (2, WS_KVB), (3, WS_KVB + 2048)):
        a(f"s_cmp_eq_u32 s{sSEC}, {sec}")
        a(f"s_cmov_b32 s{sT2}, {base:#x}")
    a(f"s_add_u32 s{sOBASE}, s{sOBASE}, s{sT2}")
    a(f"s_cmp_eq_u32 s{sSEC}, 3")
    a("s_cbranch_scc1 L_proj_V")
    a(f"s_cmp_eq_u32 s{sSEC}, 0")
    a("s_cbranch_scc0 L_proj_QK")
    a(f"s_cmp_ge_u32 s{sNT}, 4")
    a("s_cbranch_scc1 L_proj_AV")

    st = OPT["st1"]

    def epi(scale):
        a("s_nop 7")
        a("s_nop 7")
        for i in range(g.NI):
            for j in range(g.NJ):
                c = g.acc(i, j)
                t = g.F[0] + ((i * g.NJ + j) & 1) * 8
                if scale:
                    for r in range(0, 16, 2):
                        a(f"v_pk_mul_f32 {vr(c + r, 2)}, {vr(c + r, 2)}, {sr(sSCALE, 2)}")
                for r in range(8):
                    a(f"v_cvt_pk_bf16_f32 v{t + r}, v{c + 2 * r}, v{c + 2 * r + 1}")
                a(f"s_mul_i32 s{sT0}, s{sOJ}, {j}")
                a(f"s_mul_i32 s{sT1}, s{sOI}, {i}")
                a(f"s_add_u32 s{sT0}, s{sT0}, s{sT1}")
                a(f"s_add_u32 s{sT0}, s{sT0}, s{sOBASE}")
                a(f"buffer_store_dwordx4 {vr(t, 4)}, v{g.vST}, {sr(SRD_WS)}, s{sT0} offen{st}")
                a(f"buffer_store_dwordx4 {vr(t + 4, 4)}, v{g.vST}, {sr(SRD_WS)}, s{sT0} offen offset:1024{st}")

    def epi_extra(part):
        a("v_and_b32 v1, 15, v0")
        a("v_lshlrev_b32 v1, 4, v1")
        a("v_bfe_u32 v2, v0, 4, 1")
        a("v_lshl_add_u32 v1, v2, 9, v1")
        a("v_lshrrev_b32 v2, 5, v0")
        a("v_lshl_add_u32 v1, v2, 3, v1")
        a(f"s_lshr_b32 s{sT0}, s{sM0}, 5")
        a(f"s_add_u32 s{sT0}, s{sT0}, s{sWAVE}")
        a(f"s_and_b32 s{sT1}, s{sNT}, 1")
        a(f"s_lshl_b32 s{sT1}, s{sT1}, 2")
        a(f"s_add_u32 s{sT0}, s{sT0}, s{sT1}")
        a(f"s_lshl_b32 s{sT0}, s{sT0}, 12")
        a(f"s_add_u32 s{sT0}, s{sT0}, {WS_KVA + (2048 if part == 'V' else 0):#x}")
        a(f"s_bfe_u32 s{sT1}, s{sNT}, 0x10001")
        a(f"s_lshl_b32 s{sT1}, s{sT1}, {10 if part == 'K' else 8}")
        a(f"s_add_u32 s{sT0}, s{sT0}, s{sT1}")
        for th in range(2):
            c = g.EXACC + 4 * th
            a(f"v_cvt_pk_bf16_f32 v{g.EXF + 2 * th}, v{c}, v{c + 1}")
            a(f"v_cvt_pk_bf16_f32 v{g.EXF + 2 * th + 1}, v{c + 2}, v{c + 3}")
            a(f"buffer_store_dwordx2 {vr(g.EXF + 2 * th, 2)}, v1, {sr(SRD_WS)}, s{sT0} offen offset:{th * (256 if part == 'K' else 1024)}{st}")

    for lbl, tag, swap, ex, scale in ((None, "proj_AK", False, "K", True), ("L_proj_AV", "proj_AV", False, "V", True),
                                      ("L_proj_QK", "proj_QK", False, None, True), ("L_proj_V", "proj_V", True, None, False)):
        if lbl:
            a.label(lbl)
        gemm_compute(a, g, tag, swap, ex)
        if ex:
            a("s_nop 7")
            epi_extra(ex)
        epi(scale)
        stamp_end(a, 0)
        a("s_endpgm")

    a.label("L_proj_pre_l")
    vX = list(range(16, 24))
    vW = list(range(24, 28))
    a("v_lshrrev_b32 v1, 3, v0")
    a("v_lshlrev_b32 v1, 11, v1")
    a("v_lshrrev_b32 v10, 4, v0")
    a("v_and_b32 v7, 7, v0")
    a("v_xor_b32 v11, v10, v7")
    a("v_xor_b32 v12, 4, v11")
    a("v_lshl_add_u32 v11, v11, 4, v1")
    a("v_lshl_add_u32 v12, v12, 4, v1")
    for i in range(8):
        a(f"v_add_u32 v{vX[i]}, {i * 16384 - (i % 4) * 1024}, v{11 + (i & 1)}")
    a("v_lshrrev_b32 v6, 1, v0")
    a("v_lshlrev_b32 v6, 6, v6")
    a("v_and_b32 v7, 1, v0")
    a("v_lshl_add_u32 v6, v7, 4, v6")
    if OPT["pfirst"]:
        a("s_barrier")
    a.label("L_proj_lstart")
    decode()
    a(f"s_sub_u32 s{sT0}, s{sWAVE}, 4")
    a(f"s_lshl_b32 s{sT1}, s{sT0}, 6")
    a(f"s_add_u32 s{sT1}, s{sT1}, s{sM0}")
    a(f"s_lshl_b32 s{sXOFF}, s{sT1}, 11")
    a(f"s_lshl_b32 s{sK}, s{sG}, 1" if OPT["rot"] else f"s_mov_b32 s{sK}, 0")
    a(f"s_lshl_b32 s{sT1}, s{sK}, 7")
    a(f"s_add_u32 s{sXOFF}, s{sXOFF}, s{sT1}")
    a(f"s_lshl_b32 s{sSLOT}, s{sT0}, 13")
    a(f"s_lshl_b32 s{sT3}, s{sT0}, 12")
    a(f"s_add_u32 s{sT3}, s{sT3}, {g.XB}")

    def mid():
        ticket_end(a, "proj", 4, TKT)
        a(f"v_mul_lo_u32 v1, v10, s{sWSTR}")
        a("v_lshlrev_b32 v3, 2, v10")
        a("v_and_b32 v7, 15, v0")
        a("v_xor_b32 v3, v3, v7")
        a(f"v_lshl_add_u32 v{vW[0]}, v3, 4, v1")
        a(f"s_lshl_b32 s{sT1}, s{sWSTR}, 2")
        a(f"s_sub_u32 s{sT1}, s{sT1}, 1024")
        for i in range(1, 4):
            a(f"v_add_u32 v{vW[i]}, s{sT1}, v{vW[i - 1]}")
        a(f"s_sub_u32 s{sWOFF}, s{sSEC}, 1")
        a(f"s_max_i32 s{sWOFF}, s{sWOFF}, 0")
        a(f"s_lshl_b32 s{sWOFF}, s{sWOFF}, 11")
        a(f"s_mul_i32 s{sT1}, s{sT0}, s{sWSTR}")
        a(f"s_lshl_b32 s{sT1}, s{sT1}, 4")
        a(f"s_add_u32 s{sWOFF}, s{sWOFF}, s{sT1}")
        a(f"s_lshl_b32 s{sWSTG}, s{sWSTR}, 6")
        a(f"s_mul_i32 s{sT1}, s{sK}, s{sWSTG}")
        a(f"s_add_u32 s{sWOFF}, s{sWOFF}, s{sT1}")
        ticket_wait(a, "proj", TKT, "L_proj_lredo")
        stamp_mid(a, 2)
        a(f"s_lshl_b32 s{sT1}, s{sNT}, 8")
        a(f"s_add_u32 s{sWOFF}, s{sWOFF}, s{sT1}")
        a(f"s_cmp_ge_u32 s{sNT}, 4")
        srd_sel(a, SRD_WK, 22, 20, 0x10000)
        a(f"s_bfe_u32 s{sT1}, s{sNT}, 0x10001")
        a(f"s_lshl_b32 s{sT1}, s{sT1}, 5")
        a(f"s_lshl_b32 s{sEXO}, s{sT0}, 11")
        a(f"s_add_u32 s{sEXO}, s{sEXO}, s{sT1}")
        a(f"s_lshl_b32 s{sT1}, s{sK}, 12")
        a(f"s_add_u32 s{sEXO}, s{sEXO}, s{sT1}")
        a(f"s_mul_i32 s{sEXS}, s{sT0}, {4096 - 1024}")
        a(f"s_sub_u32 s{sEXS}, 16384, s{sEXS}")
        a(f"s_cmp_lt_u32 s{sT0}, 2")
        a(f"s_cselect_b32 s{sCOL0}, 1, 0")
        a(f"s_cmp_eq_u32 s{sSEC}, 0")
        a(f"s_cselect_b32 s{sCOL0}, s{sCOL0}, 0")

    def after_bar0():
        ticket_notes(a, "proj", 4)
        if OPT["pf"]:
            a(f"s_lshr_b32 s{sOI}, s2, 3")
            proj_pf_setup(a, "projB", sG, sOI, sT0)
            if OPT["p0"] != 2:
                pf_adv(a)

    g.mid, g.after_bar0 = mid, after_bar0
    gemm_loader(a, g, "proj", vX, vW)
    ticket_redo(a, "proj", "L_proj_credo", "L_proj_cstart")
    ticket_redo(a, "proj", "L_proj_lredo", "L_proj_lstart")
    a.label("L_proj_end")
    a("s_endpgm")
    return a.text(), kernel_desc("proj_kernel", g.nvgpr), g.lds, 512


def gen_outp():
    g = G("outp")
    a = A()
    kernel_head(a, "outp_kernel")
    entry(a, "outp")
    hint_load(a, "outp")
    stamp_mid(a, 2)
    hint_claim(a, "outp", 4)
    a(f"s_andn2_b32 s{sSEC}, 1, s2")
    a(f"s_bfe_u32 s{sT0}, s2, 0x20001")
    a(f"s_lshl_b32 s{sT0}, s{sT0}, 2")
    a(f"s_bfe_u32 s{sT1}, s2, 0x20003")
    a(f"s_add_u32 s{sM0}, s{sT0}, s{sT1}")
    a(f"s_lshr_b32 s{sNT}, s2, 5")
    a(f"s_cmp_ge_u32 s{sWAVE}, 4")
    a("s_cbranch_scc1 L_outp_loader")
    srd(a, SRD_OUT, S_OUT, 0x800000)
    a(f"s_lshr_b32 s{sT0}, s{sWAVE}, 1")
    a(f"s_and_b32 s{sT1}, s{sWAVE}, 1")
    a(f"s_lshl_b32 s{sT2}, s{sT0}, 13")
    a("v_lshlrev_b32 v1, 4, v0")
    a(f"v_add_u32 v{g.vXA}, s{sT2}, v1")
    a("v_lshrrev_b32 v3, 5, v0")
    a("v_bfe_u32 v2, v0, 2, 2")
    a("v_lshl_add_u32 v1, v3, 2, v2")
    a("v_lshlrev_b32 v1, 8, v1")
    a("v_and_b32 v14, 1, v0")
    a("v_lshl_add_u32 v1, v14, 5, v1")
    a("v_bfe_u32 v14, v0, 4, 1")
    a("v_lshl_add_u32 v1, v14, 4, v1")
    a("v_bfe_u32 v14, v0, 1, 1")
    a("v_lshl_add_u32 v1, v14, 3, v1")
    a(f"v_add_u32 v1, {g.XB}, v1")
    a(f"s_lshl_b32 s{sT2}, s{sT1}, 1")
    for j in range(2):
        a(f"s_add_u32 s{sT3}, s{sT2}, {j}")
        a(f"v_xor_b32 v14, s{sT3}, v2")
        a(f"v_lshl_add_u32 v{g.vWA + j}, v14, 6, v1")
    a(f"s_lshl_b32 s{sT2}, s{sM0}, 1")
    a(f"s_add_u32 s{sT2}, s{sT2}, s{sT0}")
    a(f"s_lshl_b32 s{sOBASE}, s{sT2}, 18")
    a(f"s_lshl_b32 s{sT2}, s{sSEC}, 11")
    a(f"s_add_u32 s{sOBASE}, s{sOBASE}, s{sT2}")
    a(f"s_lshl_b32 s{sT2}, s{sNT}, 8")
    a(f"s_add_u32 s{sOBASE}, s{sOBASE}, s{sT2}")
    a(f"s_lshl_b32 s{sT2}, s{sT1}, 7")
    a(f"s_add_u32 s{sOBASE}, s{sOBASE}, s{sT2}")
    vWR, vRD = 10, 11
    if OPT["epi3"]:
        a("v_and_b32 v1, 31, v0")
        a("v_lshlrev_b32 v2, 7, v1")
        a(f"s_lshl_b32 s{sT2}, s{sWAVE}, 13")
        a(f"v_add_u32 v2, s{sT2}, v2")
        a("v_and_b32 v1, 7, v0")
        a("v_lshlrev_b32 v14, 1, v3")
        a("v_xor_b32 v14, v14, v1")
        a(f"v_lshl_add_u32 v{vWR}, v14, 4, v2")
        a("v_lshrrev_b32 v2, 3, v0")
        a("v_xor_b32 v14, v2, v1")
        a("v_lshlrev_b32 v14, 4, v14")
        a("v_lshl_add_u32 v14, v2, 7, v14")
        a(f"v_add_u32 v{vRD}, s{sT2}, v14")
        a("v_lshlrev_b32 v2, 12, v2")
        a(f"v_lshl_add_u32 v{g.vST}, v1, 4, v2")
    else:
        a("v_and_b32 v1, 31, v0")
        a("v_lshlrev_b32 v1, 12, v1")
        a(f"v_lshl_add_u32 v{g.vST}, v3, 5, v1")
    for r in range(g.nacc):
        a(f"v_mov_b32 v{g.ACC + r}, 0")
    gemm_compute(a, g, "outp", False, None, check="outp")
    a("s_nop 7")
    a("s_nop 7")
    if OPT["epi3"]:
        for j in range(2):
            for e in range(2):
                a(f"v_xor_b32 v{4 + 2 * j + e}, {(4 * j + e) * 16}, v{vWR}")
        for i in range(g.NI):
            for j in range(g.NJ):
                c = g.acc(i, j)
                t = g.F[0] + (i * g.NJ + j) * 8
                for r in range(8):
                    a(f"v_cvt_pk_bf16_f32 v{t + r}, v{c + 2 * r}, v{c + 2 * r + 1}")
                for e in range(2):
                    a(f"ds_write_b128 v{4 + 2 * j + e}, {vr(t + 4 * e, 4)} offset:{4096 * i}")
        a("s_waitcnt lgkmcnt(0)")
        for k in range(8):
            a(f"ds_read_b128 {vr(g.ACC + 4 * k, 4)}, v{vRD} offset:{1024 * k}")
        for k in range(8):
            a(f"s_add_u32 s{sT0}, s{sOBASE}, {k * 8 * 4096}")
            a(f"s_waitcnt lgkmcnt({7 - k})")
            a(f"buffer_store_dwordx4 {vr(g.ACC + 4 * k, 4)}, v{g.vST}, {sr(SRD_OUT)}, s{sT0} offen{OPT['st3']}")
    else:
        for i in range(g.NI):
            for j in range(g.NJ):
                c = g.acc(i, j)
                t = g.F[0] + ((i * g.NJ + j) & 1) * 8
                for r in range(8):
                    a(f"v_cvt_pk_bf16_f32 v{t + r}, v{c + 2 * r}, v{c + 2 * r + 1}")
                a(f"s_add_u32 s{sT0}, s{sOBASE}, {i * 32 * 4096}")
                a(f"buffer_store_dwordx4 {vr(t, 4)}, v{g.vST}, {sr(SRD_OUT)}, s{sT0} offen offset:{64 * j}")
                a(f"buffer_store_dwordx4 {vr(t + 4, 4)}, v{g.vST}, {sr(SRD_OUT)}, s{sT0} offen offset:{64 * j + 16}")
    stamp_end(a, 2)
    a("s_endpgm")
    a.label("L_outp_loader")
    vX = [4] * g.XP
    vW = list(range(24, 24 + g.WP))
    srd(a, SRD_X, S_WS, WS_SIZE - (OPT["wsb"] << 20))
    a(f"s_cmp_eq_u32 s{sSEC}, 0")
    srd_sel(a, SRD_W, 24, 30, 0x200000)
    csel(a, sXOFF, WS_OA, WS_OB)
    a(f"s_sub_u32 s{sT0}, s{sWAVE}, 4")
    a("v_lshlrev_b32 v4, 4, v0")
    a("v_lshrrev_b32 v2, 4, v0")
    a("v_lshlrev_b32 v1, 11, v2")
    a("v_lshlrev_b32 v3, 2, v2")
    a("v_and_b32 v7, 15, v0")
    a("v_xor_b32 v3, v3, v7")
    a(f"v_lshl_add_u32 v{vW[0]}, v3, 4, v1")
    for i in range(1, g.WP):
        a(f"v_add_u32 v{vW[i]}, {i * (8192 - 1024)}, v{vW[0]}")
    a(f"s_lshl_b32 s{sT1}, s{sM0}, 18")
    a(f"s_add_u32 s{sXOFF}, s{sXOFF}, s{sT1}")
    a(f"s_mul_i32 s{sSLOT}, s{sT0}, {g.XP * 1024}")
    a(f"s_add_u32 s{sXOFF}, s{sXOFF}, s{sSLOT}")
    a(f"s_mul_i32 s{sWOFF}, s{sT0}, {g.WP * 8192}")
    a(f"s_lshl_b32 s{sT1}, s{sNT}, 8")
    a(f"s_add_u32 s{sWOFF}, s{sWOFF}, s{sT1}")
    a(f"s_mov_b32 s{sWSTG}, {64 * 2048}")
    a(f"s_mul_i32 s{sT3}, s{sT0}, {g.WP * 1024}")
    a(f"s_add_u32 s{sT3}, s{sT3}, {g.XB}")
    gemm_loader(a, g, "outp", vX, vW)
    hint_slow(a, "outp")
    a.label("L_outp_end")
    a("s_endpgm")
    return a.text(), kernel_desc("outp_kernel", g.nvgpr), g.lds, 256 + 64 * g.NL


def gen_attn():
    a = A()
    kernel_head(a, "attn_kernel")
    vL16, vK, vKN, IDX = 1, 2, 3, 4
    T0, T1, T2, T3 = 5, 6, 7, 8
    vPF, vPFD, vHD = 9, 10, 11
    ONES = 12
    Q, P, KF, VF, L = [16, 24], [32, 40], [48, 56], [64, 72], [80, 84]
    S, NEG, O = [96, 112], [128, 144], [160, 176]
    NV = 192
    SRD, SRDW = SRD_WS, 36
    sQB, sKV, sOB, sST, sSL, sDM, sGO, sPF, sPFC, sFIRST = 61, 62, 63, 64, 65, 66, 67, 68, 69, 70
    t0, t1, t2, t3 = sT0, sT1, sT2, sT3
    TILES = 8
    STG = TILES * 4096
    NSLOT = 3
    NSTG = 64 // TILES
    FLAG = NSLOT * STG
    lds = FLAG + 64

    entry(a, "attn")
    a(f"v_lshlrev_b32 v{vL16}, 4, v0")
    hint_load(a, "attn")
    stamp_mid(a, 2)
    hint_claim(a, "attn", 0)
    a(f"s_lshr_b32 s{t0}, s2, 3")
    a(f"s_bfe_u32 s{t2}, s2, 0x20001")
    a(f"s_lshl_b32 s{t2}, s{t2}, 4")
    a(f"s_lshl_b32 s{t3}, s{sWAVE}, 1")
    a(f"s_add_u32 s{t2}, s{t2}, s{t3}")
    a(f"s_lshl_b32 s{sKV}, s{t0}, 18")
    a(f"s_add_u32 s{sKV}, s{sKV}, {WS_KVB:#x}")
    a(f"s_lshl_b32 s{sQB}, s{t0}, 17")
    a(f"s_lshl_b32 s{t3}, s{t2}, 11")
    a(f"s_add_u32 s{sQB}, s{sQB}, s{t3}")
    a("s_bitcmp1_b32 s2, 0")
    a(f"s_cmov_b32 s{sKV}, {WS_KVA:#x}")
    a(f"s_cselect_b32 s{t3}, {WS_QA:#x}, {WS_QB:#x}")
    a(f"s_or_b32 s{sQB}, s{sQB}, s{t3}")

    def qloads():
        for q in range(2):
            for c in range(2):
                a(f"buffer_load_dwordx4 {vr(Q[q] + 4 * c, 4)}, v{vL16}, {sr(SRD)}, s{sQB} offen offset:{2048 * q + 1024 * c}")

    stamp_mid(a, 3)
    a(f"s_and_b32 s{t3}, s{sWAVE}, 3")
    a(f"s_lshl_b32 s{t3}, s{t3}, 11")
    a(f"s_add_u32 s{t1}, s{sKV}, s{t3}")

    def grp_dma(grp):
        a(f"s_add_u32 m0, s{t3}, {8192 * grp}")
        a(f"s_add_u32 s{sGO}, s{t1}, {8192 * grp}")
        for c in range(2):
            a(f"buffer_load_dwordx4 v{vL16}, {sr(SRD)}, s{sGO} offen offset:{1024 * c} lds")

    a(f"s_cmp_ge_u32 s{sWAVE}, 4")
    a("s_cbranch_scc1 L_attn_young")
    grp_dma(0)
    qloads()
    a("s_branch L_attn_issued")
    a.label("L_attn_young")
    grp_dma(1)
    if OPT["k2s"]:
        grp_dma(2)
    qloads()
    if not OPT["k2s"]:
        grp_dma(2)
    grp_dma(3)
    a.label("L_attn_issued")
    stamp_mid(a, 4)
    a(f"s_lshr_b32 s{t3}, s{t2}, 2")
    a(f"s_lshl_b32 s{sOB}, s{t3}, 18")
    a(f"s_and_b32 s{t3}, s{t2}, 3")
    a(f"s_lshl_b32 s{t3}, s{t3}, 12")
    a(f"s_add_u32 s{sOB}, s{sOB}, s{t3}")
    a(f"s_lshr_b32 s{t3}, s{t0}, 1")
    a(f"s_lshl_b32 s{t3}, s{t3}, 14")
    a(f"s_add_u32 s{sOB}, s{sOB}, s{t3}")
    a(f"s_and_b32 s{t3}, s{t0}, 1")
    a(f"s_lshl_b32 s{t3}, s{t3}, 11")
    a(f"s_add_u32 s{sOB}, s{sOB}, s{t3}")
    a("s_bitcmp1_b32 s2, 0")
    csel(a, t3, WS_OA, WS_OB)
    srd_sel(a, SRDW, 24, 30, 0x200000)
    a(f"s_add_u32 s{sOB}, s{sOB}, s{t3}")
    a(f"s_lshl_b32 s{sPF}, s{t0}, 3")
    a(f"s_add_u32 s{sPF}, s{sPF}, s{sWAVE}")
    a(f"s_lshl_b32 s{sPF}, s{sPF}, 13")
    a(f"v_lshlrev_b32 v{vPF}, 7, v0")
    a(f"s_lshl_b32 s{sDM}, s{sWAVE}, 12")
    a(f"s_add_u32 s{sDM}, s{sDM}, {STG}")
    a(f"s_add_u32 s{sGO}, s{sKV}, s{sDM}")
    a(f"v_and_b32 v{T0}, 2, v0")
    a(f"v_bfe_u32 v{T1}, v0, 2, 1")
    a(f"v_or_b32 v{T2}, v{T0}, v{T1}")
    a(f"v_xor_b32 v{T1}, 1, v{T1}")
    a(f"v_or_b32 v{T3}, v{T0}, v{T1}")
    a(f"v_mov_b32 v{T0}, 0x3f803f80")
    a(f"v_cmp_eq_u32 vcc, 0, v{T2}")
    a("s_nop 1")
    a(f"v_cndmask_b32 v{ONES}, 0, v{T0}, vcc")
    a(f"v_cndmask_b32 v{ONES + 1}, 0, v{T0}, vcc")
    a(f"v_cmp_eq_u32 vcc, 0, v{T3}")
    a("s_nop 1")
    a(f"v_cndmask_b32 v{ONES + 2}, 0, v{T0}, vcc")
    a(f"v_cndmask_b32 v{ONES + 3}, 0, v{T0}, vcc")
    a(f"v_and_b32 v{T0}, 1, v0")
    a(f"v_mov_b32 v{T1}, 0x44444444")
    a(f"v_mov_b32 v{T2}, 0xeeeeeeee")
    a(f"v_cmp_eq_u32 vcc, 1, v{T0}")
    a("s_nop 1")
    a(f"v_cndmask_b32 v{IDX}, v{T1}, v{T2}, vcc")
    for q in range(2):
        for r in range(16):
            a(f"v_mov_b32 v{O[q] + r}, 0")
        for r in range(4):
            a(f"v_mov_b32 v{L[q] + r}, 0")
    for r in range(8):
        a(f"v_mov_b32 v{P[1] + r}, 0")
        a(f"v_mov_b32 v{VF[1] + r}, 0")
    a(f"v_mov_b32 v{vK}, v{vL16}")
    a(f"v_add_u32 v{vKN}, {STG}, v{vL16}")

    def kread(kt):
        reg, k = (vK, kt) if kt < TILES else (vKN, kt - TILES)
        return [f"ds_read_b128 {vr(KF[kt & 1] + 4 * c, 4)}, v{reg} offset:{4096 * k + 1024 * c}" for c in range(2)]

    def vread(kt):
        reg, k = (vK, kt) if kt < TILES else (vKN, kt - TILES)
        return [f"ds_read_b128 {vr(VF[kt & 1] + 4 * c, 4)}, v{reg} offset:{4096 * k + 2048 + 1024 * c}" for c in range(2)]

    dma_ins = [f"buffer_load_dwordx4 v{vL16}, {sr(SRD)}, s{sGO} offen offset:{1024 * c} lds" for c in range(4)]

    def dma_adv():
        a(f"s_add_u32 s{sGO}, s{sGO}, {STG}")
        a(f"s_add_u32 s{sDM}, s{sDM}, {STG}")
        a(f"s_cmp_ge_u32 s{sDM}, {NSLOT * STG}")
        a(f"s_cselect_b32 s{t0}, {NSLOT * STG}, 0")
        a(f"s_sub_u32 s{sDM}, s{sDM}, s{t0}")

    a(f"s_cmp_lt_u32 s{sWAVE}, 4")
    a(f"s_cselect_b32 s{sFIRST}, 1, 2")
    a("s_cbranch_scc0 L_attn_b0y")
    a("s_waitcnt vmcnt(4)")
    a("s_barrier")
    a.many(kread(0) + vread(0) + kread(1))
    stamp_mid(a, 0)
    a("s_waitcnt vmcnt(0)")
    a("s_branch L_attn_b0")
    a.label("L_attn_b0y")
    a("s_barrier")
    a("s_waitcnt vmcnt(8)")
    a("s_barrier")
    if OPT["k2s"]:
        a("s_waitcnt vmcnt(6)")
        a("s_barrier")
    a.many(kread(0) + vread(0) + kread(1))
    stamp_mid(a, 0)
    a(f"s_waitcnt vmcnt({2 if OPT['k2s'] else 4})")
    a.label("L_attn_b0")
    stamp_mid(a, 5)
    a(f"s_mov_b32 m0, s{sDM}")
    a("s_waitcnt lgkmcnt(4)")
    for q in range(2):
        a(f"{MF32} {vr(S[q], 16)}, {vr(KF[0], 4)}, {vr(Q[q], 4)}, 0")
        a(dma_ins[2 * q])
        a(f"{MF32} {vr(S[q], 16)}, {vr(KF[0] + 4, 4)}, {vr(Q[q] + 4, 4)}, {vr(S[q], 16)}")
        a(dma_ins[2 * q + 1])
    dma_adv()
    a(f"s_mov_b32 s{sST}, 0")
    a(f"s_mov_b32 s{sSL}, {STG}")
    a("s_nop 5")
    for q in range(2):
        s, t = S[q], T0 + 2 * q
        a(f"v_max3_f32 v{t}, v{s}, v{s + 1}, v{s + 2}")
        for r in range(3, 15, 2):
            a(f"v_max3_f32 v{t}, v{s + r}, v{s + r + 1}, v{t}")
        a(f"v_max_f32 v{t}, v{s + 15}, v{t}")
        a(f"v_mov_b32 v{t + 1}, v{t}")
    a("s_nop 1")
    for q in range(2):
        a(f"v_permlane32_swap_b32 v{T0 + 2 * q}, v{T0 + 2 * q + 1}")
    a("s_nop 1")
    for q in (1, 0):
        t = T0 + 2 * q
        a(f"v_max_f32 v{t}, v{t}, v{t + 1}")
        for r in range(16):
            a(f"v_sub_f32 v{NEG[q] + r}, 0, v{t}")
    for r in range(16):
        a(f"v_sub_f32 v{S[0] + r}, v{S[0] + r}, v{T0}")

    def step(u, fill=()):
        q, kt = u & 1, u >> 1
        qp, ktn, ktp = q ^ 1, (u + 1) >> 1, (u - 1) >> 1
        cur, nxt = S[q], S[qp]
        rd = vread(kt + 1) if q == 0 else kread(kt + 2)
        d = dict(
            QK0=f"{MF32} {vr(nxt, 16)}, {vr(KF[ktn & 1], 4)}, {vr(Q[qp], 4)}, {vr(NEG[qp], 16)}",
            QK1=f"{MF32} {vr(nxt, 16)}, {vr(KF[ktn & 1] + 4, 4)}, {vr(Q[qp] + 4, 4)}, {vr(nxt, 16)}",
            PV0=f"{MF32} {vr(O[q], 16)}, {vr(VF[kt & 1], 4)}, {vr(P[q], 4)}, {vr(O[q], 16)}",
            PV1=f"{MF32} {vr(O[qp], 16)}, {vr(VF[ktp & 1] + 4, 4)}, {vr(P[qp] + 4, 4)}, {vr(O[qp], 16)}",
            SP=f"v_smfmac_f32_16x16x64_bf16 {vr(L[qp], 4)}, {vr(ONES, 4)}, {vr(P[qp], 8)}, v{IDX}",
            R0=rd[0], R1=rd[1],
            Wq="s_waitcnt lgkmcnt(2)" if q == 1 else None, Wp="s_waitcnt lgkmcnt(4)" if q == 0 else None)
        for i in range(16):
            d[f"E{i}"] = f"v_exp_f32 v{cur + i}, v{cur + i}"
        for i in range(8):
            d[f"C{i}"] = f"v_cvt_pk_bf16_f32 v{P[q] + i}, v{cur + 2 * i}, v{cur + 2 * i + 1}"
        fill = list(fill) + [None] * 2
        d["F0"], d["F1"] = fill[0], fill[1]
        o = "E0 E1 PV1 Wq E2 E3 E4 QK0 F0 E5 E6 E7 QK1 R0 C0 E8 C1 E9 SP R1 C2 E10 C3 E11 E12 Wp PV0 F1 E13 C4 E14 C5 E15 C6 C7"
        for t in o.split():
            x = d[t]
            if x:
                a.many(x if isinstance(x, list) else [x])

    if OPT["lstamp"]:
        stamp_mid(a, 2)
    UB = 2 * TILES - 3
    a.raw(".p2align 3")
    a.label("L_attn_loop")
    a(f"s_cmp_eq_u32 s{sFIRST}, 1")
    for u in range(2 * TILES):
        fill = ()
        if u in (1, 5, 9):
            a(f"s_cbranch_scc1 L_attn_first{u}")
            a.label(f"L_attn_back{u}")
            if u == (5 if OPT["k2s"] else 1):
                a(f"s_cmp_lg_u32 s{sFIRST}, 0")
        if u == UB:
            a("s_waitcnt vmcnt(0)")
            a("s_barrier")
            a(f"s_mov_b32 m0, s{sDM}")
            fill = (dma_ins[0], dma_ins[1])
        if u == UB + 1:
            fill = (dma_ins[2], dma_ins[3])
        if u == UB + 2:
            fill = ([f"s_cmp_eq_u32 s{sST}, {NSTG - 2}", f"s_cselect_b32 s{sPFC}, s{sPF}, 0x7ff00000",
                     f"buffer_load_dword v{vPFD}, v{vPF}, {sr(SRDW)}, s{sPFC} offen"],
                    [f"s_add_u32 s{sGO}, s{sGO}, {STG}", f"s_add_u32 s{sDM}, s{sDM}, {STG}"])
        if (u - UB) % 4 == 0:
            a(f"s_setprio {3 - ((u - UB) % (2 * TILES)) // 4}")
        step(u, fill)
    a(f"s_cmp_ge_u32 s{sDM}, {NSLOT * STG}")
    a(f"s_cselect_b32 s{t0}, {NSLOT * STG}, 0")
    a(f"s_sub_u32 s{sDM}, s{sDM}, s{t0}")
    a(f"s_mov_b32 s{sFIRST}, 0")
    a(f"v_mov_b32 v{vK}, v{vKN}")
    a(f"s_add_u32 s{sSL}, s{sSL}, {STG}")
    a(f"s_cmp_ge_u32 s{sSL}, {NSLOT * STG}")
    a(f"s_cselect_b32 s{sSL}, 0, s{sSL}")
    a(f"v_add_u32 v{vKN}, s{sSL}, v{vL16}")
    if OPT["lstamp"] and STAMP:
        for k_, n_ in ((0, 3), (1, 4), (6, 5)):
            a(f"s_cmp_lg_u32 s{sST}, {k_}")
            a(f"s_cbranch_scc1 L_attn_ls{k_}")
            stamp_mid(a, n_)
            a.label(f"L_attn_ls{k_}")
    a(f"s_add_u32 s{sST}, s{sST}, 1")
    a(f"s_cmp_lt_u32 s{sST}, {NSTG}")
    a("s_cbranch_scc1 L_attn_loop")
    stamp_mid(a, 1)
    a("s_nop 1")
    a(f"{MF32} {vr(O[1], 16)}, {vr(VF[1] + 4, 4)}, {vr(P[1] + 4, 4)}, {vr(O[1], 16)}")
    a(f"v_smfmac_f32_16x16x64_bf16 {vr(L[1], 4)}, {vr(ONES, 4)}, {vr(P[1], 8)}, v{IDX}")
    a(f"v_mov_b32 v{T2}, 0")
    for q in range(2):
        for r in range(16):
            a(f"v_fmac_f32 v{T2}, 0, v{O[q] + r}")
        a(f"v_add_f32 v{L[q]}, v{L[q]}, v{L[q] + 1}")
    a(f"v_max_f32 v{T3}, v{L[0]}, v{L[1]}")
    a(f"v_fmac_f32 v{T2}, 0, v{L[0]}")
    a(f"v_fmac_f32 v{T2}, 0, v{L[1]}")
    a(f"v_add_f32 v{T3}, v{T3}, v{T2}")
    a(f"v_mov_b32 v{T2}, {f32bits(2.0 ** 40):#x}")
    a(f"v_cmp_nle_f32 vcc, v{T3}, v{T2}")
    a("s_waitcnt lgkmcnt(0)")
    a("s_nop 3")
    a("s_cbranch_vccnz L_attn_slow")

    def finish(q, lreg):
        a(f"v_rcp_f32 v{T0}, v{lreg}")
        a("s_nop 0")
        for r in range(16):
            a(f"v_mul_f32 v{O[q] + r}, v{O[q] + r}, v{T0}")
        for r in range(8):
            a(f"v_cvt_pk_bf16_f32 v{P[q] + r}, v{O[q] + 2 * r}, v{O[q] + 2 * r + 1}")
        a(f"s_add_u32 s{t0}, s{sOB}, {4096 * q}")
        for c in range(2):
            a(f"buffer_store_dwordx4 {vr(P[q] + 4 * c, 4)}, v{vL16}, {sr(SRD)}, s{t0} offen offset:{1024 * c}{OPT['st2']}")

    for q in range(2):
        finish(q, L[q])
    stamp_end(a, 1)
    a("s_endpgm")

    for u in (1, 5, 9):
        a.label(f"L_attn_first{u}")
        if u > 1:
            a(f"s_waitcnt vmcnt({6 if u == 5 else 4})")
        if u == 9:
            a(f"s_cmp_lg_u32 s{sWAVE}, 0")
            a("s_cbranch_scc1 L_attn_nov")
            hint_verdict(a, "attn", T0, vHD, FLAG)
            a.label("L_attn_nov")
        a("s_barrier")
        if u == 9:
            hint_read(a, T0, vHD, FLAG)
            a("s_waitcnt lgkmcnt(0)")
            hint_check(a, "attn", vHD)
        a(f"s_branch L_attn_back{u}")

    a.label("L_attn_slow")
    M, LS, AL = 88, 89, 90
    for q in range(2):
        s = S[0]
        a(f"v_mov_b32 v{M}, 0xff7fffff")
        a(f"v_mov_b32 v{LS}, 0")
        for r in range(16):
            a(f"v_mov_b32 v{O[q] + r}, 0")
        a(f"s_mov_b32 s{sGO}, s{sKV}")
        a(f"s_mov_b32 s{sST}, 0")
        a.label(f"L_attn_slow_{q}")
        for c in range(2):
            a(f"buffer_load_dwordx4 {vr(KF[0] + 4 * c, 4)}, v{vL16}, {sr(SRD)}, s{sGO} offen offset:{1024 * c}")
        for c in range(2):
            a(f"buffer_load_dwordx4 {vr(VF[0] + 4 * c, 4)}, v{vL16}, {sr(SRD)}, s{sGO} offen offset:{2048 + 1024 * c}")
        a("s_waitcnt vmcnt(0)")
        a(f"{MF32} {vr(s, 16)}, {vr(KF[0], 4)}, {vr(Q[q], 4)}, 0")
        a(f"{MF32} {vr(s, 16)}, {vr(KF[0] + 4, 4)}, {vr(Q[q] + 4, 4)}, {vr(s, 16)}")
        a("s_nop 7")
        a("s_nop 7")
        a(f"v_max3_f32 v{T0}, v{s}, v{s + 1}, v{M}")
        for r in range(2, 16, 2):
            a(f"v_max3_f32 v{T0}, v{s + r}, v{s + r + 1}, v{T0}")
        a(f"v_mov_b32 v{T1}, v{T0}")
        a("s_nop 1")
        a(f"v_permlane32_swap_b32 v{T0}, v{T1}")
        a("s_nop 1")
        a(f"v_max_f32 v{T0}, v{T0}, v{T1}")
        a(f"v_sub_f32 v{AL}, v{M}, v{T0}")
        a(f"v_exp_f32 v{AL}, v{AL}")
        a(f"v_mov_b32 v{M}, v{T0}")
        for r in range(16):
            a(f"v_sub_f32 v{s + r}, v{s + r}, v{T0}")
        for r in range(16):
            a(f"v_exp_f32 v{s + r}, v{s + r}")
        a(f"v_mul_f32 v{LS}, v{LS}, v{AL}")
        for r in range(16):
            a(f"v_mul_f32 v{O[q] + r}, v{O[q] + r}, v{AL}")
        for r in range(16):
            a(f"v_add_f32 v{LS}, v{LS}, v{s + r}")
        for r in range(8):
            a(f"v_cvt_pk_bf16_f32 v{P[0] + r}, v{s + 2 * r}, v{s + 2 * r + 1}")
        a("s_nop 1")
        a(f"{MF32} {vr(O[q], 16)}, {vr(VF[0], 4)}, {vr(P[0], 4)}, {vr(O[q], 16)}")
        a(f"{MF32} {vr(O[q], 16)}, {vr(VF[0] + 4, 4)}, {vr(P[0] + 4, 4)}, {vr(O[q], 16)}")
        a("s_nop 7")
        a("s_nop 7")
        a(f"s_add_u32 s{sGO}, s{sGO}, 4096")
        a(f"s_add_u32 s{sST}, s{sST}, 1")
        a(f"s_cmp_lt_u32 s{sST}, 64")
        a(f"s_cbranch_scc1 L_attn_slow_{q}")
        a(f"v_mov_b32 v{T1}, v{LS}")
        a("s_nop 1")
        a(f"v_permlane32_swap_b32 v{LS}, v{T1}")
        a("s_nop 1")
        a(f"v_add_f32 v{LS}, v{LS}, v{T1}")
        finish(q, LS)
        a("s_waitcnt vmcnt(0)")
    stamp_end(a, 1)
    a("s_endpgm")
    hint_slow(a, "attn")
    a.label("L_attn_end")
    a("s_endpgm")
    return a.text(), kernel_desc("attn_kernel", NV), lds, 512


HEADER = """; Fused MQA (branch A) + MHA (branch B) attention block, three launches:
;   proj_kernel : Q/K/V projections -> MFMA-fragment-ordered tiles in d_ws
;   attn_kernel : softmax(Q K^T) V per (branch, head, 512 rows)
;   outp_kernel : output projections -> d_out
"""


def main(path):
    ks = [("proj_kernel",) + gen_proj(), ("attn_kernel",) + gen_attn(), ("outp_kernel",) + gen_outp()]
    s = HEADER
    for n, t, d, lds, blk in ks:
        s += f"; @launch kernel={n} grid=(256,1,1) block=({blk},1,1) lds={lds}\n"
    s += '.amdgcn_target "amdgcn-amd-amdhsa--gfx950"\n'
    s += "".join(k[1] for k in ks) + "".join(k[2] for k in ks)
    open(path, "w").write(s)


if __name__ == "__main__":
    args = sys.argv[1:]
    if "--stamp" in args:
        STAMP = True
        args.remove("--stamp")
    for x in list(args):
        if "=" in x:
            k_, v_ = x.split("=")
            assert k_ in OPT, k_
            OPT[k_] = int(v_) if v_.lstrip("-").isdigit() else ("" if v_ == "none" else " " + v_.replace("+", " "))
            args.remove(x)
    main(args[0] if args else f"cdna_kernels/{NAME}.s")
```

```python
import sys, math, struct

NAME = "concat_heads__grouped_kv_mqa__softmax_full_mha__prompt"

WS_QA = 0x0000000
WS_QB = 0x0400000
WS_KVA = 0x0800000
WS_TBL = 0x0900000
WS_CLM = 0x0910000
WS_KVB = 0x1000000
WS_OA = 0x2000000
WS_OB = 0x2400000
WS_STAMP = 0x8000000
WS_SIZE = 268435456

QSCALE = (32 ** -0.5) * math.log2(math.e)
STAMP = False
OPT = dict(pre=6, st1=" sc0 sc1", st2=" sc0 sc1", ld1="", pfb="", pf=1, pf0=0, pfd=2, badtbl=0, lstamp=0, epi3=1, nl3=4, fake16=0, badtk=0, pfirst=1, pwait=0, wsb=0, st3=" nt", k2s=1, p0=2, xfirst=1, rot=0, ks3=2, xp=0, lrot=1, swap3=1, p1e=1)

MF32 = "v_mfma_f32_32x32x16_bf16"
MF16 = "v_mfma_f32_16x16x32_bf16"


def f32bits(x):
    return struct.unpack("<I", struct.pack("<f", x))[0]


class A:
    def __init__(self):
        self.l = []

    def __call__(self, s):
        self.l.append("    " + s)

    def many(self, xs):
        for x in xs:
            self(x)

    def label(self, s):
        self.l.append(s + ":")

    def raw(self, s):
        self.l.append(s)

    def text(self):
        return "\n".join(self.l) + "\n"


def vr(b, n):
    return f"v[{b}:{b + n - 1}]"


def sr(b, n=4):
    return f"s[{b}:{b + n - 1}]"


def srd(a, d, lo, size):
    a(f"s_mov_b32 s{d}, s{lo}")
    a(f"s_mov_b32 s{d+1}, s{lo + 1}")
    a(f"s_mov_b32 s{d+2}, {size:#x}")
    a(f"s_mov_b32 s{d+3}, 0x00020000")


def srd_sel(a, d, lo1, lo0, size1, size0=None):
    a(f"s_cselect_b32 s{d}, s{lo1}, s{lo0}")
    a(f"s_cselect_b32 s{d+1}, s{lo1 + 1}, s{lo0 + 1}")
    if size0 is None:
        a(f"s_mov_b32 s{d+2}, {size1:#x}")
    else:
        csel(a, d + 2, size1, size0)
    a(f"s_mov_b32 s{d+3}, 0x00020000")


def csel(a, d, x, y):
    a(f"s_mov_b32 s{d}, {y}")
    a(f"s_cmov_b32 s{d}, {x}")


def kernel_head(a, name):
    a.raw(".text")
    a.raw(f".globl {name}")
    a.raw(".p2align 8")
    a.raw(f".type {name},@function")
    a.label(name)


def kernel_desc(name, nvgpr, nsgpr=102):
    acc = (nvgpr + 3) // 4 * 4
    return f""".section .rodata,"a"
.p2align 6
.amdhsa_kernel {name}
  .amdhsa_next_free_vgpr {nvgpr}
  .amdhsa_next_free_sgpr {nsgpr}
  .amdhsa_accum_offset {acc}
  .amdhsa_group_segment_fixed_size 0
  .amdhsa_kernarg_size 88
  .amdhsa_user_sgpr_count 2
  .amdhsa_user_sgpr_kernarg_segment_ptr 1
  .amdhsa_system_sgpr_workgroup_id_x 1
.end_amdhsa_kernel
"""


sXCC, sHW, sTRY, sTK = 3, 8, 9, 10
SRD_DBG = 12
S_IN = 16
S_OUT = 32
S_WS = 34
SRD_WS = 44
sWAVE = 56
sT0, sT1, sT2, sT3 = 57, 58, 59, 60
sOK = 81


def stamp_begin(a):
    if STAMP:
        a("s_memtime s[82:83]")
        a("s_memrealtime s[84:85]")
        for n in range(6):
            a(f"s_mov_b32 s{90 + 2 * n}, 0")


def stamp_mid(a, n):
    if STAMP:
        a(f"s_memtime s[{90 + 2 * n}:{91 + 2 * n}]")


def stamp_end(a, kidx):
    if not STAMP:
        return
    a("s_waitcnt vmcnt(0)")
    a("s_memtime s[86:87]")
    a("s_memrealtime s[88:89]")
    a("s_waitcnt lgkmcnt(0)")
    a(f"s_min_u32 s9, s{sWAVE}, 7")
    a("s_lshl_b32 s8, s2, 3")
    a("s_add_u32 s8, s8, s9")
    a("s_lshl_b32 s8, s8, 6")
    a(f"s_add_u32 s8, s8, {WS_STAMP + kidx * 0x20000:#x}")
    for i, r in enumerate((82, 84, 86, 88, 90, 92, 94, 96, 98, 100, 100, 100)):
        a(f"v_mov_b32 v{4 + i}, s{r}")
    a("v_mov_b32 v1, 0")
    a("s_mov_b64 exec, 1")
    for i in range(3):
        a(f"buffer_store_dwordx4 v[{4 + 4 * i}:{7 + 4 * i}], v1, {sr(SRD_WS)}, s8 offen offset:{16 * i}")


def entry(a, tag):
    a("s_cmp_ge_u32 s2, 256")
    a(f"s_cbranch_scc1 L_{tag}_end")
    stamp_begin(a)
    a(f"s_load_dwordx16 {sr(S_IN, 16)}, s[0:1], 0")
    a(f"s_load_dwordx2 {sr(S_OUT, 2)}, s[0:1], 64")
    a(f"s_load_dwordx2 {sr(SRD_DBG, 2)}, s[0:1], 72")
    a(f"s_load_dwordx2 {sr(S_WS, 2)}, s[0:1], 80")
    a("v_lshrrev_b32 v1, 6, v0")
    a("v_and_b32 v0, 63, v0")
    a(f"v_readfirstlane_b32 s{sWAVE}, v1")
    a(f"s_getreg_b32 s{sXCC}, hwreg(HW_REG_XCC_ID, 0, 3)")
    a(f"s_getreg_b32 s{sHW}, hwreg(HW_REG_HW_ID, 8, 8)")
    a(f"s_mov_b32 s{SRD_DBG + 2}, 256")
    a(f"s_mov_b32 s{SRD_DBG + 3}, 0x00020000")


def ws_reloc(a):
    if OPT["wsb"]:
        a(f"s_add_u32 s{S_WS}, s{S_WS}, {OPT['wsb'] << 20:#x}")
        a(f"s_addc_u32 s{S_WS + 1}, s{S_WS + 1}, 0")


def tbl_offset(a, d):
    a(f"s_lshl_b32 s{d}, s{sXCC}, 8")
    a(f"s_or_b32 s{d}, s{d}, s{sHW}")
    a(f"s_lshl_b32 s{d}, s{d}, 2")
    a(f"s_add_u32 s{d}, s{d}, {WS_TBL:#x}")


sG, sMT = 32, 33


def ticket_issue(a, tag, who):
    a(f"s_mov_b32 s{sG}, s{sXCC}")
    a(f"s_bfe_u32 s{sMT}, s{sHW}, 0x20005")
    if OPT["badtk"]:
        a(f"s_and_b32 s{sMT}, s{sMT}, 1")
        a(f"s_and_b32 s{sG}, s{sG}, 5")
    a(f"s_mov_b32 s{sOK}, 0")
    a(f"s_cmp_lg_u32 s{sWAVE}, {who}")
    a(f"s_cbranch_scc1 L_{tag}_cl0")
    a(f"s_lshl_b32 s{sTK + 1}, s{sG}, 2")
    a(f"s_or_b32 s{sTK + 1}, s{sTK + 1}, s{sMT}")
    a(f"s_lshl_b32 s{sTRY}, s{sTK + 1}, 3")
    a(f"s_mov_b32 s{sTK}, 1")
    a(f"s_atomic_add s{sTK}, {sr(SRD_DBG, 2)}, s{sTRY} glc")
    a.label(f"L_{tag}_cl0")


def ticket_end(a, tag, who, ldsoff):
    a(f"s_cmp_lg_u32 s{sWAVE}, {who}")
    a(f"s_cbranch_scc1 L_{tag}_cl3")
    a(f"s_cmp_lg_u32 s{sOK}, 0")
    a(f"s_cbranch_scc1 L_{tag}_cl3")
    a(f"s_mov_b32 s{sCNT}, 0")
    a.label(f"L_{tag}_cl1")
    a("s_waitcnt lgkmcnt(0)")
    a(f"s_cmp_lt_u32 s{sTK}, 8")
    a(f"s_cbranch_scc1 L_{tag}_cl2")
    a(f"s_add_u32 s{sCNT}, s{sCNT}, 1")
    a(f"s_cmp_ge_u32 s{sCNT}, 32")
    a(f"s_cbranch_scc1 L_{tag}_cl2")
    a(f"s_add_u32 s{sTK + 1}, s{sTK + 1}, 1")
    a(f"s_and_b32 s{sTK + 1}, s{sTK + 1}, 31")
    a(f"s_lshl_b32 s{sTRY}, s{sTK + 1}, 3")
    a(f"s_mov_b32 s{sTK}, 1")
    a(f"s_atomic_add s{sTK}, {sr(SRD_DBG, 2)}, s{sTRY} glc")
    a(f"s_branch L_{tag}_cl1")
    a.label(f"L_{tag}_cl2")
    a(f"s_min_u32 s{sTK}, s{sTK}, 8")
    a(f"s_lshl_b32 s{sTK}, s{sTK}, 5")
    a(f"s_and_b32 s{sTRY}, s{sTK + 1}, 3")
    a(f"s_lshl_b32 s{sTRY}, s{sTRY}, 3")
    a(f"s_or_b32 s{sTK}, s{sTK}, s{sTRY}")
    a(f"s_lshr_b32 s{sTRY}, s{sTK + 1}, 2")
    a(f"s_or_b32 s{sTK}, s{sTK}, s{sTRY}")
    a("s_mov_b64 exec, 1")
    a(f"v_mov_b32 v2, {ldsoff}")
    a(f"v_mov_b32 v3, s{sTK}")
    a("ds_write_b32 v2, v3")
    a("s_mov_b64 exec, -1")
    a("s_waitcnt lgkmcnt(0)")
    a.label(f"L_{tag}_cl3")


def ticket_notes(a, tag, who):
    a(f"s_cmp_lg_u32 s{sWAVE}, {who}")
    a(f"s_cbranch_scc1 L_{tag}_cl4")
    a("s_mov_b64 exec, 1")
    a("v_mov_b32 v1, 0")
    a("v_mov_b32 v3, s2")
    a(f"s_lshl_b32 s{sT1}, s2, 7")
    a(f"s_add_u32 s{sT1}, s{sT1}, {WS_CLM:#x}")
    a(f"buffer_store_dword v1, v1, {sr(SRD_WS)}, s{sT1} offen")
    a(f"s_add_u32 s{sT1}, s{sT1}, 0x8000")
    a(f"buffer_store_dword v1, v1, {sr(SRD_WS)}, s{sT1} offen")
    tbl_offset(a, sT1)
    a(f"buffer_store_dword v3, v1, {sr(SRD_WS)}, s{sT1} offen sc0 sc1")
    a("s_mov_b64 exec, -1")
    a.label(f"L_{tag}_cl4")


def ticket_wait(a, tag, ldsoff, redo):
    a(f"v_mov_b32 v2, {ldsoff}")
    a("s_barrier")
    a("ds_read_b32 v3, v2")
    a(f"s_lshl_b32 s{sT1}, s{sMT}, 3")
    a(f"s_or_b32 s{sT1}, s{sT1}, s{sG}")
    a("s_waitcnt lgkmcnt(0)")
    a("v_readfirstlane_b32 s2, v3")
    a("s_nop 3")
    a(f"s_and_b32 s{sT2}, s2, 0x31f")
    a(f"s_cmp_lg_u32 s{sT2}, s{sT1}")
    a(f"s_cbranch_scc1 {redo}")
    a(f"s_lshr_b32 s{sNT}, s2, 5")


def ticket_redo(a, tag, lbl, back):
    a.label(lbl)
    a("s_waitcnt vmcnt(0)")
    a("s_cmp_ge_u32 s2, 256")
    a(f"s_cbranch_scc1 L_{tag}_end")
    a(f"s_and_b32 s{sG}, s2, 7")
    a(f"s_bfe_u32 s{sMT}, s2, 0x20003")
    a(f"s_mov_b32 s{sOK}, 1")
    a(f"s_branch {back}")


def hint_load(a, tag):
    tbl_offset(a, sTK)
    a("s_waitcnt lgkmcnt(0)")
    ws_reloc(a)
    a(f"s_load_dword s2, {sr(S_WS, 2)}, s{sTK}")
    srd(a, SRD_WS, S_WS, WS_SIZE - (OPT["wsb"] << 20))
    a(f"s_mov_b32 s{sOK}, 0")
    a("s_waitcnt lgkmcnt(0)")
    if OPT["badtbl"]:
        a(f"s_and_b32 s2, s2, {OPT['badtbl']}")
    a("s_and_b32 s2, s2, 255")
    a.label(f"L_{tag}_item")


def clm_base(tag):
    return WS_CLM + (0 if tag == "attn" else 0x8000)


def hint_claim(a, tag, who):
    a(f"s_cmp_lg_u32 s{sWAVE}, {who}")
    a(f"s_cbranch_scc1 L_{tag}_noc")
    a(f"s_lshl_b32 s{sTK + 1}, s2, 7")
    a(f"s_add_u32 s{sTK + 1}, s{sTK + 1}, {clm_base(tag):#x}")
    a(f"s_mov_b32 s{sTK}, 1")
    a(f"s_atomic_or s{sTK}, {sr(S_WS, 2)}, s{sTK + 1} glc")
    a.label(f"L_{tag}_noc")


def hint_verdict(a, tag, vA, vD, ldsoff):
    a("s_waitcnt lgkmcnt(0)")
    a(f"s_andn2_b32 s{sTK}, s{sTK}, s{sOK}")
    a(f"s_cmp_lg_u32 s{sTK}, 0")
    a(f"s_mov_b32 s{sTRY}, s2")
    a(f"s_cbranch_scc1 L_{tag}_hslow")
    a.label(f"L_{tag}_hback")
    a(f"v_mov_b32 v{vA}, {ldsoff}")
    a(f"v_mov_b32 v{vD}, s{sTRY}")
    a(f"ds_write_b32 v{vA}, v{vD}")
    a("s_waitcnt lgkmcnt(0)")


def hint_slow(a, tag):
    sN = 4
    a.label(f"L_{tag}_hslow")
    a(f"s_mov_b32 s{sN}, 0")
    a.label(f"L_{tag}_hs1")
    a(f"s_add_u32 s{sN}, s{sN}, 1")
    a(f"s_add_u32 s{sTRY}, s{sTRY}, 9")
    a(f"s_and_b32 s{sTRY}, s{sTRY}, 255")
    a(f"s_cmp_gt_u32 s{sN}, 256")
    a(f"s_cbranch_scc1 L_{tag}_hs2")
    a(f"s_lshl_b32 s{sTK + 1}, s{sTRY}, 7")
    a(f"s_add_u32 s{sTK + 1}, s{sTK + 1}, {clm_base(tag):#x}")
    a(f"s_mov_b32 s{sTK}, 1")
    a(f"s_atomic_or s{sTK}, {sr(S_WS, 2)}, s{sTK + 1} glc")
    a("s_waitcnt lgkmcnt(0)")
    a(f"s_cmp_lg_u32 s{sTK}, 0")
    a(f"s_cbranch_scc1 L_{tag}_hs1")
    a(f"s_branch L_{tag}_hback")
    a.label(f"L_{tag}_hs2")
    a(f"s_mov_b32 s{sTRY}, 0x8000")
    a(f"s_branch L_{tag}_hback")
    a.label(f"L_{tag}_restart")
    a("s_waitcnt vmcnt(0) lgkmcnt(0)")
    a("s_barrier")
    a(f"s_mov_b32 s2, s{sTRY}")
    a(f"s_mov_b32 s{sOK}, 1")
    a("s_setprio 0")
    a("s_cmp_ge_u32 s2, 256")
    a(f"s_cbranch_scc1 L_{tag}_end")
    a(f"s_branch L_{tag}_item")


def hint_read(a, vA, vD, ldsoff):
    a(f"v_mov_b32 v{vA}, {ldsoff}")
    a(f"ds_read_b32 v{vD}, v{vA}")


def hint_check(a, tag, vD):
    a(f"v_readfirstlane_b32 s{sTRY}, v{vD}")
    a("s_nop 3")
    a(f"s_cmp_lg_u32 s{sTRY}, s2")
    a(f"s_cbranch_scc1 L_{tag}_restart")


SRD_X, SRD_W, SRD_WK, SRD_WV, SRD_PF, SRD_OUT = 36, 40, 48, 52, 4, 48
sXOFF, sWOFF, sWSTG, sSLOT, sCNT, sDELTA = 61, 62, 64, 65, 66, 67
sOBASE, sOJ, sOI, sSCALE = 68, 69, 70, 72
sSEC, sM0, sCOL0, sWSTR, sNT, sEXO, sEXS, sRSLOT = 74, 75, 76, 77, 78, 79, 80, 63
sPFO, sPFS, sPFN = 9, 10, 11
sPFL, sPFW, sK = 68, 69, 71


class G:
    def __init__(self, kind):
        self.kind = kind
        proj = kind == "proj"
        self.NI, self.NJ = (4, 2) if proj else (2, 2)
        self.XB = 32768 if proj else 16384
        self.NSLOT = 3 if proj else 4
        self.NL = 4 if proj else OPT["nl3"]
        self.SLOT = self.XB + 16384 + (2048 if proj else 0)
        self.XP = self.XB // 1024 // self.NL
        self.WP = 16 // self.NL
        self.NST = 16
        self.EXB = self.NSLOT * self.SLOT
        self.lds = self.NSLOT * self.SLOT + 64
        self.KS = 1 if proj else OPT["ks3"]
        self.ACC = 128 if proj else 16 + 32 * self.KS + (16 if self.KS == 1 else 0)
        self.nacc = self.NI * self.NJ * 16
        self.f1 = self.NI * 4 + self.NJ * 4
        fsz = self.f1 * self.KS
        self.F = [16, 16 + fsz]
        self.vXA, self.vWA, self.vEXX, self.vEXW, self.vST = 4, 8, 10, 12, 13
        self.EXF = 16 + 2 * fsz
        self.EXACC = self.EXF + 12
        self.nvgpr = self.ACC + self.nacc

    def fx(self, t, i):
        return self.F[(t // self.KS) & 1] + (t % self.KS) * self.f1 + 4 * i

    def fw(self, t, j):
        return self.F[(t // self.KS) & 1] + (t % self.KS) * self.f1 + self.NI * 4 + 4 * j

    def acc(self, i, j):
        return self.ACC + (i * self.NJ + j) * 16


def gemm_reads(g, T):
    proj = g.kind == "proj"
    out = []
    for t in range(T * g.KS, (T + 1) * g.KS):
        wr = [f"ds_read_b64_tr_b16 {vr(g.fw(t, j) + 2 * u, 2)}, v{g.vWA + j} offset:{4096 * t + (1024 if proj else 2048) * u}"
              for j in range(g.NJ) for u in range(2)]
        if proj:
            xr = [f"ds_read_b128 {vr(g.fx(t, i), 4)}, v{g.vXA + t} offset:{4096 * i}" for i in range(g.NI)]
        else:
            xr = [f"ds_read_b128 {vr(g.fx(t, i), 4)}, v{g.vXA} offset:{4096 * i + 1024 * t}" for i in range(g.NI)]
        out += [xr[0]] + wr + xr[1:]
    if OPT["xp"] == 1:
        out = out[::2]
    if OPT["xp"] == 2:
        out = out[:1]
    return out


def gemm_extra_reads(g, e):
    return [f"ds_read_b64_tr_b16 {vr(g.EXF + 2 * u, 2)}, v{g.vEXW} offset:{1024 * e + 128 * u}" for u in range(2)] + \
           [f"ds_read_b128 {vr(g.EXF + 4 + 4 * th, 4)}, v{g.vEXX + e} offset:{2048 * th}" for th in range(2)]


def gemm_step(a, g, T, swap, reads, pre=(), extra_mfma=(), post_valu=()):
    a.many(pre)
    mf = []
    for t in range(T * g.KS, (T + 1) * g.KS):
        for i in range(g.NI):
            for j in range(g.NJ):
                x, w, c = vr(g.fx(t, i), 4), vr(g.fw(t, j), 4), vr(g.acc(i, j), 16)
                mf.append(f"{MF32} {c}, {x}, {w}, {c}" if swap else f"{MF32} {c}, {w}, {x}, {c}")
    mf += list(extra_mfma)
    reads, post_valu = list(reads), list(post_valu)
    for m in mf:
        if OPT["xp"] != 3:
            a(m)
        for _ in range(2):
            if reads:
                a(reads.pop(0))
        if not reads:
            for _ in range(2):
                if post_valu:
                    a(post_valu.pop(0))
    a.many(reads + post_valu)


def gemm_compute(a, g, tag, swap, extras, check=None):
    proj = g.kind == "proj"

    def ex_mfma():
        w = vr(g.EXF, 4)
        out = []
        for th in range(2):
            x, c = vr(g.EXF + 4 + 4 * th, 4), vr(g.EXACC + 4 * th, 4)
            out.append(f"{MF16} {c}, {x}, {w}, {c}" if extras == "V" else f"{MF16} {c}, {w}, {x}, {c}")
        return out

    def adv(reg):
        return f"v_add_u32 v{reg}, s{sDELTA}, v{reg}"

    NB = 4 // g.KS

    def stage(last):
        for t in range(NB):
            pre = ["s_waitcnt lgkmcnt(0)"]
            reads, post, em = [], [], []
            if t < NB - 1:
                reads = gemm_reads(g, t + 1)
                if extras and t == 1:
                    reads += gemm_extra_reads(g, 1)
                if not last:
                    if proj:
                        post.append(adv(g.vXA + t + 1))
                    if t == NB - 2:
                        post += [adv(g.vWA), adv(g.vWA + 1), adv(g.vXA)]
                        if extras:
                            post += [adv(g.vEXX), adv(g.vEXX + 1), adv(g.vEXW)]
            elif not last:
                pre.append("s_barrier")
                reads = gemm_reads(g, 0)
                if extras:
                    reads += gemm_extra_reads(g, 0)
            if extras and t in (0, 2):
                em = ex_mfma()
            gemm_step(a, g, t, swap, reads, pre, em, post)

    stamp_mid(a, 4)
    a("s_barrier")
    stamp_mid(a, 0)
    a.many(gemm_reads(g, 0))
    if extras:
        a.many(gemm_extra_reads(g, 0))
    a(f"s_mov_b32 s{sCNT}, 0")
    a(f"s_mov_b32 s{sRSLOT}, 0")
    a.raw(".p2align 3")
    a.label(f"L_{tag}_loop")
    a(f"s_add_u32 s{sRSLOT}, s{sRSLOT}, 1")
    a(f"s_cmp_eq_u32 s{sRSLOT}, {g.NSLOT}")
    csel(a, sDELTA, f"{-(g.NSLOT - 1) * g.SLOT & 0xffffffff:#x}", g.SLOT)
    a(f"s_cselect_b32 s{sRSLOT}, 0, s{sRSLOT}")
    stage(False)
    a(f"s_add_u32 s{sCNT}, s{sCNT}, 1")
    a(f"s_cmp_lt_u32 s{sCNT}, {g.NST - 1}")
    a(f"s_cbranch_scc1 L_{tag}_loop")
    if check:
        hint_read(a, 14, 15, g.EXB)
    stage(True)
    if check:
        hint_check(a, check, 15)
    stamp_mid(a, 1)


def pf_adv(a):
    a(f"s_add_u32 s{sPFO}, s{sPFO}, s{sPFS}")
    a(f"s_cmp_ge_u32 s{sPFO}, s{sPFL}")
    a(f"s_cselect_b32 s{sT1}, s{sPFW}, 0")
    a(f"s_sub_u32 s{sPFO}, s{sPFO}, s{sT1}")


def k_wrap(a, lbl, n):
    a(f"s_add_u32 s{sK}, s{sK}, {n}")
    a(f"s_cmp_lt_u32 s{sK}, 16")
    a(f"s_cbranch_scc1 {lbl}")
    a(f"s_mov_b32 s{sK}, 0")
    a(f"s_sub_u32 s{sXOFF}, s{sXOFF}, 2048")
    a(f"s_lshl_b32 s{sT1}, s{sWSTG}, 4")
    a(f"s_sub_u32 s{sWOFF}, s{sWOFF}, s{sT1}")
    a(f"s_sub_u32 s{sEXO}, s{sEXO}, 0x10000")
    a.label(lbl)


def gemm_loader(a, g, tag, vX, vW):
    proj = g.kind == "proj"
    per, LA = g.XP + g.WP, g.NSLOT
    lb = OPT["ld1"] if proj else ""
    pf = proj and OPT["pf"]

    def prefetch():
        a(f"buffer_load_dword v9, v8, {sr(SRD_PF)}, s{sPFO} offen{OPT['pfb']}")
        pf_adv(a)

    def prefetch_if(hi, lbl):
        a(f"s_cmp_ge_u32 s{sWAVE}, 6")
        a(f"s_cbranch_scc{0 if hi else 1} {lbl}")
        prefetch()
        a.label(lbl)

    nlab = [0]

    def issue(lo=0, hi=None):
        hi = per if hi is None else hi
        for n in range(lo, hi):
            isx = n < g.XP
            i = n if isx else n - g.XP
            if i % 4 == 0 or n == lo:
                base = (i // 4) * 4096 if isx else 0
                a(f"s_add_u32 m0, s{sSLOT if isx else sEXS + 0}, {base}" if isx else f"s_add_u32 m0, s{sT3}, 0")
                a("s_nop 0")
            if isx:
                a(f"buffer_load_dwordx4 v{vX[i]}, {sr(SRD_X)}, s{sXOFF} offen offset:{(i % 4) * 1024}{lb} lds")
            else:
                a(f"buffer_load_dwordx4 v{vW[i]}, {sr(SRD_W)}, s{sWOFF} offen offset:{(i % 4) * 1024}{lb} lds")
        if hi == per:
            a(f"s_add_u32 s{sXOFF}, s{sXOFF}, {128 if proj else f's{sEXO}'}")
            a(f"s_add_u32 s{sWOFF}, s{sWOFF}, s{sWSTG}")
            if proj:
                nlab[0] += 1
                k_wrap(a, f"L_{tag}_kw{nlab[0]}", 1)
            a(f"s_add_u32 s{sRSLOT}, s{sRSLOT}, 1")
            a(f"s_cmp_eq_u32 s{sRSLOT}, {g.NSLOT}")
            csel(a, sDELTA, f"{-(g.NSLOT - 1) * g.SLOT & 0xffffffff:#x}", g.SLOT)
            a(f"s_cselect_b32 s{sRSLOT}, 0, s{sRSLOT}")
            a(f"s_add_u32 s{sSLOT}, s{sSLOT}, s{sDELTA}")
            a(f"s_add_u32 s{sT3}, s{sT3}, s{sDELTA}")

    def maybe_extra(lbl, st=0):
        if not proj:
            return
        a(f"s_cmp_eq_u32 s{sCOL0}, 0")
        a(f"s_cbranch_scc1 {lbl}")
        a(f"s_add_u32 m0, s{sT3}, s{sEXS}")
        if st:
            a(f"s_add_u32 m0, m0, {st * g.SLOT}")
        a("s_nop 0")
        a(f"buffer_load_dwordx4 v6, {sr(SRD_WK)}, s{sEXO} offen lds")
        a(f"s_add_u32 s{sEXO}, s{sEXO}, 4096")
        a.label(lbl)

    a(f"s_mov_b32 s{sRSLOT}, 0")
    stamp_mid(a, 3)
    if proj:
        def xs(st):
            a(f"s_add_u32 s{sDELTA}, s{sXOFF}, {128 * st}")
            for i in range(g.XP):
                if i % 4 == 0:
                    a(f"s_add_u32 m0, s{sSLOT}, {st * g.SLOT + (i // 4) * 4096}")
                    a("s_nop 0")
                a(f"buffer_load_dwordx4 v{vX[i]}, {sr(SRD_X)}, s{sDELTA} offen offset:{(i % 4) * 1024}{lb} lds")

        def ws_(st):
            maybe_extra(f"L_{tag}_x{st}", st)
            a(f"s_add_u32 m0, s{sT3}, {st * g.SLOT}")
            a("s_nop 0")
            for i in range(g.WP):
                a(f"buffer_load_dwordx4 v{vW[i]}, {sr(SRD_W)}, s{sWOFF} offen offset:{i * 1024}{lb} lds")
            a(f"s_add_u32 s{sWOFF}, s{sWOFF}, s{sWSTG}")

        for st in range(OPT["xfirst"]):
            xs(st)
        if pf and OPT["p1e"]:
            a(f"s_cmp_ge_u32 s{sWAVE}, 6")
            a(f"s_cbranch_scc0 L_{tag}_p1e")
            a(f"buffer_load_dword v9, v8, {sr(SRD_PF)}, s{sOBASE} offen{OPT['pfb']}")
            a.label(f"L_{tag}_p1e")
        g.mid()
        ws_(0)
        young = g.WP
        if OPT["xfirst"] == 1:
            young += g.XP
            xs(1)
        ws_(1)
        stamp_mid(a, 4)
        a(f"s_add_u32 s{sXOFF}, s{sXOFF}, 256")
        k_wrap(a, f"L_{tag}_kw0", 2)
        a(f"s_add_u32 s{sSLOT}, s{sSLOT}, {2 * g.SLOT}")
        a(f"s_add_u32 s{sT3}, s{sT3}, {2 * g.SLOT}")
        a(f"s_mov_b32 s{sRSLOT}, 2")
        a(f"s_waitcnt vmcnt({young})")
        stamp_mid(a, 5)
        a("s_barrier")
        stamp_mid(a, 0)
        if pf and OPT["p0"] == 2:
            g.after_bar0()
            if not OPT["p1e"]:
                a(f"s_cmp_ge_u32 s{sWAVE}, 6")
                a(f"s_cbranch_scc0 L_{tag}_p1b")
                a(f"buffer_load_dword v9, v8, {sr(SRD_PF)}, s{sPFO} offen{OPT['pfb']}")
                a.label(f"L_{tag}_p1b")
            pf_adv(a)
        maybe_extra(f"L_{tag}_x1b")
        issue()
        if not (pf and OPT["p0"] == 2):
            g.after_bar0()
        if pf:
            prefetch_if(False, f"L_{tag}_p2")
            a(f"s_cmp_ge_u32 s{sWAVE}, 6")
            a(f"s_cselect_b32 s{sPFN}, {OPT['pf0']}, {OPT['pf0'] + OPT['pfd']}")
    else:
        issue()
        pre = min(OPT["pre"] * 4 // g.NL, per)
        issue(0, pre)
        stamp_mid(a, 4)
        a(f"s_waitcnt vmcnt({pre})")
        stamp_mid(a, 5)
        a("s_barrier")
        stamp_mid(a, 0)
        if pre < per:
            issue(pre, per)
        for _ in range(LA - 2):
            issue()
    a(f"s_mov_b32 s{sCNT}, 0")
    a.label(f"L_{tag}_lloop")
    a(f"s_waitcnt vmcnt({(LA - 2) * per})")
    a("s_barrier")
    if OPT["lstamp"] and STAMP:
        for k_, n_ in ((1, 2), (4, 3), (8, 4), (11, 5)):
            a(f"s_cmp_lg_u32 s{sCNT}, {k_}")
            a(f"s_cbranch_scc1 L_{tag}_ls{k_}")
            stamp_mid(a, n_)
            a.label(f"L_{tag}_ls{k_}")
    maybe_extra(f"L_{tag}_x2")
    issue()
    if pf:
        a(f"s_cmp_eq_u32 s{sCNT}, s{sPFN}")
        a(f"s_cbranch_scc0 L_{tag}_nopf")
        prefetch()
        a(f"s_add_u32 s{sPFN}, s{sPFN}, {2 * OPT['pfd']}")
        a(f"s_cmp_gt_u32 s{sPFN}, {OPT['pf0'] + 4 * OPT['pfd']}")
        a(f"s_cselect_b32 s{sPFN}, 64, s{sPFN}")
        a.label(f"L_{tag}_nopf")
    a(f"s_add_u32 s{sCNT}, s{sCNT}, 1")
    a(f"s_cmp_lt_u32 s{sCNT}, {g.NST - LA}")
    a(f"s_cbranch_scc1 L_{tag}_lloop")
    for s in range(g.NST - LA, g.NST - 1):
        a(f"s_waitcnt vmcnt({(g.NST - 2 - s) * per})")
        if not proj and s == g.NST - LA:
            a(f"s_cmp_lg_u32 s{sWAVE}, 4")
            a(f"s_cbranch_scc1 L_{tag}_nov")
            hint_verdict(a, tag, 14, 15, g.EXB)
            a.label(f"L_{tag}_nov")
        a("s_barrier")
        if proj and s == g.NST - 2:
            tbl_offset(a, sT1)
            a("v_mov_b32 v1, 0")
            a(f"buffer_load_dword v2, v1, {sr(SRD_WS)}, s{sT1} offen")
    if not proj:
        hint_read(a, 14, 15, g.EXB)
        a("s_waitcnt lgkmcnt(0)")
        hint_check(a, tag, 15)
    stamp_mid(a, 1)
    stamp_end(a, 0 if proj else 2)
    a("s_endpgm")


def proj_group(a, sg):
    a(f"s_and_b32 s{sSEC}, s{sg}, 3")
    a(f"s_cmp_eq_u32 s{sSEC}, 0")
    csel(a, sWSTR, 2048, 6144)
    srd_sel(a, SRD_X, 16, 26, 0x400000)
    srd_sel(a, SRD_W, 18, 28, 0x200000, 0x600000)


def proj_pf_setup(a, tag, sg, sidx, sw2, dst=None):
    sPFO, sPFS = dst if dst else (9, 10)
    sPFL, sPFW = (sOI, sK) if dst else (68, 69)
    a(f"s_lshr_b32 s{sPFW}, s{sw2}, 1")
    if OPT["rot"]:
        a(f"s_add_u32 s{sPFW}, s{sPFW}, s{sg}")
        a(f"s_and_b32 s{sPFW}, s{sPFW}, 7")
    a(f"s_bitcmp1_b32 s{sw2}, 0")
    for i in range(3):
        a(f"s_cselect_b32 s{SRD_PF + i}, s{SRD_W + i}, s{SRD_X + i}")
    a(f"s_mov_b32 s{SRD_PF + 3}, 0x00020000")
    a(f"s_cbranch_scc1 L_{tag}_pfw")
    a("v_and_b32 v1, 31, v0")
    a("v_lshlrev_b32 v1, 11, v1")
    a("v_lshrrev_b32 v8, 5, v0")
    a("v_lshl_add_u32 v8, v8, 7, v1")
    a(f"s_lshr_b32 s{sT1}, s{sg}, 2")
    a(f"s_lshl_b32 s{sT1}, s{sT1}, 5")
    a(f"s_add_u32 s{sT1}, s{sT1}, s{sidx}")
    a(f"s_lshl_b32 s{sT1}, s{sT1}, 16")
    a(f"s_lshl_b32 s{sT2}, s{sPFW}, 8")
    a(f"s_add_u32 s{sPFO}, s{sT1}, s{sT2}")
    a(f"s_mov_b32 s{sPFS}, 512")
    a(f"s_add_u32 s{sPFL}, s{sT1}, 2048")
    a(f"s_mov_b32 s{sPFW}, 2048")
    a(f"s_branch L_{tag}_pfdone")
    a.label(f"L_{tag}_pfw")
    a("v_lshrrev_b32 v8, 5, v0")
    a("v_lshlrev_b32 v8, 6, v8")
    a("v_bfe_u32 v1, v0, 4, 1")
    a("v_add_u32 v8, v8, v1")
    a(f"v_mul_lo_u32 v8, v8, s{sWSTR}")
    a("v_and_b32 v1, 15, v0")
    a("v_lshl_add_u32 v8, v1, 7, v8")
    a(f"s_lshl_b32 s{sT2}, s{sPFW}, 6")
    a(f"s_add_u32 s{sT2}, s{sT2}, s{sidx}")
    a(f"s_lshl_b32 s{sT2}, s{sT2}, 1")
    a(f"s_mul_i32 s{sT2}, s{sT2}, s{sWSTR}")
    a(f"s_sub_u32 s{sT1}, s{sSEC}, 1")
    a(f"s_max_i32 s{sT1}, s{sT1}, 0")
    a(f"s_lshl_b32 s{sT1}, s{sT1}, 11")
    a(f"s_add_u32 s{sPFO}, s{sT2}, s{sT1}")
    a(f"s_lshl_b32 s{sPFS}, s{sWSTR}, 8")
    a(f"s_lshl_b32 s{sPFL}, s{sWSTR}, 10")
    a(f"s_mov_b32 s{sPFW}, s{sPFL}")
    a.label(f"L_{tag}_pfdone")


def gen_proj():
    g = G("proj")
    a = A()
    kernel_head(a, "proj_kernel")
    entry(a, "proj")
    a("s_waitcnt lgkmcnt(0)")
    ws_reloc(a)
    ticket_issue(a, "proj", 4)
    srd(a, SRD_WS, S_WS, WS_SIZE - (OPT["wsb"] << 20))
    def decode():
        proj_group(a, sG)
        a(f"s_lshr_b32 s{sT0}, s{sG}, 2")
        a(f"s_lshl_b32 s{sM0}, s{sT0}, 10")
        a(f"s_lshl_b32 s{sT0}, s{sMT}, 8")
        a(f"s_add_u32 s{sM0}, s{sM0}, s{sT0}")

    TKT = 2 * g.SLOT + g.XB
    a(f"s_cmp_lt_u32 s{sWAVE}, 4")
    a("s_cbranch_scc1 L_proj_compute")
    vX = list(range(16, 24))
    vW = list(range(24, 28))
    a("v_lshrrev_b32 v1, 3, v0")
    a("v_lshlrev_b32 v1, 11, v1")
    a("v_lshrrev_b32 v10, 4, v0")
    a("v_and_b32 v7, 7, v0")
    a("v_xor_b32 v11, v10, v7")
    a("v_xor_b32 v12, 4, v11")
    a("v_lshl_add_u32 v11, v11, 4, v1")
    a("v_lshl_add_u32 v12, v12, 4, v1")
    for i in range(8):
        a(f"v_add_u32 v{vX[i]}, {i * 16384 - (i % 4) * 1024}, v{11 + (i & 1)}")
    a("v_lshrrev_b32 v6, 1, v0")
    a("v_lshlrev_b32 v6, 6, v6")
    a("v_and_b32 v7, 1, v0")
    a("v_lshl_add_u32 v6, v7, 4, v6")
    a.label("L_proj_lstart")
    decode()
    if OPT["pf"]:
        a(f"s_lshr_b32 s{sT0}, s{sHW}, 2")
        a(f"s_and_b32 s{sT0}, s{sT0}, 0x18")
        a(f"s_and_b32 s{sT3}, s{sHW}, 7")
        a(f"s_or_b32 s{sT0}, s{sT0}, s{sT3}")
        a(f"s_and_b32 s{sT3}, s{sWAVE}, 3")
        proj_pf_setup(a, "projA", sG, sT0, sT3, (sOBASE, sOJ))
        a(f"s_cmp_ge_u32 s{sWAVE}, 6")
        a("s_cbranch_scc1 L_proj_pkv")
        a(f"buffer_load_dword v9, v8, {sr(SRD_PF)}, s{sOBASE} offen{OPT['pfb']}")
        a("s_branch L_proj_nokv")
        a.label("L_proj_pkv")
        a(f"s_cmp_lg_u32 s{sSEC}, 0")
        a("s_cbranch_scc1 L_proj_nokv")
        a(f"s_lshl_b32 s{sT0}, s{sT0}, 11")
        a("v_and_b32 v1, 15, v0")
        a("v_lshlrev_b32 v1, 7, v1")
        a(f"s_cmp_eq_u32 s{sWAVE}, 6")
        srd_sel(a, SRD_WK, 20, 22, 0x10000)
        a(f"buffer_load_dword v9, v1, {sr(SRD_WK)}, s{sT0} offen{OPT['pfb']}")
        a.label("L_proj_nokv")
    a(f"s_add_u32 s{sT0}, s{sWAVE}, s{sHW}" if OPT["lrot"] else f"s_mov_b32 s{sT0}, s{sWAVE}")
    a(f"s_and_b32 s{sT0}, s{sT0}, 3")
    a(f"s_lshl_b32 s{sT1}, s{sT0}, 6")
    a(f"s_add_u32 s{sT1}, s{sT1}, s{sM0}")
    a(f"s_lshl_b32 s{sXOFF}, s{sT1}, 11")
    a(f"s_lshl_b32 s{sK}, s{sG}, 1" if OPT["rot"] else f"s_mov_b32 s{sK}, 0")
    a(f"s_lshl_b32 s{sT1}, s{sK}, 7")
    a(f"s_add_u32 s{sXOFF}, s{sXOFF}, s{sT1}")
    a(f"s_lshl_b32 s{sSLOT}, s{sT0}, 13")
    a(f"s_lshl_b32 s{sT3}, s{sT0}, 12")
    a(f"s_add_u32 s{sT3}, s{sT3}, {g.XB}")

    def mid():
        ticket_end(a, "proj", 4, TKT)
        a(f"v_mul_lo_u32 v1, v10, s{sWSTR}")
        a("v_lshlrev_b32 v3, 2, v10")
        a("v_and_b32 v7, 15, v0")
        a("v_xor_b32 v3, v3, v7")
        a(f"v_lshl_add_u32 v{vW[0]}, v3, 4, v1")
        a(f"s_lshl_b32 s{sT1}, s{sWSTR}, 2")
        a(f"s_sub_u32 s{sT1}, s{sT1}, 1024")
        for i in range(1, 4):
            a(f"v_add_u32 v{vW[i]}, s{sT1}, v{vW[i - 1]}")
        a(f"s_sub_u32 s{sWOFF}, s{sSEC}, 1")
        a(f"s_max_i32 s{sWOFF}, s{sWOFF}, 0")
        a(f"s_lshl_b32 s{sWOFF}, s{sWOFF}, 11")
        a(f"s_mul_i32 s{sT1}, s{sT0}, s{sWSTR}")
        a(f"s_lshl_b32 s{sT1}, s{sT1}, 4")
        a(f"s_add_u32 s{sWOFF}, s{sWOFF}, s{sT1}")
        a(f"s_lshl_b32 s{sWSTG}, s{sWSTR}, 6")
        a(f"s_mul_i32 s{sT1}, s{sK}, s{sWSTG}")
        a(f"s_add_u32 s{sWOFF}, s{sWOFF}, s{sT1}")
        ticket_wait(a, "proj", TKT, "L_proj_lredo")
        stamp_mid(a, 2)
        a(f"s_lshl_b32 s{sT1}, s{sNT}, 8")
        a(f"s_add_u32 s{sWOFF}, s{sWOFF}, s{sT1}")
        a(f"s_cmp_ge_u32 s{sNT}, 4")
        srd_sel(a, SRD_WK, 22, 20, 0x10000)
        a(f"s_bfe_u32 s{sT1}, s{sNT}, 0x10001")
        a(f"s_lshl_b32 s{sT1}, s{sT1}, 5")
        a(f"s_lshl_b32 s{sEXO}, s{sT0}, 11")
        a(f"s_add_u32 s{sEXO}, s{sEXO}, s{sT1}")
        a(f"s_lshl_b32 s{sT1}, s{sK}, 12")
        a(f"s_add_u32 s{sEXO}, s{sEXO}, s{sT1}")
        a(f"s_mul_i32 s{sEXS}, s{sT0}, {4096 - 1024}")
        a(f"s_sub_u32 s{sEXS}, 16384, s{sEXS}")
        a(f"s_cmp_lt_u32 s{sT0}, 2")
        a(f"s_cselect_b32 s{sCOL0}, 1, 0")
        a(f"s_cmp_eq_u32 s{sSEC}, 0")
        a(f"s_cselect_b32 s{sCOL0}, s{sCOL0}, 0")

    def after_bar0():
        ticket_notes(a, "proj", 4)
        if OPT["pf"]:
            a(f"s_lshr_b32 s{sOI}, s2, 3")
            a(f"s_and_b32 s{sT0}, s{sWAVE}, 3")
            proj_pf_setup(a, "projB", sG, sOI, sT0)
            if OPT["p0"] != 2:
                pf_adv(a)

    g.mid, g.after_bar0 = mid, after_bar0
    gemm_loader(a, g, "proj", vX, vW)
    a.label("L_proj_compute")
    a(f"s_lshr_b32 s{sT0}, s{sWAVE}, 1")
    a(f"s_and_b32 s{sT1}, s{sWAVE}, 1")
    a("v_and_b32 v1, 31, v0")
    a("v_lshlrev_b32 v1, 7, v1")
    a(f"s_lshl_b32 s{sT2}, s{sT0}, 14")
    a(f"v_add_u32 v1, s{sT2}, v1")
    a("v_bfe_u32 v2, v0, 1, 3")
    a("v_lshrrev_b32 v3, 5, v0")
    for t in range(4):
        a(f"v_add_u32 v14, {2 * t}, v3")
        a("v_xor_b32 v14, v14, v2")
        a(f"v_lshl_add_u32 v{g.vXA + t}, v14, 4, v1")
    a("v_bfe_u32 v2, v0, 2, 2")
    a("v_lshl_add_u32 v1, v3, 3, v2")
    a("v_lshlrev_b32 v1, 8, v1")
    a("v_bfe_u32 v14, v0, 4, 1")
    a("v_lshl_add_u32 v1, v14, 5, v1")
    a("v_and_b32 v14, 3, v0")
    a("v_lshl_add_u32 v1, v14, 3, v1")
    a(f"v_add_u32 v1, {g.XB}, v1")
    a(f"s_lshl_b32 s{sT2}, s{sT1}, 1")
    for j in range(2):
        a(f"s_add_u32 s{sT3}, s{sT2}, {j}")
        a(f"v_xor_b32 v14, s{sT3}, v2")
        a(f"v_lshl_add_u32 v{g.vWA + j}, v14, 6, v1")
    a(f"v_lshlrev_b32 v{g.vST}, 4, v0")
    a("v_and_b32 v1, 15, v0")
    a("v_lshlrev_b32 v1, 7, v1")
    a(f"s_lshl_b32 s{sT2}, s{sWAVE}, 12")
    a(f"v_add_u32 v1, s{sT2}, v1")
    a("v_bfe_u32 v2, v0, 1, 3")
    a("v_lshrrev_b32 v3, 4, v0")
    for e in range(2):
        a(f"v_add_u32 v14, {4 * e}, v3")
        a("v_xor_b32 v14, v14, v2")
        a(f"v_lshl_add_u32 v{g.vEXX + e}, v14, 4, v1")
    a("v_bfe_u32 v2, v0, 2, 2")
    a("v_lshl_add_u32 v1, v3, 3, v2")
    a("v_lshlrev_b32 v1, 5, v1")
    a("v_and_b32 v14, 3, v0")
    a("v_lshl_add_u32 v1, v14, 3, v1")
    a(f"v_add_u32 v{g.vEXW}, {g.XB + 16384}, v1")
    for r in range(g.nacc):
        a(f"v_mov_b32 v{g.ACC + r}, 0")
    for r in range(8):
        a(f"v_mov_b32 v{g.EXACC + r}, 0")

    a.label("L_proj_cstart")
    ticket_wait(a, "proj", TKT, "L_proj_credo")
    stamp_mid(a, 2)
    decode()

    a(f"s_lshr_b32 s{sT0}, s{sWAVE}, 1")
    a(f"s_and_b32 s{sT1}, s{sWAVE}, 1")
    a(f"s_and_b32 s{sT2}, s{sNT}, 1")
    a(f"s_lshl_b32 s{sT2}, s{sT2}, 14")
    for e in range(2):
        a(f"v_add_u32 v{g.vEXX + e}, s{sT2}, v{g.vEXX + e}")
    a(f"s_lshl_b32 s{sT2}, s{sNT}, 2")
    a(f"s_lshl_b32 s{sT3}, s{sT1}, 1")
    a(f"s_add_u32 s{sT2}, s{sT2}, s{sT3}")
    a(f"s_lshr_b32 s{sT3}, s{sM0}, 5")
    a(f"s_lshl_b32 s{sOBASE}, s{sT0}, 2")
    a(f"s_add_u32 s{sT3}, s{sT3}, s{sOBASE}")
    a(f"s_cmp_le_u32 s{sSEC}, 1")
    csel(a, sOJ, 0x20000, 0x40000)
    csel(a, sOI, 2048, 4096)
    a(f"s_cselect_b32 s{sSCALE}, {f32bits(QSCALE):#x}, 1.0")
    a(f"s_mov_b32 s{sSCALE+1}, s{sSCALE}")
    a(f"s_mul_i32 s{sOBASE}, s{sT2}, s{sOJ}")
    a(f"s_mul_i32 s{sT3}, s{sT3}, s{sOI}")
    a(f"s_add_u32 s{sOBASE}, s{sOBASE}, s{sT3}")
    a(f"s_mov_b32 s{sT2}, {WS_QA:#x}")
    for sec, base in ((1, WS_QB), (2, WS_KVB), (3, WS_KVB + 2048)):
        a(f"s_cmp_eq_u32 s{sSEC}, {sec}")
        a(f"s_cmov_b32 s{sT2}, {base:#x}")
    a(f"s_add_u32 s{sOBASE}, s{sOBASE}, s{sT2}")
    a(f"s_cmp_eq_u32 s{sSEC}, 3")
    a("s_cbranch_scc1 L_proj_V")
    a(f"s_cmp_eq_u32 s{sSEC}, 0")
    a("s_cbranch_scc0 L_proj_QK")
    a(f"s_cmp_ge_u32 s{sNT}, 4")
    a("s_cbranch_scc1 L_proj_AV")

    st = OPT["st1"]

    def epi(scale):
        a("s_nop 7")
        a("s_nop 7")
        for i in range(g.NI):
            for j in range(g.NJ):
                c = g.acc(i, j)
                t = g.F[0] + ((i * g.NJ + j) & 1) * 8
                if scale:
                    for r in range(0, 16, 2):
                        a(f"v_pk_mul_f32 {vr(c + r, 2)}, {vr(c + r, 2)}, {sr(sSCALE, 2)}")
                for r in range(8):
                    a(f"v_cvt_pk_bf16_f32 v{t + r}, v{c + 2 * r}, v{c + 2 * r + 1}")
                a(f"s_mul_i32 s{sT0}, s{sOJ}, {j}")
                a(f"s_mul_i32 s{sT1}, s{sOI}, {i}")
                a(f"s_add_u32 s{sT0}, s{sT0}, s{sT1}")
                a(f"s_add_u32 s{sT0}, s{sT0}, s{sOBASE}")
                a(f"buffer_store_dwordx4 {vr(t, 4)}, v{g.vST}, {sr(SRD_WS)}, s{sT0} offen{st}")
                a(f"buffer_store_dwordx4 {vr(t + 4, 4)}, v{g.vST}, {sr(SRD_WS)}, s{sT0} offen offset:1024{st}")

    def epi_extra(part):
        a("v_and_b32 v1, 15, v0")
        a("v_lshlrev_b32 v1, 4, v1")
        a("v_bfe_u32 v2, v0, 4, 1")
        a("v_lshl_add_u32 v1, v2, 9, v1")
        a("v_lshrrev_b32 v2, 5, v0")
        a("v_lshl_add_u32 v1, v2, 3, v1")
        a(f"s_lshr_b32 s{sT0}, s{sM0}, 5")
        a(f"s_add_u32 s{sT0}, s{sT0}, s{sWAVE}")
        a(f"s_and_b32 s{sT1}, s{sNT}, 1")
        a(f"s_lshl_b32 s{sT1}, s{sT1}, 2")
        a(f"s_add_u32 s{sT0}, s{sT0}, s{sT1}")
        a(f"s_lshl_b32 s{sT0}, s{sT0}, 12")
        a(f"s_add_u32 s{sT0}, s{sT0}, {WS_KVA + (2048 if part == 'V' else 0):#x}")
        a(f"s_bfe_u32 s{sT1}, s{sNT}, 0x10001")
        a(f"s_lshl_b32 s{sT1}, s{sT1}, {10 if part == 'K' else 8}")
        a(f"s_add_u32 s{sT0}, s{sT0}, s{sT1}")
        for th in range(2):
            c = g.EXACC + 4 * th
            if part == "K":
                for r in range(0, 4, 2):
                    a(f"v_pk_mul_f32 {vr(c + r, 2)}, {vr(c + r, 2)}, {sr(sSCALE, 2)}")
            a(f"v_cvt_pk_bf16_f32 v{g.EXF + 2 * th}, v{c}, v{c + 1}")
            a(f"v_cvt_pk_bf16_f32 v{g.EXF + 2 * th + 1}, v{c + 2}, v{c + 3}")
            a(f"buffer_store_dwordx2 {vr(g.EXF + 2 * th, 2)}, v1, {sr(SRD_WS)}, s{sT0} offen offset:{th * (256 if part == 'K' else 1024)}{st}")

    for lbl, tag, swap, ex, scale in ((None, "proj_AK", False, "K", False), ("L_proj_AV", "proj_AV", False, "V", False),
                                      ("L_proj_QK", "proj_QK", False, None, True), ("L_proj_V", "proj_V", True, None, False)):
        if lbl:
            a.label(lbl)
        gemm_compute(a, g, tag, swap, ex)
        if ex:
            a("s_nop 7")
            epi_extra(ex)
        epi(scale)
        stamp_end(a, 0)
        a("s_endpgm")

    ticket_redo(a, "proj", "L_proj_credo", "L_proj_cstart")
    ticket_redo(a, "proj", "L_proj_lredo", "L_proj_lstart")
    a.label("L_proj_end")
    a("s_endpgm")
    return a.text(), kernel_desc("proj_kernel", g.nvgpr), g.lds, 512


def gen_outp():
    g = G("outp")
    a = A()
    kernel_head(a, "outp_kernel")
    entry(a, "outp")
    hint_load(a, "outp")
    stamp_mid(a, 2)
    hint_claim(a, "outp", 4)
    a(f"s_andn2_b32 s{sSEC}, 1, s2")
    a(f"s_bfe_u32 s{sT0}, s2, 0x20001")
    a(f"s_lshl_b32 s{sT0}, s{sT0}, 2")
    a(f"s_bfe_u32 s{sT1}, s2, 0x20003")
    a(f"s_add_u32 s{sM0}, s{sT0}, s{sT1}")
    a(f"s_lshr_b32 s{sNT}, s2, 5")
    a(f"s_cmp_lt_u32 s{sWAVE}, 4")
    a("s_cbranch_scc1 L_outp_compute")
    vX = list(range(20, 20 + g.XP))
    vW = list(range(24, 24 + g.WP))
    srd(a, SRD_X, S_WS, WS_SIZE - (OPT["wsb"] << 20))
    a(f"s_cmp_eq_u32 s{sSEC}, 0")
    srd_sel(a, SRD_W, 24, 30, 0x200000)
    csel(a, sXOFF, WS_OA, WS_OB)
    a(f"s_add_u32 s{sT0}, s{sWAVE}, s{sHW}" if OPT["lrot"] else f"s_mov_b32 s{sT0}, s{sWAVE}")
    a(f"s_and_b32 s{sT0}, s{sT0}, {g.NL - 1}")
    a("v_lshlrev_b32 v4, 4, v0")
    a("v_lshrrev_b32 v2, 4, v0")
    a("v_lshlrev_b32 v1, 11, v2")
    a("v_lshlrev_b32 v3, 2, v2")
    a("v_and_b32 v7, 15, v0")
    a("v_xor_b32 v3, v3, v7")
    a(f"v_lshl_add_u32 v{vW[0]}, v3, 4, v1")
    for i in range(1, g.WP):
        a(f"v_add_u32 v{vW[i]}, {i * (8192 - 1024)}, v{vW[0]}")
    a(f"s_lshl_b32 s{sT1}, s{sM0}, 18")
    a(f"s_add_u32 s{sXOFF}, s{sXOFF}, s{sT1}")
    a(f"s_mul_i32 s{sSLOT}, s{sT0}, {g.XP * 1024}")
    a(f"s_add_u32 s{sXOFF}, s{sXOFF}, s{sSLOT}")
    a(f"s_mul_i32 s{sWOFF}, s{sT0}, {g.WP * 8192}")
    a(f"s_lshl_b32 s{sT1}, s{sNT}, 8")
    a(f"s_add_u32 s{sWOFF}, s{sWOFF}, s{sT1}")
    a(f"s_mov_b32 s{sWSTG}, {64 * 2048}")
    a(f"s_mul_i32 s{sT3}, s{sT0}, {g.WP * 1024}")
    a(f"s_add_u32 s{sT3}, s{sT3}, {g.XB}")
    for i in range(g.XP):
        a(f"v_mov_b32 v{vX[i]}, v4")
    a(f"s_mov_b32 s{sEXO}, 16384")
    if OPT["swap3"]:
        a(f"s_bitcmp1_b32 s{sHW}, 2")
        a("s_cbranch_scc0 L_outp_noswap")
        for i in range(g.XP):
            a(f"v_swap_b32 v{vX[i]}, v{vW[i]}")
        for x, y in [(SRD_X + i, SRD_W + i) for i in range(3)] + [(sXOFF, sWOFF), (sEXO, sWSTG), (sSLOT, sT3)]:
            a(f"s_mov_b32 s{sT1}, s{x}")
            a(f"s_mov_b32 s{x}, s{y}")
            a(f"s_mov_b32 s{y}, s{sT1}")
        a.label("L_outp_noswap")
    gemm_loader(a, g, "outp", vX, vW)
    a.label("L_outp_compute")
    srd(a, SRD_OUT, S_OUT, 0x800000)
    a(f"s_lshr_b32 s{sT0}, s{sWAVE}, 1")
    a(f"s_and_b32 s{sT1}, s{sWAVE}, 1")
    a(f"s_lshl_b32 s{sT2}, s{sT0}, 13")
    a("v_lshlrev_b32 v1, 4, v0")
    a(f"v_add_u32 v{g.vXA}, s{sT2}, v1")
    a("v_lshrrev_b32 v3, 5, v0")
    a("v_bfe_u32 v2, v0, 2, 2")
    a("v_lshl_add_u32 v1, v3, 2, v2")
    a("v_lshlrev_b32 v1, 8, v1")
    a("v_and_b32 v14, 1, v0")
    a("v_lshl_add_u32 v1, v14, 5, v1")
    a("v_bfe_u32 v14, v0, 4, 1")
    a("v_lshl_add_u32 v1, v14, 4, v1")
    a("v_bfe_u32 v14, v0, 1, 1")
    a("v_lshl_add_u32 v1, v14, 3, v1")
    a(f"v_add_u32 v1, {g.XB}, v1")
    a(f"s_lshl_b32 s{sT2}, s{sT1}, 1")
    for j in range(2):
        a(f"s_add_u32 s{sT3}, s{sT2}, {j}")
        a(f"v_xor_b32 v14, s{sT3}, v2")
        a(f"v_lshl_add_u32 v{g.vWA + j}, v14, 6, v1")
    a(f"s_lshl_b32 s{sT2}, s{sM0}, 1")
    a(f"s_add_u32 s{sT2}, s{sT2}, s{sT0}")
    a(f"s_lshl_b32 s{sOBASE}, s{sT2}, 18")
    a(f"s_lshl_b32 s{sT2}, s{sSEC}, 11")
    a(f"s_add_u32 s{sOBASE}, s{sOBASE}, s{sT2}")
    a(f"s_lshl_b32 s{sT2}, s{sNT}, 8")
    a(f"s_add_u32 s{sOBASE}, s{sOBASE}, s{sT2}")
    a(f"s_lshl_b32 s{sT2}, s{sT1}, 7")
    a(f"s_add_u32 s{sOBASE}, s{sOBASE}, s{sT2}")
    vWR, vRD = 10, 11
    if OPT["epi3"]:
        a("v_and_b32 v1, 31, v0")
        a("v_lshlrev_b32 v2, 7, v1")
        a(f"s_lshl_b32 s{sT2}, s{sWAVE}, 13")
        a(f"v_add_u32 v2, s{sT2}, v2")
        a("v_and_b32 v1, 7, v0")
        a("v_lshlrev_b32 v14, 1, v3")
        a("v_xor_b32 v14, v14, v1")
        a(f"v_lshl_add_u32 v{vWR}, v14, 4, v2")
        a("v_lshrrev_b32 v2, 3, v0")
        a("v_xor_b32 v14, v2, v1")
        a("v_lshlrev_b32 v14, 4, v14")
        a("v_lshl_add_u32 v14, v2, 7, v14")
        a(f"v_add_u32 v{vRD}, s{sT2}, v14")
        a("v_lshlrev_b32 v2, 12, v2")
        a(f"v_lshl_add_u32 v{g.vST}, v1, 4, v2")
    else:
        a("v_and_b32 v1, 31, v0")
        a("v_lshlrev_b32 v1, 12, v1")
        a(f"v_lshl_add_u32 v{g.vST}, v3, 5, v1")
    for r in range(g.nacc):
        a(f"v_mov_b32 v{g.ACC + r}, 0")
    gemm_compute(a, g, "outp", False, None, check="outp")
    a("s_nop 7")
    a("s_nop 7")
    if OPT["epi3"]:
        for j in range(2):
            for e in range(2):
                a(f"v_xor_b32 v{4 + 2 * j + e}, {(4 * j + e) * 16}, v{vWR}")
        for i in range(g.NI):
            for j in range(g.NJ):
                c = g.acc(i, j)
                t = g.F[0] + (i * g.NJ + j) * 8
                for r in range(8):
                    a(f"v_cvt_pk_bf16_f32 v{t + r}, v{c + 2 * r}, v{c + 2 * r + 1}")
                for e in range(2):
                    a(f"ds_write_b128 v{4 + 2 * j + e}, {vr(t + 4 * e, 4)} offset:{4096 * i}")
        a("s_waitcnt lgkmcnt(0)")
        for k in range(8):
            a(f"ds_read_b128 {vr(g.ACC + 4 * k, 4)}, v{vRD} offset:{1024 * k}")
        for k in range(8):
            a(f"s_add_u32 s{sT0}, s{sOBASE}, {k * 8 * 4096}")
            a(f"s_waitcnt lgkmcnt({7 - k})")
            a(f"buffer_store_dwordx4 {vr(g.ACC + 4 * k, 4)}, v{g.vST}, {sr(SRD_OUT)}, s{sT0} offen{OPT['st3']}")
    else:
        for i in range(g.NI):
            for j in range(g.NJ):
                c = g.acc(i, j)
                t = g.F[0] + ((i * g.NJ + j) & 1) * 8
                for r in range(8):
                    a(f"v_cvt_pk_bf16_f32 v{t + r}, v{c + 2 * r}, v{c + 2 * r + 1}")
                a(f"s_add_u32 s{sT0}, s{sOBASE}, {i * 32 * 4096}")
                a(f"buffer_store_dwordx4 {vr(t, 4)}, v{g.vST}, {sr(SRD_OUT)}, s{sT0} offen offset:{64 * j}")
                a(f"buffer_store_dwordx4 {vr(t + 4, 4)}, v{g.vST}, {sr(SRD_OUT)}, s{sT0} offen offset:{64 * j + 16}")
    stamp_end(a, 2)
    a("s_endpgm")
    hint_slow(a, "outp")
    a.label("L_outp_end")
    a("s_endpgm")
    return a.text(), kernel_desc("outp_kernel", g.nvgpr), g.lds, 256 + 64 * g.NL


def gen_attn():
    a = A()
    kernel_head(a, "attn_kernel")
    vL16, vK, vKN, IDX = 1, 2, 3, 4
    T0, T1, T2, T3 = 5, 6, 7, 8
    vPF, vPFD, vHD = 9, 10, 11
    ONES = 12
    Q, P, KF, VF, L = [16, 24], [32, 40], [48, 56], [64, 72], [80, 84]
    S, NEG, O = [96, 112], [128, 144], [160, 176]
    NV = 192
    SRD, SRDW = SRD_WS, 36
    sQB, sKV, sOB, sST, sSL, sDM, sGO, sPF, sPFC, sFIRST = 61, 62, 63, 64, 65, 66, 67, 68, 69, 70
    t0, t1, t2, t3 = sT0, sT1, sT2, sT3
    TILES = 8
    STG = TILES * 4096
    NSLOT = 3
    NSTG = 64 // TILES
    FLAG = NSLOT * STG
    lds = FLAG + 64

    entry(a, "attn")
    a(f"v_lshlrev_b32 v{vL16}, 4, v0")
    hint_load(a, "attn")
    stamp_mid(a, 2)
    hint_claim(a, "attn", 0)
    a(f"s_lshr_b32 s{t0}, s2, 3")
    a(f"s_bfe_u32 s{t2}, s2, 0x20001")
    a(f"s_lshl_b32 s{t2}, s{t2}, 4")
    a(f"s_lshl_b32 s{t3}, s{sWAVE}, 1")
    a(f"s_add_u32 s{t2}, s{t2}, s{t3}")
    a(f"s_lshl_b32 s{sKV}, s{t0}, 18")
    a(f"s_add_u32 s{sKV}, s{sKV}, {WS_KVB:#x}")
    a(f"s_lshl_b32 s{sQB}, s{t0}, 17")
    a(f"s_lshl_b32 s{t3}, s{t2}, 11")
    a(f"s_add_u32 s{sQB}, s{sQB}, s{t3}")
    a("s_bitcmp1_b32 s2, 0")
    a(f"s_cmov_b32 s{sKV}, {WS_KVA:#x}")
    a(f"s_cselect_b32 s{t3}, {WS_QA:#x}, {WS_QB:#x}")
    a(f"s_or_b32 s{sQB}, s{sQB}, s{t3}")

    def qloads():
        for q in range(2):
            for c in range(2):
                a(f"buffer_load_dwordx4 {vr(Q[q] + 4 * c, 4)}, v{vL16}, {sr(SRD)}, s{sQB} offen offset:{2048 * q + 1024 * c}")

    stamp_mid(a, 3)
    a(f"s_and_b32 s{t3}, s{sWAVE}, 3")
    a(f"s_lshl_b32 s{t3}, s{t3}, 11")
    a(f"s_add_u32 s{t1}, s{sKV}, s{t3}")

    def grp_dma(grp):
        a(f"s_add_u32 m0, s{t3}, {8192 * grp}")
        a(f"s_add_u32 s{sGO}, s{t1}, {8192 * grp}")
        for c in range(2):
            a(f"buffer_load_dwordx4 v{vL16}, {sr(SRD)}, s{sGO} offen offset:{1024 * c} lds")

    a(f"s_cmp_ge_u32 s{sWAVE}, 4")
    a("s_cbranch_scc1 L_attn_young")
    grp_dma(0)
    qloads()
    a("s_branch L_attn_issued")
    a.label("L_attn_young")
    grp_dma(1)
    if OPT["k2s"]:
        grp_dma(2)
    qloads()
    if not OPT["k2s"]:
        grp_dma(2)
    grp_dma(3)
    a.label("L_attn_issued")
    stamp_mid(a, 4)
    a(f"s_lshr_b32 s{t3}, s{t2}, 2")
    a(f"s_lshl_b32 s{sOB}, s{t3}, 18")
    a(f"s_and_b32 s{t3}, s{t2}, 3")
    a(f"s_lshl_b32 s{t3}, s{t3}, 12")
    a(f"s_add_u32 s{sOB}, s{sOB}, s{t3}")
    a(f"s_lshr_b32 s{t3}, s{t0}, 1")
    a(f"s_lshl_b32 s{t3}, s{t3}, 14")
    a(f"s_add_u32 s{sOB}, s{sOB}, s{t3}")
    a(f"s_and_b32 s{t3}, s{t0}, 1")
    a(f"s_lshl_b32 s{t3}, s{t3}, 11")
    a(f"s_add_u32 s{sOB}, s{sOB}, s{t3}")
    a("s_bitcmp1_b32 s2, 0")
    csel(a, t3, WS_OA, WS_OB)
    srd_sel(a, SRDW, 24, 30, 0x200000)
    a(f"s_add_u32 s{sOB}, s{sOB}, s{t3}")
    a(f"s_lshl_b32 s{sPF}, s{t0}, 3")
    a(f"s_add_u32 s{sPF}, s{sPF}, s{sWAVE}")
    a(f"s_lshl_b32 s{sPF}, s{sPF}, 13")
    a(f"v_lshlrev_b32 v{vPF}, 7, v0")
    a(f"s_lshl_b32 s{sDM}, s{sWAVE}, 12")
    a(f"s_add_u32 s{sDM}, s{sDM}, {STG}")
    a(f"s_add_u32 s{sGO}, s{sKV}, s{sDM}")
    a(f"v_and_b32 v{T0}, 2, v0")
    a(f"v_bfe_u32 v{T1}, v0, 2, 1")
    a(f"v_or_b32 v{T2}, v{T0}, v{T1}")
    a(f"v_xor_b32 v{T1}, 1, v{T1}")
    a(f"v_or_b32 v{T3}, v{T0}, v{T1}")
    a(f"v_mov_b32 v{T0}, 0x3f803f80")
    a(f"v_cmp_eq_u32 vcc, 0, v{T2}")
    a("s_nop 1")
    a(f"v_cndmask_b32 v{ONES}, 0, v{T0}, vcc")
    a(f"v_cndmask_b32 v{ONES + 1}, 0, v{T0}, vcc")
    a(f"v_cmp_eq_u32 vcc, 0, v{T3}")
    a("s_nop 1")
    a(f"v_cndmask_b32 v{ONES + 2}, 0, v{T0}, vcc")
    a(f"v_cndmask_b32 v{ONES + 3}, 0, v{T0}, vcc")
    a(f"v_and_b32 v{T0}, 1, v0")
    a(f"v_mov_b32 v{T1}, 0x44444444")
    a(f"v_mov_b32 v{T2}, 0xeeeeeeee")
    a(f"v_cmp_eq_u32 vcc, 1, v{T0}")
    a("s_nop 1")
    a(f"v_cndmask_b32 v{IDX}, v{T1}, v{T2}, vcc")
    for q in range(2):
        for r in range(16):
            a(f"v_mov_b32 v{O[q] + r}, 0")
        for r in range(4):
            a(f"v_mov_b32 v{L[q] + r}, 0")
    for r in range(8):
        a(f"v_mov_b32 v{P[1] + r}, 0")
        a(f"v_mov_b32 v{VF[1] + r}, 0")
    a(f"v_mov_b32 v{vK}, v{vL16}")
    a(f"v_add_u32 v{vKN}, {STG}, v{vL16}")

    def kread(kt):
        reg, k = (vK, kt) if kt < TILES else (vKN, kt - TILES)
        return [f"ds_read_b128 {vr(KF[kt & 1] + 4 * c, 4)}, v{reg} offset:{4096 * k + 1024 * c}" for c in range(2)]

    def vread(kt):
        reg, k = (vK, kt) if kt < TILES else (vKN, kt - TILES)
        return [f"ds_read_b128 {vr(VF[kt & 1] + 4 * c, 4)}, v{reg} offset:{4096 * k + 2048 + 1024 * c}" for c in range(2)]

    dma_ins = [f"buffer_load_dwordx4 v{vL16}, {sr(SRD)}, s{sGO} offen offset:{1024 * c} lds" for c in range(4)]

    def dma_adv():
        a(f"s_add_u32 s{sGO}, s{sGO}, {STG}")
        a(f"s_add_u32 s{sDM}, s{sDM}, {STG}")
        a(f"s_cmp_ge_u32 s{sDM}, {NSLOT * STG}")
        a(f"s_cselect_b32 s{t0}, {NSLOT * STG}, 0")
        a(f"s_sub_u32 s{sDM}, s{sDM}, s{t0}")

    a(f"s_cmp_lt_u32 s{sWAVE}, 4")
    a(f"s_cselect_b32 s{sFIRST}, 1, 2")
    a("s_cbranch_scc0 L_attn_b0y")
    a("s_waitcnt vmcnt(4)")
    a("s_barrier")
    a.many(kread(0) + vread(0) + kread(1))
    stamp_mid(a, 0)
    a("s_waitcnt vmcnt(0)")
    a("s_branch L_attn_b0")
    a.label("L_attn_b0y")
    a("s_barrier")
    a("s_waitcnt vmcnt(8)")
    a("s_barrier")
    if OPT["k2s"]:
        a("s_waitcnt vmcnt(6)")
        a("s_barrier")
    a.many(kread(0) + vread(0) + kread(1))
    stamp_mid(a, 0)
    a(f"s_waitcnt vmcnt({2 if OPT['k2s'] else 4})")
    a.label("L_attn_b0")
    stamp_mid(a, 5)
    a(f"s_mov_b32 m0, s{sDM}")
    a("s_waitcnt lgkmcnt(4)")
    for q in range(2):
        a(f"{MF32} {vr(S[q], 16)}, {vr(KF[0], 4)}, {vr(Q[q], 4)}, 0")
        a(dma_ins[2 * q])
        a(f"{MF32} {vr(S[q], 16)}, {vr(KF[0] + 4, 4)}, {vr(Q[q] + 4, 4)}, {vr(S[q], 16)}")
        a(dma_ins[2 * q + 1])
    dma_adv()
    a(f"s_mov_b32 s{sST}, 0")
    a(f"s_mov_b32 s{sSL}, {STG}")
    a("s_nop 5")
    for q in range(2):
        s, t = S[q], T0 + 2 * q
        a(f"v_max3_f32 v{t}, v{s}, v{s + 1}, v{s + 2}")
        for r in range(3, 15, 2):
            a(f"v_max3_f32 v{t}, v{s + r}, v{s + r + 1}, v{t}")
        a(f"v_max_f32 v{t}, v{s + 15}, v{t}")
        a(f"v_mov_b32 v{t + 1}, v{t}")
    a("s_nop 1")
    for q in range(2):
        a(f"v_permlane32_swap_b32 v{T0 + 2 * q}, v{T0 + 2 * q + 1}")
    a("s_nop 1")
    for q in (1, 0):
        t = T0 + 2 * q
        a(f"v_max_f32 v{t}, v{t}, v{t + 1}")
        for r in range(16):
            a(f"v_sub_f32 v{NEG[q] + r}, 0, v{t}")
    for r in range(16):
        a(f"v_sub_f32 v{S[0] + r}, v{S[0] + r}, v{T0}")

    def step(u, fill=()):
        q, kt = u & 1, u >> 1
        qp, ktn, ktp = q ^ 1, (u + 1) >> 1, (u - 1) >> 1
        cur, nxt = S[q], S[qp]
        rd = vread(kt + 1) if q == 0 else kread(kt + 2)
        d = dict(
            QK0=f"{MF32} {vr(nxt, 16)}, {vr(KF[ktn & 1], 4)}, {vr(Q[qp], 4)}, {vr(NEG[qp], 16)}",
            QK1=f"{MF32} {vr(nxt, 16)}, {vr(KF[ktn & 1] + 4, 4)}, {vr(Q[qp] + 4, 4)}, {vr(nxt, 16)}",
            PV0=f"{MF32} {vr(O[q], 16)}, {vr(VF[kt & 1], 4)}, {vr(P[q], 4)}, {vr(O[q], 16)}",
            PV1=f"{MF32} {vr(O[qp], 16)}, {vr(VF[ktp & 1] + 4, 4)}, {vr(P[qp] + 4, 4)}, {vr(O[qp], 16)}",
            SP=f"v_smfmac_f32_16x16x64_bf16 {vr(L[qp], 4)}, {vr(ONES, 4)}, {vr(P[qp], 8)}, v{IDX}",
            R0=rd[0], R1=rd[1],
            Wq="s_waitcnt lgkmcnt(2)" if q == 1 else None, Wp="s_waitcnt lgkmcnt(4)" if q == 0 else None)
        for i in range(16):
            d[f"E{i}"] = f"v_exp_f32 v{cur + i}, v{cur + i}"
        for i in range(8):
            d[f"C{i}"] = f"v_cvt_pk_bf16_f32 v{P[q] + i}, v{cur + 2 * i}, v{cur + 2 * i + 1}"
        fill = list(fill) + [None] * 2
        d["F0"], d["F1"] = fill[0], fill[1]
        o = "E0 E1 PV1 Wq E2 E3 E4 QK0 F0 E5 E6 E7 QK1 R0 C0 E8 C1 E9 SP R1 C2 E10 C3 E11 E12 Wp PV0 F1 E13 C4 E14 C5 E15 C6 C7"
        for t in o.split():
            x = d[t]
            if x:
                a.many(x if isinstance(x, list) else [x])

    if OPT["lstamp"]:
        stamp_mid(a, 2)
    UB = 2 * TILES - 3
    a.raw(".p2align 3")
    a.label("L_attn_loop")
    a(f"s_cmp_eq_u32 s{sFIRST}, 1")
    for u in range(2 * TILES):
        fill = ()
        if u in (1, 5, 9):
            a(f"s_cbranch_scc1 L_attn_first{u}")
            a.label(f"L_attn_back{u}")
            if u == (5 if OPT["k2s"] else 1):
                a(f"s_cmp_lg_u32 s{sFIRST}, 0")
        if u == UB:
            a("s_waitcnt vmcnt(0)")
            a("s_barrier")
            a(f"s_mov_b32 m0, s{sDM}")
            fill = (dma_ins[0], dma_ins[1])
        if u == UB + 1:
            fill = (dma_ins[2], dma_ins[3])
        if u == UB + 2:
            fill = ([f"s_cmp_eq_u32 s{sST}, {NSTG - 2}", f"s_cselect_b32 s{sPFC}, s{sPF}, 0x7ff00000",
                     f"buffer_load_dword v{vPFD}, v{vPF}, {sr(SRDW)}, s{sPFC} offen"],
                    [f"s_add_u32 s{sGO}, s{sGO}, {STG}", f"s_add_u32 s{sDM}, s{sDM}, {STG}"])
        if (u - UB) % 4 == 0:
            a(f"s_setprio {3 - ((u - UB) % (2 * TILES)) // 4}")
        step(u, fill)
    a(f"s_cmp_ge_u32 s{sDM}, {NSLOT * STG}")
    a(f"s_cselect_b32 s{t0}, {NSLOT * STG}, 0")
    a(f"s_sub_u32 s{sDM}, s{sDM}, s{t0}")
    a(f"s_mov_b32 s{sFIRST}, 0")
    a(f"v_mov_b32 v{vK}, v{vKN}")
    a(f"s_add_u32 s{sSL}, s{sSL}, {STG}")
    a(f"s_cmp_ge_u32 s{sSL}, {NSLOT * STG}")
    a(f"s_cselect_b32 s{sSL}, 0, s{sSL}")
    a(f"v_add_u32 v{vKN}, s{sSL}, v{vL16}")
    if OPT["lstamp"] and STAMP:
        for k_, n_ in ((0, 3), (1, 4), (6, 5)):
            a(f"s_cmp_lg_u32 s{sST}, {k_}")
            a(f"s_cbranch_scc1 L_attn_ls{k_}")
            stamp_mid(a, n_)
            a.label(f"L_attn_ls{k_}")
    a(f"s_add_u32 s{sST}, s{sST}, 1")
    a(f"s_cmp_lt_u32 s{sST}, {NSTG}")
    a("s_cbranch_scc1 L_attn_loop")
    stamp_mid(a, 1)
    tbl_offset(a, t0)
    a(f"v_mov_b32 v{T2}, 0")
    a(f"buffer_load_dword v{vPFD}, v{T2}, {sr(SRD)}, s{t0} offen")
    a(f"{MF32} {vr(O[1], 16)}, {vr(VF[1] + 4, 4)}, {vr(P[1] + 4, 4)}, {vr(O[1], 16)}")
    a(f"v_smfmac_f32_16x16x64_bf16 {vr(L[1], 4)}, {vr(ONES, 4)}, {vr(P[1], 8)}, v{IDX}")
    a(f"v_mov_b32 v{T2}, 0")
    for q in range(2):
        for r in range(16):
            a(f"v_fmac_f32 v{T2}, 0, v{O[q] + r}")
        a(f"v_add_f32 v{L[q]}, v{L[q]}, v{L[q] + 1}")
    a(f"v_max_f32 v{T3}, v{L[0]}, v{L[1]}")
    a(f"v_fmac_f32 v{T2}, 0, v{L[0]}")
    a(f"v_fmac_f32 v{T2}, 0, v{L[1]}")
    a(f"v_add_f32 v{T3}, v{T3}, v{T2}")
    a(f"v_mov_b32 v{T2}, {f32bits(2.0 ** 40):#x}")
    a(f"v_cmp_nle_f32 vcc, v{T3}, v{T2}")
    a("s_waitcnt lgkmcnt(0)")
    a("s_nop 3")
    a("s_cbranch_vccnz L_attn_slow")

    def finish(q, lreg):
        a(f"v_rcp_f32 v{T0}, v{lreg}")
        a("s_nop 0")
        for r in range(16):
            a(f"v_mul_f32 v{O[q] + r}, v{O[q] + r}, v{T0}")
        for r in range(8):
            a(f"v_cvt_pk_bf16_f32 v{P[q] + r}, v{O[q] + 2 * r}, v{O[q] + 2 * r + 1}")
        a(f"s_add_u32 s{t0}, s{sOB}, {4096 * q}")
        for c in range(2):
            a(f"buffer_store_dwordx4 {vr(P[q] + 4 * c, 4)}, v{vL16}, {sr(SRD)}, s{t0} offen offset:{1024 * c}{OPT['st2']}")

    for q in range(2):
        finish(q, L[q])
    stamp_end(a, 1)
    a("s_endpgm")

    for u in (1, 5, 9):
        a.label(f"L_attn_first{u}")
        if u > 1:
            a(f"s_waitcnt vmcnt({6 if u == 5 else 4})")
        if u == 9:
            a(f"s_cmp_lg_u32 s{sWAVE}, 0")
            a("s_cbranch_scc1 L_attn_nov")
            hint_verdict(a, "attn", T0, vHD, FLAG)
            a.label("L_attn_nov")
        a("s_barrier")
        if u == 9:
            hint_read(a, T0, vHD, FLAG)
            a("s_waitcnt lgkmcnt(0)")
            hint_check(a, "attn", vHD)
        a(f"s_branch L_attn_back{u}")

    a.label("L_attn_slow")
    M, LS, AL = 88, 89, 90
    for q in range(2):
        s = S[0]
        a(f"v_mov_b32 v{M}, 0xff7fffff")
        a(f"v_mov_b32 v{LS}, 0")
        for r in range(16):
            a(f"v_mov_b32 v{O[q] + r}, 0")
        a(f"s_mov_b32 s{sGO}, s{sKV}")
        a(f"s_mov_b32 s{sST}, 0")
        a.label(f"L_attn_slow_{q}")
        for c in range(2):
            a(f"buffer_load_dwordx4 {vr(KF[0] + 4 * c, 4)}, v{vL16}, {sr(SRD)}, s{sGO} offen offset:{1024 * c}")
        for c in range(2):
            a(f"buffer_load_dwordx4 {vr(VF[0] + 4 * c, 4)}, v{vL16}, {sr(SRD)}, s{sGO} offen offset:{2048 + 1024 * c}")
        a("s_waitcnt vmcnt(0)")
        a(f"{MF32} {vr(s, 16)}, {vr(KF[0], 4)}, {vr(Q[q], 4)}, 0")
        a(f"{MF32} {vr(s, 16)}, {vr(KF[0] + 4, 4)}, {vr(Q[q] + 4, 4)}, {vr(s, 16)}")
        a("s_nop 7")
        a("s_nop 7")
        a(f"v_max3_f32 v{T0}, v{s}, v{s + 1}, v{M}")
        for r in range(2, 16, 2):
            a(f"v_max3_f32 v{T0}, v{s + r}, v{s + r + 1}, v{T0}")
        a(f"v_mov_b32 v{T1}, v{T0}")
        a("s_nop 1")
        a(f"v_permlane32_swap_b32 v{T0}, v{T1}")
        a("s_nop 1")
        a(f"v_max_f32 v{T0}, v{T0}, v{T1}")
        a(f"v_sub_f32 v{AL}, v{M}, v{T0}")
        a(f"v_exp_f32 v{AL}, v{AL}")
        a(f"v_mov_b32 v{M}, v{T0}")
        for r in range(16):
            a(f"v_sub_f32 v{s + r}, v{s + r}, v{T0}")
        for r in range(16):
            a(f"v_exp_f32 v{s + r}, v{s + r}")
        a(f"v_mul_f32 v{LS}, v{LS}, v{AL}")
        for r in range(16):
            a(f"v_mul_f32 v{O[q] + r}, v{O[q] + r}, v{AL}")
        for r in range(16):
            a(f"v_add_f32 v{LS}, v{LS}, v{s + r}")
        for r in range(8):
            a(f"v_cvt_pk_bf16_f32 v{P[0] + r}, v{s + 2 * r}, v{s + 2 * r + 1}")
        a("s_nop 1")
        a(f"{MF32} {vr(O[q], 16)}, {vr(VF[0], 4)}, {vr(P[0], 4)}, {vr(O[q], 16)}")
        a(f"{MF32} {vr(O[q], 16)}, {vr(VF[0] + 4, 4)}, {vr(P[0] + 4, 4)}, {vr(O[q], 16)}")
        a("s_nop 7")
        a("s_nop 7")
        a(f"s_add_u32 s{sGO}, s{sGO}, 4096")
        a(f"s_add_u32 s{sST}, s{sST}, 1")
        a(f"s_cmp_lt_u32 s{sST}, 64")
        a(f"s_cbranch_scc1 L_attn_slow_{q}")
        a(f"v_mov_b32 v{T1}, v{LS}")
        a("s_nop 1")
        a(f"v_permlane32_swap_b32 v{LS}, v{T1}")
        a("s_nop 1")
        a(f"v_add_f32 v{LS}, v{LS}, v{T1}")
        finish(q, LS)
        a("s_waitcnt vmcnt(0)")
    stamp_end(a, 1)
    a("s_endpgm")
    hint_slow(a, "attn")
    a.label("L_attn_end")
    a("s_endpgm")
    return a.text(), kernel_desc("attn_kernel", NV), lds, 512


HEADER = """; Fused MQA (branch A) + MHA (branch B) attention block, three launches:
;   proj_kernel : Q/K/V projections -> MFMA-fragment-ordered tiles in d_ws
;   attn_kernel : softmax(Q K^T) V per (branch, head, 512 rows)
;   outp_kernel : output projections -> d_out
"""


def main(path):
    ks = [("proj_kernel",) + gen_proj(), ("attn_kernel",) + gen_attn(), ("outp_kernel",) + gen_outp()]
    s = HEADER
    for n, t, d, lds, blk in ks:
        s += f"; @launch kernel={n} grid=(256,1,1) block=({blk},1,1) lds={lds}\n"
    s += '.amdgcn_target "amdgcn-amd-amdhsa--gfx950"\n'
    s += "".join(k[1] for k in ks) + "".join(k[2] for k in ks)
    open(path, "w").write(s)


if __name__ == "__main__":
    args = sys.argv[1:]
    if "--stamp" in args:
        STAMP = True
        args.remove("--stamp")
    for x in list(args):
        if "=" in x:
            k_, v_ = x.split("=")
            assert k_ in OPT, k_
            OPT[k_] = int(v_) if v_.lstrip("-").isdigit() else ("" if v_ == "none" else " " + v_.replace("+", " "))
            args.remove(x)
    main(args[0] if args else f"cdna_kernels/{NAME}.s")
```

```python
import sys
src, dst, ka, kb, mult = sys.argv[1], sys.argv[2], int(sys.argv[3]), int(sys.argv[4]), int(sys.argv[5])
s = open(src).read()
L = [l for l in s.splitlines() if l.startswith('; @launch')]
s = s.replace(L[-1], L[-1] + "\n; @launch kernel=rep_kernel grid=(1,1,1) block=(256,1,1) lds=1024")
b = f""".text
.globl rep_kernel
.p2align 8
.type rep_kernel,@function
rep_kernel:
    s_cmp_ge_u32 s2, 1
    s_cbranch_scc1 L_rep_end
    s_load_dwordx2 s[12:13], s[0:1], 80
    s_waitcnt lgkmcnt(0)
    s_mov_b32 s14, 0x10000000
    s_mov_b32 s15, 0x00020000
    v_lshlrev_b32 v1, 9, v0
    s_mov_b32 s16, {0x8000000 + ka*0x20000:#x}
    s_mov_b32 s17, {0x8000000 + kb*0x20000:#x}
    buffer_load_dword v2, v1, s[12:15], s16 offen offset:4
    buffer_load_dword v3, v1, s[12:15], s17 offen offset:12
    buffer_load_dword v4, v1, s[12:15], s17 offen offset:460
    v_mov_b32 v5, 0
    v_mov_b32 v6, -1
    ds_write_b32 v5, v5
    ds_write_b32 v5, v6 offset:4
    s_waitcnt vmcnt(0) lgkmcnt(0)
    s_barrier
    v_max_u32 v3, v3, v4
    ds_max_u32 v5, v3
    ds_min_u32 v5, v2 offset:4
    s_waitcnt lgkmcnt(0)
    s_barrier
    ds_read_b64 v[8:9], v5
    s_waitcnt lgkmcnt(0)
    v_sub_u32 v8, v8, v9
    s_nop 1
    v_readfirstlane_b32 s20, v8
    s_nop 3
    s_min_u32 s20, s20, 20000
    s_mul_i32 s20, s20, {mult}
    s_memrealtime s[22:23]
    s_waitcnt lgkmcnt(0)
L_rep_spin:
    s_memrealtime s[24:25]
    s_waitcnt lgkmcnt(0)
    s_sub_u32 s26, s24, s22
    s_cmp_lt_u32 s26, s20
    s_cbranch_scc1 L_rep_spin
L_rep_end:
    s_endpgm
.section .rodata,"a"
.p2align 6
.amdhsa_kernel rep_kernel
  .amdhsa_next_free_vgpr 16
  .amdhsa_next_free_sgpr 32
  .amdhsa_accum_offset 16
  .amdhsa_group_segment_fixed_size 0
  .amdhsa_kernarg_size 88
  .amdhsa_user_sgpr_count 2
  .amdhsa_user_sgpr_kernarg_segment_ptr 1
  .amdhsa_system_sgpr_workgroup_id_x 1
.end_amdhsa_kernel
"""
open(dst, "w").write(s + b)
```

```python
import sys, math, struct

NAME = "concat_heads__grouped_kv_mqa__softmax_full_mha__prompt"

WS_QA = 0x0000000
WS_QB = 0x0400000
WS_KVA = 0x0800000
WS_TBL = 0x0900000
WS_CLM = 0x0910000
WS_KVB = 0x1000000
WS_OA = 0x2000000
WS_OB = 0x2400000
WS_STAMP = 0x8000000
WS_SIZE = 268435456

QSCALE = (32 ** -0.5) * math.log2(math.e)
STAMP = False
OPT = dict(pre=6, st1=" sc0 sc1", st2=" sc0 sc1", ld1="", pfb="", pf=1, pf0=0, pfd=2, badtbl=0, lstamp=0, epi3=1, nl3=4, fake16=0, badtk=0, pfirst=1, pwait=0, wsb=0, st3=" nt", k2s=1, p0=2, xfirst=1, rot=0, ks3=2, xp=0, lrot=1, swap3=1, p1e=1)

MF32 = "v_mfma_f32_32x32x16_bf16"
MF16 = "v_mfma_f32_16x16x32_bf16"


def f32bits(x):
    return struct.unpack("<I", struct.pack("<f", x))[0]


class A:
    def __init__(self):
        self.l = []

    def __call__(self, s):
        self.l.append("    " + s)

    def many(self, xs):
        for x in xs:
            self(x)

    def label(self, s):
        self.l.append(s + ":")

    def raw(self, s):
        self.l.append(s)

    def text(self):
        return "\n".join(self.l) + "\n"


def vr(b, n):
    return f"v[{b}:{b + n - 1}]"


def sr(b, n=4):
    return f"s[{b}:{b + n - 1}]"


def srd(a, d, lo, size):
    a(f"s_mov_b32 s{d}, s{lo}")
    a(f"s_mov_b32 s{d+1}, s{lo + 1}")
    a(f"s_mov_b32 s{d+2}, {size:#x}")
    a(f"s_mov_b32 s{d+3}, 0x00020000")


def srd_sel(a, d, lo1, lo0, size1, size0=None):
    a(f"s_cselect_b32 s{d}, s{lo1}, s{lo0}")
    a(f"s_cselect_b32 s{d+1}, s{lo1 + 1}, s{lo0 + 1}")
    if size0 is None:
        a(f"s_mov_b32 s{d+2}, {size1:#x}")
    else:
        csel(a, d + 2, size1, size0)
    a(f"s_mov_b32 s{d+3}, 0x00020000")


def csel(a, d, x, y):
    a(f"s_mov_b32 s{d}, {y}")
    a(f"s_cmov_b32 s{d}, {x}")


def kernel_head(a, name):
    a.raw(".text")
    a.raw(f".globl {name}")
    a.raw(".p2align 8")
    a.raw(f".type {name},@function")
    a.label(name)


def kernel_desc(name, nvgpr, nsgpr=102):
    acc = (nvgpr + 3) // 4 * 4
    return f""".section .rodata,"a"
.p2align 6
.amdhsa_kernel {name}
  .amdhsa_next_free_vgpr {nvgpr}
  .amdhsa_next_free_sgpr {nsgpr}
  .amdhsa_accum_offset {acc}
  .amdhsa_group_segment_fixed_size 0
  .amdhsa_kernarg_size 88
  .amdhsa_user_sgpr_count 2
  .amdhsa_user_sgpr_kernarg_segment_ptr 1
  .amdhsa_system_sgpr_workgroup_id_x 1
.end_amdhsa_kernel
"""


sXCC, sHW, sTRY, sTK = 3, 8, 9, 10
SRD_DBG = 12
S_IN = 16
S_OUT = 32
S_WS = 34
SRD_WS = 44
sWAVE = 56
sT0, sT1, sT2, sT3 = 57, 58, 59, 60
sOK = 81


def stamp_begin(a):
    if STAMP:
        a("s_memtime s[82:83]")
        a("s_memrealtime s[84:85]")
        for n in range(6):
            a(f"s_mov_b32 s{90 + 2 * n}, 0")


def stamp_mid(a, n):
    if STAMP:
        a(f"s_memtime s[{90 + 2 * n}:{91 + 2 * n}]")


def stamp_end(a, kidx):
    if not STAMP:
        return
    a("s_waitcnt vmcnt(0)")
    a("s_memtime s[86:87]")
    a("s_memrealtime s[88:89]")
    a("s_waitcnt lgkmcnt(0)")
    a(f"s_min_u32 s9, s{sWAVE}, 7")
    a("s_lshl_b32 s8, s2, 3")
    a("s_add_u32 s8, s8, s9")
    a("s_lshl_b32 s8, s8, 6")
    a(f"s_add_u32 s8, s8, {WS_STAMP + kidx * 0x20000:#x}")
    for i, r in enumerate((82, 84, 86, 88, 90, 92, 94, 96, 98, 100, 100, 100)):
        a(f"v_mov_b32 v{4 + i}, s{r}")
    a("v_mov_b32 v1, 0")
    a("s_mov_b64 exec, 1")
    for i in range(3):
        a(f"buffer_store_dwordx4 v[{4 + 4 * i}:{7 + 4 * i}], v1, {sr(SRD_WS)}, s8 offen offset:{16 * i}")


def entry(a, tag):
    a("s_cmp_ge_u32 s2, 256")
    a(f"s_cbranch_scc1 L_{tag}_end")
    stamp_begin(a)
    a(f"s_load_dwordx16 {sr(S_IN, 16)}, s[0:1], 0")
    a(f"s_load_dwordx2 {sr(S_OUT, 2)}, s[0:1], 64")
    a(f"s_load_dwordx2 {sr(SRD_DBG, 2)}, s[0:1], 72")
    a(f"s_load_dwordx2 {sr(S_WS, 2)}, s[0:1], 80")
    a("v_lshrrev_b32 v1, 6, v0")
    a("v_and_b32 v0, 63, v0")
    a(f"v_readfirstlane_b32 s{sWAVE}, v1")
    a(f"s_getreg_b32 s{sXCC}, hwreg(HW_REG_XCC_ID, 0, 3)")
    a(f"s_getreg_b32 s{sHW}, hwreg(HW_REG_HW_ID, 8, 8)")
    a(f"s_mov_b32 s{SRD_DBG + 2}, 256")
    a(f"s_mov_b32 s{SRD_DBG + 3}, 0x00020000")


def ws_reloc(a):
    if OPT["wsb"]:
        a(f"s_add_u32 s{S_WS}, s{S_WS}, {OPT['wsb'] << 20:#x}")
        a(f"s_addc_u32 s{S_WS + 1}, s{S_WS + 1}, 0")


def tbl_offset(a, d):
    a(f"s_lshl_b32 s{d}, s{sXCC}, 8")
    a(f"s_or_b32 s{d}, s{d}, s{sHW}")
    a(f"s_lshl_b32 s{d}, s{d}, 2")
    a(f"s_add_u32 s{d}, s{d}, {WS_TBL:#x}")


sG, sMT = 32, 33


def ticket_issue(a, tag, who):
    a(f"s_mov_b32 s{sG}, s{sXCC}")
    a(f"s_bfe_u32 s{sMT}, s{sHW}, 0x20005")
    if OPT["badtk"]:
        a(f"s_and_b32 s{sMT}, s{sMT}, 1")
        a(f"s_and_b32 s{sG}, s{sG}, 5")
    a(f"s_mov_b32 s{sOK}, 0")
    a(f"s_cmp_lg_u32 s{sWAVE}, {who}")
    a(f"s_cbranch_scc1 L_{tag}_cl0")
    a(f"s_lshl_b32 s{sTK + 1}, s{sG}, 2")
    a(f"s_or_b32 s{sTK + 1}, s{sTK + 1}, s{sMT}")
    a(f"s_lshl_b32 s{sTRY}, s{sTK + 1}, 3")
    a(f"s_mov_b32 s{sTK}, 1")
    a(f"s_atomic_add s{sTK}, {sr(SRD_DBG, 2)}, s{sTRY} glc")
    a.label(f"L_{tag}_cl0")


def ticket_end(a, tag, who, ldsoff):
    a(f"s_cmp_lg_u32 s{sWAVE}, {who}")
    a(f"s_cbranch_scc1 L_{tag}_cl3")
    a(f"s_cmp_lg_u32 s{sOK}, 0")
    a(f"s_cbranch_scc1 L_{tag}_cl3")
    a(f"s_mov_b32 s{sCNT}, 0")
    a.label(f"L_{tag}_cl1")
    a("s_waitcnt lgkmcnt(0)")
    a(f"s_cmp_lt_u32 s{sTK}, 8")
    a(f"s_cbranch_scc1 L_{tag}_cl2")
    a(f"s_add_u32 s{sCNT}, s{sCNT}, 1")
    a(f"s_cmp_ge_u32 s{sCNT}, 32")
    a(f"s_cbranch_scc1 L_{tag}_cl2")
    a(f"s_add_u32 s{sTK + 1}, s{sTK + 1}, 1")
    a(f"s_and_b32 s{sTK + 1}, s{sTK + 1}, 31")
    a(f"s_lshl_b32 s{sTRY}, s{sTK + 1}, 3")
    a(f"s_mov_b32 s{sTK}, 1")
    a(f"s_atomic_add s{sTK}, {sr(SRD_DBG, 2)}, s{sTRY} glc")
    a(f"s_branch L_{tag}_cl1")
    a.label(f"L_{tag}_cl2")
    a(f"s_min_u32 s{sTK}, s{sTK}, 8")
    a(f"s_lshl_b32 s{sTK}, s{sTK}, 5")
    a(f"s_and_b32 s{sTRY}, s{sTK + 1}, 3")
    a(f"s_lshl_b32 s{sTRY}, s{sTRY}, 3")
    a(f"s_or_b32 s{sTK}, s{sTK}, s{sTRY}")
    a(f"s_lshr_b32 s{sTRY}, s{sTK + 1}, 2")
    a(f"s_or_b32 s{sTK}, s{sTK}, s{sTRY}")
    a("s_mov_b64 exec, 1")
    a(f"v_mov_b32 v2, {ldsoff}")
    a(f"v_mov_b32 v3, s{sTK}")
    a("ds_write_b32 v2, v3")
    a("s_mov_b64 exec, -1")
    a("s_waitcnt lgkmcnt(0)")
    a.label(f"L_{tag}_cl3")


def ticket_notes(a, tag, who):
    a(f"s_cmp_lg_u32 s{sWAVE}, {who}")
    a(f"s_cbranch_scc1 L_{tag}_cl4")
    a("s_mov_b64 exec, 1")
    a("v_mov_b32 v1, 0")
    a("v_mov_b32 v3, s2")
    a(f"s_lshl_b32 s{sT1}, s2, 7")
    a(f"s_add_u32 s{sT1}, s{sT1}, {WS_CLM:#x}")
    a(f"buffer_store_dword v1, v1, {sr(SRD_WS)}, s{sT1} offen")
    a(f"s_add_u32 s{sT1}, s{sT1}, 0x8000")
    a(f"buffer_store_dword v1, v1, {sr(SRD_WS)}, s{sT1} offen")
    tbl_offset(a, sT1)
    a(f"buffer_store_dword v3, v1, {sr(SRD_WS)}, s{sT1} offen sc0 sc1")
    a("s_mov_b64 exec, -1")
    a.label(f"L_{tag}_cl4")


def ticket_wait(a, tag, ldsoff, redo):
    a(f"v_mov_b32 v2, {ldsoff}")
    a("s_barrier")
    a("ds_read_b32 v3, v2")
    a(f"s_lshl_b32 s{sT1}, s{sMT}, 3")
    a(f"s_or_b32 s{sT1}, s{sT1}, s{sG}")
    a("s_waitcnt lgkmcnt(0)")
    a("v_readfirstlane_b32 s2, v3")
    a("s_nop 3")
    a(f"s_and_b32 s{sT2}, s2, 0x31f")
    a(f"s_cmp_lg_u32 s{sT2}, s{sT1}")
    a(f"s_cbranch_scc1 {redo}")
    a(f"s_lshr_b32 s{sNT}, s2, 5")


def ticket_redo(a, tag, lbl, back):
    a.label(lbl)
    a("s_waitcnt vmcnt(0)")
    a("s_cmp_ge_u32 s2, 256")
    a(f"s_cbranch_scc1 L_{tag}_end")
    a(f"s_and_b32 s{sG}, s2, 7")
    a(f"s_bfe_u32 s{sMT}, s2, 0x20003")
    a(f"s_mov_b32 s{sOK}, 1")
    a(f"s_branch {back}")


def hint_load(a, tag):
    tbl_offset(a, sTK)
    a("s_waitcnt lgkmcnt(0)")
    ws_reloc(a)
    a(f"s_load_dword s2, {sr(S_WS, 2)}, s{sTK}")
    srd(a, SRD_WS, S_WS, WS_SIZE - (OPT["wsb"] << 20))
    a(f"s_mov_b32 s{sOK}, 0")
    a("s_waitcnt lgkmcnt(0)")
    if OPT["badtbl"]:
        a(f"s_and_b32 s2, s2, {OPT['badtbl']}")
    a("s_and_b32 s2, s2, 255")
    a.label(f"L_{tag}_item")


def clm_base(tag):
    return WS_CLM + (0 if tag == "attn" else 0x8000)


def hint_claim(a, tag, who):
    a(f"s_cmp_lg_u32 s{sWAVE}, {who}")
    a(f"s_cbranch_scc1 L_{tag}_noc")
    a(f"s_lshl_b32 s{sTK + 1}, s2, 7")
    a(f"s_add_u32 s{sTK + 1}, s{sTK + 1}, {clm_base(tag):#x}")
    a(f"s_mov_b32 s{sTK}, 1")
    a(f"s_atomic_or s{sTK}, {sr(S_WS, 2)}, s{sTK + 1} glc")
    a.label(f"L_{tag}_noc")


def hint_verdict(a, tag, vA, vD, ldsoff):
    a("s_waitcnt lgkmcnt(0)")
    a(f"s_andn2_b32 s{sTK}, s{sTK}, s{sOK}")
    a(f"s_cmp_lg_u32 s{sTK}, 0")
    a(f"s_mov_b32 s{sTRY}, s2")
    a(f"s_cbranch_scc1 L_{tag}_hslow")
    a.label(f"L_{tag}_hback")
    a(f"v_mov_b32 v{vA}, {ldsoff}")
    a(f"v_mov_b32 v{vD}, s{sTRY}")
    a(f"ds_write_b32 v{vA}, v{vD}")
    a("s_waitcnt lgkmcnt(0)")


def hint_slow(a, tag):
    sN = 4
    a.label(f"L_{tag}_hslow")
    a(f"s_mov_b32 s{sN}, 0")
    a.label(f"L_{tag}_hs1")
    a(f"s_add_u32 s{sN}, s{sN}, 1")
    a(f"s_add_u32 s{sTRY}, s{sTRY}, 9")
    a(f"s_and_b32 s{sTRY}, s{sTRY}, 255")
    a(f"s_cmp_gt_u32 s{sN}, 256")
    a(f"s_cbranch_scc1 L_{tag}_hs2")
    a(f"s_lshl_b32 s{sTK + 1}, s{sTRY}, 7")
    a(f"s_add_u32 s{sTK + 1}, s{sTK + 1}, {clm_base(tag):#x}")
    a(f"s_mov_b32 s{sTK}, 1")
    a(f"s_atomic_or s{sTK}, {sr(S_WS, 2)}, s{sTK + 1} glc")
    a("s_waitcnt lgkmcnt(0)")
    a(f"s_cmp_lg_u32 s{sTK}, 0")
    a(f"s_cbranch_scc1 L_{tag}_hs1")
    a(f"s_branch L_{tag}_hback")
    a.label(f"L_{tag}_hs2")
    a(f"s_mov_b32 s{sTRY}, 0x8000")
    a(f"s_branch L_{tag}_hback")
    a.label(f"L_{tag}_restart")
    a("s_waitcnt vmcnt(0) lgkmcnt(0)")
    a("s_barrier")
    a(f"s_mov_b32 s2, s{sTRY}")
    a(f"s_mov_b32 s{sOK}, 1")
    a("s_setprio 0")
    a("s_cmp_ge_u32 s2, 256")
    a(f"s_cbranch_scc1 L_{tag}_end")
    a(f"s_branch L_{tag}_item")


def hint_read(a, vA, vD, ldsoff):
    a(f"v_mov_b32 v{vA}, {ldsoff}")
    a(f"ds_read_b32 v{vD}, v{vA}")


def hint_check(a, tag, vD):
    a(f"v_readfirstlane_b32 s{sTRY}, v{vD}")
    a("s_nop 3")
    a(f"s_cmp_lg_u32 s{sTRY}, s2")
    a(f"s_cbranch_scc1 L_{tag}_restart")


SRD_X, SRD_W, SRD_WK, SRD_WV, SRD_PF, SRD_OUT = 36, 40, 48, 52, 4, 48
sXOFF, sWOFF, sWSTG, sSLOT, sCNT, sDELTA = 61, 62, 64, 65, 66, 67
sOBASE, sOJ, sOI, sSCALE = 68, 69, 70, 72
sSEC, sM0, sCOL0, sWSTR, sNT, sEXO, sEXS, sRSLOT = 74, 75, 76, 77, 78, 79, 80, 63
sPFO, sPFS, sPFN = 9, 10, 11
sPFL, sPFW, sK = 68, 69, 71


class G:
    def __init__(self, kind):
        self.kind = kind
        proj = kind == "proj"
        self.NI, self.NJ = (4, 2) if proj else (2, 2)
        self.XB = 32768 if proj else 16384
        self.NSLOT = 3 if proj else 4
        self.NL = 4 if proj else OPT["nl3"]
        self.SLOT = self.XB + 16384 + (2048 if proj else 0)
        self.XP = self.XB // 1024 // self.NL
        self.WP = 16 // self.NL
        self.NST = 16
        self.EXB = self.NSLOT * self.SLOT
        self.lds = self.NSLOT * self.SLOT + 64
        self.KS = 1 if proj else OPT["ks3"]
        self.ACC = 128 if proj else 16 + 32 * self.KS + (16 if self.KS == 1 else 0)
        self.nacc = self.NI * self.NJ * 16
        self.f1 = self.NI * 4 + self.NJ * 4
        fsz = self.f1 * self.KS
        self.F = [16, 16 + fsz]
        self.vXA, self.vWA, self.vEXX, self.vEXW, self.vST = 4, 8, 10, 12, 13
        self.EXF = 16 + 2 * fsz
        self.EXACC = self.EXF + 12
        self.nvgpr = self.ACC + self.nacc

    def fx(self, t, i):
        return self.F[(t // self.KS) & 1] + (t % self.KS) * self.f1 + 4 * i

    def fw(self, t, j):
        return self.F[(t // self.KS) & 1] + (t % self.KS) * self.f1 + self.NI * 4 + 4 * j

    def acc(self, i, j):
        return self.ACC + (i * self.NJ + j) * 16


def gemm_reads(g, T):
    proj = g.kind == "proj"
    out = []
    for t in range(T * g.KS, (T + 1) * g.KS):
        wr = [f"ds_read_b64_tr_b16 {vr(g.fw(t, j) + 2 * u, 2)}, v{g.vWA + j} offset:{4096 * t + (1024 if proj else 2048) * u}"
              for j in range(g.NJ) for u in range(2)]
        if proj:
            xr = [f"ds_read_b128 {vr(g.fx(t, i), 4)}, v{g.vXA + t} offset:{4096 * i}" for i in range(g.NI)]
        else:
            xr = [f"ds_read_b128 {vr(g.fx(t, i), 4)}, v{g.vXA} offset:{4096 * i + 1024 * t}" for i in range(g.NI)]
        out += [xr[0]] + wr + xr[1:]
    if OPT["xp"] == 1:
        out = out[::2]
    if OPT["xp"] == 2:
        out = out[:1]
    return out


def gemm_extra_reads(g, e):
    return [f"ds_read_b64_tr_b16 {vr(g.EXF + 2 * u, 2)}, v{g.vEXW} offset:{1024 * e + 128 * u}" for u in range(2)] + \
           [f"ds_read_b128 {vr(g.EXF + 4 + 4 * th, 4)}, v{g.vEXX + e} offset:{2048 * th}" for th in range(2)]


def gemm_step(a, g, T, swap, reads, pre=(), extra_mfma=(), post_valu=()):
    a.many(pre)
    mf = []
    for t in range(T * g.KS, (T + 1) * g.KS):
        for i in range(g.NI):
            for j in range(g.NJ):
                x, w, c = vr(g.fx(t, i), 4), vr(g.fw(t, j), 4), vr(g.acc(i, j), 16)
                mf.append(f"{MF32} {c}, {x}, {w}, {c}" if swap else f"{MF32} {c}, {w}, {x}, {c}")
    mf += list(extra_mfma)
    reads, post_valu = list(reads), list(post_valu)
    for m in mf:
        if OPT["xp"] != 3:
            a(m)
        for _ in range(2):
            if reads:
                a(reads.pop(0))
        if not reads:
            for _ in range(2):
                if post_valu:
                    a(post_valu.pop(0))
    a.many(reads + post_valu)


def gemm_compute(a, g, tag, swap, extras, check=None):
    proj = g.kind == "proj"

    def ex_mfma():
        w = vr(g.EXF, 4)
        out = []
        for th in range(2):
            x, c = vr(g.EXF + 4 + 4 * th, 4), vr(g.EXACC + 4 * th, 4)
            out.append(f"{MF16} {c}, {x}, {w}, {c}" if extras == "V" else f"{MF16} {c}, {w}, {x}, {c}")
        return out

    def adv(reg):
        return f"v_add_u32 v{reg}, s{sDELTA}, v{reg}"

    NB = 4 // g.KS

    def stage(last):
        for t in range(NB):
            pre = ["s_waitcnt lgkmcnt(0)"]
            reads, post, em = [], [], []
            if t < NB - 1:
                reads = gemm_reads(g, t + 1)
                if extras and t == 1:
                    reads += gemm_extra_reads(g, 1)
                if not last:
                    if proj:
                        post.append(adv(g.vXA + t + 1))
                    if t == NB - 2:
                        post += [adv(g.vWA), adv(g.vWA + 1), adv(g.vXA)]
                        if extras:
                            post += [adv(g.vEXX), adv(g.vEXX + 1), adv(g.vEXW)]
            elif not last:
                pre.append("s_barrier")
                reads = gemm_reads(g, 0)
                if extras:
                    reads += gemm_extra_reads(g, 0)
            if extras and t in (0, 2):
                em = ex_mfma()
            gemm_step(a, g, t, swap, reads, pre, em, post)

    stamp_mid(a, 4)
    a("s_barrier")
    stamp_mid(a, 0)
    a.many(gemm_reads(g, 0))
    if extras:
        a.many(gemm_extra_reads(g, 0))
    a(f"s_mov_b32 s{sCNT}, 0")
    a(f"s_mov_b32 s{sRSLOT}, 0")
    a.raw(".p2align 3")
    a.label(f"L_{tag}_loop")
    a(f"s_add_u32 s{sRSLOT}, s{sRSLOT}, 1")
    a(f"s_cmp_eq_u32 s{sRSLOT}, {g.NSLOT}")
    csel(a, sDELTA, f"{-(g.NSLOT - 1) * g.SLOT & 0xffffffff:#x}", g.SLOT)
    a(f"s_cselect_b32 s{sRSLOT}, 0, s{sRSLOT}")
    stage(False)
    a(f"s_add_u32 s{sCNT}, s{sCNT}, 1")
    a(f"s_cmp_lt_u32 s{sCNT}, {g.NST - 1}")
    a(f"s_cbranch_scc1 L_{tag}_loop")
    if check:
        hint_read(a, 14, 15, g.EXB)
    stage(True)
    if check:
        hint_check(a, check, 15)
    stamp_mid(a, 1)


def pf_adv(a):
    a(f"s_add_u32 s{sPFO}, s{sPFO}, s{sPFS}")
    a(f"s_cmp_ge_u32 s{sPFO}, s{sPFL}")
    a(f"s_cselect_b32 s{sT1}, s{sPFW}, 0")
    a(f"s_sub_u32 s{sPFO}, s{sPFO}, s{sT1}")


def k_wrap(a, lbl, n):
    a(f"s_add_u32 s{sK}, s{sK}, {n}")
    a(f"s_cmp_lt_u32 s{sK}, 16")
    a(f"s_cbranch_scc1 {lbl}")
    a(f"s_mov_b32 s{sK}, 0")
    a(f"s_sub_u32 s{sXOFF}, s{sXOFF}, 2048")
    a(f"s_lshl_b32 s{sT1}, s{sWSTG}, 4")
    a(f"s_sub_u32 s{sWOFF}, s{sWOFF}, s{sT1}")
    a(f"s_sub_u32 s{sEXO}, s{sEXO}, 0x10000")
    a.label(lbl)


def gemm_loader(a, g, tag, vX, vW):
    proj = g.kind == "proj"
    per, LA = g.XP + g.WP, g.NSLOT
    lb = OPT["ld1"] if proj else ""
    pf = proj and OPT["pf"]

    def prefetch():
        a(f"buffer_load_dword v9, v8, {sr(SRD_PF)}, s{sPFO} offen{OPT['pfb']}")
        pf_adv(a)

    def prefetch_if(hi, lbl):
        a(f"s_cmp_ge_u32 s{sWAVE}, 6")
        a(f"s_cbranch_scc{0 if hi else 1} {lbl}")
        prefetch()
        a.label(lbl)

    nlab = [0]

    def issue(lo=0, hi=None):
        hi = per if hi is None else hi
        for n in range(lo, hi):
            isx = n < g.XP
            i = n if isx else n - g.XP
            if i % 4 == 0 or n == lo:
                base = (i // 4) * 4096 if isx else 0
                a(f"s_add_u32 m0, s{sSLOT if isx else sEXS + 0}, {base}" if isx else f"s_add_u32 m0, s{sT3}, 0")
                a("s_nop 0")
            if isx:
                a(f"buffer_load_dwordx4 v{vX[i]}, {sr(SRD_X)}, s{sXOFF} offen offset:{(i % 4) * 1024}{lb} lds")
            else:
                a(f"buffer_load_dwordx4 v{vW[i]}, {sr(SRD_W)}, s{sWOFF} offen offset:{(i % 4) * 1024}{lb} lds")
        if hi == per:
            a(f"s_add_u32 s{sXOFF}, s{sXOFF}, {128 if proj else f's{sEXO}'}")
            a(f"s_add_u32 s{sWOFF}, s{sWOFF}, s{sWSTG}")
            if proj:
                nlab[0] += 1
                k_wrap(a, f"L_{tag}_kw{nlab[0]}", 1)
            a(f"s_add_u32 s{sRSLOT}, s{sRSLOT}, 1")
            a(f"s_cmp_eq_u32 s{sRSLOT}, {g.NSLOT}")
            csel(a, sDELTA, f"{-(g.NSLOT - 1) * g.SLOT & 0xffffffff:#x}", g.SLOT)
            a(f"s_cselect_b32 s{sRSLOT}, 0, s{sRSLOT}")
            a(f"s_add_u32 s{sSLOT}, s{sSLOT}, s{sDELTA}")
            a(f"s_add_u32 s{sT3}, s{sT3}, s{sDELTA}")

    def maybe_extra(lbl, st=0):
        if not proj:
            return
        a(f"s_cmp_eq_u32 s{sCOL0}, 0")
        a(f"s_cbranch_scc1 {lbl}")
        a(f"s_add_u32 m0, s{sT3}, s{sEXS}")
        if st:
            a(f"s_add_u32 m0, m0, {st * g.SLOT}")
        a("s_nop 0")
        a(f"buffer_load_dwordx4 v6, {sr(SRD_WK)}, s{sEXO} offen lds")
        a(f"s_add_u32 s{sEXO}, s{sEXO}, 4096")
        a.label(lbl)

    a(f"s_mov_b32 s{sRSLOT}, 0")
    stamp_mid(a, 3)
    if proj:
        def xs(st):
            a(f"s_add_u32 s{sDELTA}, s{sXOFF}, {128 * st}")
            for i in range(g.XP):
                if i % 4 == 0:
                    a(f"s_add_u32 m0, s{sSLOT}, {st * g.SLOT + (i // 4) * 4096}")
                    a("s_nop 0")
                a(f"buffer_load_dwordx4 v{vX[i]}, {sr(SRD_X)}, s{sDELTA} offen offset:{(i % 4) * 1024}{lb} lds")

        def ws_(st):
            maybe_extra(f"L_{tag}_x{st}", st)
            a(f"s_add_u32 m0, s{sT3}, {st * g.SLOT}")
            a("s_nop 0")
            for i in range(g.WP):
                a(f"buffer_load_dwordx4 v{vW[i]}, {sr(SRD_W)}, s{sWOFF} offen offset:{i * 1024}{lb} lds")
            a(f"s_add_u32 s{sWOFF}, s{sWOFF}, s{sWSTG}")

        for st in range(OPT["xfirst"]):
            xs(st)
        if pf and OPT["p1e"]:
            a(f"s_cmp_ge_u32 s{sWAVE}, 6")
            a(f"s_cbranch_scc0 L_{tag}_p1e")
            a(f"buffer_load_dword v9, v8, {sr(SRD_PF)}, s{sOBASE} offen{OPT['pfb']}")
            a.label(f"L_{tag}_p1e")
        g.mid()
        ws_(0)
        young = g.WP
        if OPT["xfirst"] == 1:
            young += g.XP
            xs(1)
        ws_(1)
        stamp_mid(a, 4)
        a(f"s_add_u32 s{sXOFF}, s{sXOFF}, 256")
        k_wrap(a, f"L_{tag}_kw0", 2)
        a(f"s_add_u32 s{sSLOT}, s{sSLOT}, {2 * g.SLOT}")
        a(f"s_add_u32 s{sT3}, s{sT3}, {2 * g.SLOT}")
        a(f"s_mov_b32 s{sRSLOT}, 2")
        a(f"s_waitcnt vmcnt({young})")
        stamp_mid(a, 5)
        a("s_barrier")
        stamp_mid(a, 0)
        if pf and OPT["p0"] == 2:
            g.after_bar0()
            if not OPT["p1e"]:
                a(f"s_cmp_ge_u32 s{sWAVE}, 6")
                a(f"s_cbranch_scc0 L_{tag}_p1b")
                a(f"buffer_load_dword v9, v8, {sr(SRD_PF)}, s{sPFO} offen{OPT['pfb']}")
                a.label(f"L_{tag}_p1b")
            pf_adv(a)
        maybe_extra(f"L_{tag}_x1b")
        issue()
        if not (pf and OPT["p0"] == 2):
            g.after_bar0()
        if pf:
            prefetch_if(False, f"L_{tag}_p2")
            a(f"s_cmp_ge_u32 s{sWAVE}, 6")
            a(f"s_cselect_b32 s{sPFN}, {OPT['pf0']}, {OPT['pf0'] + OPT['pfd']}")
    else:
        issue()
        pre = min(OPT["pre"] * 4 // g.NL, per)
        issue(0, pre)
        stamp_mid(a, 4)
        a(f"s_waitcnt vmcnt({pre})")
        stamp_mid(a, 5)
        a("s_barrier")
        stamp_mid(a, 0)
        if pre < per:
            issue(pre, per)
        for _ in range(LA - 2):
            issue()
    a(f"s_mov_b32 s{sCNT}, 0")
    a.label(f"L_{tag}_lloop")
    a(f"s_waitcnt vmcnt({(LA - 2) * per})")
    a("s_barrier")
    if OPT["lstamp"] and STAMP:
        for k_, n_ in ((1, 2), (4, 3), (8, 4), (11, 5)):
            a(f"s_cmp_lg_u32 s{sCNT}, {k_}")
            a(f"s_cbranch_scc1 L_{tag}_ls{k_}")
            stamp_mid(a, n_)
            a.label(f"L_{tag}_ls{k_}")
    maybe_extra(f"L_{tag}_x2")
    issue()
    if pf:
        a(f"s_cmp_eq_u32 s{sCNT}, s{sPFN}")
        a(f"s_cbranch_scc0 L_{tag}_nopf")
        prefetch()
        a(f"s_add_u32 s{sPFN}, s{sPFN}, {2 * OPT['pfd']}")
        a(f"s_cmp_gt_u32 s{sPFN}, {OPT['pf0'] + 4 * OPT['pfd']}")
        a(f"s_cselect_b32 s{sPFN}, 64, s{sPFN}")
        a.label(f"L_{tag}_nopf")
    a(f"s_add_u32 s{sCNT}, s{sCNT}, 1")
    a(f"s_cmp_lt_u32 s{sCNT}, {g.NST - LA}")
    a(f"s_cbranch_scc1 L_{tag}_lloop")
    for s in range(g.NST - LA, g.NST - 1):
        a(f"s_waitcnt vmcnt({(g.NST - 2 - s) * per})")
        if not proj and s == g.NST - LA:
            a(f"s_cmp_lg_u32 s{sWAVE}, 4")
            a(f"s_cbranch_scc1 L_{tag}_nov")
            hint_verdict(a, tag, 14, 15, g.EXB)
            a.label(f"L_{tag}_nov")
        a("s_barrier")
        if proj and s == g.NST - 2:
            tbl_offset(a, sT1)
            a("v_mov_b32 v1, 0")
            a(f"buffer_load_dword v2, v1, {sr(SRD_WS)}, s{sT1} offen")
    if not proj:
        hint_read(a, 14, 15, g.EXB)
        a("s_waitcnt lgkmcnt(0)")
        hint_check(a, tag, 15)
    stamp_mid(a, 1)
    stamp_end(a, 0 if proj else 2)
    a("s_endpgm")


def proj_group(a, sg):
    a(f"s_and_b32 s{sSEC}, s{sg}, 3")
    a(f"s_cmp_eq_u32 s{sSEC}, 0")
    csel(a, sWSTR, 2048, 6144)
    srd_sel(a, SRD_X, 16, 26, 0x400000)
    srd_sel(a, SRD_W, 18, 28, 0x200000, 0x600000)


def proj_pf_setup(a, tag, sg, sidx, sw2, dst=None):
    sPFO, sPFS = dst if dst else (9, 10)
    sPFL, sPFW = (sOI, sK) if dst else (68, 69)
    a(f"s_lshr_b32 s{sPFW}, s{sw2}, 1")
    if OPT["rot"]:
        a(f"s_add_u32 s{sPFW}, s{sPFW}, s{sg}")
        a(f"s_and_b32 s{sPFW}, s{sPFW}, 7")
    a(f"s_bitcmp1_b32 s{sw2}, 0")
    for i in range(3):
        a(f"s_cselect_b32 s{SRD_PF + i}, s{SRD_W + i}, s{SRD_X + i}")
    a(f"s_mov_b32 s{SRD_PF + 3}, 0x00020000")
    a(f"s_cbranch_scc1 L_{tag}_pfw")
    a("v_and_b32 v1, 31, v0")
    a("v_lshlrev_b32 v1, 11, v1")
    a("v_lshrrev_b32 v8, 5, v0")
    a("v_lshl_add_u32 v8, v8, 7, v1")
    a(f"s_lshr_b32 s{sT1}, s{sg}, 2")
    a(f"s_lshl_b32 s{sT1}, s{sT1}, 5")
    a(f"s_add_u32 s{sT1}, s{sT1}, s{sidx}")
    a(f"s_lshl_b32 s{sT1}, s{sT1}, 16")
    a(f"s_lshl_b32 s{sT2}, s{sPFW}, 8")
    a(f"s_add_u32 s{sPFO}, s{sT1}, s{sT2}")
    a(f"s_mov_b32 s{sPFS}, 512")
    a(f"s_add_u32 s{sPFL}, s{sT1}, 2048")
    a(f"s_mov_b32 s{sPFW}, 2048")
    a(f"s_branch L_{tag}_pfdone")
    a.label(f"L_{tag}_pfw")
    a("v_lshrrev_b32 v8, 5, v0")
    a("v_lshlrev_b32 v8, 6, v8")
    a("v_bfe_u32 v1, v0, 4, 1")
    a("v_add_u32 v8, v8, v1")
    a(f"v_mul_lo_u32 v8, v8, s{sWSTR}")
    a("v_and_b32 v1, 15, v0")
    a("v_lshl_add_u32 v8, v1, 7, v8")
    a(f"s_lshl_b32 s{sT2}, s{sPFW}, 6")
    a(f"s_add_u32 s{sT2}, s{sT2}, s{sidx}")
    a(f"s_lshl_b32 s{sT2}, s{sT2}, 1")
    a(f"s_mul_i32 s{sT2}, s{sT2}, s{sWSTR}")
    a(f"s_sub_u32 s{sT1}, s{sSEC}, 1")
    a(f"s_max_i32 s{sT1}, s{sT1}, 0")
    a(f"s_lshl_b32 s{sT1}, s{sT1}, 11")
    a(f"s_add_u32 s{sPFO}, s{sT2}, s{sT1}")
    a(f"s_lshl_b32 s{sPFS}, s{sWSTR}, 8")
    a(f"s_lshl_b32 s{sPFL}, s{sWSTR}, 10")
    a(f"s_mov_b32 s{sPFW}, s{sPFL}")
    a.label(f"L_{tag}_pfdone")


def gen_proj():
    g = G("proj")
    a = A()
    kernel_head(a, "proj_kernel")
    entry(a, "proj")
    a("s_waitcnt lgkmcnt(0)")
    ws_reloc(a)
    ticket_issue(a, "proj", 4)
    srd(a, SRD_WS, S_WS, WS_SIZE - (OPT["wsb"] << 20))
    def decode():
        proj_group(a, sG)
        a(f"s_lshr_b32 s{sT0}, s{sG}, 2")
        a(f"s_lshl_b32 s{sM0}, s{sT0}, 10")
        a(f"s_lshl_b32 s{sT0}, s{sMT}, 8")
        a(f"s_add_u32 s{sM0}, s{sM0}, s{sT0}")

    TKT = 2 * g.SLOT + g.XB
    a(f"s_cmp_lt_u32 s{sWAVE}, 4")
    a("s_cbranch_scc1 L_proj_compute")
    vX = list(range(16, 24))
    vW = list(range(24, 28))
    a("v_lshrrev_b32 v1, 3, v0")
    a("v_lshlrev_b32 v1, 11, v1")
    a("v_lshrrev_b32 v10, 4, v0")
    a("v_and_b32 v7, 7, v0")
    a("v_xor_b32 v11, v10, v7")
    a("v_xor_b32 v12, 4, v11")
    a("v_lshl_add_u32 v11, v11, 4, v1")
    a("v_lshl_add_u32 v12, v12, 4, v1")
    for i in range(8):
        a(f"v_add_u32 v{vX[i]}, {i * 16384 - (i % 4) * 1024}, v{11 + (i & 1)}")
    a("v_lshrrev_b32 v6, 1, v0")
    a("v_lshlrev_b32 v6, 6, v6")
    a("v_and_b32 v7, 1, v0")
    a("v_lshl_add_u32 v6, v7, 4, v6")
    a.label("L_proj_lstart")
    decode()
    if OPT["pf"]:
        a(f"s_lshr_b32 s{sT0}, s{sHW}, 2")
        a(f"s_and_b32 s{sT0}, s{sT0}, 0x18")
        a(f"s_and_b32 s{sT3}, s{sHW}, 7")
        a(f"s_or_b32 s{sT0}, s{sT0}, s{sT3}")
        a(f"s_and_b32 s{sT3}, s{sWAVE}, 3")
        proj_pf_setup(a, "projA", sG, sT0, sT3, (sOBASE, sOJ))
        a(f"s_cmp_ge_u32 s{sWAVE}, 6")
        a("s_cbranch_scc1 L_proj_pkv")
        a(f"buffer_load_dword v9, v8, {sr(SRD_PF)}, s{sOBASE} offen{OPT['pfb']}")
        a("s_branch L_proj_nokv")
        a.label("L_proj_pkv")
        a(f"s_cmp_lg_u32 s{sSEC}, 0")
        a("s_cbranch_scc1 L_proj_nokv")
        a(f"s_lshl_b32 s{sT0}, s{sT0}, 11")
        a("v_and_b32 v1, 15, v0")
        a("v_lshlrev_b32 v1, 7, v1")
        a(f"s_cmp_eq_u32 s{sWAVE}, 6")
        srd_sel(a, SRD_WK, 20, 22, 0x10000)
        a(f"buffer_load_dword v9, v1, {sr(SRD_WK)}, s{sT0} offen{OPT['pfb']}")
        a.label("L_proj_nokv")
    a(f"s_add_u32 s{sT0}, s{sWAVE}, s{sHW}" if OPT["lrot"] else f"s_mov_b32 s{sT0}, s{sWAVE}")
    a(f"s_and_b32 s{sT0}, s{sT0}, 3")
    a(f"s_lshl_b32 s{sT1}, s{sT0}, 6")
    a(f"s_add_u32 s{sT1}, s{sT1}, s{sM0}")
    a(f"s_lshl_b32 s{sXOFF}, s{sT1}, 11")
    a(f"s_lshl_b32 s{sK}, s{sG}, 1" if OPT["rot"] else f"s_mov_b32 s{sK}, 0")
    a(f"s_lshl_b32 s{sT1}, s{sK}, 7")
    a(f"s_add_u32 s{sXOFF}, s{sXOFF}, s{sT1}")
    a(f"s_lshl_b32 s{sSLOT}, s{sT0}, 13")
    a(f"s_lshl_b32 s{sT3}, s{sT0}, 12")
    a(f"s_add_u32 s{sT3}, s{sT3}, {g.XB}")

    def mid():
        ticket_end(a, "proj", 4, TKT)
        a(f"v_mul_lo_u32 v1, v10, s{sWSTR}")
        a("v_lshlrev_b32 v3, 2, v10")
        a("v_and_b32 v7, 15, v0")
        a("v_xor_b32 v3, v3, v7")
        a(f"v_lshl_add_u32 v{vW[0]}, v3, 4, v1")
        a(f"s_lshl_b32 s{sT1}, s{sWSTR}, 2")
        a(f"s_sub_u32 s{sT1}, s{sT1}, 1024")
        for i in range(1, 4):
            a(f"v_add_u32 v{vW[i]}, s{sT1}, v{vW[i - 1]}")
        a(f"s_sub_u32 s{sWOFF}, s{sSEC}, 1")
        a(f"s_max_i32 s{sWOFF}, s{sWOFF}, 0")
        a(f"s_lshl_b32 s{sWOFF}, s{sWOFF}, 11")
        a(f"s_mul_i32 s{sT1}, s{sT0}, s{sWSTR}")
        a(f"s_lshl_b32 s{sT1}, s{sT1}, 4")
        a(f"s_add_u32 s{sWOFF}, s{sWOFF}, s{sT1}")
        a(f"s_lshl_b32 s{sWSTG}, s{sWSTR}, 6")
        a(f"s_mul_i32 s{sT1}, s{sK}, s{sWSTG}")
        a(f"s_add_u32 s{sWOFF}, s{sWOFF}, s{sT1}")
        ticket_wait(a, "proj", TKT, "L_proj_lredo")
        stamp_mid(a, 2)
        a(f"s_lshl_b32 s{sT1}, s{sNT}, 8")
        a(f"s_add_u32 s{sWOFF}, s{sWOFF}, s{sT1}")
        a(f"s_cmp_ge_u32 s{sNT}, 4")
        srd_sel(a, SRD_WK, 22, 20, 0x10000)
        a(f"s_bfe_u32 s{sT1}, s{sNT}, 0x10001")
        a(f"s_lshl_b32 s{sT1}, s{sT1}, 5")
        a(f"s_lshl_b32 s{sEXO}, s{sT0}, 11")
        a(f"s_add_u32 s{sEXO}, s{sEXO}, s{sT1}")
        a(f"s_lshl_b32 s{sT1}, s{sK}, 12")
        a(f"s_add_u32 s{sEXO}, s{sEXO}, s{sT1}")
        a(f"s_mul_i32 s{sEXS}, s{sT0}, {4096 - 1024}")
        a(f"s_sub_u32 s{sEXS}, 16384, s{sEXS}")
        a(f"s_cmp_lt_u32 s{sT0}, 2")
        a(f"s_cselect_b32 s{sCOL0}, 1, 0")
        a(f"s_cmp_eq_u32 s{sSEC}, 0")
        a(f"s_cselect_b32 s{sCOL0}, s{sCOL0}, 0")

    def after_bar0():
        ticket_notes(a, "proj", 4)
        if OPT["pf"]:
            a(f"s_lshr_b32 s{sOI}, s2, 3")
            a(f"s_and_b32 s{sT0}, s{sWAVE}, 3")
            proj_pf_setup(a, "projB", sG, sOI, sT0)
            if OPT["p0"] != 2:
                pf_adv(a)

    g.mid, g.after_bar0 = mid, after_bar0
    gemm_loader(a, g, "proj", vX, vW)
    a.label("L_proj_compute")
    a(f"s_lshr_b32 s{sT0}, s{sWAVE}, 1")
    a(f"s_and_b32 s{sT1}, s{sWAVE}, 1")
    a("v_and_b32 v1, 31, v0")
    a("v_lshlrev_b32 v1, 7, v1")
    a(f"s_lshl_b32 s{sT2}, s{sT0}, 14")
    a(f"v_add_u32 v1, s{sT2}, v1")
    a("v_bfe_u32 v2, v0, 1, 3")
    a("v_lshrrev_b32 v3, 5, v0")
    for t in range(4):
        a(f"v_add_u32 v14, {2 * t}, v3")
        a("v_xor_b32 v14, v14, v2")
        a(f"v_lshl_add_u32 v{g.vXA + t}, v14, 4, v1")
    a("v_bfe_u32 v2, v0, 2, 2")
    a("v_lshl_add_u32 v1, v3, 3, v2")
    a("v_lshlrev_b32 v1, 8, v1")
    a("v_bfe_u32 v14, v0, 4, 1")
    a("v_lshl_add_u32 v1, v14, 5, v1")
    a("v_and_b32 v14, 3, v0")
    a("v_lshl_add_u32 v1, v14, 3, v1")
    a(f"v_add_u32 v1, {g.XB}, v1")
    a(f"s_lshl_b32 s{sT2}, s{sT1}, 1")
    for j in range(2):
        a(f"s_add_u32 s{sT3}, s{sT2}, {j}")
        a(f"v_xor_b32 v14, s{sT3}, v2")
        a(f"v_lshl_add_u32 v{g.vWA + j}, v14, 6, v1")
    a(f"v_lshlrev_b32 v{g.vST}, 4, v0")
    a("v_and_b32 v1, 15, v0")
    a("v_lshlrev_b32 v1, 7, v1")
    a(f"s_lshl_b32 s{sT2}, s{sWAVE}, 12")
    a(f"v_add_u32 v1, s{sT2}, v1")
    a("v_bfe_u32 v2, v0, 1, 3")
    a("v_lshrrev_b32 v3, 4, v0")
    for e in range(2):
        a(f"v_add_u32 v14, {4 * e}, v3")
        a("v_xor_b32 v14, v14, v2")
        a(f"v_lshl_add_u32 v{g.vEXX + e}, v14, 4, v1")
    a("v_bfe_u32 v2, v0, 2, 2")
    a("v_lshl_add_u32 v1, v3, 3, v2")
    a("v_lshlrev_b32 v1, 5, v1")
    a("v_and_b32 v14, 3, v0")
    a("v_lshl_add_u32 v1, v14, 3, v1")
    a(f"v_add_u32 v{g.vEXW}, {g.XB + 16384}, v1")
    for r in range(g.nacc):
        a(f"v_mov_b32 v{g.ACC + r}, 0")
    for r in range(8):
        a(f"v_mov_b32 v{g.EXACC + r}, 0")

    a.label("L_proj_cstart")
    ticket_wait(a, "proj", TKT, "L_proj_credo")
    stamp_mid(a, 2)
    decode()

    a(f"s_lshr_b32 s{sT0}, s{sWAVE}, 1")
    a(f"s_and_b32 s{sT1}, s{sWAVE}, 1")
    a(f"s_and_b32 s{sT2}, s{sNT}, 1")
    a(f"s_lshl_b32 s{sT2}, s{sT2}, 14")
    for e in range(2):
        a(f"v_add_u32 v{g.vEXX + e}, s{sT2}, v{g.vEXX + e}")
    a(f"s_lshl_b32 s{sT2}, s{sNT}, 2")
    a(f"s_lshl_b32 s{sT3}, s{sT1}, 1")
    a(f"s_add_u32 s{sT2}, s{sT2}, s{sT3}")
    a(f"s_lshr_b32 s{sT3}, s{sM0}, 5")
    a(f"s_lshl_b32 s{sOBASE}, s{sT0}, 2")
    a(f"s_add_u32 s{sT3}, s{sT3}, s{sOBASE}")
    a(f"s_cmp_le_u32 s{sSEC}, 1")
    csel(a, sOJ, 0x20000, 0x40000)
    csel(a, sOI, 2048, 4096)
    a(f"s_cselect_b32 s{sSCALE}, {f32bits(QSCALE):#x}, 1.0")
    a(f"s_mov_b32 s{sSCALE+1}, s{sSCALE}")
    a(f"s_mul_i32 s{sOBASE}, s{sT2}, s{sOJ}")
    a(f"s_mul_i32 s{sT3}, s{sT3}, s{sOI}")
    a(f"s_add_u32 s{sOBASE}, s{sOBASE}, s{sT3}")
    a(f"s_mov_b32 s{sT2}, {WS_QA:#x}")
    for sec, base in ((1, WS_QB), (2, WS_KVB), (3, WS_KVB + 2048)):
        a(f"s_cmp_eq_u32 s{sSEC}, {sec}")
        a(f"s_cmov_b32 s{sT2}, {base:#x}")
    a(f"s_add_u32 s{sOBASE}, s{sOBASE}, s{sT2}")
    a(f"s_cmp_lg_u32 s{sSEC}, 2")
    a("s_cbranch_scc1 L_proj_nok")
    a("v_and_b32 v1, 0x33, v0")
    a("v_bfe_u32 v2, v0, 2, 1")
    a("v_lshl_or_b32 v1, v2, 3, v1")
    a("v_bfe_u32 v2, v0, 3, 1")
    a("v_lshl_or_b32 v1, v2, 2, v1")
    a(f"v_lshlrev_b32 v{g.vST}, 4, v1")
    a.label("L_proj_nok")
    a(f"s_cmp_eq_u32 s{sSEC}, 3")
    a("s_cbranch_scc1 L_proj_V")
    a(f"s_cmp_eq_u32 s{sSEC}, 0")
    a("s_cbranch_scc0 L_proj_QK")
    a(f"s_cmp_ge_u32 s{sNT}, 4")
    a("s_cbranch_scc1 L_proj_AV")

    st = OPT["st1"]

    def epi(scale):
        a("s_nop 7")
        a("s_nop 7")
        for i in range(g.NI):
            for j in range(g.NJ):
                c = g.acc(i, j)
                t = g.F[0] + ((i * g.NJ + j) & 1) * 8
                if scale:
                    for r in range(0, 16, 2):
                        a(f"v_pk_mul_f32 {vr(c + r, 2)}, {vr(c + r, 2)}, {sr(sSCALE, 2)}")
                for r in range(8):
                    a(f"v_cvt_pk_bf16_f32 v{t + r}, v{c + 2 * r}, v{c + 2 * r + 1}")
                a(f"s_mul_i32 s{sT0}, s{sOJ}, {j}")
                a(f"s_mul_i32 s{sT1}, s{sOI}, {i}")
                a(f"s_add_u32 s{sT0}, s{sT0}, s{sT1}")
                a(f"s_add_u32 s{sT0}, s{sT0}, s{sOBASE}")
                a(f"buffer_store_dwordx4 {vr(t, 4)}, v{g.vST}, {sr(SRD_WS)}, s{sT0} offen{st}")
                a(f"buffer_store_dwordx4 {vr(t + 4, 4)}, v{g.vST}, {sr(SRD_WS)}, s{sT0} offen offset:1024{st}")

    def epi_extra(part):
        if part == "K":
            a("v_and_b32 v1, 3, v0")
            a("v_bfe_u32 v2, v0, 2, 1")
            a("v_lshl_or_b32 v1, v2, 3, v1")
            a("v_bfe_u32 v2, v0, 3, 1")
            a("v_lshl_or_b32 v1, v2, 2, v1")
        else:
            a("v_and_b32 v1, 15, v0")
        a("v_lshlrev_b32 v1, 4, v1")
        a("v_bfe_u32 v2, v0, 4, 1")
        a("v_lshl_add_u32 v1, v2, 9, v1")
        a("v_lshrrev_b32 v2, 5, v0")
        a("v_lshl_add_u32 v1, v2, 3, v1")
        a(f"s_lshr_b32 s{sT0}, s{sM0}, 5")
        a(f"s_add_u32 s{sT0}, s{sT0}, s{sWAVE}")
        a(f"s_and_b32 s{sT1}, s{sNT}, 1")
        a(f"s_lshl_b32 s{sT1}, s{sT1}, 2")
        a(f"s_add_u32 s{sT0}, s{sT0}, s{sT1}")
        a(f"s_lshl_b32 s{sT0}, s{sT0}, 12")
        a(f"s_add_u32 s{sT0}, s{sT0}, {WS_KVA + (2048 if part == 'V' else 0):#x}")
        a(f"s_bfe_u32 s{sT1}, s{sNT}, 0x10001")
        a(f"s_lshl_b32 s{sT1}, s{sT1}, {10 if part == 'K' else 8}")
        a(f"s_add_u32 s{sT0}, s{sT0}, s{sT1}")
        for th in range(2):
            c = g.EXACC + 4 * th
            if part == "K":
                for r in range(0, 4, 2):
                    a(f"v_pk_mul_f32 {vr(c + r, 2)}, {vr(c + r, 2)}, {sr(sSCALE, 2)}")
            a(f"v_cvt_pk_bf16_f32 v{g.EXF + 2 * th}, v{c}, v{c + 1}")
            a(f"v_cvt_pk_bf16_f32 v{g.EXF + 2 * th + 1}, v{c + 2}, v{c + 3}")
            a(f"buffer_store_dwordx2 {vr(g.EXF + 2 * th, 2)}, v1, {sr(SRD_WS)}, s{sT0} offen offset:{th * (256 if part == 'K' else 1024)}{st}")

    for lbl, tag, swap, ex, scale in ((None, "proj_AK", False, "K", False), ("L_proj_AV", "proj_AV", False, "V", False),
                                      ("L_proj_QK", "proj_QK", False, None, True), ("L_proj_V", "proj_V", True, None, False)):
        if lbl:
            a.label(lbl)
        gemm_compute(a, g, tag, swap, ex)
        if ex:
            a("s_nop 7")
            epi_extra(ex)
        epi(scale)
        stamp_end(a, 0)
        a("s_endpgm")

    ticket_redo(a, "proj", "L_proj_credo", "L_proj_cstart")
    ticket_redo(a, "proj", "L_proj_lredo", "L_proj_lstart")
    a.label("L_proj_end")
    a("s_endpgm")
    return a.text(), kernel_desc("proj_kernel", g.nvgpr), g.lds, 512


def gen_outp():
    g = G("outp")
    a = A()
    kernel_head(a, "outp_kernel")
    entry(a, "outp")
    hint_load(a, "outp")
    stamp_mid(a, 2)
    hint_claim(a, "outp", 4)
    a(f"s_andn2_b32 s{sSEC}, 1, s2")
    a(f"s_bfe_u32 s{sT0}, s2, 0x20001")
    a(f"s_lshl_b32 s{sT0}, s{sT0}, 2")
    a(f"s_bfe_u32 s{sT1}, s2, 0x20003")
    a(f"s_add_u32 s{sM0}, s{sT0}, s{sT1}")
    a(f"s_lshr_b32 s{sNT}, s2, 5")
    a(f"s_cmp_lt_u32 s{sWAVE}, 4")
    a("s_cbranch_scc1 L_outp_compute")
    vX = list(range(20, 20 + g.XP))
    vW = list(range(24, 24 + g.WP))
    srd(a, SRD_X, S_WS, WS_SIZE - (OPT["wsb"] << 20))
    a(f"s_cmp_eq_u32 s{sSEC}, 0")
    srd_sel(a, SRD_W, 24, 30, 0x200000)
    csel(a, sXOFF, WS_OA, WS_OB)
    a(f"s_add_u32 s{sT0}, s{sWAVE}, s{sHW}" if OPT["lrot"] else f"s_mov_b32 s{sT0}, s{sWAVE}")
    a(f"s_and_b32 s{sT0}, s{sT0}, {g.NL - 1}")
    a("v_lshlrev_b32 v4, 4, v0")
    a("v_lshrrev_b32 v2, 4, v0")
    a("v_lshlrev_b32 v1, 11, v2")
    a("v_lshlrev_b32 v3, 2, v2")
    a("v_and_b32 v7, 15, v0")
    a("v_xor_b32 v3, v3, v7")
    a(f"v_lshl_add_u32 v{vW[0]}, v3, 4, v1")
    for i in range(1, g.WP):
        a(f"v_add_u32 v{vW[i]}, {i * (8192 - 1024)}, v{vW[0]}")
    a(f"s_lshl_b32 s{sT1}, s{sM0}, 18")
    a(f"s_add_u32 s{sXOFF}, s{sXOFF}, s{sT1}")
    a(f"s_mul_i32 s{sSLOT}, s{sT0}, {g.XP * 1024}")
    a(f"s_add_u32 s{sXOFF}, s{sXOFF}, s{sSLOT}")
    a(f"s_mul_i32 s{sWOFF}, s{sT0}, {g.WP * 8192}")
    a(f"s_lshl_b32 s{sT1}, s{sNT}, 8")
    a(f"s_add_u32 s{sWOFF}, s{sWOFF}, s{sT1}")
    a(f"s_mov_b32 s{sWSTG}, {64 * 2048}")
    a(f"s_mul_i32 s{sT3}, s{sT0}, {g.WP * 1024}")
    a(f"s_add_u32 s{sT3}, s{sT3}, {g.XB}")
    for i in range(g.XP):
        a(f"v_mov_b32 v{vX[i]}, v4")
    a(f"s_mov_b32 s{sEXO}, 16384")
    if OPT["swap3"]:
        a(f"s_bitcmp1_b32 s{sHW}, 2")
        a("s_cbranch_scc0 L_outp_noswap")
        for i in range(g.XP):
            a(f"v_swap_b32 v{vX[i]}, v{vW[i]}")
        for x, y in [(SRD_X + i, SRD_W + i) for i in range(3)] + [(sXOFF, sWOFF), (sEXO, sWSTG), (sSLOT, sT3)]:
            a(f"s_mov_b32 s{sT1}, s{x}")
            a(f"s_mov_b32 s{x}, s{y}")
            a(f"s_mov_b32 s{y}, s{sT1}")
        a.label("L_outp_noswap")
    gemm_loader(a, g, "outp", vX, vW)
    a.label("L_outp_compute")
    srd(a, SRD_OUT, S_OUT, 0x800000)
    a(f"s_lshr_b32 s{sT0}, s{sWAVE}, 1")
    a(f"s_and_b32 s{sT1}, s{sWAVE}, 1")
    a(f"s_lshl_b32 s{sT2}, s{sT0}, 13")
    a("v_lshlrev_b32 v1, 4, v0")
    a(f"v_add_u32 v{g.vXA}, s{sT2}, v1")
    a("v_lshrrev_b32 v3, 5, v0")
    a("v_bfe_u32 v2, v0, 2, 2")
    a("v_lshl_add_u32 v1, v3, 2, v2")
    a("v_lshlrev_b32 v1, 8, v1")
    a("v_and_b32 v14, 1, v0")
    a("v_lshl_add_u32 v1, v14, 5, v1")
    a("v_bfe_u32 v14, v0, 4, 1")
    a("v_lshl_add_u32 v1, v14, 4, v1")
    a("v_bfe_u32 v14, v0, 1, 1")
    a("v_lshl_add_u32 v1, v14, 3, v1")
    a(f"v_add_u32 v1, {g.XB}, v1")
    a(f"s_lshl_b32 s{sT2}, s{sT1}, 1")
    for j in range(2):
        a(f"s_add_u32 s{sT3}, s{sT2}, {j}")
        a(f"v_xor_b32 v14, s{sT3}, v2")
        a(f"v_lshl_add_u32 v{g.vWA + j}, v14, 6, v1")
    a(f"s_lshl_b32 s{sT2}, s{sM0}, 1")
    a(f"s_add_u32 s{sT2}, s{sT2}, s{sT0}")
    a(f"s_lshl_b32 s{sOBASE}, s{sT2}, 18")
    a(f"s_lshl_b32 s{sT2}, s{sSEC}, 11")
    a(f"s_add_u32 s{sOBASE}, s{sOBASE}, s{sT2}")
    a(f"s_lshl_b32 s{sT2}, s{sNT}, 8")
    a(f"s_add_u32 s{sOBASE}, s{sOBASE}, s{sT2}")
    a(f"s_lshl_b32 s{sT2}, s{sT1}, 7")
    a(f"s_add_u32 s{sOBASE}, s{sOBASE}, s{sT2}")
    vWR, vRD = 10, 11
    if OPT["epi3"]:
        a("v_and_b32 v1, 31, v0")
        a("v_lshlrev_b32 v2, 7, v1")
        a(f"s_lshl_b32 s{sT2}, s{sWAVE}, 13")
        a(f"v_add_u32 v2, s{sT2}, v2")
        a("v_and_b32 v1, 7, v0")
        a("v_lshlrev_b32 v14, 1, v3")
        a("v_xor_b32 v14, v14, v1")
        a(f"v_lshl_add_u32 v{vWR}, v14, 4, v2")
        a("v_lshrrev_b32 v2, 3, v0")
        a("v_xor_b32 v14, v2, v1")
        a("v_lshlrev_b32 v14, 4, v14")
        a("v_lshl_add_u32 v14, v2, 7, v14")
        a(f"v_add_u32 v{vRD}, s{sT2}, v14")
        a("v_lshlrev_b32 v2, 12, v2")
        a(f"v_lshl_add_u32 v{g.vST}, v1, 4, v2")
    else:
        a("v_and_b32 v1, 31, v0")
        a("v_lshlrev_b32 v1, 12, v1")
        a(f"v_lshl_add_u32 v{g.vST}, v3, 5, v1")
    for r in range(g.nacc):
        a(f"v_mov_b32 v{g.ACC + r}, 0")
    gemm_compute(a, g, "outp", False, None, check="outp")
    a("s_nop 7")
    a("s_nop 7")
    if OPT["epi3"]:
        for j in range(2):
            for e in range(2):
                a(f"v_xor_b32 v{4 + 2 * j + e}, {(4 * j + e) * 16}, v{vWR}")
        for i in range(g.NI):
            for j in range(g.NJ):
                c = g.acc(i, j)
                t = g.F[0] + (i * g.NJ + j) * 8
                for r in range(8):
                    a(f"v_cvt_pk_bf16_f32 v{t + r}, v{c + 2 * r}, v{c + 2 * r + 1}")
                for e in range(2):
                    a(f"ds_write_b128 v{4 + 2 * j + e}, {vr(t + 4 * e, 4)} offset:{4096 * i}")
        a("s_waitcnt lgkmcnt(0)")
        for k in range(8):
            a(f"ds_read_b128 {vr(g.ACC + 4 * k, 4)}, v{vRD} offset:{1024 * k}")
        for k in range(8):
            a(f"s_add_u32 s{sT0}, s{sOBASE}, {k * 8 * 4096}")
            a(f"s_waitcnt lgkmcnt({7 - k})")
            a(f"buffer_store_dwordx4 {vr(g.ACC + 4 * k, 4)}, v{g.vST}, {sr(SRD_OUT)}, s{sT0} offen{OPT['st3']}")
    else:
        for i in range(g.NI):
            for j in range(g.NJ):
                c = g.acc(i, j)
                t = g.F[0] + ((i * g.NJ + j) & 1) * 8
                for r in range(8):
                    a(f"v_cvt_pk_bf16_f32 v{t + r}, v{c + 2 * r}, v{c + 2 * r + 1}")
                a(f"s_add_u32 s{sT0}, s{sOBASE}, {i * 32 * 4096}")
                a(f"buffer_store_dwordx4 {vr(t, 4)}, v{g.vST}, {sr(SRD_OUT)}, s{sT0} offen offset:{64 * j}")
                a(f"buffer_store_dwordx4 {vr(t + 4, 4)}, v{g.vST}, {sr(SRD_OUT)}, s{sT0} offen offset:{64 * j + 16}")
    stamp_end(a, 2)
    a("s_endpgm")
    hint_slow(a, "outp")
    a.label("L_outp_end")
    a("s_endpgm")
    return a.text(), kernel_desc("outp_kernel", g.nvgpr), g.lds, 256 + 64 * g.NL


def gen_attn():
    a = A()
    kernel_head(a, "attn_kernel")
    vL16, vK, vKN, IDX = 1, 2, 3, 4
    T0, T1, T2, T3 = 5, 6, 7, 8
    vPF, vPFD, vHD = 9, 10, 11
    ONES = 12
    Q, P, KF, VF, L = [16, 24], [32, 40], [48, 56], [64, 72], [80, 84]
    S, NEG, O = [96, 112], [128, 144], [160, 176]
    NV = 192
    SRD, SRDW = SRD_WS, 36
    sQB, sKV, sOB, sST, sSL, sDM, sGO, sPF, sPFC, sFIRST = 61, 62, 63, 64, 65, 66, 67, 68, 69, 70
    t0, t1, t2, t3 = sT0, sT1, sT2, sT3
    TILES = 8
    STG = TILES * 4096
    NSLOT = 3
    NSTG = 64 // TILES
    FLAG = NSLOT * STG
    lds = FLAG + 64

    entry(a, "attn")
    a(f"v_lshlrev_b32 v{vL16}, 4, v0")
    hint_load(a, "attn")
    stamp_mid(a, 2)
    hint_claim(a, "attn", 0)
    a(f"s_lshr_b32 s{t0}, s2, 3")
    a(f"s_bfe_u32 s{t2}, s2, 0x20001")
    a(f"s_lshl_b32 s{t2}, s{t2}, 4")
    a(f"s_lshl_b32 s{t3}, s{sWAVE}, 1")
    a(f"s_add_u32 s{t2}, s{t2}, s{t3}")
    a(f"s_lshl_b32 s{sKV}, s{t0}, 18")
    a(f"s_add_u32 s{sKV}, s{sKV}, {WS_KVB:#x}")
    a(f"s_lshl_b32 s{sQB}, s{t0}, 17")
    a(f"s_lshl_b32 s{t3}, s{t2}, 11")
    a(f"s_add_u32 s{sQB}, s{sQB}, s{t3}")
    a("s_bitcmp1_b32 s2, 0")
    a(f"s_cmov_b32 s{sKV}, {WS_KVA:#x}")
    a(f"s_cselect_b32 s{t3}, {WS_QA:#x}, {WS_QB:#x}")
    a(f"s_or_b32 s{sQB}, s{sQB}, s{t3}")

    def qloads():
        for q in range(2):
            for c in range(2):
                a(f"buffer_load_dwordx4 {vr(Q[q] + 4 * c, 4)}, v{vL16}, {sr(SRD)}, s{sQB} offen offset:{2048 * q + 1024 * c}")

    stamp_mid(a, 3)
    a(f"s_and_b32 s{t3}, s{sWAVE}, 3")
    a(f"s_lshl_b32 s{t3}, s{t3}, 11")
    a(f"s_add_u32 s{t1}, s{sKV}, s{t3}")

    def grp_dma(grp):
        a(f"s_add_u32 m0, s{t3}, {8192 * grp}")
        a(f"s_add_u32 s{sGO}, s{t1}, {8192 * grp}")
        for c in range(2):
            a(f"buffer_load_dwordx4 v{vL16}, {sr(SRD)}, s{sGO} offen offset:{1024 * c} lds")

    a(f"s_cmp_ge_u32 s{sWAVE}, 4")
    a("s_cbranch_scc1 L_attn_young")
    grp_dma(0)
    qloads()
    a("s_branch L_attn_issued")
    a.label("L_attn_young")
    grp_dma(1)
    if OPT["k2s"]:
        grp_dma(2)
    qloads()
    if not OPT["k2s"]:
        grp_dma(2)
    grp_dma(3)
    a.label("L_attn_issued")
    stamp_mid(a, 4)
    a(f"s_lshr_b32 s{t3}, s{t2}, 2")
    a(f"s_lshl_b32 s{sOB}, s{t3}, 18")
    a(f"s_and_b32 s{t3}, s{t2}, 3")
    a(f"s_lshl_b32 s{t3}, s{t3}, 12")
    a(f"s_add_u32 s{sOB}, s{sOB}, s{t3}")
    a(f"s_lshr_b32 s{t3}, s{t0}, 1")
    a(f"s_lshl_b32 s{t3}, s{t3}, 14")
    a(f"s_add_u32 s{sOB}, s{sOB}, s{t3}")
    a(f"s_and_b32 s{t3}, s{t0}, 1")
    a(f"s_lshl_b32 s{t3}, s{t3}, 11")
    a(f"s_add_u32 s{sOB}, s{sOB}, s{t3}")
    a("s_bitcmp1_b32 s2, 0")
    csel(a, t3, WS_OA, WS_OB)
    srd_sel(a, SRDW, 24, 30, 0x200000)
    a(f"s_add_u32 s{sOB}, s{sOB}, s{t3}")
    a(f"s_lshl_b32 s{sPF}, s{t0}, 3")
    a(f"s_add_u32 s{sPF}, s{sPF}, s{sWAVE}")
    a(f"s_lshl_b32 s{sPF}, s{sPF}, 13")
    a(f"v_lshlrev_b32 v{vPF}, 7, v0")
    a(f"s_lshl_b32 s{sDM}, s{sWAVE}, 12")
    a(f"s_add_u32 s{sDM}, s{sDM}, {STG}")
    a(f"s_add_u32 s{sGO}, s{sKV}, s{sDM}")
    a(f"v_and_b32 v{T0}, 3, v0")
    a(f"v_bfe_u32 v{T1}, v0, 2, 1")
    a(f"v_or_b32 v{T2}, v{T0}, v{T1}")
    a(f"v_xor_b32 v{T1}, 1, v{T1}")
    a(f"v_or_b32 v{T3}, v{T0}, v{T1}")
    a(f"v_mov_b32 v{T0}, 0x3f803f80")
    a(f"v_cmp_eq_u32 vcc, 0, v{T2}")
    a("s_nop 1")
    a(f"v_cndmask_b32 v{ONES}, 0, v{T0}, vcc")
    a(f"v_cndmask_b32 v{ONES + 1}, 0, v{T0}, vcc")
    a(f"v_cmp_eq_u32 vcc, 0, v{T3}")
    a("s_nop 1")
    a(f"v_cndmask_b32 v{ONES + 2}, 0, v{T0}, vcc")
    a(f"v_cndmask_b32 v{ONES + 3}, 0, v{T0}, vcc")
    a(f"v_mov_b32 v{IDX}, 0xdddddddd")
    for q in range(2):
        for r in range(16):
            a(f"v_mov_b32 v{O[q] + r}, 0")
        for r in range(4):
            a(f"v_mov_b32 v{L[q] + r}, 0")
    for r in range(8):
        a(f"v_mov_b32 v{VF[1] + r}, 0")
    a(f"v_mov_b32 v{vK}, v{vL16}")
    a(f"v_add_u32 v{vKN}, {STG}, v{vL16}")

    def kread(kt):
        reg, k = (vK, kt) if kt < TILES else (vKN, kt - TILES)
        return [f"ds_read_b128 {vr(KF[kt & 1] + 4 * c, 4)}, v{reg} offset:{4096 * k + 1024 * c}" for c in range(2)]

    def vread(kt):
        reg, k = (vK, kt) if kt < TILES else (vKN, kt - TILES)
        return [f"ds_read_b128 {vr(VF[kt & 1] + 4 * c, 4)}, v{reg} offset:{4096 * k + 2048 + 1024 * c}" for c in range(2)]

    dma_ins = [f"buffer_load_dwordx4 v{vL16}, {sr(SRD)}, s{sGO} offen offset:{1024 * c} lds" for c in range(4)]

    def dma_adv():
        a(f"s_add_u32 s{sGO}, s{sGO}, {STG}")
        a(f"s_add_u32 s{sDM}, s{sDM}, {STG}")
        a(f"s_cmp_ge_u32 s{sDM}, {NSLOT * STG}")
        a(f"s_cselect_b32 s{t0}, {NSLOT * STG}, 0")
        a(f"s_sub_u32 s{sDM}, s{sDM}, s{t0}")

    a(f"s_cmp_lt_u32 s{sWAVE}, 4")
    a(f"s_cselect_b32 s{sFIRST}, 1, 2")
    a("s_cbranch_scc0 L_attn_b0y")
    a("s_waitcnt vmcnt(4)")
    a("s_barrier")
    a.many(kread(0) + vread(0) + kread(1))
    stamp_mid(a, 0)
    a("s_waitcnt vmcnt(0)")
    a("s_branch L_attn_b0")
    a.label("L_attn_b0y")
    a("s_barrier")
    a("s_waitcnt vmcnt(8)")
    a("s_barrier")
    if OPT["k2s"]:
        a("s_waitcnt vmcnt(6)")
        a("s_barrier")
    a.many(kread(0) + vread(0) + kread(1))
    stamp_mid(a, 0)
    a(f"s_waitcnt vmcnt({2 if OPT['k2s'] else 4})")
    a.label("L_attn_b0")
    stamp_mid(a, 5)
    a(f"s_mov_b32 m0, s{sDM}")
    a("s_waitcnt lgkmcnt(4)")
    for q in range(2):
        a(f"{MF32} {vr(S[q], 16)}, {vr(KF[0], 4)}, {vr(Q[q], 4)}, 0")
        a(dma_ins[2 * q])
        a(f"{MF32} {vr(S[q], 16)}, {vr(KF[0] + 4, 4)}, {vr(Q[q] + 4, 4)}, {vr(S[q], 16)}")
        a(dma_ins[2 * q + 1])
    dma_adv()
    a(f"s_mov_b32 s{sST}, 0")
    a(f"s_mov_b32 s{sSL}, {STG}")
    a("s_nop 5")
    for q in range(2):
        s, t = S[q], T0 + 2 * q
        a(f"v_max3_f32 v{t}, v{s}, v{s + 1}, v{s + 2}")
        for r in range(3, 15, 2):
            a(f"v_max3_f32 v{t}, v{s + r}, v{s + r + 1}, v{t}")
        a(f"v_max_f32 v{t}, v{s + 15}, v{t}")
        a(f"v_mov_b32 v{t + 1}, v{t}")
    a("s_nop 1")
    for q in range(2):
        a(f"v_permlane32_swap_b32 v{T0 + 2 * q}, v{T0 + 2 * q + 1}")
    a("s_nop 1")
    for q in (1, 0):
        t = T0 + 2 * q
        a(f"v_max_f32 v{t}, v{t}, v{t + 1}")
        for r in range(16):
            a(f"v_sub_f32 v{NEG[q] + r}, 0, v{t}")
    for r in range(16):
        a(f"v_sub_f32 v{S[0] + r}, v{S[0] + r}, v{T0}")
    for r in range(8, 16):
        a(f"v_mov_b32 v{S[1] + r}, 0")

    SM32, SM16 = "v_smfmac_f32_32x32x32_bf16", "v_smfmac_f32_16x16x64_bf16"

    def step(u, fill=()):
        q, kt = u & 1, u >> 1
        qp, ktn, ktp = q ^ 1, (u + 1) >> 1, (u - 1) >> 1
        cur, nxt = S[q], S[qp]
        rd = vread(kt + 1) if q == 0 else kread(kt + 2)
        d = dict(
            QK0=f"{MF32} {vr(nxt, 16)}, {vr(KF[ktn & 1], 4)}, {vr(Q[qp], 4)}, {vr(NEG[qp], 16)}",
            QK1=f"{MF32} {vr(nxt, 16)}, {vr(KF[ktn & 1] + 4, 4)}, {vr(Q[qp] + 4, 4)}, {vr(nxt, 16)}",
            PV0=f"{SM32} {vr(O[q], 16)}, {vr(VF[kt & 1], 4)}, {vr(cur, 8)}, v{IDX}",
            PV1=f"{SM32} {vr(O[qp], 16)}, {vr(VF[ktp & 1] + 4, 4)}, {vr(nxt + 8, 8)}, v{IDX}",
            S0=f"{SM16} {vr(L[q], 4)}, {vr(ONES, 4)}, {vr(cur, 8)}, v{IDX}",
            S1=f"{SM16} {vr(L[qp], 4)}, {vr(ONES, 4)}, {vr(nxt + 8, 8)}, v{IDX}",
            R0=rd[0], R1=rd[1], N="s_nop 0" if q == 1 else None,
            Wq="s_waitcnt lgkmcnt(2)" if q == 1 else None, Wp="s_waitcnt lgkmcnt(3)" if q == 0 else None)
        for i in range(16):
            d[f"E{i}"] = f"v_exp_f32 v{cur + i}, v{cur + i}"
        fill = list(fill) + [None] * 2
        d["F0"], d["F1"] = fill[0], fill[1]
        o = "E0 E1 S1 Wq E2 PV1 F0 E3 E4 E5 QK0 F1 E6 E7 E8 QK1 R0 E9 E10 E11 Wp PV0 R1 E12 E13 E14 S0 N E15"
        for t in o.split():
            x = d[t]
            if x:
                a.many(x if isinstance(x, list) else [x])

    if OPT["lstamp"]:
        stamp_mid(a, 2)
    UB = 2 * TILES - 3
    a.raw(".p2align 3")
    a.label("L_attn_loop")
    a(f"s_cmp_eq_u32 s{sFIRST}, 1")
    for u in range(2 * TILES):
        fill = ()
        if u in (1, 5, 9):
            a(f"s_cbranch_scc1 L_attn_first{u}")
            a.label(f"L_attn_back{u}")
            if u == (5 if OPT["k2s"] else 1):
                a(f"s_cmp_lg_u32 s{sFIRST}, 0")
        if u == UB:
            a("s_waitcnt vmcnt(0)")
            a("s_barrier")
            a(f"s_mov_b32 m0, s{sDM}")
            fill = (dma_ins[0], dma_ins[1])
        if u == UB + 1:
            fill = (dma_ins[2], dma_ins[3])
        if u == UB + 2:
            fill = ([f"s_cmp_eq_u32 s{sST}, {NSTG - 2}", f"s_cselect_b32 s{sPFC}, s{sPF}, 0x7ff00000",
                     f"buffer_load_dword v{vPFD}, v{vPF}, {sr(SRDW)}, s{sPFC} offen"],
                    [f"s_add_u32 s{sGO}, s{sGO}, {STG}", f"s_add_u32 s{sDM}, s{sDM}, {STG}"])
        if (u - UB) % 4 == 0:
            a(f"s_setprio {3 - ((u - UB) % (2 * TILES)) // 4}")
        step(u, fill)
    a(f"s_cmp_ge_u32 s{sDM}, {NSLOT * STG}")
    a(f"s_cselect_b32 s{t0}, {NSLOT * STG}, 0")
    a(f"s_sub_u32 s{sDM}, s{sDM}, s{t0}")
    a(f"s_mov_b32 s{sFIRST}, 0")
    a(f"v_mov_b32 v{vK}, v{vKN}")
    a(f"s_add_u32 s{sSL}, s{sSL}, {STG}")
    a(f"s_cmp_ge_u32 s{sSL}, {NSLOT * STG}")
    a(f"s_cselect_b32 s{sSL}, 0, s{sSL}")
    a(f"v_add_u32 v{vKN}, s{sSL}, v{vL16}")
    if OPT["lstamp"] and STAMP:
        for k_, n_ in ((0, 3), (1, 4), (6, 5)):
            a(f"s_cmp_lg_u32 s{sST}, {k_}")
            a(f"s_cbranch_scc1 L_attn_ls{k_}")
            stamp_mid(a, n_)
            a.label(f"L_attn_ls{k_}")
    a(f"s_add_u32 s{sST}, s{sST}, 1")
    a(f"s_cmp_lt_u32 s{sST}, {NSTG}")
    a("s_cbranch_scc1 L_attn_loop")
    stamp_mid(a, 1)
    tbl_offset(a, t0)
    a(f"v_mov_b32 v{T2}, 0")
    a(f"buffer_load_dword v{vPFD}, v{T2}, {sr(SRD)}, s{t0} offen")
    a(f"{SM32} {vr(O[1], 16)}, {vr(VF[1] + 4, 4)}, {vr(S[1] + 8, 8)}, v{IDX}")
    a(f"{SM16} {vr(L[1], 4)}, {vr(ONES, 4)}, {vr(S[1] + 8, 8)}, v{IDX}")
    a(f"v_mov_b32 v{T2}, 0")
    for q in range(2):
        for r in range(16):
            a(f"v_fmac_f32 v{T2}, 0, v{O[q] + r}")
    a(f"v_max_f32 v{T3}, v{L[0]}, v{L[1]}")
    a(f"v_fmac_f32 v{T2}, 0, v{L[0]}")
    a(f"v_fmac_f32 v{T2}, 0, v{L[1]}")
    a(f"v_add_f32 v{T3}, v{T3}, v{T2}")
    a(f"v_mov_b32 v{T2}, {f32bits(2.0 ** 40):#x}")
    a(f"v_cmp_nle_f32 vcc, v{T3}, v{T2}")
    a("s_waitcnt lgkmcnt(0)")
    a("s_nop 3")
    a("s_cbranch_vccnz L_attn_slow")

    def finish(q, lreg):
        a(f"v_rcp_f32 v{T0}, v{lreg}")
        a("s_nop 0")
        for r in range(16):
            a(f"v_mul_f32 v{O[q] + r}, v{O[q] + r}, v{T0}")
        for r in range(8):
            a(f"v_cvt_pk_bf16_f32 v{P[q] + r}, v{O[q] + 2 * r}, v{O[q] + 2 * r + 1}")
        a(f"s_add_u32 s{t0}, s{sOB}, {4096 * q}")
        for c in range(2):
            a(f"buffer_store_dwordx4 {vr(P[q] + 4 * c, 4)}, v{vL16}, {sr(SRD)}, s{t0} offen offset:{1024 * c}{OPT['st2']}")

    for q in range(2):
        finish(q, L[q])
    stamp_end(a, 1)
    a("s_endpgm")

    for u in (1, 5, 9):
        a.label(f"L_attn_first{u}")
        if u > 1:
            a(f"s_waitcnt vmcnt({6 if u == 5 else 4})")
        if u == 9:
            a(f"s_cmp_lg_u32 s{sWAVE}, 0")
            a("s_cbranch_scc1 L_attn_nov")
            hint_verdict(a, "attn", T0, vHD, FLAG)
            a.label("L_attn_nov")
        a("s_barrier")
        if u == 9:
            hint_read(a, T0, vHD, FLAG)
            a("s_waitcnt lgkmcnt(0)")
            hint_check(a, "attn", vHD)
        a(f"s_branch L_attn_back{u}")

    a.label("L_attn_slow")
    M, LS, AL = 88, 89, 90
    for q in range(2):
        s = S[0]
        a(f"v_mov_b32 v{M}, 0xff7fffff")
        a(f"v_mov_b32 v{LS}, 0")
        for r in range(16):
            a(f"v_mov_b32 v{O[q] + r}, 0")
        a(f"s_mov_b32 s{sGO}, s{sKV}")
        a(f"s_mov_b32 s{sST}, 0")
        a.label(f"L_attn_slow_{q}")
        for c in range(2):
            a(f"buffer_load_dwordx4 {vr(KF[0] + 4 * c, 4)}, v{vL16}, {sr(SRD)}, s{sGO} offen offset:{1024 * c}")
        for c in range(2):
            a(f"buffer_load_dwordx4 {vr(VF[0] + 4 * c, 4)}, v{vL16}, {sr(SRD)}, s{sGO} offen offset:{2048 + 1024 * c}")
        a("s_waitcnt vmcnt(0)")
        a(f"{MF32} {vr(s, 16)}, {vr(KF[0], 4)}, {vr(Q[q], 4)}, 0")
        a(f"{MF32} {vr(s, 16)}, {vr(KF[0] + 4, 4)}, {vr(Q[q] + 4, 4)}, {vr(s, 16)}")
        a("s_nop 7")
        a("s_nop 7")
        a(f"v_max3_f32 v{T0}, v{s}, v{s + 1}, v{M}")
        for r in range(2, 16, 2):
            a(f"v_max3_f32 v{T0}, v{s + r}, v{s + r + 1}, v{T0}")
        a(f"v_mov_b32 v{T1}, v{T0}")
        a("s_nop 1")
        a(f"v_permlane32_swap_b32 v{T0}, v{T1}")
        a("s_nop 1")
        a(f"v_max_f32 v{T0}, v{T0}, v{T1}")
        a(f"v_sub_f32 v{AL}, v{M}, v{T0}")
        a(f"v_exp_f32 v{AL}, v{AL}")
        a(f"v_mov_b32 v{M}, v{T0}")
        for r in range(16):
            a(f"v_sub_f32 v{s + r}, v{s + r}, v{T0}")
        for r in range(16):
            a(f"v_exp_f32 v{s + r}, v{s + r}")
        a(f"v_mul_f32 v{LS}, v{LS}, v{AL}")
        for r in range(16):
            a(f"v_mul_f32 v{O[q] + r}, v{O[q] + r}, v{AL}")
        for r in range(16):
            a(f"v_and_b32 v{s + r}, 0xffff0000, v{s + r}")
        for r in range(16):
            a(f"v_add_f32 v{LS}, v{LS}, v{s + r}")
        a("s_nop 1")
        a(f"{SM32} {vr(O[q], 16)}, {vr(VF[0], 4)}, {vr(s, 8)}, v{IDX}")
        a(f"{SM32} {vr(O[q], 16)}, {vr(VF[0] + 4, 4)}, {vr(s + 8, 8)}, v{IDX}")
        a("s_nop 7")
        a("s_nop 7")
        a(f"s_add_u32 s{sGO}, s{sGO}, 4096")
        a(f"s_add_u32 s{sST}, s{sST}, 1")
        a(f"s_cmp_lt_u32 s{sST}, 64")
        a(f"s_cbranch_scc1 L_attn_slow_{q}")
        a(f"v_mov_b32 v{T1}, v{LS}")
        a("s_nop 1")
        a(f"v_permlane32_swap_b32 v{LS}, v{T1}")
        a("s_nop 1")
        a(f"v_add_f32 v{LS}, v{LS}, v{T1}")
        finish(q, LS)
        a("s_waitcnt vmcnt(0)")
    stamp_end(a, 1)
    a("s_endpgm")
    hint_slow(a, "attn")
    a.label("L_attn_end")
    a("s_endpgm")
    return a.text(), kernel_desc("attn_kernel", NV), lds, 512


HEADER = """; Fused MQA (branch A) + MHA (branch B) attention block, three launches:
;   proj_kernel : Q/K/V projections -> MFMA-fragment-ordered tiles in d_ws
;   attn_kernel : softmax(Q K^T) V per (branch, head, 512 rows)
;   outp_kernel : output projections -> d_out
"""


def main(path):
    ks = [("proj_kernel",) + gen_proj(), ("attn_kernel",) + gen_attn(), ("outp_kernel",) + gen_outp()]
    s = HEADER
    for n, t, d, lds, blk in ks:
        s += f"; @launch kernel={n} grid=(256,1,1) block=({blk},1,1) lds={lds}\n"
    s += '.amdgcn_target "amdgcn-amd-amdhsa--gfx950"\n'
    s += "".join(k[1] for k in ks) + "".join(k[2] for k in ks)
    open(path, "w").write(s)


if __name__ == "__main__":
    args = sys.argv[1:]
    if "--stamp" in args:
        STAMP = True
        args.remove("--stamp")
    for x in list(args):
        if "=" in x:
            k_, v_ = x.split("=")
            assert k_ in OPT, k_
            OPT[k_] = int(v_) if v_.lstrip("-").isdigit() else ("" if v_ == "none" else " " + v_.replace("+", " "))
            args.remove(x)
    main(args[0] if args else f"cdna_kernels/{NAME}.s")
```

```python
import sys, math, struct

NAME = "concat_heads__grouped_kv_mqa__softmax_full_mha__prompt"

WS_QA = 0x0000000
WS_QB = 0x0400000
WS_KVA = 0x0800000
WS_TBL = 0x0900000
WS_CLM = 0x0910000
WS_KVB = 0x1000000
WS_OA = 0x2000000
WS_OB = 0x2400000
WS_STAMP = 0x8000000
WS_SIZE = 268435456

QSCALE = (32 ** -0.5) * math.log2(math.e)
STAMP = False
OPT = dict(pre=16, st1=" sc0 sc1", st2=" sc0 sc1", ld1="", pfb="", pf=1, pf0=0, pfd=2, badtbl=0, lstamp=0, epi3=1, nl3=4, fake16=0, badtk=0, pfirst=1, pwait=0, wsb=0, st3=" nt", k2s=1, p0=2, xfirst=1, rot=0, ks3=2, xp=0, lrot=1, swap3=1, p1e=1, orb=0, twice3=0)

MF32 = "v_mfma_f32_32x32x16_bf16"
MF16 = "v_mfma_f32_16x16x32_bf16"


def f32bits(x):
    return struct.unpack("<I", struct.pack("<f", x))[0]


class A:
    def __init__(self):
        self.l = []

    def __call__(self, s):
        self.l.append("    " + s)

    def many(self, xs):
        for x in xs:
            self(x)

    def label(self, s):
        self.l.append(s + ":")

    def raw(self, s):
        self.l.append(s)

    def text(self):
        return "\n".join(self.l) + "\n"


def vr(b, n):
    return f"v[{b}:{b + n - 1}]"


def sr(b, n=4):
    return f"s[{b}:{b + n - 1}]"


def srd(a, d, lo, size):
    a(f"s_mov_b32 s{d}, s{lo}")
    a(f"s_mov_b32 s{d+1}, s{lo + 1}")
    a(f"s_mov_b32 s{d+2}, {size:#x}")
    a(f"s_mov_b32 s{d+3}, 0x00020000")


def srd_sel(a, d, lo1, lo0, size1, size0=None):
    a(f"s_cselect_b32 s{d}, s{lo1}, s{lo0}")
    a(f"s_cselect_b32 s{d+1}, s{lo1 + 1}, s{lo0 + 1}")
    if size0 is None:
        a(f"s_mov_b32 s{d+2}, {size1:#x}")
    else:
        csel(a, d + 2, size1, size0)
    a(f"s_mov_b32 s{d+3}, 0x00020000")


def csel(a, d, x, y):
    a(f"s_mov_b32 s{d}, {y}")
    a(f"s_cmov_b32 s{d}, {x}")


def kernel_head(a, name):
    a.raw(".text")
    a.raw(f".globl {name}")
    a.raw(".p2align 8")
    a.raw(f".type {name},@function")
    a.label(name)


def kernel_desc(name, nvgpr, nsgpr=102):
    acc = (nvgpr + 3) // 4 * 4
    return f""".section .rodata,"a"
.p2align 6
.amdhsa_kernel {name}
  .amdhsa_next_free_vgpr {nvgpr}
  .amdhsa_next_free_sgpr {nsgpr}
  .amdhsa_accum_offset {acc}
  .amdhsa_group_segment_fixed_size 0
  .amdhsa_kernarg_size 88
  .amdhsa_user_sgpr_count 2
  .amdhsa_user_sgpr_kernarg_segment_ptr 1
  .amdhsa_system_sgpr_workgroup_id_x 1
.end_amdhsa_kernel
"""


sXCC, sHW, sTRY, sTK = 3, 8, 9, 10
SRD_DBG = 12
S_IN = 16
S_OUT = 32
S_WS = 34
SRD_WS = 44
sWAVE = 56
sT0, sT1, sT2, sT3 = 57, 58, 59, 60
sOK = 81


def stamp_begin(a):
    if STAMP:
        a("s_memtime s[82:83]")
        a("s_memrealtime s[84:85]")
        for n in range(6):
            a(f"s_mov_b32 s{90 + 2 * n}, 0")


def stamp_mid(a, n):
    if STAMP:
        a(f"s_memtime s[{90 + 2 * n}:{91 + 2 * n}]")


def stamp_end(a, kidx, keep=0):
    if not STAMP:
        return
    a(f"s_waitcnt vmcnt({keep})")
    a("s_memtime s[86:87]")
    a("s_memrealtime s[88:89]")
    a("s_waitcnt lgkmcnt(0)")
    a(f"s_min_u32 s9, s{sWAVE}, 7")
    a("s_lshl_b32 s8, s2, 3")
    a("s_add_u32 s8, s8, s9")
    a("s_lshl_b32 s8, s8, 6")
    a(f"s_add_u32 s8, s8, {WS_STAMP + kidx * 0x20000:#x}")
    for i, r in enumerate((82, 84, 86, 88, 90, 92, 94, 96, 98, 100, 100, 100)):
        a(f"v_mov_b32 v{4 + i}, s{r}")
    a("v_mov_b32 v1, 0")
    a("s_mov_b64 exec, 1")
    for i in range(3):
        a(f"buffer_store_dwordx4 v[{4 + 4 * i}:{7 + 4 * i}], v1, {sr(SRD_WS)}, s8 offen offset:{16 * i}")


def entry(a, tag):
    a("s_cmp_ge_u32 s2, 256")
    a(f"s_cbranch_scc1 L_{tag}_end")
    stamp_begin(a)
    a(f"s_load_dwordx16 {sr(S_IN, 16)}, s[0:1], 0")
    a(f"s_load_dwordx2 {sr(S_OUT, 2)}, s[0:1], 64")
    a(f"s_load_dwordx2 {sr(SRD_DBG, 2)}, s[0:1], 72")
    a(f"s_load_dwordx2 {sr(S_WS, 2)}, s[0:1], 80")
    a("v_lshrrev_b32 v1, 6, v0")
    a("v_and_b32 v0, 63, v0")
    a(f"v_readfirstlane_b32 s{sWAVE}, v1")
    a(f"s_getreg_b32 s{sXCC}, hwreg(HW_REG_XCC_ID, 0, 3)")
    a(f"s_getreg_b32 s{sHW}, hwreg(HW_REG_HW_ID, 8, 8)")
    a(f"s_mov_b32 s{SRD_DBG + 2}, 256")
    a(f"s_mov_b32 s{SRD_DBG + 3}, 0x00020000")


def ws_reloc(a):
    if OPT["wsb"]:
        a(f"s_add_u32 s{S_WS}, s{S_WS}, {OPT['wsb'] << 20:#x}")
        a(f"s_addc_u32 s{S_WS + 1}, s{S_WS + 1}, 0")


def tbl_offset(a, d):
    a(f"s_lshl_b32 s{d}, s{sXCC}, 8")
    a(f"s_or_b32 s{d}, s{d}, s{sHW}")
    a(f"s_lshl_b32 s{d}, s{d}, 2")
    a(f"s_add_u32 s{d}, s{d}, {WS_TBL:#x}")


sG, sMT = 32, 33


def ticket_issue(a, tag, who):
    a(f"s_mov_b32 s{sG}, s{sXCC}")
    a(f"s_bfe_u32 s{sMT}, s{sHW}, 0x20005")
    if OPT["badtk"]:
        a(f"s_and_b32 s{sMT}, s{sMT}, 1")
        a(f"s_and_b32 s{sG}, s{sG}, 5")
    a(f"s_mov_b32 s{sOK}, 0")
    a(f"s_cmp_lg_u32 s{sWAVE}, {who}")
    a(f"s_cbranch_scc1 L_{tag}_cl0")
    a(f"s_lshl_b32 s{sTK + 1}, s{sG}, 2")
    a(f"s_or_b32 s{sTK + 1}, s{sTK + 1}, s{sMT}")
    a(f"s_lshl_b32 s{sTRY}, s{sTK + 1}, 3")
    a(f"s_mov_b32 s{sTK}, 1")
    a(f"s_atomic_add s{sTK}, {sr(SRD_DBG, 2)}, s{sTRY} glc")
    a.label(f"L_{tag}_cl0")


def ticket_end(a, tag, who, ldsoff):
    a(f"s_cmp_lg_u32 s{sWAVE}, {who}")
    a(f"s_cbranch_scc1 L_{tag}_cl3")
    a(f"s_cmp_lg_u32 s{sOK}, 0")
    a(f"s_cbranch_scc1 L_{tag}_cl3")
    a(f"s_mov_b32 s{sCNT}, 0")
    a.label(f"L_{tag}_cl1")
    a("s_waitcnt lgkmcnt(0)")
    a(f"s_cmp_lt_u32 s{sTK}, 8")
    a(f"s_cbranch_scc1 L_{tag}_cl2")
    a(f"s_add_u32 s{sCNT}, s{sCNT}, 1")
    a(f"s_cmp_ge_u32 s{sCNT}, 32")
    a(f"s_cbranch_scc1 L_{tag}_cl2")
    a(f"s_add_u32 s{sTK + 1}, s{sTK + 1}, 1")
    a(f"s_and_b32 s{sTK + 1}, s{sTK + 1}, 31")
    a(f"s_lshl_b32 s{sTRY}, s{sTK + 1}, 3")
    a(f"s_mov_b32 s{sTK}, 1")
    a(f"s_atomic_add s{sTK}, {sr(SRD_DBG, 2)}, s{sTRY} glc")
    a(f"s_branch L_{tag}_cl1")
    a.label(f"L_{tag}_cl2")
    a(f"s_min_u32 s{sTK}, s{sTK}, 8")
    a(f"s_lshl_b32 s{sTK}, s{sTK}, 5")
    a(f"s_and_b32 s{sTRY}, s{sTK + 1}, 3")
    a(f"s_lshl_b32 s{sTRY}, s{sTRY}, 3")
    a(f"s_or_b32 s{sTK}, s{sTK}, s{sTRY}")
    a(f"s_lshr_b32 s{sTRY}, s{sTK + 1}, 2")
    a(f"s_or_b32 s{sTK}, s{sTK}, s{sTRY}")
    a("s_mov_b64 exec, 1")
    a(f"v_mov_b32 v2, {ldsoff}")
    a(f"v_mov_b32 v3, s{sTK}")
    a("ds_write_b32 v2, v3")
    a("s_mov_b64 exec, -1")
    a("s_waitcnt lgkmcnt(0)")
    a.label(f"L_{tag}_cl3")


def ticket_notes(a, tag, who):
    a(f"s_cmp_lg_u32 s{sWAVE}, {who}")
    a(f"s_cbranch_scc1 L_{tag}_cl4")
    a("s_mov_b64 exec, 1")
    a("v_mov_b32 v1, 0")
    a("v_mov_b32 v3, s2")
    a(f"s_lshl_b32 s{sT1}, s2, 7")
    a(f"s_add_u32 s{sT1}, s{sT1}, {WS_CLM:#x}")
    a(f"buffer_store_dword v1, v1, {sr(SRD_WS)}, s{sT1} offen")
    a(f"s_add_u32 s{sT1}, s{sT1}, 0x8000")
    a(f"buffer_store_dword v1, v1, {sr(SRD_WS)}, s{sT1} offen")
    tbl_offset(a, sT1)
    a(f"buffer_store_dword v3, v1, {sr(SRD_WS)}, s{sT1} offen sc0 sc1")
    a("s_mov_b64 exec, -1")
    a.label(f"L_{tag}_cl4")


def ticket_wait(a, tag, ldsoff, redo):
    a(f"v_mov_b32 v2, {ldsoff}")
    a("s_barrier")
    a("ds_read_b32 v3, v2")
    a(f"s_lshl_b32 s{sT1}, s{sMT}, 3")
    a(f"s_or_b32 s{sT1}, s{sT1}, s{sG}")
    a("s_waitcnt lgkmcnt(0)")
    a("v_readfirstlane_b32 s2, v3")
    a("s_nop 3")
    a(f"s_and_b32 s{sT2}, s2, 0x31f")
    a(f"s_cmp_lg_u32 s{sT2}, s{sT1}")
    a(f"s_cbranch_scc1 {redo}")
    a(f"s_lshr_b32 s{sNT}, s2, 5")


def ticket_redo(a, tag, lbl, back):
    a.label(lbl)
    a("s_waitcnt vmcnt(0)")
    a("s_cmp_ge_u32 s2, 256")
    a(f"s_cbranch_scc1 L_{tag}_end")
    a(f"s_and_b32 s{sG}, s2, 7")
    a(f"s_bfe_u32 s{sMT}, s2, 0x20003")
    a(f"s_mov_b32 s{sOK}, 1")
    a(f"s_branch {back}")


def hint_load(a, tag):
    tbl_offset(a, sTK)
    a("s_waitcnt lgkmcnt(0)")
    ws_reloc(a)
    a(f"s_load_dword s2, {sr(S_WS, 2)}, s{sTK}")
    srd(a, SRD_WS, S_WS, WS_SIZE - (OPT["wsb"] << 20))
    a(f"s_mov_b32 s{sOK}, 0")
    a("s_waitcnt lgkmcnt(0)")
    if OPT["badtbl"]:
        a(f"s_and_b32 s2, s2, {OPT['badtbl']}")
    a("s_and_b32 s2, s2, 255")
    a.label(f"L_{tag}_item")


def clm_base(tag):
    return WS_CLM + (0 if tag == "attn" else 0x8000)


def hint_claim(a, tag, who):
    a(f"s_cmp_lg_u32 s{sWAVE}, {who}")
    a(f"s_cbranch_scc1 L_{tag}_noc")
    a(f"s_lshl_b32 s{sTK + 1}, s2, 7")
    a(f"s_add_u32 s{sTK + 1}, s{sTK + 1}, {clm_base(tag):#x}")
    a(f"s_mov_b32 s{sTK}, 1")
    a(f"s_atomic_or s{sTK}, {sr(S_WS, 2)}, s{sTK + 1} glc")
    a.label(f"L_{tag}_noc")


def hint_verdict(a, tag, vA, vD, ldsoff):
    a("s_waitcnt lgkmcnt(0)")
    a(f"s_andn2_b32 s{sTK}, s{sTK}, s{sOK}")
    if OPT["twice3"] and tag == "outp":
        a(f"s_mov_b32 s{sTK}, 0")
    a(f"s_cmp_lg_u32 s{sTK}, 0")
    a(f"s_mov_b32 s{sTRY}, s2")
    a(f"s_cbranch_scc1 L_{tag}_hslow")
    a.label(f"L_{tag}_hback")
    a(f"v_mov_b32 v{vA}, {ldsoff}")
    a(f"v_mov_b32 v{vD}, s{sTRY}")
    a(f"ds_write_b32 v{vA}, v{vD}")
    a("s_waitcnt lgkmcnt(0)")


def hint_slow(a, tag):
    sN = 4
    a.label(f"L_{tag}_hslow")
    a(f"s_mov_b32 s{sN}, 0")
    a.label(f"L_{tag}_hs1")
    a(f"s_add_u32 s{sN}, s{sN}, 1")
    a(f"s_add_u32 s{sTRY}, s{sTRY}, 9")
    a(f"s_and_b32 s{sTRY}, s{sTRY}, 255")
    a(f"s_cmp_gt_u32 s{sN}, 256")
    a(f"s_cbranch_scc1 L_{tag}_hs2")
    a(f"s_lshl_b32 s{sTK + 1}, s{sTRY}, 7")
    a(f"s_add_u32 s{sTK + 1}, s{sTK + 1}, {clm_base(tag):#x}")
    a(f"s_mov_b32 s{sTK}, 1")
    a(f"s_atomic_or s{sTK}, {sr(S_WS, 2)}, s{sTK + 1} glc")
    a("s_waitcnt lgkmcnt(0)")
    a(f"s_cmp_lg_u32 s{sTK}, 0")
    a(f"s_cbranch_scc1 L_{tag}_hs1")
    a(f"s_branch L_{tag}_hback")
    a.label(f"L_{tag}_hs2")
    a(f"s_mov_b32 s{sTRY}, 0x8000")
    a(f"s_branch L_{tag}_hback")
    a.label(f"L_{tag}_restart")
    a("s_waitcnt vmcnt(0) lgkmcnt(0)")
    a("s_barrier")
    a(f"s_mov_b32 s2, s{sTRY}")
    a(f"s_mov_b32 s{sOK}, 1")
    a("s_setprio 0")
    a("s_cmp_ge_u32 s2, 256")
    a(f"s_cbranch_scc1 L_{tag}_end")
    a(f"s_branch L_{tag}_item")


def hint_read(a, vA, vD, ldsoff):
    a(f"v_mov_b32 v{vA}, {ldsoff}")
    a(f"ds_read_b32 v{vD}, v{vA}")


def hint_check(a, tag, vD):
    a(f"v_readfirstlane_b32 s{sTRY}, v{vD}")
    a("s_nop 3")
    a(f"s_cmp_lg_u32 s{sTRY}, s2")
    a(f"s_cbranch_scc1 L_{tag}_restart")


SRD_X, SRD_W, SRD_WK, SRD_WV, SRD_PF, SRD_OUT = 36, 40, 48, 52, 4, 48
sXOFF, sWOFF, sWSTG, sSLOT, sCNT, sDELTA = 61, 62, 64, 65, 66, 67
sOBASE, sOJ, sOI, sSCALE = 68, 69, 70, 72
sSEC, sM0, sCOL0, sWSTR, sNT, sEXO, sEXS, sRSLOT = 74, 75, 76, 77, 78, 79, 80, 63
sPFO, sPFS, sPFN = 9, 10, 11
sPFL, sPFW, sK = 68, 69, 71


class G:
    def __init__(self, kind):
        self.kind = kind
        proj = kind == "proj"
        self.NI, self.NJ = (4, 2) if proj else (2, 2)
        self.XB = 32768 if proj else 16384
        self.NSLOT = 3 if proj else 4
        self.NL = 4 if proj else OPT["nl3"]
        self.SLOT = self.XB + 16384 + (2048 if proj else 0)
        self.XP = self.XB // 1024 // self.NL
        self.WP = 16 // self.NL
        self.NST = 16
        self.EXB = self.NSLOT * self.SLOT
        self.lds = self.NSLOT * self.SLOT + 64
        self.KS = 1 if proj else OPT["ks3"]
        self.ACC = 128 if proj else 16 + 32 * self.KS + (16 if self.KS == 1 else 0)
        self.nacc = self.NI * self.NJ * 16
        self.f1 = self.NI * 4 + self.NJ * 4
        fsz = self.f1 * self.KS
        self.F = [16, 16 + fsz]
        self.vXA, self.vWA, self.vEXX, self.vEXW, self.vST = 4, 8, 10, 12, 13
        self.EXF = 16 + 2 * fsz
        self.EXACC = self.EXF + 12
        self.nvgpr = self.ACC + self.nacc

    def fx(self, t, i):
        return self.F[(t // self.KS) & 1] + (t % self.KS) * self.f1 + 4 * i

    def fw(self, t, j):
        return self.F[(t // self.KS) & 1] + (t % self.KS) * self.f1 + self.NI * 4 + 4 * j

    def acc(self, i, j):
        return self.ACC + (i * self.NJ + j) * 16


def gemm_reads(g, T):
    proj = g.kind == "proj"
    out = []
    for t in range(T * g.KS, (T + 1) * g.KS):
        wr = [f"ds_read_b64_tr_b16 {vr(g.fw(t, j) + 2 * u, 2)}, v{g.vWA + j} offset:{4096 * t + (1024 if proj else 2048) * u}"
              for j in range(g.NJ) for u in range(2)]
        if proj:
            xr = [f"ds_read_b128 {vr(g.fx(t, i), 4)}, v{g.vXA + t} offset:{4096 * i}" for i in range(g.NI)]
        else:
            xr = [f"ds_read_b128 {vr(g.fx(t, i), 4)}, v{g.vXA} offset:{4096 * i + 1024 * t}" for i in range(g.NI)]
        out += [xr[0]] + wr + xr[1:]
    if OPT["xp"] == 1:
        out = out[::2]
    if OPT["xp"] == 2:
        out = out[:1]
    return out


def gemm_extra_reads(g, e):
    return [f"ds_read_b64_tr_b16 {vr(g.EXF + 2 * u, 2)}, v{g.vEXW} offset:{1024 * e + 128 * u}" for u in range(2)] + \
           [f"ds_read_b128 {vr(g.EXF + 4 + 4 * th, 4)}, v{g.vEXX + e} offset:{2048 * th}" for th in range(2)]


def gemm_step(a, g, T, swap, reads, pre=(), extra_mfma=(), post_valu=()):
    a.many(pre)
    mf = []
    for t in range(T * g.KS, (T + 1) * g.KS):
        for i in range(g.NI):
            for j in range(g.NJ):
                x, w, c = vr(g.fx(t, i), 4), vr(g.fw(t, j), 4), vr(g.acc(i, j), 16)
                mf.append(f"{MF32} {c}, {x}, {w}, {c}" if swap else f"{MF32} {c}, {w}, {x}, {c}")
    mf += list(extra_mfma)
    reads, post_valu = list(reads), list(post_valu)
    for m in mf:
        if OPT["xp"] != 3:
            a(m)
        for _ in range(2):
            if reads:
                a(reads.pop(0))
        if not reads:
            for _ in range(2):
                if post_valu:
                    a(post_valu.pop(0))
    a.many(reads + post_valu)


def gemm_compute(a, g, tag, swap, extras, check=None):
    proj = g.kind == "proj"

    def ex_mfma():
        w = vr(g.EXF, 4)
        out = []
        for th in range(2):
            x, c = vr(g.EXF + 4 + 4 * th, 4), vr(g.EXACC + 4 * th, 4)
            out.append(f"{MF16} {c}, {x}, {w}, {c}" if extras == "V" else f"{MF16} {c}, {w}, {x}, {c}")
        return out

    def adv(reg):
        return f"v_add_u32 v{reg}, s{sDELTA}, v{reg}"

    NB = 4 // g.KS

    def stage(last):
        for t in range(NB):
            pre = ["s_waitcnt lgkmcnt(0)"]
            reads, post, em = [], [], []
            if t < NB - 1:
                reads = gemm_reads(g, t + 1)
                if extras and t == 1:
                    reads += gemm_extra_reads(g, 1)
                if not last:
                    if proj:
                        post.append(adv(g.vXA + t + 1))
                    if t == NB - 2:
                        post += [adv(g.vWA), adv(g.vWA + 1), adv(g.vXA)]
                        if extras:
                            post += [adv(g.vEXX), adv(g.vEXX + 1), adv(g.vEXW)]
            elif not last:
                pre.append("s_barrier")
                reads = gemm_reads(g, 0)
                if extras:
                    reads += gemm_extra_reads(g, 0)
            if extras and t in (0, 2):
                em = ex_mfma()
            gemm_step(a, g, t, swap, reads, pre, em, post)

    stamp_mid(a, 4)
    a("s_barrier")
    stamp_mid(a, 0)
    a.many(gemm_reads(g, 0))
    if extras:
        a.many(gemm_extra_reads(g, 0))
    a(f"s_mov_b32 s{sCNT}, 0")
    a(f"s_mov_b32 s{sRSLOT}, 0")
    a.raw(".p2align 3")
    a.label(f"L_{tag}_loop")
    a(f"s_add_u32 s{sRSLOT}, s{sRSLOT}, 1")
    a(f"s_cmp_eq_u32 s{sRSLOT}, {g.NSLOT}")
    csel(a, sDELTA, f"{-(g.NSLOT - 1) * g.SLOT & 0xffffffff:#x}", g.SLOT)
    a(f"s_cselect_b32 s{sRSLOT}, 0, s{sRSLOT}")
    stage(False)
    a(f"s_add_u32 s{sCNT}, s{sCNT}, 1")
    a(f"s_cmp_lt_u32 s{sCNT}, {g.NST - 1}")
    a(f"s_cbranch_scc1 L_{tag}_loop")
    if check:
        hint_read(a, 14, 15, g.EXB)
    stage(True)
    if check:
        hint_check(a, check, 15)
    stamp_mid(a, 1)


def pf_adv(a):
    a(f"s_add_u32 s{sPFO}, s{sPFO}, s{sPFS}")
    a(f"s_cmp_ge_u32 s{sPFO}, s{sPFL}")
    a(f"s_cselect_b32 s{sT1}, s{sPFW}, 0")
    a(f"s_sub_u32 s{sPFO}, s{sPFO}, s{sT1}")


def k_wrap(a, lbl, n):
    a(f"s_add_u32 s{sK}, s{sK}, {n}")
    a(f"s_cmp_lt_u32 s{sK}, 16")
    a(f"s_cbranch_scc1 {lbl}")
    a(f"s_mov_b32 s{sK}, 0")
    a(f"s_sub_u32 s{sXOFF}, s{sXOFF}, 2048")
    a(f"s_lshl_b32 s{sT1}, s{sWSTG}, 4")
    a(f"s_sub_u32 s{sWOFF}, s{sWOFF}, s{sT1}")
    a(f"s_sub_u32 s{sEXO}, s{sEXO}, 0x10000")
    a.label(lbl)


def gemm_loader(a, g, tag, vX, vW):
    proj = g.kind == "proj"
    per, LA = g.XP + g.WP, g.NSLOT
    lb = OPT["ld1"] if proj else ""
    pf = proj and OPT["pf"]

    def prefetch():
        a(f"buffer_load_dword v9, v8, {sr(SRD_PF)}, s{sPFO} offen{OPT['pfb']}")
        pf_adv(a)

    def prefetch_if(hi, lbl):
        a(f"s_cmp_ge_u32 s{sWAVE}, 6")
        a(f"s_cbranch_scc{0 if hi else 1} {lbl}")
        prefetch()
        a.label(lbl)

    nlab = [0]

    def issue(lo=0, hi=None):
        hi = per if hi is None else hi
        for n in range(lo, hi):
            isx = n < g.XP
            i = n if isx else n - g.XP
            if i % 4 == 0 or n == lo:
                base = (i // 4) * 4096 if isx else 0
                a(f"s_add_u32 m0, s{sSLOT if isx else sEXS + 0}, {base}" if isx else f"s_add_u32 m0, s{sT3}, 0")
                a("s_nop 0")
            if isx:
                a(f"buffer_load_dwordx4 v{vX[i]}, {sr(SRD_X)}, s{sXOFF} offen offset:{(i % 4) * 1024}{lb} lds")
            else:
                a(f"buffer_load_dwordx4 v{vW[i]}, {sr(SRD_W)}, s{sWOFF} offen offset:{(i % 4) * 1024}{lb} lds")
        if hi == per:
            a(f"s_add_u32 s{sXOFF}, s{sXOFF}, {128 if proj else f's{sEXO}'}")
            a(f"s_add_u32 s{sWOFF}, s{sWOFF}, s{sWSTG}")
            if proj:
                nlab[0] += 1
                k_wrap(a, f"L_{tag}_kw{nlab[0]}", 1)
            a(f"s_add_u32 s{sRSLOT}, s{sRSLOT}, 1")
            a(f"s_cmp_eq_u32 s{sRSLOT}, {g.NSLOT}")
            csel(a, sDELTA, f"{-(g.NSLOT - 1) * g.SLOT & 0xffffffff:#x}", g.SLOT)
            a(f"s_cselect_b32 s{sRSLOT}, 0, s{sRSLOT}")
            a(f"s_add_u32 s{sSLOT}, s{sSLOT}, s{sDELTA}")
            a(f"s_add_u32 s{sT3}, s{sT3}, s{sDELTA}")

    def maybe_extra(lbl, st=0):
        if not proj:
            return
        a(f"s_cmp_eq_u32 s{sCOL0}, 0")
        a(f"s_cbranch_scc1 {lbl}")
        a(f"s_add_u32 m0, s{sT3}, s{sEXS}")
        if st:
            a(f"s_add_u32 m0, m0, {st * g.SLOT}")
        a("s_nop 0")
        a(f"buffer_load_dwordx4 v6, {sr(SRD_WK)}, s{sEXO} offen lds")
        a(f"s_add_u32 s{sEXO}, s{sEXO}, 4096")
        a.label(lbl)

    a(f"s_mov_b32 s{sRSLOT}, 0")
    stamp_mid(a, 3)
    if proj:
        def xs(st):
            a(f"s_add_u32 s{sDELTA}, s{sXOFF}, {128 * st}")
            for i in range(g.XP):
                if i % 4 == 0:
                    a(f"s_add_u32 m0, s{sSLOT}, {st * g.SLOT + (i // 4) * 4096}")
                    a("s_nop 0")
                a(f"buffer_load_dwordx4 v{vX[i]}, {sr(SRD_X)}, s{sDELTA} offen offset:{(i % 4) * 1024}{lb} lds")

        def ws_(st):
            maybe_extra(f"L_{tag}_x{st}", st)
            a(f"s_add_u32 m0, s{sT3}, {st * g.SLOT}")
            a("s_nop 0")
            for i in range(g.WP):
                a(f"buffer_load_dwordx4 v{vW[i]}, {sr(SRD_W)}, s{sWOFF} offen offset:{i * 1024}{lb} lds")
            a(f"s_add_u32 s{sWOFF}, s{sWOFF}, s{sWSTG}")

        for st in range(OPT["xfirst"]):
            xs(st)
        if pf and OPT["p1e"]:
            a(f"s_cmp_ge_u32 s{sWAVE}, 6")
            a(f"s_cbranch_scc0 L_{tag}_p1e")
            a(f"buffer_load_dword v9, v8, {sr(SRD_PF)}, s{sOBASE} offen{OPT['pfb']}")
            a.label(f"L_{tag}_p1e")
        g.mid()
        ws_(0)
        young = g.WP
        if OPT["xfirst"] == 1:
            young += g.XP
            xs(1)
        ws_(1)
        stamp_mid(a, 4)
        a(f"s_add_u32 s{sXOFF}, s{sXOFF}, 256")
        k_wrap(a, f"L_{tag}_kw0", 2)
        a(f"s_add_u32 s{sSLOT}, s{sSLOT}, {2 * g.SLOT}")
        a(f"s_add_u32 s{sT3}, s{sT3}, {2 * g.SLOT}")
        a(f"s_mov_b32 s{sRSLOT}, 2")
        a(f"s_waitcnt vmcnt({young})")
        stamp_mid(a, 5)
        a("s_barrier")
        stamp_mid(a, 0)
        if pf and OPT["p0"] == 2:
            g.after_bar0()
            if not OPT["p1e"]:
                a(f"s_cmp_ge_u32 s{sWAVE}, 6")
                a(f"s_cbranch_scc0 L_{tag}_p1b")
                a(f"buffer_load_dword v9, v8, {sr(SRD_PF)}, s{sPFO} offen{OPT['pfb']}")
                a.label(f"L_{tag}_p1b")
            pf_adv(a)
        maybe_extra(f"L_{tag}_x1b")
        issue()
        if not (pf and OPT["p0"] == 2):
            g.after_bar0()
        if pf:
            prefetch_if(False, f"L_{tag}_p2")
            a(f"s_cmp_ge_u32 s{sWAVE}, 6")
            a(f"s_cselect_b32 s{sPFN}, {OPT['pf0']}, {OPT['pf0'] + OPT['pfd']}")
    else:
        issue()
        pre = min(OPT["pre"] * 4 // g.NL, per * (LA - 1))
        full, part = divmod(pre, per)
        for _ in range(full):
            issue()
        if part:
            issue(0, part)
        stamp_mid(a, 4)
        a(f"s_waitcnt vmcnt({pre})")
        stamp_mid(a, 5)
        a("s_barrier")
        stamp_mid(a, 0)
        if part:
            issue(part, per)
            full += 1
        for _ in range(LA - 1 - full):
            issue()
    a(f"s_mov_b32 s{sCNT}, 0")
    a.label(f"L_{tag}_lloop")
    a(f"s_waitcnt vmcnt({(LA - 2) * per})")
    a("s_barrier")
    if OPT["lstamp"] and STAMP:
        for k_, n_ in ((1, 2), (4, 3), (8, 4), (11, 5)):
            a(f"s_cmp_lg_u32 s{sCNT}, {k_}")
            a(f"s_cbranch_scc1 L_{tag}_ls{k_}")
            stamp_mid(a, n_)
            a.label(f"L_{tag}_ls{k_}")
    maybe_extra(f"L_{tag}_x2")
    issue()
    if pf:
        a(f"s_cmp_eq_u32 s{sCNT}, s{sPFN}")
        a(f"s_cbranch_scc0 L_{tag}_nopf")
        prefetch()
        a(f"s_add_u32 s{sPFN}, s{sPFN}, {2 * OPT['pfd']}")
        a(f"s_cmp_gt_u32 s{sPFN}, {OPT['pf0'] + 4 * OPT['pfd']}")
        a(f"s_cselect_b32 s{sPFN}, 64, s{sPFN}")
        a.label(f"L_{tag}_nopf")
    a(f"s_add_u32 s{sCNT}, s{sCNT}, 1")
    a(f"s_cmp_lt_u32 s{sCNT}, {g.NST - LA}")
    a(f"s_cbranch_scc1 L_{tag}_lloop")
    for s in range(g.NST - LA, g.NST - 1):
        a(f"s_waitcnt vmcnt({(g.NST - 2 - s) * per})")
        if not proj and s == g.NST - LA:
            a(f"s_cmp_lg_u32 s{sWAVE}, 4")
            a(f"s_cbranch_scc1 L_{tag}_nov")
            hint_verdict(a, tag, 14, 15, g.EXB)
            a.label(f"L_{tag}_nov")
        a("s_barrier")
        if proj and s == g.NST - 2:
            tbl_offset(a, sT1)
            a("v_mov_b32 v1, 0")
            a(f"buffer_load_dword v2, v1, {sr(SRD_WS)}, s{sT1} offen")
    if not proj:
        hint_read(a, 14, 15, g.EXB)
        a("s_waitcnt lgkmcnt(0)")
        hint_check(a, tag, 15)
    stamp_mid(a, 1)
    stamp_end(a, 0 if proj else 2)
    a("s_endpgm")


def proj_group(a, sg):
    a(f"s_and_b32 s{sSEC}, s{sg}, 3")
    a(f"s_cmp_eq_u32 s{sSEC}, 0")
    csel(a, sWSTR, 2048, 6144)
    srd_sel(a, SRD_X, 16, 26, 0x400000)
    srd_sel(a, SRD_W, 18, 28, 0x200000, 0x600000)


def proj_pf_setup(a, tag, sg, sidx, sw2, dst=None):
    sPFO, sPFS = dst if dst else (9, 10)
    sPFL, sPFW = (sOI, sK) if dst else (68, 69)
    a(f"s_lshr_b32 s{sPFW}, s{sw2}, 1")
    if OPT["rot"]:
        a(f"s_add_u32 s{sPFW}, s{sPFW}, s{sg}")
        a(f"s_and_b32 s{sPFW}, s{sPFW}, 7")
    a(f"s_bitcmp1_b32 s{sw2}, 0")
    for i in range(3):
        a(f"s_cselect_b32 s{SRD_PF + i}, s{SRD_W + i}, s{SRD_X + i}")
    a(f"s_mov_b32 s{SRD_PF + 3}, 0x00020000")
    a(f"s_cbranch_scc1 L_{tag}_pfw")
    a("v_and_b32 v1, 31, v0")
    a("v_lshlrev_b32 v1, 11, v1")
    a("v_lshrrev_b32 v8, 5, v0")
    a("v_lshl_add_u32 v8, v8, 7, v1")
    a(f"s_lshr_b32 s{sT1}, s{sg}, 2")
    a(f"s_lshl_b32 s{sT1}, s{sT1}, 5")
    a(f"s_add_u32 s{sT1}, s{sT1}, s{sidx}")
    a(f"s_lshl_b32 s{sT1}, s{sT1}, 16")
    a(f"s_lshl_b32 s{sT2}, s{sPFW}, 8")
    a(f"s_add_u32 s{sPFO}, s{sT1}, s{sT2}")
    a(f"s_mov_b32 s{sPFS}, 512")
    a(f"s_add_u32 s{sPFL}, s{sT1}, 2048")
    a(f"s_mov_b32 s{sPFW}, 2048")
    a(f"s_branch L_{tag}_pfdone")
    a.label(f"L_{tag}_pfw")
    a("v_lshrrev_b32 v8, 5, v0")
    a("v_lshlrev_b32 v8, 6, v8")
    a("v_bfe_u32 v1, v0, 4, 1")
    a("v_add_u32 v8, v8, v1")
    a(f"v_mul_lo_u32 v8, v8, s{sWSTR}")
    a("v_and_b32 v1, 15, v0")
    a("v_lshl_add_u32 v8, v1, 7, v8")
    a(f"s_lshl_b32 s{sT2}, s{sPFW}, 6")
    a(f"s_add_u32 s{sT2}, s{sT2}, s{sidx}")
    a(f"s_lshl_b32 s{sT2}, s{sT2}, 1")
    a(f"s_mul_i32 s{sT2}, s{sT2}, s{sWSTR}")
    a(f"s_sub_u32 s{sT1}, s{sSEC}, 1")
    a(f"s_max_i32 s{sT1}, s{sT1}, 0")
    a(f"s_lshl_b32 s{sT1}, s{sT1}, 11")
    a(f"s_add_u32 s{sPFO}, s{sT2}, s{sT1}")
    a(f"s_lshl_b32 s{sPFS}, s{sWSTR}, 8")
    a(f"s_lshl_b32 s{sPFL}, s{sWSTR}, 10")
    a(f"s_mov_b32 s{sPFW}, s{sPFL}")
    a.label(f"L_{tag}_pfdone")


def gen_proj():
    g = G("proj")
    a = A()
    kernel_head(a, "proj_kernel")
    entry(a, "proj")
    a("s_waitcnt lgkmcnt(0)")
    ws_reloc(a)
    ticket_issue(a, "proj", 4)
    srd(a, SRD_WS, S_WS, WS_SIZE - (OPT["wsb"] << 20))
    def decode():
        proj_group(a, sG)
        a(f"s_lshr_b32 s{sT0}, s{sG}, 2")
        a(f"s_lshl_b32 s{sM0}, s{sT0}, 10")
        a(f"s_lshl_b32 s{sT0}, s{sMT}, 8")
        a(f"s_add_u32 s{sM0}, s{sM0}, s{sT0}")

    TKT = 2 * g.SLOT + g.XB
    a(f"s_cmp_lt_u32 s{sWAVE}, 4")
    a("s_cbranch_scc1 L_proj_compute")
    vX = list(range(16, 24))
    vW = list(range(24, 28))
    a("v_lshrrev_b32 v1, 3, v0")
    a("v_lshlrev_b32 v1, 11, v1")
    a("v_lshrrev_b32 v10, 4, v0")
    a("v_and_b32 v7, 7, v0")
    a("v_xor_b32 v11, v10, v7")
    a("v_xor_b32 v12, 4, v11")
    a("v_lshl_add_u32 v11, v11, 4, v1")
    a("v_lshl_add_u32 v12, v12, 4, v1")
    for i in range(8):
        a(f"v_add_u32 v{vX[i]}, {i * 16384 - (i % 4) * 1024}, v{11 + (i & 1)}")
    a("v_lshrrev_b32 v6, 1, v0")
    a("v_lshlrev_b32 v6, 6, v6")
    a("v_and_b32 v7, 1, v0")
    a("v_lshl_add_u32 v6, v7, 4, v6")
    a.label("L_proj_lstart")
    decode()
    if OPT["pf"]:
        a(f"s_lshr_b32 s{sT0}, s{sHW}, 2")
        a(f"s_and_b32 s{sT0}, s{sT0}, 0x18")
        a(f"s_and_b32 s{sT3}, s{sHW}, 7")
        a(f"s_or_b32 s{sT0}, s{sT0}, s{sT3}")
        a(f"s_and_b32 s{sT3}, s{sWAVE}, 3")
        proj_pf_setup(a, "projA", sG, sT0, sT3, (sOBASE, sOJ))
        a(f"s_cmp_ge_u32 s{sWAVE}, 6")
        a("s_cbranch_scc1 L_proj_pkv")
        a(f"buffer_load_dword v9, v8, {sr(SRD_PF)}, s{sOBASE} offen{OPT['pfb']}")
        a("s_branch L_proj_nokv")
        a.label("L_proj_pkv")
        a(f"s_cmp_lg_u32 s{sSEC}, 0")
        a("s_cbranch_scc1 L_proj_nokv")
        a(f"s_lshl_b32 s{sT0}, s{sT0}, 11")
        a("v_and_b32 v1, 15, v0")
        a("v_lshlrev_b32 v1, 7, v1")
        a(f"s_cmp_eq_u32 s{sWAVE}, 6")
        srd_sel(a, SRD_WK, 20, 22, 0x10000)
        a(f"buffer_load_dword v9, v1, {sr(SRD_WK)}, s{sT0} offen{OPT['pfb']}")
        a.label("L_proj_nokv")
    a(f"s_add_u32 s{sT0}, s{sWAVE}, s{sHW}" if OPT["lrot"] else f"s_mov_b32 s{sT0}, s{sWAVE}")
    a(f"s_and_b32 s{sT0}, s{sT0}, 3")
    a(f"s_lshl_b32 s{sT1}, s{sT0}, 6")
    a(f"s_add_u32 s{sT1}, s{sT1}, s{sM0}")
    a(f"s_lshl_b32 s{sXOFF}, s{sT1}, 11")
    a(f"s_lshl_b32 s{sK}, s{sG}, 1" if OPT["rot"] else f"s_mov_b32 s{sK}, 0")
    a(f"s_lshl_b32 s{sT1}, s{sK}, 7")
    a(f"s_add_u32 s{sXOFF}, s{sXOFF}, s{sT1}")
    a(f"s_lshl_b32 s{sSLOT}, s{sT0}, 13")
    a(f"s_lshl_b32 s{sT3}, s{sT0}, 12")
    a(f"s_add_u32 s{sT3}, s{sT3}, {g.XB}")

    def mid():
        ticket_end(a, "proj", 4, TKT)
        a(f"v_mul_lo_u32 v1, v10, s{sWSTR}")
        a("v_lshlrev_b32 v3, 2, v10")
        a("v_and_b32 v7, 15, v0")
        a("v_xor_b32 v3, v3, v7")
        a(f"v_lshl_add_u32 v{vW[0]}, v3, 4, v1")
        a(f"s_lshl_b32 s{sT1}, s{sWSTR}, 2")
        a(f"s_sub_u32 s{sT1}, s{sT1}, 1024")
        for i in range(1, 4):
            a(f"v_add_u32 v{vW[i]}, s{sT1}, v{vW[i - 1]}")
        a(f"s_sub_u32 s{sWOFF}, s{sSEC}, 1")
        a(f"s_max_i32 s{sWOFF}, s{sWOFF}, 0")
        a(f"s_lshl_b32 s{sWOFF}, s{sWOFF}, 11")
        a(f"s_mul_i32 s{sT1}, s{sT0}, s{sWSTR}")
        a(f"s_lshl_b32 s{sT1}, s{sT1}, 4")
        a(f"s_add_u32 s{sWOFF}, s{sWOFF}, s{sT1}")
        a(f"s_lshl_b32 s{sWSTG}, s{sWSTR}, 6")
        a(f"s_mul_i32 s{sT1}, s{sK}, s{sWSTG}")
        a(f"s_add_u32 s{sWOFF}, s{sWOFF}, s{sT1}")
        ticket_wait(a, "proj", TKT, "L_proj_lredo")
        stamp_mid(a, 2)
        a(f"s_lshl_b32 s{sT1}, s{sNT}, 8")
        a(f"s_add_u32 s{sWOFF}, s{sWOFF}, s{sT1}")
        a(f"s_cmp_ge_u32 s{sNT}, 4")
        srd_sel(a, SRD_WK, 22, 20, 0x10000)
        a(f"s_bfe_u32 s{sT1}, s{sNT}, 0x10001")
        a(f"s_lshl_b32 s{sT1}, s{sT1}, 5")
        a(f"s_lshl_b32 s{sEXO}, s{sT0}, 11")
        a(f"s_add_u32 s{sEXO}, s{sEXO}, s{sT1}")
        a(f"s_lshl_b32 s{sT1}, s{sK}, 12")
        a(f"s_add_u32 s{sEXO}, s{sEXO}, s{sT1}")
        a(f"s_mul_i32 s{sEXS}, s{sT0}, {4096 - 1024}")
        a(f"s_sub_u32 s{sEXS}, 16384, s{sEXS}")
        a(f"s_cmp_lt_u32 s{sT0}, 2")
        a(f"s_cselect_b32 s{sCOL0}, 1, 0")
        a(f"s_cmp_eq_u32 s{sSEC}, 0")
        a(f"s_cselect_b32 s{sCOL0}, s{sCOL0}, 0")

    def after_bar0():
        ticket_notes(a, "proj", 4)
        if OPT["pf"]:
            a(f"s_lshr_b32 s{sOI}, s2, 3")
            a(f"s_and_b32 s{sT0}, s{sWAVE}, 3")
            proj_pf_setup(a, "projB", sG, sOI, sT0)
            if OPT["p0"] != 2:
                pf_adv(a)

    g.mid, g.after_bar0 = mid, after_bar0
    gemm_loader(a, g, "proj", vX, vW)
    a.label("L_proj_compute")
    a(f"s_lshr_b32 s{sT0}, s{sWAVE}, 1")
    a(f"s_and_b32 s{sT1}, s{sWAVE}, 1")
    a("v_and_b32 v1, 31, v0")
    a("v_lshlrev_b32 v1, 7, v1")
    a(f"s_lshl_b32 s{sT2}, s{sT0}, 14")
    a(f"v_add_u32 v1, s{sT2}, v1")
    a("v_bfe_u32 v2, v0, 1, 3")
    a("v_lshrrev_b32 v3, 5, v0")
    for t in range(4):
        a(f"v_add_u32 v14, {2 * t}, v3")
        a("v_xor_b32 v14, v14, v2")
        a(f"v_lshl_add_u32 v{g.vXA + t}, v14, 4, v1")
    a("v_bfe_u32 v2, v0, 2, 2")
    a("v_lshl_add_u32 v1, v3, 3, v2")
    a("v_lshlrev_b32 v1, 8, v1")
    a("v_bfe_u32 v14, v0, 4, 1")
    a("v_lshl_add_u32 v1, v14, 5, v1")
    a("v_and_b32 v14, 3, v0")
    a("v_lshl_add_u32 v1, v14, 3, v1")
    a(f"v_add_u32 v1, {g.XB}, v1")
    a(f"s_lshl_b32 s{sT2}, s{sT1}, 1")
    for j in range(2):
        a(f"s_add_u32 s{sT3}, s{sT2}, {j}")
        a(f"v_xor_b32 v14, s{sT3}, v2")
        a(f"v_lshl_add_u32 v{g.vWA + j}, v14, 6, v1")
    a(f"v_lshlrev_b32 v{g.vST}, 4, v0")
    a("v_and_b32 v1, 15, v0")
    a("v_lshlrev_b32 v1, 7, v1")
    a(f"s_lshl_b32 s{sT2}, s{sWAVE}, 12")
    a(f"v_add_u32 v1, s{sT2}, v1")
    a("v_bfe_u32 v2, v0, 1, 3")
    a("v_lshrrev_b32 v3, 4, v0")
    for e in range(2):
        a(f"v_add_u32 v14, {4 * e}, v3")
        a("v_xor_b32 v14, v14, v2")
        a(f"v_lshl_add_u32 v{g.vEXX + e}, v14, 4, v1")
    a("v_bfe_u32 v2, v0, 2, 2")
    a("v_lshl_add_u32 v1, v3, 3, v2")
    a("v_lshlrev_b32 v1, 5, v1")
    a("v_and_b32 v14, 3, v0")
    a("v_lshl_add_u32 v1, v14, 3, v1")
    a(f"v_add_u32 v{g.vEXW}, {g.XB + 16384}, v1")
    for r in range(g.nacc):
        a(f"v_mov_b32 v{g.ACC + r}, 0")
    for r in range(8):
        a(f"v_mov_b32 v{g.EXACC + r}, 0")

    a.label("L_proj_cstart")
    ticket_wait(a, "proj", TKT, "L_proj_credo")
    stamp_mid(a, 2)
    decode()

    a(f"s_lshr_b32 s{sT0}, s{sWAVE}, 1")
    a(f"s_and_b32 s{sT1}, s{sWAVE}, 1")
    a(f"s_and_b32 s{sT2}, s{sNT}, 1")
    a(f"s_lshl_b32 s{sT2}, s{sT2}, 14")
    for e in range(2):
        a(f"v_add_u32 v{g.vEXX + e}, s{sT2}, v{g.vEXX + e}")
    a(f"s_lshl_b32 s{sT2}, s{sNT}, 2")
    a(f"s_lshl_b32 s{sT3}, s{sT1}, 1")
    a(f"s_add_u32 s{sT2}, s{sT2}, s{sT3}")
    a(f"s_lshr_b32 s{sT3}, s{sM0}, 5")
    a(f"s_lshl_b32 s{sOBASE}, s{sT0}, 2")
    a(f"s_add_u32 s{sT3}, s{sT3}, s{sOBASE}")
    a(f"s_cmp_le_u32 s{sSEC}, 1")
    csel(a, sOJ, 0x20000, 0x40000)
    csel(a, sOI, 2048, 4096)
    a(f"s_cselect_b32 s{sSCALE}, {f32bits(QSCALE):#x}, 1.0")
    a(f"s_mov_b32 s{sSCALE+1}, s{sSCALE}")
    a(f"s_mul_i32 s{sOBASE}, s{sT2}, s{sOJ}")
    a(f"s_mul_i32 s{sT3}, s{sT3}, s{sOI}")
    a(f"s_add_u32 s{sOBASE}, s{sOBASE}, s{sT3}")
    a(f"s_mov_b32 s{sT2}, {WS_QA:#x}")
    for sec, base in ((1, WS_QB), (2, WS_KVB), (3, WS_KVB + 2048)):
        a(f"s_cmp_eq_u32 s{sSEC}, {sec}")
        a(f"s_cmov_b32 s{sT2}, {base:#x}")
    a(f"s_add_u32 s{sOBASE}, s{sOBASE}, s{sT2}")
    a(f"s_cmp_lg_u32 s{sSEC}, 2")
    a("s_cbranch_scc1 L_proj_nok")
    a("v_and_b32 v1, 0x33, v0")
    a("v_bfe_u32 v2, v0, 2, 1")
    a("v_lshl_or_b32 v1, v2, 3, v1")
    a("v_bfe_u32 v2, v0, 3, 1")
    a("v_lshl_or_b32 v1, v2, 2, v1")
    a(f"v_lshlrev_b32 v{g.vST}, 4, v1")
    a.label("L_proj_nok")
    a(f"s_cmp_eq_u32 s{sSEC}, 3")
    a("s_cbranch_scc1 L_proj_V")
    a(f"s_cmp_eq_u32 s{sSEC}, 0")
    a("s_cbranch_scc0 L_proj_QK")
    a(f"s_cmp_ge_u32 s{sNT}, 4")
    a("s_cbranch_scc1 L_proj_AV")

    st = OPT["st1"]

    def epi(scale):
        a("s_nop 7")
        a("s_nop 7")
        for i in range(g.NI):
            for j in range(g.NJ):
                c = g.acc(i, j)
                t = g.F[0] + ((i * g.NJ + j) & 1) * 8
                if scale:
                    for r in range(0, 16, 2):
                        a(f"v_pk_mul_f32 {vr(c + r, 2)}, {vr(c + r, 2)}, {sr(sSCALE, 2)}")
                for r in range(8):
                    a(f"v_cvt_pk_bf16_f32 v{t + r}, v{c + 2 * r}, v{c + 2 * r + 1}")
                a(f"s_mul_i32 s{sT0}, s{sOJ}, {j}")
                a(f"s_mul_i32 s{sT1}, s{sOI}, {i}")
                a(f"s_add_u32 s{sT0}, s{sT0}, s{sT1}")
                a(f"s_add_u32 s{sT0}, s{sT0}, s{sOBASE}")
                a(f"buffer_store_dwordx4 {vr(t, 4)}, v{g.vST}, {sr(SRD_WS)}, s{sT0} offen{st}")
                a(f"buffer_store_dwordx4 {vr(t + 4, 4)}, v{g.vST}, {sr(SRD_WS)}, s{sT0} offen offset:1024{st}")

    def epi_extra(part):
        if part == "K":
            a("v_and_b32 v1, 3, v0")
            a("v_bfe_u32 v2, v0, 2, 1")
            a("v_lshl_or_b32 v1, v2, 3, v1")
            a("v_bfe_u32 v2, v0, 3, 1")
            a("v_lshl_or_b32 v1, v2, 2, v1")
        else:
            a("v_and_b32 v1, 15, v0")
        a("v_lshlrev_b32 v1, 4, v1")
        a("v_bfe_u32 v2, v0, 4, 1")
        a("v_lshl_add_u32 v1, v2, 9, v1")
        a("v_lshrrev_b32 v2, 5, v0")
        a("v_lshl_add_u32 v1, v2, 3, v1")
        a(f"s_lshr_b32 s{sT0}, s{sM0}, 5")
        a(f"s_add_u32 s{sT0}, s{sT0}, s{sWAVE}")
        a(f"s_and_b32 s{sT1}, s{sNT}, 1")
        a(f"s_lshl_b32 s{sT1}, s{sT1}, 2")
        a(f"s_add_u32 s{sT0}, s{sT0}, s{sT1}")
        a(f"s_lshl_b32 s{sT0}, s{sT0}, 12")
        a(f"s_add_u32 s{sT0}, s{sT0}, {WS_KVA + (2048 if part == 'V' else 0):#x}")
        a(f"s_bfe_u32 s{sT1}, s{sNT}, 0x10001")
        a(f"s_lshl_b32 s{sT1}, s{sT1}, {10 if part == 'K' else 8}")
        a(f"s_add_u32 s{sT0}, s{sT0}, s{sT1}")
        for th in range(2):
            c = g.EXACC + 4 * th
            if part == "K":
                for r in range(0, 4, 2):
                    a(f"v_pk_mul_f32 {vr(c + r, 2)}, {vr(c + r, 2)}, {sr(sSCALE, 2)}")
            a(f"v_cvt_pk_bf16_f32 v{g.EXF + 2 * th}, v{c}, v{c + 1}")
            a(f"v_cvt_pk_bf16_f32 v{g.EXF + 2 * th + 1}, v{c + 2}, v{c + 3}")
            a(f"buffer_store_dwordx2 {vr(g.EXF + 2 * th, 2)}, v1, {sr(SRD_WS)}, s{sT0} offen offset:{th * (256 if part == 'K' else 1024)}{st}")

    for lbl, tag, swap, ex, scale in ((None, "proj_AK", False, "K", False), ("L_proj_AV", "proj_AV", False, "V", False),
                                      ("L_proj_QK", "proj_QK", False, None, True), ("L_proj_V", "proj_V", True, None, False)):
        if lbl:
            a.label(lbl)
        gemm_compute(a, g, tag, swap, ex)
        if ex:
            a("s_nop 7")
            epi_extra(ex)
        epi(scale)
        stamp_end(a, 0)
        a("s_endpgm")

    ticket_redo(a, "proj", "L_proj_credo", "L_proj_cstart")
    ticket_redo(a, "proj", "L_proj_lredo", "L_proj_lstart")
    a.label("L_proj_end")
    a("s_endpgm")
    return a.text(), kernel_desc("proj_kernel", g.nvgpr), g.lds, 512


def gen_outp():
    g = G("outp")
    a = A()
    kernel_head(a, "outp_kernel")
    entry(a, "outp")
    hint_load(a, "outp")
    stamp_mid(a, 2)
    hint_claim(a, "outp", 4)
    a(f"s_andn2_b32 s{sSEC}, 1, s2")
    a(f"s_bfe_u32 s{sT0}, s2, 0x20001")
    a(f"s_lshl_b32 s{sT0}, s{sT0}, 2")
    a(f"s_bfe_u32 s{sT1}, s2, 0x20003")
    a(f"s_add_u32 s{sM0}, s{sT0}, s{sT1}")
    a(f"s_lshr_b32 s{sNT}, s2, 5")
    a(f"s_cmp_lt_u32 s{sWAVE}, 4")
    a("s_cbranch_scc1 L_outp_compute")
    vX = list(range(20, 20 + g.XP))
    vW = list(range(24, 24 + g.WP))
    srd(a, SRD_X, S_WS, WS_SIZE - (OPT["wsb"] << 20))
    a(f"s_cmp_eq_u32 s{sSEC}, 0")
    srd_sel(a, SRD_W, 24, 30, 0x200000)
    csel(a, sXOFF, WS_OA, WS_OB)
    a(f"s_add_u32 s{sT0}, s{sWAVE}, s{sHW}" if OPT["lrot"] else f"s_mov_b32 s{sT0}, s{sWAVE}")
    a(f"s_and_b32 s{sT0}, s{sT0}, {g.NL - 1}")
    a("v_lshlrev_b32 v4, 4, v0")
    a("v_lshrrev_b32 v2, 4, v0")
    a("v_lshlrev_b32 v1, 11, v2")
    a("v_lshlrev_b32 v3, 2, v2")
    a("v_and_b32 v7, 15, v0")
    a("v_xor_b32 v3, v3, v7")
    a(f"v_lshl_add_u32 v{vW[0]}, v3, 4, v1")
    for i in range(1, g.WP):
        a(f"v_add_u32 v{vW[i]}, {i * (8192 - 1024)}, v{vW[0]}")
    a(f"s_lshl_b32 s{sT1}, s{sM0}, 18")
    a(f"s_add_u32 s{sXOFF}, s{sXOFF}, s{sT1}")
    a(f"s_mul_i32 s{sSLOT}, s{sT0}, {g.XP * 1024}")
    a(f"s_add_u32 s{sXOFF}, s{sXOFF}, s{sSLOT}")
    a(f"s_mul_i32 s{sWOFF}, s{sT0}, {g.WP * 8192}")
    a(f"s_lshl_b32 s{sT1}, s{sNT}, 8")
    a(f"s_add_u32 s{sWOFF}, s{sWOFF}, s{sT1}")
    a(f"s_mov_b32 s{sWSTG}, {64 * 2048}")
    a(f"s_mul_i32 s{sT3}, s{sT0}, {g.WP * 1024}")
    a(f"s_add_u32 s{sT3}, s{sT3}, {g.XB}")
    for i in range(g.XP):
        a(f"v_mov_b32 v{vX[i]}, v4")
    a(f"s_mov_b32 s{sEXO}, 16384")
    if OPT["swap3"]:
        a(f"s_bitcmp1_b32 s{sHW}, 2")
        a("s_cbranch_scc0 L_outp_noswap")
        for i in range(g.XP):
            a(f"v_swap_b32 v{vX[i]}, v{vW[i]}")
        for x, y in [(SRD_X + i, SRD_W + i) for i in range(3)] + [(sXOFF, sWOFF), (sEXO, sWSTG), (sSLOT, sT3)]:
            a(f"s_mov_b32 s{sT1}, s{x}")
            a(f"s_mov_b32 s{x}, s{y}")
            a(f"s_mov_b32 s{y}, s{sT1}")
        a.label("L_outp_noswap")
    gemm_loader(a, g, "outp", vX, vW)
    a.label("L_outp_compute")
    srd(a, SRD_OUT, S_OUT, 0x800000)
    a(f"s_lshr_b32 s{sT0}, s{sWAVE}, 1")
    a(f"s_and_b32 s{sT1}, s{sWAVE}, 1")
    a(f"s_lshl_b32 s{sT2}, s{sT0}, 13")
    a("v_lshlrev_b32 v1, 4, v0")
    a(f"v_add_u32 v{g.vXA}, s{sT2}, v1")
    a("v_lshrrev_b32 v3, 5, v0")
    a("v_bfe_u32 v2, v0, 2, 2")
    a("v_lshl_add_u32 v1, v3, 2, v2")
    a("v_lshlrev_b32 v1, 8, v1")
    a("v_and_b32 v14, 1, v0")
    a("v_lshl_add_u32 v1, v14, 5, v1")
    a("v_bfe_u32 v14, v0, 4, 1")
    a("v_lshl_add_u32 v1, v14, 4, v1")
    a("v_bfe_u32 v14, v0, 1, 1")
    a("v_lshl_add_u32 v1, v14, 3, v1")
    a(f"v_add_u32 v1, {g.XB}, v1")
    a(f"s_lshl_b32 s{sT2}, s{sT1}, 1")
    for j in range(2):
        a(f"s_add_u32 s{sT3}, s{sT2}, {j}")
        a(f"v_xor_b32 v14, s{sT3}, v2")
        a(f"v_lshl_add_u32 v{g.vWA + j}, v14, 6, v1")
    a(f"s_lshl_b32 s{sT2}, s{sM0}, 1")
    a(f"s_add_u32 s{sT2}, s{sT2}, s{sT0}")
    a(f"s_lshl_b32 s{sOBASE}, s{sT2}, 18")
    a(f"s_lshl_b32 s{sT2}, s{sSEC}, 11")
    a(f"s_add_u32 s{sOBASE}, s{sOBASE}, s{sT2}")
    a(f"s_lshl_b32 s{sT2}, s{sNT}, 8")
    a(f"s_add_u32 s{sOBASE}, s{sOBASE}, s{sT2}")
    a(f"s_lshl_b32 s{sT2}, s{sT1}, 7")
    a(f"s_add_u32 s{sOBASE}, s{sOBASE}, s{sT2}")
    vWR, vRD = 10, 11
    if OPT["epi3"]:
        a("v_and_b32 v1, 31, v0")
        a("v_lshlrev_b32 v2, 7, v1")
        a(f"s_lshl_b32 s{sT2}, s{sWAVE}, 13")
        a(f"v_add_u32 v2, s{sT2}, v2")
        a("v_and_b32 v1, 7, v0")
        a("v_lshlrev_b32 v14, 1, v3")
        a("v_xor_b32 v14, v14, v1")
        a(f"v_lshl_add_u32 v{vWR}, v14, 4, v2")
        a("v_lshrrev_b32 v2, 3, v0")
        a("v_xor_b32 v14, v2, v1")
        a("v_lshlrev_b32 v14, 4, v14")
        a("v_lshl_add_u32 v14, v2, 7, v14")
        a(f"v_add_u32 v{vRD}, s{sT2}, v14")
        a("v_lshlrev_b32 v2, 12, v2")
        a(f"v_lshl_add_u32 v{g.vST}, v1, 4, v2")
    else:
        a("v_and_b32 v1, 31, v0")
        a("v_lshlrev_b32 v1, 12, v1")
        a(f"v_lshl_add_u32 v{g.vST}, v3, 5, v1")
    for r in range(g.nacc):
        a(f"v_mov_b32 v{g.ACC + r}, 0")
    gemm_compute(a, g, "outp", False, None, check="outp")
    a("s_nop 7")
    a("s_nop 7")
    if OPT["epi3"]:
        for j in range(2):
            for e in range(2):
                a(f"v_xor_b32 v{4 + 2 * j + e}, {(4 * j + e) * 16}, v{vWR}")
        for i in range(g.NI):
            for j in range(g.NJ):
                c = g.acc(i, j)
                t = g.F[0] + (i * g.NJ + j) * 8
                for r in range(8):
                    a(f"v_cvt_pk_bf16_f32 v{t + r}, v{c + 2 * r}, v{c + 2 * r + 1}")
                for e in range(2):
                    a(f"ds_write_b128 v{4 + 2 * j + e}, {vr(t + 4 * e, 4)} offset:{4096 * i}")
        a("s_waitcnt lgkmcnt(0)")
        for k in range(8):
            a(f"ds_read_b128 {vr(g.ACC + 4 * k, 4)}, v{vRD} offset:{1024 * k}")
        for k in range(8):
            a(f"s_add_u32 s{sT0}, s{sOBASE}, {k * 8 * 4096}")
            a(f"s_waitcnt lgkmcnt({7 - k})")
            a(f"buffer_store_dwordx4 {vr(g.ACC + 4 * k, 4)}, v{g.vST}, {sr(SRD_OUT)}, s{sT0} offen{OPT['st3']}")
    else:
        for i in range(g.NI):
            for j in range(g.NJ):
                c = g.acc(i, j)
                t = g.F[0] + ((i * g.NJ + j) & 1) * 8
                for r in range(8):
                    a(f"v_cvt_pk_bf16_f32 v{t + r}, v{c + 2 * r}, v{c + 2 * r + 1}")
                a(f"s_add_u32 s{sT0}, s{sOBASE}, {i * 32 * 4096}")
                a(f"buffer_store_dwordx4 {vr(t, 4)}, v{g.vST}, {sr(SRD_OUT)}, s{sT0} offen offset:{64 * j}")
                a(f"buffer_store_dwordx4 {vr(t + 4, 4)}, v{g.vST}, {sr(SRD_OUT)}, s{sT0} offen offset:{64 * j + 16}")
    stamp_end(a, 2)
    a("s_endpgm")
    hint_slow(a, "outp")
    a.label("L_outp_end")
    a("s_endpgm")
    return a.text(), kernel_desc("outp_kernel", g.nvgpr), g.lds, 256 + 64 * g.NL


def gen_attn():
    a = A()
    kernel_head(a, "attn_kernel")
    vL16, vK, vKN, IDX = 1, 2, 3, 4
    T0, T1, T2, T3 = 5, 6, 7, 8
    vPF, vPFD, vHD = 9, 10, 11
    ONES = 12
    Q, P, KF, VF, L = [16, 24], [32, 40], [48, 56], [64, 72], [80, 84]
    S, NEG, O = [96, 112], [128, 144], [160, 176]
    NV = 192
    SRD, SRDW = SRD_WS, 36
    sQB, sKV, sOB, sST, sSL, sDM, sGO, sPF, sPFC, sFIRST = 61, 62, 63, 64, 65, 66, 67, 68, 69, 70
    t0, t1, t2, t3 = sT0, sT1, sT2, sT3
    TILES = 8
    STG = TILES * 4096
    NSLOT = 3
    NSTG = 64 // TILES
    FLAG = NSLOT * STG
    lds = FLAG + 64

    entry(a, "attn")
    a(f"v_lshlrev_b32 v{vL16}, 4, v0")
    hint_load(a, "attn")
    stamp_mid(a, 2)
    hint_claim(a, "attn", 0)
    a(f"s_lshr_b32 s{t0}, s2, 3")
    a(f"s_bfe_u32 s{t2}, s2, 0x20001")
    a(f"s_lshl_b32 s{t2}, s{t2}, 4")
    a(f"s_lshl_b32 s{t3}, s{sWAVE}, 1")
    a(f"s_add_u32 s{t2}, s{t2}, s{t3}")
    a(f"s_lshl_b32 s{sKV}, s{t0}, 18")
    a(f"s_add_u32 s{sKV}, s{sKV}, {WS_KVB:#x}")
    a(f"s_lshl_b32 s{sQB}, s{t0}, 17")
    a(f"s_lshl_b32 s{t3}, s{t2}, 11")
    a(f"s_add_u32 s{sQB}, s{sQB}, s{t3}")
    a("s_bitcmp1_b32 s2, 0")
    a(f"s_cmov_b32 s{sKV}, {WS_KVA:#x}")
    a(f"s_cselect_b32 s{t3}, {WS_QA:#x}, {WS_QB:#x}")
    a(f"s_or_b32 s{sQB}, s{sQB}, s{t3}")

    def qloads():
        for q in range(2):
            for c in range(2):
                a(f"buffer_load_dwordx4 {vr(Q[q] + 4 * c, 4)}, v{vL16}, {sr(SRD)}, s{sQB} offen offset:{2048 * q + 1024 * c}")

    stamp_mid(a, 3)
    a(f"s_and_b32 s{t3}, s{sWAVE}, 3")
    a(f"s_lshl_b32 s{t3}, s{t3}, 11")
    a(f"s_add_u32 s{t1}, s{sKV}, s{t3}")

    def grp_dma(grp):
        a(f"s_add_u32 m0, s{t3}, {8192 * grp}")
        a(f"s_add_u32 s{sGO}, s{t1}, {8192 * grp}")
        for c in range(2):
            a(f"buffer_load_dwordx4 v{vL16}, {sr(SRD)}, s{sGO} offen offset:{1024 * c} lds")

    a(f"s_cmp_ge_u32 s{sWAVE}, 4")
    a("s_cbranch_scc1 L_attn_young")
    grp_dma(0)
    qloads()
    a("s_branch L_attn_issued")
    a.label("L_attn_young")
    grp_dma(1)
    if OPT["k2s"]:
        grp_dma(2)
    qloads()
    if not OPT["k2s"]:
        grp_dma(2)
    grp_dma(3)
    a.label("L_attn_issued")
    stamp_mid(a, 4)
    a(f"s_lshr_b32 s{t3}, s{t2}, 2")
    a(f"s_lshl_b32 s{sOB}, s{t3}, 18")
    a(f"s_and_b32 s{t3}, s{t2}, 3")
    a(f"s_lshl_b32 s{t3}, s{t3}, 12")
    a(f"s_add_u32 s{sOB}, s{sOB}, s{t3}")
    a(f"s_lshr_b32 s{t3}, s{t0}, 1")
    a(f"s_lshl_b32 s{t3}, s{t3}, 14")
    a(f"s_add_u32 s{sOB}, s{sOB}, s{t3}")
    a(f"s_and_b32 s{t3}, s{t0}, 1")
    a(f"s_lshl_b32 s{t3}, s{t3}, 11")
    a(f"s_add_u32 s{sOB}, s{sOB}, s{t3}")
    a("s_bitcmp1_b32 s2, 0")
    csel(a, t3, WS_OA, WS_OB)
    srd_sel(a, SRDW, 24, 30, 0x200000)
    a(f"s_add_u32 s{sOB}, s{sOB}, s{t3}")
    a(f"s_lshl_b32 s{sPF}, s{t0}, 3")
    a(f"s_add_u32 s{sPF}, s{sPF}, s{sWAVE}")
    a(f"s_lshl_b32 s{sPF}, s{sPF}, 13")
    a(f"v_lshlrev_b32 v{vPF}, 7, v0")
    a(f"s_lshl_b32 s{sDM}, s{sWAVE}, 12")
    a(f"s_add_u32 s{sDM}, s{sDM}, {STG}")
    a(f"s_add_u32 s{sGO}, s{sKV}, s{sDM}")
    a(f"v_and_b32 v{T0}, 3, v0")
    a(f"v_bfe_u32 v{T1}, v0, 2, 1")
    a(f"v_or_b32 v{T2}, v{T0}, v{T1}")
    a(f"v_xor_b32 v{T1}, 1, v{T1}")
    a(f"v_or_b32 v{T3}, v{T0}, v{T1}")
    a(f"v_mov_b32 v{T0}, 0x3f803f80")
    a(f"v_cmp_eq_u32 vcc, 0, v{T2}")
    a("s_nop 1")
    a(f"v_cndmask_b32 v{ONES}, 0, v{T0}, vcc")
    a(f"v_cndmask_b32 v{ONES + 1}, 0, v{T0}, vcc")
    a(f"v_cmp_eq_u32 vcc, 0, v{T3}")
    a("s_nop 1")
    a(f"v_cndmask_b32 v{ONES + 2}, 0, v{T0}, vcc")
    a(f"v_cndmask_b32 v{ONES + 3}, 0, v{T0}, vcc")
    a(f"v_mov_b32 v{IDX}, 0xdddddddd")
    for q in range(2):
        for r in range(16):
            a(f"v_mov_b32 v{O[q] + r}, 0")
        for r in range(4):
            a(f"v_mov_b32 v{L[q] + r}, 0")
    for r in range(8):
        a(f"v_mov_b32 v{VF[1] + r}, 0")
    a(f"v_mov_b32 v{vK}, v{vL16}")
    a(f"v_add_u32 v{vKN}, {STG}, v{vL16}")

    def kread(kt):
        reg, k = (vK, kt) if kt < TILES else (vKN, kt - TILES)
        return [f"ds_read_b128 {vr(KF[kt & 1] + 4 * c, 4)}, v{reg} offset:{4096 * k + 1024 * c}" for c in range(2)]

    def vread(kt):
        reg, k = (vK, kt) if kt < TILES else (vKN, kt - TILES)
        return [f"ds_read_b128 {vr(VF[kt & 1] + 4 * c, 4)}, v{reg} offset:{4096 * k + 2048 + 1024 * c}" for c in range(2)]

    dma_ins = [f"buffer_load_dwordx4 v{vL16}, {sr(SRD)}, s{sGO} offen offset:{1024 * c} lds" for c in range(4)]

    def dma_adv():
        a(f"s_add_u32 s{sGO}, s{sGO}, {STG}")
        a(f"s_add_u32 s{sDM}, s{sDM}, {STG}")
        a(f"s_cmp_ge_u32 s{sDM}, {NSLOT * STG}")
        a(f"s_cselect_b32 s{t0}, {NSLOT * STG}, 0")
        a(f"s_sub_u32 s{sDM}, s{sDM}, s{t0}")

    a(f"s_cmp_lt_u32 s{sWAVE}, 4")
    a(f"s_cselect_b32 s{sFIRST}, 1, 2")
    a("s_cbranch_scc0 L_attn_b0y")
    a("s_waitcnt vmcnt(4)")
    a("s_barrier")
    a.many(kread(0) + vread(0) + kread(1))
    stamp_mid(a, 0)
    a("s_waitcnt vmcnt(0)")
    a("s_branch L_attn_b0")
    a.label("L_attn_b0y")
    a("s_barrier")
    a("s_waitcnt vmcnt(8)")
    a("s_barrier")
    if OPT["k2s"]:
        a("s_waitcnt vmcnt(6)")
        a("s_barrier")
    a.many(kread(0) + vread(0) + kread(1))
    stamp_mid(a, 0)
    a(f"s_waitcnt vmcnt({2 if OPT['k2s'] else 4})")
    a.label("L_attn_b0")
    stamp_mid(a, 5)
    a(f"s_mov_b32 m0, s{sDM}")
    a("s_waitcnt lgkmcnt(4)")
    for q in range(2):
        a(f"{MF32} {vr(S[q], 16)}, {vr(KF[0], 4)}, {vr(Q[q], 4)}, 0")
        a(dma_ins[2 * q])
        a(f"{MF32} {vr(S[q], 16)}, {vr(KF[0] + 4, 4)}, {vr(Q[q] + 4, 4)}, {vr(S[q], 16)}")
        a(dma_ins[2 * q + 1])
    dma_adv()
    a(f"s_mov_b32 s{sST}, 0")
    a(f"s_mov_b32 s{sSL}, {STG}")
    a("s_nop 5")
    for q in range(2):
        s, t = S[q], T0 + 2 * q
        a(f"v_max3_f32 v{t}, v{s}, v{s + 1}, v{s + 2}")
        for r in range(3, 15, 2):
            a(f"v_max3_f32 v{t}, v{s + r}, v{s + r + 1}, v{t}")
        a(f"v_max_f32 v{t}, v{s + 15}, v{t}")
        a(f"v_mov_b32 v{t + 1}, v{t}")
    a("s_nop 1")
    for q in range(2):
        a(f"v_permlane32_swap_b32 v{T0 + 2 * q}, v{T0 + 2 * q + 1}")
    a("s_nop 1")
    for q in (1, 0):
        t = T0 + 2 * q
        a(f"v_max_f32 v{t}, v{t}, v{t + 1}")
        for r in range(16):
            a(f"v_sub_f32 v{NEG[q] + r}, 0, v{t}")
    for r in range(16):
        a(f"v_sub_f32 v{S[0] + r}, v{S[0] + r}, v{T0}")
    for r in range(8, 16):
        a(f"v_mov_b32 v{S[1] + r}, 0")

    SM32, SM16 = "v_smfmac_f32_32x32x32_bf16", "v_smfmac_f32_16x16x64_bf16"

    def step(u, fill=()):
        q, kt = u & 1, u >> 1
        qp, ktn, ktp = q ^ 1, (u + 1) >> 1, (u - 1) >> 1
        cur, nxt = S[q], S[qp]
        rd = vread(kt + 1) if q == 0 else kread(kt + 2)
        d = dict(
            QK0=f"{MF32} {vr(nxt, 16)}, {vr(KF[ktn & 1], 4)}, {vr(Q[qp], 4)}, {vr(NEG[qp], 16)}",
            QK1=f"{MF32} {vr(nxt, 16)}, {vr(KF[ktn & 1] + 4, 4)}, {vr(Q[qp] + 4, 4)}, {vr(nxt, 16)}",
            PV0=f"{SM32} {vr(O[q], 16)}, {vr(VF[kt & 1], 4)}, {vr(cur, 8)}, v{IDX}",
            PV1=f"{SM32} {vr(O[qp], 16)}, {vr(VF[ktp & 1] + 4, 4)}, {vr(nxt + 8, 8)}, v{IDX}",
            S0=f"{SM16} {vr(L[q], 4)}, {vr(ONES, 4)}, {vr(cur, 8)}, v{IDX}",
            S1=f"{SM16} {vr(L[qp], 4)}, {vr(ONES, 4)}, {vr(nxt + 8, 8)}, v{IDX}",
            R0=rd[0], R1=rd[1], N="s_nop 0" if q == 1 else None,
            Wq="s_waitcnt lgkmcnt(2)" if q == 1 else None, Wp="s_waitcnt lgkmcnt(3)" if q == 0 else None)
        for i in range(16):
            d[f"E{i}"] = f"v_exp_f32 v{cur + i}, v{cur + i}"
        fill = list(fill) + [None] * 2
        d["F0"], d["F1"] = fill[0], fill[1]
        o = "E0 E1 S1 Wq E2 PV1 F0 E3 E4 E5 QK0 F1 E6 E7 E8 QK1 R0 E9 E10 E11 Wp PV0 R1 E12 E13 E14 S0 N E15"
        for t in o.split():
            x = d[t]
            if x:
                a.many(x if isinstance(x, list) else [x])

    if OPT["lstamp"]:
        stamp_mid(a, 2)
    UB = 2 * TILES - 3
    a.raw(".p2align 3")
    a.label("L_attn_loop")
    a(f"s_cmp_eq_u32 s{sFIRST}, 1")
    for u in range(2 * TILES):
        fill = ()
        if u in (1, 5, 9):
            a(f"s_cbranch_scc1 L_attn_first{u}")
            a.label(f"L_attn_back{u}")
            if u == (5 if OPT["k2s"] else 1):
                a(f"s_cmp_lg_u32 s{sFIRST}, 0")
        if u == UB:
            a("s_waitcnt vmcnt(0)")
            a("s_barrier")
            a(f"s_mov_b32 m0, s{sDM}")
            fill = (dma_ins[0], dma_ins[1])
        if u == UB + 1:
            fill = (dma_ins[2], dma_ins[3])
        if u == UB + 2:
            fill = ([f"s_cmp_eq_u32 s{sST}, {NSTG - 2}", f"s_cselect_b32 s{sPFC}, s{sPF}, 0x7ff00000",
                     f"buffer_load_dword v{vPFD}, v{vPF}, {sr(SRDW)}, s{sPFC} offen"],
                    [f"s_add_u32 s{sGO}, s{sGO}, {STG}", f"s_add_u32 s{sDM}, s{sDM}, {STG}"])
        if (u - UB) % 4 == 0:
            a(f"s_setprio {3 - ((u - UB) % (2 * TILES)) // 4}")
        step(u, fill)
    a(f"s_cmp_ge_u32 s{sDM}, {NSLOT * STG}")
    a(f"s_cselect_b32 s{t0}, {NSLOT * STG}, 0")
    a(f"s_sub_u32 s{sDM}, s{sDM}, s{t0}")
    a(f"s_mov_b32 s{sFIRST}, 0")
    a(f"v_mov_b32 v{vK}, v{vKN}")
    a(f"s_add_u32 s{sSL}, s{sSL}, {STG}")
    a(f"s_cmp_ge_u32 s{sSL}, {NSLOT * STG}")
    a(f"s_cselect_b32 s{sSL}, 0, s{sSL}")
    a(f"v_add_u32 v{vKN}, s{sSL}, v{vL16}")
    if OPT["lstamp"] and STAMP:
        for k_, n_ in ((0, 3), (1, 4), (6, 5)):
            a(f"s_cmp_lg_u32 s{sST}, {k_}")
            a(f"s_cbranch_scc1 L_attn_ls{k_}")
            stamp_mid(a, n_)
            a.label(f"L_attn_ls{k_}")
    a(f"s_add_u32 s{sST}, s{sST}, 1")
    a(f"s_cmp_lt_u32 s{sST}, {NSTG}")
    a("s_cbranch_scc1 L_attn_loop")
    stamp_mid(a, 1)
    tbl_offset(a, t0)
    a(f"v_mov_b32 v{T2}, 0")
    a(f"buffer_load_dword v{vPFD}, v{T2}, {sr(SRD)}, s{t0} offen")
    a(f"{SM32} {vr(O[1], 16)}, {vr(VF[1] + 4, 4)}, {vr(S[1] + 8, 8)}, v{IDX}")
    a(f"{SM16} {vr(L[1], 4)}, {vr(ONES, 4)}, {vr(S[1] + 8, 8)}, v{IDX}")
    a(f"v_mov_b32 v{T2}, 0")
    for q in range(2):
        for r in range(16):
            a(f"v_fmac_f32 v{T2}, 0, v{O[q] + r}")
    a(f"v_max_f32 v{T3}, v{L[0]}, v{L[1]}")
    a(f"v_fmac_f32 v{T2}, 0, v{L[0]}")
    a(f"v_fmac_f32 v{T2}, 0, v{L[1]}")
    a(f"v_add_f32 v{T3}, v{T3}, v{T2}")
    a(f"v_mov_b32 v{T2}, {f32bits(2.0 ** 40):#x}")
    a(f"v_cmp_nle_f32 vcc, v{T3}, v{T2}")
    a("s_waitcnt lgkmcnt(0)")
    a("s_nop 3")
    a("s_cbranch_vccnz L_attn_slow")

    def finish(q, lreg):
        a(f"v_rcp_f32 v{T0}, v{lreg}")
        a("s_nop 0")
        for r in range(16):
            a(f"v_mul_f32 v{O[q] + r}, v{O[q] + r}, v{T0}")
        for r in range(8):
            a(f"v_cvt_pk_bf16_f32 v{P[q] + r}, v{O[q] + 2 * r}, v{O[q] + 2 * r + 1}")
        a(f"s_add_u32 s{t0}, s{sOB}, {4096 * q}")
        for c in range(2):
            a(f"buffer_store_dwordx4 {vr(P[q] + 4 * c, 4)}, v{vL16}, {sr(SRD)}, s{t0} offen offset:{1024 * c}{OPT['st2']}")

    for q in range(2):
        finish(q, L[q])
    if OPT["orb"]:
        a(f"v_and_b32 v{T1}, 15, v0")
        a(f"v_lshlrev_b32 v{T1}, 7, v{T1}")
        a(f"v_bfe_u32 v{T2}, v0, 4, 1")
        a(f"v_lshl_add_u32 v{T1}, v{T2}, 12, v{T1}")
        a("s_waitcnt vmcnt(0)")
        a(f"buffer_load_dword v{vPFD}, v{T1}, {sr(SRD)}, s{sOB} offen")
    stamp_end(a, 1, OPT["orb"])
    a("s_endpgm")

    for u in (1, 5, 9):
        a.label(f"L_attn_first{u}")
        if u > 1:
            a(f"s_waitcnt vmcnt({6 if u == 5 else 4})")
        if u == 9:
            a(f"s_cmp_lg_u32 s{sWAVE}, 0")
            a("s_cbranch_scc1 L_attn_nov")
            hint_verdict(a, "attn", T0, vHD, FLAG)
            a.label("L_attn_nov")
        a("s_barrier")
        if u == 9:
            hint_read(a, T0, vHD, FLAG)
            a("s_waitcnt lgkmcnt(0)")
            hint_check(a, "attn", vHD)
        a(f"s_branch L_attn_back{u}")

    a.label("L_attn_slow")
    M, LS, AL = 88, 89, 90
    for q in range(2):
        s = S[0]
        a(f"v_mov_b32 v{M}, 0xff7fffff")
        a(f"v_mov_b32 v{LS}, 0")
        for r in range(16):
            a(f"v_mov_b32 v{O[q] + r}, 0")
        a(f"s_mov_b32 s{sGO}, s{sKV}")
        a(f"s_mov_b32 s{sST}, 0")
        a.label(f"L_attn_slow_{q}")
        for c in range(2):
            a(f"buffer_load_dwordx4 {vr(KF[0] + 4 * c, 4)}, v{vL16}, {sr(SRD)}, s{sGO} offen offset:{1024 * c}")
        for c in range(2):
            a(f"buffer_load_dwordx4 {vr(VF[0] + 4 * c, 4)}, v{vL16}, {sr(SRD)}, s{sGO} offen offset:{2048 + 1024 * c}")
        a("s_waitcnt vmcnt(0)")
        a(f"{MF32} {vr(s, 16)}, {vr(KF[0], 4)}, {vr(Q[q], 4)}, 0")
        a(f"{MF32} {vr(s, 16)}, {vr(KF[0] + 4, 4)}, {vr(Q[q] + 4, 4)}, {vr(s, 16)}")
        a("s_nop 7")
        a("s_nop 7")
        a(f"v_max3_f32 v{T0}, v{s}, v{s + 1}, v{M}")
        for r in range(2, 16, 2):
            a(f"v_max3_f32 v{T0}, v{s + r}, v{s + r + 1}, v{T0}")
        a(f"v_mov_b32 v{T1}, v{T0}")
        a("s_nop 1")
        a(f"v_permlane32_swap_b32 v{T0}, v{T1}")
        a("s_nop 1")
        a(f"v_max_f32 v{T0}, v{T0}, v{T1}")
        a(f"v_sub_f32 v{AL}, v{M}, v{T0}")
        a(f"v_exp_f32 v{AL}, v{AL}")
        a(f"v_mov_b32 v{M}, v{T0}")
        for r in range(16):
            a(f"v_sub_f32 v{s + r}, v{s + r}, v{T0}")
        for r in range(16):
            a(f"v_exp_f32 v{s + r}, v{s + r}")
        a(f"v_mul_f32 v{LS}, v{LS}, v{AL}")
        for r in range(16):
            a(f"v_mul_f32 v{O[q] + r}, v{O[q] + r}, v{AL}")
        for r in range(16):
            a(f"v_and_b32 v{s + r}, 0xffff0000, v{s + r}")
        for r in range(16):
            a(f"v_add_f32 v{LS}, v{LS}, v{s + r}")
        a("s_nop 1")
        a(f"{SM32} {vr(O[q], 16)}, {vr(VF[0], 4)}, {vr(s, 8)}, v{IDX}")
        a(f"{SM32} {vr(O[q], 16)}, {vr(VF[0] + 4, 4)}, {vr(s + 8, 8)}, v{IDX}")
        a("s_nop 7")
        a("s_nop 7")
        a(f"s_add_u32 s{sGO}, s{sGO}, 4096")
        a(f"s_add_u32 s{sST}, s{sST}, 1")
        a(f"s_cmp_lt_u32 s{sST}, 64")
        a(f"s_cbranch_scc1 L_attn_slow_{q}")
        a(f"v_mov_b32 v{T1}, v{LS}")
        a("s_nop 1")
        a(f"v_permlane32_swap_b32 v{LS}, v{T1}")
        a("s_nop 1")
        a(f"v_add_f32 v{LS}, v{LS}, v{T1}")
        finish(q, LS)
        a("s_waitcnt vmcnt(0)")
    stamp_end(a, 1)
    a("s_endpgm")
    hint_slow(a, "attn")
    a.label("L_attn_end")
    a("s_endpgm")
    return a.text(), kernel_desc("attn_kernel", NV), lds, 512


HEADER = """; Fused MQA (branch A) + MHA (branch B) attention block, three launches:
;   proj_kernel : Q/K/V projections -> MFMA-fragment-ordered tiles in d_ws
;   attn_kernel : softmax(Q K^T) V per (branch, head, 512 rows)
;   outp_kernel : output projections -> d_out
"""


def main(path):
    ks = [("proj_kernel",) + gen_proj(), ("attn_kernel",) + gen_attn(), ("outp_kernel",) + gen_outp()]
    s = HEADER
    for n, t, d, lds, blk in ks:
        s += f"; @launch kernel={n} grid=(256,1,1) block=({blk},1,1) lds={lds}\n"
    if OPT["twice3"]:
        s += s.splitlines()[-1] + "\n"
    s += '.amdgcn_target "amdgcn-amd-amdhsa--gfx950"\n'
    s += "".join(k[1] for k in ks) + "".join(k[2] for k in ks)
    open(path, "w").write(s)


if __name__ == "__main__":
    args = sys.argv[1:]
    if "--stamp" in args:
        STAMP = True
        args.remove("--stamp")
    for x in list(args):
        if "=" in x:
            k_, v_ = x.split("=")
            assert k_ in OPT, k_
            OPT[k_] = int(v_) if v_.lstrip("-").isdigit() else ("" if v_ == "none" else " " + v_.replace("+", " "))
            args.remove(x)
    main(args[0] if args else f"cdna_kernels/{NAME}.s")
```

```python
import sys, math, struct

NAME = "concat_heads__grouped_kv_mqa__softmax_full_mha__prompt"

WS_QA = 0x0000000
WS_QB = 0x0400000
WS_KVA = 0x0800000
WS_TBL = 0x0900000
WS_CLM = 0x0910000
WS_KVB = 0x1000000
WS_OA = 0x2000000
WS_OB = 0x2400000
WS_STAMP = 0x8000000
WS_SIZE = 268435456

QSCALE = (32 ** -0.5) * math.log2(math.e)
STAMP = False
OPT = dict(pre=16, st1=" sc0 sc1", st2=" sc0 sc1", ld1="", pfb="", pf=1, pf0=0, pfd=2, badtbl=0, lstamp=0, epi3=1, nl3=4, fake16=0, badtk=0, pfirst=1, pwait=0, wsb=0, st3=" nt", k2s=1, p0=2, xfirst=1, rot=0, ks3=2, xp=0, lrot=1, swap3=1, p1e=1, orb=0, twice3=0, wos=6, oob=1, m16=1, m16b=1)

MF32 = "v_mfma_f32_32x32x16_bf16"
MF16 = "v_mfma_f32_16x16x32_bf16"


def f32bits(x):
    return struct.unpack("<I", struct.pack("<f", x))[0]


class A:
    def __init__(self):
        self.l = []

    def __call__(self, s):
        self.l.append("    " + s)

    def many(self, xs):
        for x in xs:
            self(x)

    def label(self, s):
        self.l.append(s + ":")

    def raw(self, s):
        self.l.append(s)

    def text(self):
        return "\n".join(self.l) + "\n"


def vr(b, n):
    return f"v[{b}:{b + n - 1}]"


def sr(b, n=4):
    return f"s[{b}:{b + n - 1}]"


def srd(a, d, lo, size):
    a(f"s_mov_b32 s{d}, s{lo}")
    a(f"s_mov_b32 s{d+1}, s{lo + 1}")
    a(f"s_mov_b32 s{d+2}, {size:#x}")
    a(f"s_mov_b32 s{d+3}, 0x00020000")


def srd_sel(a, d, lo1, lo0, size1, size0=None):
    a(f"s_cselect_b32 s{d}, s{lo1}, s{lo0}")
    a(f"s_cselect_b32 s{d+1}, s{lo1 + 1}, s{lo0 + 1}")
    if size0 is None:
        a(f"s_mov_b32 s{d+2}, {size1:#x}")
    else:
        csel(a, d + 2, size1, size0)
    a(f"s_mov_b32 s{d+3}, 0x00020000")


def csel(a, d, x, y):
    a(f"s_mov_b32 s{d}, {y}")
    a(f"s_cmov_b32 s{d}, {x}")


def kernel_head(a, name):
    a.raw(".text")
    a.raw(f".globl {name}")
    a.raw(".p2align 8")
    a.raw(f".type {name},@function")
    a.label(name)


def kernel_desc(name, nvgpr, nsgpr=102):
    acc = (nvgpr + 3) // 4 * 4
    return f""".section .rodata,"a"
.p2align 6
.amdhsa_kernel {name}
  .amdhsa_next_free_vgpr {nvgpr}
  .amdhsa_next_free_sgpr {nsgpr}
  .amdhsa_accum_offset {acc}
  .amdhsa_group_segment_fixed_size 0
  .amdhsa_kernarg_size 88
  .amdhsa_user_sgpr_count 2
  .amdhsa_user_sgpr_kernarg_segment_ptr 1
  .amdhsa_system_sgpr_workgroup_id_x 1
.end_amdhsa_kernel
"""


sXCC, sHW, sTRY, sTK = 3, 8, 9, 10
SRD_DBG = 12
S_IN = 16
S_OUT = 32
S_WS = 34
SRD_WS = 44
sWAVE = 56
sT0, sT1, sT2, sT3 = 57, 58, 59, 60
sOK = 81


def stamp_begin(a):
    if STAMP:
        a("s_memtime s[82:83]")
        a("s_memrealtime s[84:85]")
        for n in range(6):
            a(f"s_mov_b32 s{90 + 2 * n}, 0")


def stamp_mid(a, n):
    if STAMP:
        a(f"s_memtime s[{90 + 2 * n}:{91 + 2 * n}]")


def stamp_end(a, kidx, keep=0):
    if not STAMP:
        return
    a(f"s_waitcnt vmcnt({keep})")
    a("s_memtime s[86:87]")
    a("s_memrealtime s[88:89]")
    a("s_waitcnt lgkmcnt(0)")
    a(f"s_min_u32 s9, s{sWAVE}, 7")
    a("s_lshl_b32 s8, s2, 3")
    a("s_add_u32 s8, s8, s9")
    a("s_lshl_b32 s8, s8, 6")
    a(f"s_add_u32 s8, s8, {WS_STAMP + kidx * 0x20000:#x}")
    for i, r in enumerate((82, 84, 86, 88, 90, 92, 94, 96, 98, 100, 100, 100)):
        a(f"v_mov_b32 v{4 + i}, s{r}")
    a("v_mov_b32 v1, 0")
    a("s_mov_b64 exec, 1")
    for i in range(3):
        a(f"buffer_store_dwordx4 v[{4 + 4 * i}:{7 + 4 * i}], v1, {sr(SRD_WS)}, s8 offen offset:{16 * i}")


def entry(a, tag):
    a("s_cmp_ge_u32 s2, 256")
    a(f"s_cbranch_scc1 L_{tag}_end")
    stamp_begin(a)
    a(f"s_load_dwordx16 {sr(S_IN, 16)}, s[0:1], 0")
    a(f"s_load_dwordx2 {sr(S_OUT, 2)}, s[0:1], 64")
    a(f"s_load_dwordx2 {sr(SRD_DBG, 2)}, s[0:1], 72")
    a(f"s_load_dwordx2 {sr(S_WS, 2)}, s[0:1], 80")
    a("v_lshrrev_b32 v1, 6, v0")
    a("v_and_b32 v0, 63, v0")
    a(f"v_readfirstlane_b32 s{sWAVE}, v1")
    a(f"s_getreg_b32 s{sXCC}, hwreg(HW_REG_XCC_ID, 0, 3)")
    a(f"s_getreg_b32 s{sHW}, hwreg(HW_REG_HW_ID, 8, 8)")
    a(f"s_mov_b32 s{SRD_DBG + 2}, 256")
    a(f"s_mov_b32 s{SRD_DBG + 3}, 0x00020000")


def ws_reloc(a):
    if OPT["wsb"]:
        a(f"s_add_u32 s{S_WS}, s{S_WS}, {OPT['wsb'] << 20:#x}")
        a(f"s_addc_u32 s{S_WS + 1}, s{S_WS + 1}, 0")


def tbl_offset(a, d):
    a(f"s_lshl_b32 s{d}, s{sXCC}, 8")
    a(f"s_or_b32 s{d}, s{d}, s{sHW}")
    a(f"s_lshl_b32 s{d}, s{d}, 2")
    a(f"s_add_u32 s{d}, s{d}, {WS_TBL:#x}")


sG, sMT = 32, 33


def ticket_issue(a, tag, who):
    a(f"s_mov_b32 s{sG}, s{sXCC}")
    a(f"s_bfe_u32 s{sMT}, s{sHW}, 0x20005")
    if OPT["badtk"]:
        a(f"s_and_b32 s{sMT}, s{sMT}, 1")
        a(f"s_and_b32 s{sG}, s{sG}, 5")
    a(f"s_mov_b32 s{sOK}, 0")
    a(f"s_cmp_lg_u32 s{sWAVE}, {who}")
    a(f"s_cbranch_scc1 L_{tag}_cl0")
    a(f"s_lshl_b32 s{sTK + 1}, s{sG}, 2")
    a(f"s_or_b32 s{sTK + 1}, s{sTK + 1}, s{sMT}")
    a(f"s_lshl_b32 s{sTRY}, s{sTK + 1}, 3")
    a(f"s_mov_b32 s{sTK}, 1")
    a(f"s_atomic_add s{sTK}, {sr(SRD_DBG, 2)}, s{sTRY} glc")
    a.label(f"L_{tag}_cl0")


def ticket_end(a, tag, who, ldsoff):
    a(f"s_cmp_lg_u32 s{sWAVE}, {who}")
    a(f"s_cbranch_scc1 L_{tag}_cl3")
    a(f"s_cmp_lg_u32 s{sOK}, 0")
    a(f"s_cbranch_scc1 L_{tag}_cl3")
    a(f"s_mov_b32 s{sCNT}, 0")
    a.label(f"L_{tag}_cl1")
    a("s_waitcnt lgkmcnt(0)")
    a(f"s_cmp_lt_u32 s{sTK}, 8")
    a(f"s_cbranch_scc1 L_{tag}_cl2")
    a(f"s_add_u32 s{sCNT}, s{sCNT}, 1")
    a(f"s_cmp_ge_u32 s{sCNT}, 32")
    a(f"s_cbranch_scc1 L_{tag}_cl2")
    a(f"s_add_u32 s{sTK + 1}, s{sTK + 1}, 1")
    a(f"s_and_b32 s{sTK + 1}, s{sTK + 1}, 31")
    a(f"s_lshl_b32 s{sTRY}, s{sTK + 1}, 3")
    a(f"s_mov_b32 s{sTK}, 1")
    a(f"s_atomic_add s{sTK}, {sr(SRD_DBG, 2)}, s{sTRY} glc")
    a(f"s_branch L_{tag}_cl1")
    a.label(f"L_{tag}_cl2")
    a(f"s_min_u32 s{sTK}, s{sTK}, 8")
    a(f"s_lshl_b32 s{sTK}, s{sTK}, 5")
    a(f"s_and_b32 s{sTRY}, s{sTK + 1}, 3")
    a(f"s_lshl_b32 s{sTRY}, s{sTRY}, 3")
    a(f"s_or_b32 s{sTK}, s{sTK}, s{sTRY}")
    a(f"s_lshr_b32 s{sTRY}, s{sTK + 1}, 2")
    a(f"s_or_b32 s{sTK}, s{sTK}, s{sTRY}")
    a("s_mov_b64 exec, 1")
    a(f"v_mov_b32 v2, {ldsoff}")
    a(f"v_mov_b32 v3, s{sTK}")
    a("ds_write_b32 v2, v3")
    a("s_mov_b64 exec, -1")
    a("s_waitcnt lgkmcnt(0)")
    a.label(f"L_{tag}_cl3")


def ticket_notes(a, tag, who):
    a(f"s_cmp_lg_u32 s{sWAVE}, {who}")
    a(f"s_cbranch_scc1 L_{tag}_cl4")
    a("s_mov_b64 exec, 1")
    a("v_mov_b32 v1, 0")
    a("v_mov_b32 v3, s2")
    a(f"s_lshl_b32 s{sT1}, s2, 7")
    a(f"s_add_u32 s{sT1}, s{sT1}, {WS_CLM:#x}")
    a(f"buffer_store_dword v1, v1, {sr(SRD_WS)}, s{sT1} offen")
    a(f"s_add_u32 s{sT1}, s{sT1}, 0x8000")
    a(f"buffer_store_dword v1, v1, {sr(SRD_WS)}, s{sT1} offen")
    tbl_offset(a, sT1)
    a(f"buffer_store_dword v3, v1, {sr(SRD_WS)}, s{sT1} offen sc0 sc1")
    a("s_mov_b64 exec, -1")
    a.label(f"L_{tag}_cl4")


def ticket_wait(a, tag, ldsoff, redo):
    a(f"v_mov_b32 v2, {ldsoff}")
    a("s_barrier")
    a("ds_read_b32 v3, v2")
    a(f"s_lshl_b32 s{sT1}, s{sMT}, 3")
    a(f"s_or_b32 s{sT1}, s{sT1}, s{sG}")
    a("s_waitcnt lgkmcnt(0)")
    a("v_readfirstlane_b32 s2, v3")
    a("s_nop 3")
    a(f"s_and_b32 s{sT2}, s2, 0x31f")
    a(f"s_cmp_lg_u32 s{sT2}, s{sT1}")
    a(f"s_cbranch_scc1 {redo}")
    a(f"s_lshr_b32 s{sNT}, s2, 5")


def ticket_redo(a, tag, lbl, back):
    a.label(lbl)
    a("s_waitcnt vmcnt(0)")
    a("s_cmp_ge_u32 s2, 256")
    a(f"s_cbranch_scc1 L_{tag}_end")
    a(f"s_and_b32 s{sG}, s2, 7")
    a(f"s_bfe_u32 s{sMT}, s2, 0x20003")
    a(f"s_mov_b32 s{sOK}, 1")
    a(f"s_branch {back}")


def hint_load(a, tag):
    tbl_offset(a, sTK)
    a("s_waitcnt lgkmcnt(0)")
    ws_reloc(a)
    a(f"s_load_dword s2, {sr(S_WS, 2)}, s{sTK}")
    srd(a, SRD_WS, S_WS, WS_SIZE - (OPT["wsb"] << 20))
    a(f"s_mov_b32 s{sOK}, 0")
    a("s_waitcnt lgkmcnt(0)")
    if OPT["badtbl"]:
        a(f"s_and_b32 s2, s2, {OPT['badtbl']}")
    a("s_and_b32 s2, s2, 255")
    a.label(f"L_{tag}_item")


def clm_base(tag):
    return WS_CLM + (0 if tag == "attn" else 0x8000)


def hint_claim(a, tag, who):
    a(f"s_cmp_lg_u32 s{sWAVE}, {who}")
    a(f"s_cbranch_scc1 L_{tag}_noc")
    a(f"s_lshl_b32 s{sTK + 1}, s2, 7")
    a(f"s_add_u32 s{sTK + 1}, s{sTK + 1}, {clm_base(tag):#x}")
    a(f"s_mov_b32 s{sTK}, 1")
    a(f"s_atomic_or s{sTK}, {sr(S_WS, 2)}, s{sTK + 1} glc")
    a.label(f"L_{tag}_noc")


def hint_verdict(a, tag, vA, vD, ldsoff):
    a("s_waitcnt lgkmcnt(0)")
    a(f"s_andn2_b32 s{sTK}, s{sTK}, s{sOK}")
    if OPT["twice3"] and tag == "outp":
        a(f"s_mov_b32 s{sTK}, 0")
    a(f"s_cmp_lg_u32 s{sTK}, 0")
    a(f"s_mov_b32 s{sTRY}, s2")
    a(f"s_cbranch_scc1 L_{tag}_hslow")
    a.label(f"L_{tag}_hback")
    a(f"v_mov_b32 v{vA}, {ldsoff}")
    a(f"v_mov_b32 v{vD}, s{sTRY}")
    a(f"ds_write_b32 v{vA}, v{vD}")
    a("s_waitcnt lgkmcnt(0)")


def hint_slow(a, tag):
    sN = 4
    a.label(f"L_{tag}_hslow")
    a(f"s_mov_b32 s{sN}, 0")
    a.label(f"L_{tag}_hs1")
    a(f"s_add_u32 s{sN}, s{sN}, 1")
    a(f"s_add_u32 s{sTRY}, s{sTRY}, 9")
    a(f"s_and_b32 s{sTRY}, s{sTRY}, 255")
    a(f"s_cmp_gt_u32 s{sN}, 256")
    a(f"s_cbranch_scc1 L_{tag}_hs2")
    a(f"s_lshl_b32 s{sTK + 1}, s{sTRY}, 7")
    a(f"s_add_u32 s{sTK + 1}, s{sTK + 1}, {clm_base(tag):#x}")
    a(f"s_mov_b32 s{sTK}, 1")
    a(f"s_atomic_or s{sTK}, {sr(S_WS, 2)}, s{sTK + 1} glc")
    a("s_waitcnt lgkmcnt(0)")
    a(f"s_cmp_lg_u32 s{sTK}, 0")
    a(f"s_cbranch_scc1 L_{tag}_hs1")
    a(f"s_branch L_{tag}_hback")
    a.label(f"L_{tag}_hs2")
    a(f"s_mov_b32 s{sTRY}, 0x8000")
    a(f"s_branch L_{tag}_hback")
    a.label(f"L_{tag}_restart")
    a("s_waitcnt vmcnt(0) lgkmcnt(0)")
    a("s_barrier")
    a(f"s_mov_b32 s2, s{sTRY}")
    a(f"s_mov_b32 s{sOK}, 1")
    a("s_setprio 0")
    a("s_cmp_ge_u32 s2, 256")
    a(f"s_cbranch_scc1 L_{tag}_end")
    a(f"s_branch L_{tag}_item")


def hint_read(a, vA, vD, ldsoff):
    a(f"v_mov_b32 v{vA}, {ldsoff}")
    a(f"ds_read_b32 v{vD}, v{vA}")


def hint_check(a, tag, vD):
    a(f"v_readfirstlane_b32 s{sTRY}, v{vD}")
    a("s_nop 3")
    a(f"s_cmp_lg_u32 s{sTRY}, s2")
    a(f"s_cbranch_scc1 L_{tag}_restart")


SRD_X, SRD_W, SRD_WK, SRD_WV, SRD_PF, SRD_OUT = 36, 40, 48, 52, 4, 48
sXOFF, sWOFF, sWSTG, sSLOT, sCNT, sDELTA = 61, 62, 64, 65, 66, 67
sOBASE, sOJ, sOI, sSCALE = 68, 69, 70, 72
sSEC, sM0, sCOL0, sWSTR, sNT, sEXO, sEXS, sRSLOT = 74, 75, 76, 77, 78, 79, 80, 63
sPFO, sPFS, sPFN = 9, 10, 11
sPFL, sPFW, sK = 68, 69, 71


class G:
    def __init__(self, kind):
        self.kind = kind
        proj = kind == "proj"
        self.NI, self.NJ = (4, 2) if proj else (2, 2)
        self.XB = 32768 if proj else 16384
        self.NSLOT = 3 if proj else 4
        self.NL = 4 if proj else OPT["nl3"]
        self.SLOT = self.XB + 16384 + (2048 if proj else 0)
        self.XP = self.XB // 1024 // self.NL
        self.WP = 16 // self.NL
        self.NST = 16
        self.EXB = self.NSLOT * self.SLOT
        self.lds = self.NSLOT * self.SLOT + 64
        self.KS = 1 if proj else OPT["ks3"]
        self.ACC = 128 if proj else 16 + 32 * self.KS + (16 if self.KS == 1 else 0)
        self.nacc = self.NI * self.NJ * 16
        self.f1 = self.NI * 4 + self.NJ * 4
        fsz = self.f1 * self.KS
        self.F = [16, 16 + fsz]
        self.vXA, self.vWA, self.vEXX, self.vEXW, self.vST = 4, 8, 10, 12, 13
        self.EXF = 16 + 2 * fsz
        self.EXACC = self.EXF + 12
        self.nvgpr = self.ACC + self.nacc

    def fx(self, t, i):
        return self.F[(t // self.KS) & 1] + (t % self.KS) * self.f1 + 4 * i

    def fw(self, t, j):
        return self.F[(t // self.KS) & 1] + (t % self.KS) * self.f1 + self.NI * 4 + 4 * j

    def acc(self, i, j):
        return self.ACC + (i * self.NJ + j) * 16


def gemm_reads(g, T):
    proj = g.kind == "proj"
    out = []
    for t in range(T * g.KS, (T + 1) * g.KS):
        wr = [f"ds_read_b64_tr_b16 {vr(g.fw(t, j) + 2 * u, 2)}, v{g.vWA + j} offset:{4096 * t + (1024 if proj else 2048) * u}"
              for j in range(g.NJ) for u in range(2)]
        if proj:
            xr = [f"ds_read_b128 {vr(g.fx(t, i), 4)}, v{g.vXA + t} offset:{4096 * i}" for i in range(g.NI)]
        else:
            xr = [f"ds_read_b128 {vr(g.fx(t, i), 4)}, v{g.vXA} offset:{4096 * i + 1024 * t}" for i in range(g.NI)]
        out += [xr[0]] + wr + xr[1:]
    if OPT["xp"] == 1:
        out = out[::2]
    if OPT["xp"] == 2:
        out = out[:1]
    return out


def gemm_extra_reads(g, e):
    return [f"ds_read_b64_tr_b16 {vr(g.EXF + 2 * u, 2)}, v{g.vEXW} offset:{1024 * e + 128 * u}" for u in range(2)] + \
           [f"ds_read_b128 {vr(g.EXF + 4 + 4 * th, 4)}, v{g.vEXX + e} offset:{2048 * th}" for th in range(2)]


def gemm_step(a, g, T, swap, reads, pre=(), extra_mfma=(), post_valu=()):
    a.many(pre)
    mf = []
    for t in range(T * g.KS, (T + 1) * g.KS):
        for i in range(g.NI):
            for j in range(g.NJ):
                x, w, c = vr(g.fx(t, i), 4), vr(g.fw(t, j), 4), vr(g.acc(i, j), 16)
                mf.append(f"{MF32} {c}, {x}, {w}, {c}" if swap else f"{MF32} {c}, {w}, {x}, {c}")
    mf += list(extra_mfma)
    reads, post_valu = list(reads), list(post_valu)
    for m in mf:
        if OPT["fake16"] and m.startswith(MF32):
            import re as _re
            c0 = int(_re.search(r"v\[(\d+):", m).group(1))
            ops = m.split(", ")
            for h in range(2):
                cc = vr(c0 + 4 * h + 8 * (T & 1), 4)
                a(f"{MF16} {cc}, {ops[1 + h]}, {ops[2 - h]}, {cc}")
        elif OPT["xp"] != 3:
            a(m)
        for _ in range(2):
            if reads:
                a(reads.pop(0))
        if not reads:
            for _ in range(2):
                if post_valu:
                    a(post_valu.pop(0))
    a.many(reads + post_valu)


def gemm_compute(a, g, tag, swap, extras, check=None):
    proj = g.kind == "proj"

    def ex_mfma():
        w = vr(g.EXF, 4)
        out = []
        for th in range(2):
            x, c = vr(g.EXF + 4 + 4 * th, 4), vr(g.EXACC + 4 * th, 4)
            out.append(f"{MF16} {c}, {x}, {w}, {c}" if extras == "V" else f"{MF16} {c}, {w}, {x}, {c}")
        return out

    def adv(reg):
        return f"v_add_u32 v{reg}, s{sDELTA}, v{reg}"

    NB = 4 // g.KS

    def stage(last):
        for t in range(NB):
            pre = ["s_waitcnt lgkmcnt(0)"]
            reads, post, em = [], [], []
            if t < NB - 1:
                reads = gemm_reads(g, t + 1)
                if extras and t == 1:
                    reads += gemm_extra_reads(g, 1)
                if not last:
                    if proj:
                        post.append(adv(g.vXA + t + 1))
                    if t == NB - 2:
                        post += [adv(g.vWA), adv(g.vWA + 1), adv(g.vXA)]
                        if extras:
                            post += [adv(g.vEXX), adv(g.vEXX + 1), adv(g.vEXW)]
            elif not last:
                pre.append("s_barrier")
                reads = gemm_reads(g, 0)
                if extras:
                    reads += gemm_extra_reads(g, 0)
            if extras and t in (0, 2):
                em = ex_mfma()
            gemm_step(a, g, t, swap, reads, pre, em, post)

    stamp_mid(a, 4)
    a("s_barrier")
    stamp_mid(a, 0)
    a.many(gemm_reads(g, 0))
    if extras:
        a.many(gemm_extra_reads(g, 0))
    a(f"s_mov_b32 s{sCNT}, 0")
    a(f"s_mov_b32 s{sRSLOT}, 0")
    a.raw(".p2align 3")
    a.label(f"L_{tag}_loop")
    a(f"s_add_u32 s{sRSLOT}, s{sRSLOT}, 1")
    a(f"s_cmp_eq_u32 s{sRSLOT}, {g.NSLOT}")
    csel(a, sDELTA, f"{-(g.NSLOT - 1) * g.SLOT & 0xffffffff:#x}", g.SLOT)
    a(f"s_cselect_b32 s{sRSLOT}, 0, s{sRSLOT}")
    stage(False)
    a(f"s_add_u32 s{sCNT}, s{sCNT}, 1")
    a(f"s_cmp_lt_u32 s{sCNT}, {g.NST - 1}")
    a(f"s_cbranch_scc1 L_{tag}_loop")
    if check:
        hint_read(a, 14, 15, g.EXB)
    stage(True)
    if check:
        hint_check(a, check, 15)
    stamp_mid(a, 1)


def pf_adv(a):
    a(f"s_add_u32 s{sPFO}, s{sPFO}, s{sPFS}")
    a(f"s_cmp_ge_u32 s{sPFO}, s{sPFL}")
    a(f"s_cselect_b32 s{sT1}, s{sPFW}, 0")
    a(f"s_sub_u32 s{sPFO}, s{sPFO}, s{sT1}")


def k_wrap(a, lbl, n):
    a(f"s_add_u32 s{sK}, s{sK}, {n}")
    a(f"s_cmp_lt_u32 s{sK}, 16")
    a(f"s_cbranch_scc1 {lbl}")
    a(f"s_mov_b32 s{sK}, 0")
    a(f"s_sub_u32 s{sXOFF}, s{sXOFF}, 2048")
    a(f"s_lshl_b32 s{sT1}, s{sWSTG}, 4")
    a(f"s_sub_u32 s{sWOFF}, s{sWOFF}, s{sT1}")
    a(f"s_sub_u32 s{sEXO}, s{sEXO}, 0x10000")
    a.label(lbl)


def gemm_loader(a, g, tag, vX, vW):
    proj = g.kind == "proj"
    per, LA = g.XP + g.WP, g.NSLOT
    lb = OPT["ld1"] if proj else ""
    pf = proj and OPT["pf"]

    def prefetch():
        a(f"buffer_load_dword v9, v8, {sr(SRD_PF)}, s{sPFO} offen{OPT['pfb']}")
        pf_adv(a)

    def prefetch_if(hi, lbl):
        a(f"s_cmp_ge_u32 s{sWAVE}, 6")
        a(f"s_cbranch_scc{0 if hi else 1} {lbl}")
        prefetch()
        a.label(lbl)

    nlab = [0]

    def issue(lo=0, hi=None):
        hi = per if hi is None else hi
        for n in range(lo, hi):
            isx = n < g.XP
            i = n if isx else n - g.XP
            if i % 4 == 0 or n == lo:
                base = (i // 4) * 4096 if isx else 0
                a(f"s_add_u32 m0, s{sSLOT if isx else sEXS + 0}, {base}" if isx else f"s_add_u32 m0, s{sT3}, 0")
                a("s_nop 0")
            if isx:
                a(f"buffer_load_dwordx4 v{vX[i]}, {sr(SRD_X)}, s{sXOFF} offen offset:{(i % 4) * 1024}{lb} lds")
            else:
                a(f"buffer_load_dwordx4 v{vW[i]}, {sr(SRD_W)}, s{sWOFF} offen offset:{(i % 4) * 1024}{lb} lds")
        if hi == per:
            a(f"s_add_u32 s{sXOFF}, s{sXOFF}, {128 if proj else f's{sEXO}'}")
            a(f"s_add_u32 s{sWOFF}, s{sWOFF}, s{sWSTG}")
            if proj:
                nlab[0] += 1
                k_wrap(a, f"L_{tag}_kw{nlab[0]}", 1)
            a(f"s_add_u32 s{sRSLOT}, s{sRSLOT}, 1")
            a(f"s_cmp_eq_u32 s{sRSLOT}, {g.NSLOT}")
            csel(a, sDELTA, f"{-(g.NSLOT - 1) * g.SLOT & 0xffffffff:#x}", g.SLOT)
            a(f"s_cselect_b32 s{sRSLOT}, 0, s{sRSLOT}")
            a(f"s_add_u32 s{sSLOT}, s{sSLOT}, s{sDELTA}")
            a(f"s_add_u32 s{sT3}, s{sT3}, s{sDELTA}")

    def maybe_extra(lbl, st=0):
        if not proj:
            return
        a(f"s_cmp_eq_u32 s{sCOL0}, 0")
        a(f"s_cbranch_scc1 {lbl}")
        a(f"s_add_u32 m0, s{sT3}, s{sEXS}")
        if st:
            a(f"s_add_u32 m0, m0, {st * g.SLOT}")
        a("s_nop 0")
        a(f"buffer_load_dwordx4 v6, {sr(SRD_WK)}, s{sEXO} offen lds")
        a(f"s_add_u32 s{sEXO}, s{sEXO}, 4096")
        a.label(lbl)

    a(f"s_mov_b32 s{sRSLOT}, 0")
    stamp_mid(a, 3)
    if proj:
        def xs(st):
            a(f"s_add_u32 s{sDELTA}, s{sXOFF}, {128 * st}")
            for i in range(g.XP):
                if i % 4 == 0:
                    a(f"s_add_u32 m0, s{sSLOT}, {st * g.SLOT + (i // 4) * 4096}")
                    a("s_nop 0")
                a(f"buffer_load_dwordx4 v{vX[i]}, {sr(SRD_X)}, s{sDELTA} offen offset:{(i % 4) * 1024}{lb} lds")

        def ws_(st):
            maybe_extra(f"L_{tag}_x{st}", st)
            a(f"s_add_u32 m0, s{sT3}, {st * g.SLOT}")
            a("s_nop 0")
            for i in range(g.WP):
                a(f"buffer_load_dwordx4 v{vW[i]}, {sr(SRD_W)}, s{sWOFF} offen offset:{i * 1024}{lb} lds")
            a(f"s_add_u32 s{sWOFF}, s{sWOFF}, s{sWSTG}")

        for st in range(OPT["xfirst"]):
            xs(st)
        if pf and OPT["p1e"]:
            a(f"s_cmp_ge_u32 s{sWAVE}, 6")
            a(f"s_cbranch_scc0 L_{tag}_p1e")
            a(f"buffer_load_dword v9, v8, {sr(SRD_PF)}, s{sOBASE} offen{OPT['pfb']}")
            a.label(f"L_{tag}_p1e")
        g.mid()
        ws_(0)
        young = g.WP
        if OPT["xfirst"] == 1:
            young += g.XP
            xs(1)
        ws_(1)
        stamp_mid(a, 4)
        a(f"s_add_u32 s{sXOFF}, s{sXOFF}, 256")
        k_wrap(a, f"L_{tag}_kw0", 2)
        a(f"s_add_u32 s{sSLOT}, s{sSLOT}, {2 * g.SLOT}")
        a(f"s_add_u32 s{sT3}, s{sT3}, {2 * g.SLOT}")
        a(f"s_mov_b32 s{sRSLOT}, 2")
        a(f"s_waitcnt vmcnt({young})")
        stamp_mid(a, 5)
        a("s_barrier")
        stamp_mid(a, 0)
        if pf and OPT["p0"] == 2:
            g.after_bar0()
            if not OPT["p1e"]:
                a(f"s_cmp_ge_u32 s{sWAVE}, 6")
                a(f"s_cbranch_scc0 L_{tag}_p1b")
                a(f"buffer_load_dword v9, v8, {sr(SRD_PF)}, s{sPFO} offen{OPT['pfb']}")
                a.label(f"L_{tag}_p1b")
            pf_adv(a)
        maybe_extra(f"L_{tag}_x1b")
        issue()
        if not (pf and OPT["p0"] == 2):
            g.after_bar0()
        if pf:
            prefetch_if(False, f"L_{tag}_p2")
            a(f"s_cmp_ge_u32 s{sWAVE}, 6")
            a(f"s_cselect_b32 s{sPFN}, {OPT['pf0']}, {OPT['pf0'] + OPT['pfd']}")
    else:
        issue()
        pre = min(OPT["pre"] * 4 // g.NL, per * (LA - 1))
        full, part = divmod(pre, per)
        for _ in range(full):
            issue()
        if part:
            issue(0, part)
        stamp_mid(a, 4)
        a(f"s_waitcnt vmcnt({pre})")
        stamp_mid(a, 5)
        a("s_barrier")
        stamp_mid(a, 0)
        if part:
            issue(part, per)
            full += 1
        for _ in range(LA - 1 - full):
            issue()
    a(f"s_mov_b32 s{sCNT}, 0")
    a.label(f"L_{tag}_lloop")
    a(f"s_waitcnt vmcnt({(LA - 2) * per})")
    a("s_barrier")
    if OPT["lstamp"] and STAMP:
        for k_, n_ in ((1, 2), (4, 3), (8, 4), (11, 5)):
            a(f"s_cmp_lg_u32 s{sCNT}, {k_}")
            a(f"s_cbranch_scc1 L_{tag}_ls{k_}")
            stamp_mid(a, n_)
            a.label(f"L_{tag}_ls{k_}")
    maybe_extra(f"L_{tag}_x2")
    issue()
    if pf:
        a(f"s_cmp_eq_u32 s{sCNT}, s{sPFN}")
        a(f"s_cbranch_scc0 L_{tag}_nopf")
        prefetch()
        a(f"s_add_u32 s{sPFN}, s{sPFN}, {2 * OPT['pfd']}")
        a(f"s_cmp_gt_u32 s{sPFN}, {OPT['pf0'] + 4 * OPT['pfd']}")
        a(f"s_cselect_b32 s{sPFN}, 64, s{sPFN}")
        a.label(f"L_{tag}_nopf")
    a(f"s_add_u32 s{sCNT}, s{sCNT}, 1")
    a(f"s_cmp_lt_u32 s{sCNT}, {g.NST - LA}")
    a(f"s_cbranch_scc1 L_{tag}_lloop")
    for s in range(g.NST - LA, g.NST - 1):
        a(f"s_waitcnt vmcnt({(g.NST - 2 - s) * per})")
        if not proj and s == g.NST - LA:
            a(f"s_cmp_lg_u32 s{sWAVE}, 4")
            a(f"s_cbranch_scc1 L_{tag}_nov")
            hint_verdict(a, tag, 14, 15, g.EXB)
            a.label(f"L_{tag}_nov")
        a("s_barrier")
        if proj and s == g.NST - 2:
            tbl_offset(a, sT1)
            a("v_mov_b32 v1, 0")
            a(f"buffer_load_dword v2, v1, {sr(SRD_WS)}, s{sT1} offen")
    if not proj:
        hint_read(a, 14, 15, g.EXB)
        a("s_waitcnt lgkmcnt(0)")
        hint_check(a, tag, 15)
    stamp_mid(a, 1)
    stamp_end(a, 0 if proj else 2)
    a("s_endpgm")


def proj_group(a, sg):
    a(f"s_and_b32 s{sSEC}, s{sg}, 3")
    a(f"s_cmp_eq_u32 s{sSEC}, 0")
    csel(a, sWSTR, 2048, 6144)
    srd_sel(a, SRD_X, 16, 26, 0x400000)
    srd_sel(a, SRD_W, 18, 28, 0x200000, 0x600000)


def proj_pf_setup(a, tag, sg, sidx, sw2, dst=None):
    sPFO, sPFS = dst if dst else (9, 10)
    sPFL, sPFW = (sOI, sK) if dst else (68, 69)
    a(f"s_lshr_b32 s{sPFW}, s{sw2}, 1")
    if OPT["rot"]:
        a(f"s_add_u32 s{sPFW}, s{sPFW}, s{sg}")
        a(f"s_and_b32 s{sPFW}, s{sPFW}, 7")
    a(f"s_bitcmp1_b32 s{sw2}, 0")
    for i in range(3):
        a(f"s_cselect_b32 s{SRD_PF + i}, s{SRD_W + i}, s{SRD_X + i}")
    a(f"s_mov_b32 s{SRD_PF + 3}, 0x00020000")
    a(f"s_cbranch_scc1 L_{tag}_pfw")
    a("v_and_b32 v1, 31, v0")
    a("v_lshlrev_b32 v1, 11, v1")
    a("v_lshrrev_b32 v8, 5, v0")
    a("v_lshl_add_u32 v8, v8, 7, v1")
    a(f"s_lshr_b32 s{sT1}, s{sg}, 2")
    a(f"s_lshl_b32 s{sT1}, s{sT1}, 5")
    a(f"s_add_u32 s{sT1}, s{sT1}, s{sidx}")
    a(f"s_lshl_b32 s{sT1}, s{sT1}, 16")
    a(f"s_lshl_b32 s{sT2}, s{sPFW}, 8")
    a(f"s_add_u32 s{sPFO}, s{sT1}, s{sT2}")
    a(f"s_mov_b32 s{sPFS}, 512")
    a(f"s_add_u32 s{sPFL}, s{sT1}, 2048")
    a(f"s_mov_b32 s{sPFW}, 2048")
    a(f"s_branch L_{tag}_pfdone")
    a.label(f"L_{tag}_pfw")
    a("v_lshrrev_b32 v8, 5, v0")
    a("v_lshlrev_b32 v8, 6, v8")
    a("v_bfe_u32 v1, v0, 4, 1")
    a("v_add_u32 v8, v8, v1")
    a(f"v_mul_lo_u32 v8, v8, s{sWSTR}")
    a("v_and_b32 v1, 15, v0")
    a("v_lshl_add_u32 v8, v1, 7, v8")
    a(f"s_lshl_b32 s{sT2}, s{sPFW}, 6")
    a(f"s_add_u32 s{sT2}, s{sT2}, s{sidx}")
    a(f"s_lshl_b32 s{sT2}, s{sT2}, 1")
    a(f"s_mul_i32 s{sT2}, s{sT2}, s{sWSTR}")
    a(f"s_sub_u32 s{sT1}, s{sSEC}, 1")
    a(f"s_max_i32 s{sT1}, s{sT1}, 0")
    a(f"s_lshl_b32 s{sT1}, s{sT1}, 11")
    a(f"s_add_u32 s{sPFO}, s{sT2}, s{sT1}")
    a(f"s_lshl_b32 s{sPFS}, s{sWSTR}, 8")
    a(f"s_lshl_b32 s{sPFL}, s{sWSTR}, 10")
    a(f"s_mov_b32 s{sPFW}, s{sPFL}")
    a.label(f"L_{tag}_pfdone")


def gen_proj():
    g = G("proj")
    a = A()
    kernel_head(a, "proj_kernel")
    entry(a, "proj")
    a("s_waitcnt lgkmcnt(0)")
    ws_reloc(a)
    ticket_issue(a, "proj", 4)
    srd(a, SRD_WS, S_WS, WS_SIZE - (OPT["wsb"] << 20))
    def decode():
        proj_group(a, sG)
        a(f"s_lshr_b32 s{sT0}, s{sG}, 2")
        a(f"s_lshl_b32 s{sM0}, s{sT0}, 10")
        a(f"s_lshl_b32 s{sT0}, s{sMT}, 8")
        a(f"s_add_u32 s{sM0}, s{sM0}, s{sT0}")

    TKT = 2 * g.SLOT + g.XB
    a(f"s_cmp_lt_u32 s{sWAVE}, 4")
    a("s_cbranch_scc1 L_proj_compute")
    vX = list(range(16, 24))
    vW = list(range(24, 28))
    a("v_lshrrev_b32 v1, 3, v0")
    a("v_lshlrev_b32 v1, 11, v1")
    a("v_lshrrev_b32 v10, 4, v0")
    a("v_and_b32 v7, 7, v0")
    a("v_xor_b32 v11, v10, v7")
    a("v_xor_b32 v12, 4, v11")
    a("v_lshl_add_u32 v11, v11, 4, v1")
    a("v_lshl_add_u32 v12, v12, 4, v1")
    for i in range(8):
        a(f"v_add_u32 v{vX[i]}, {i * 16384 - (i % 4) * 1024}, v{11 + (((i & 1) ^ (i >> 1 & 1)) if OPT['m16'] else (i & 1))}")
    a("v_lshrrev_b32 v6, 1, v0")
    a("v_lshlrev_b32 v6, 6, v6")
    a("v_and_b32 v7, 1, v0")
    a("v_lshl_add_u32 v6, v7, 4, v6")
    a.label("L_proj_lstart")
    decode()
    if OPT["pf"]:
        a(f"s_lshr_b32 s{sT0}, s{sHW}, 2")
        a(f"s_and_b32 s{sT0}, s{sT0}, 0x18")
        a(f"s_and_b32 s{sT3}, s{sHW}, 7")
        a(f"s_or_b32 s{sT0}, s{sT0}, s{sT3}")
        a(f"s_and_b32 s{sT3}, s{sWAVE}, 3")
        proj_pf_setup(a, "projA", sG, sT0, sT3, (sOBASE, sOJ))
        a(f"s_cmp_ge_u32 s{sWAVE}, 6")
        a("s_cbranch_scc1 L_proj_pkv")
        a(f"buffer_load_dword v9, v8, {sr(SRD_PF)}, s{sOBASE} offen{OPT['pfb']}")
        a("s_branch L_proj_nokv")
        a.label("L_proj_pkv")
        a(f"s_cmp_lg_u32 s{sSEC}, 0")
        a("s_cbranch_scc1 L_proj_nokv")
        a(f"s_lshl_b32 s{sT0}, s{sT0}, 11")
        a("v_and_b32 v1, 15, v0")
        a("v_lshlrev_b32 v1, 7, v1")
        a(f"s_cmp_eq_u32 s{sWAVE}, 6")
        srd_sel(a, SRD_WK, 20, 22, 0x10000)
        a(f"buffer_load_dword v9, v1, {sr(SRD_WK)}, s{sT0} offen{OPT['pfb']}")
        a.label("L_proj_nokv")
    a(f"s_add_u32 s{sT0}, s{sWAVE}, s{sHW}" if OPT["lrot"] else f"s_mov_b32 s{sT0}, s{sWAVE}")
    a(f"s_and_b32 s{sT0}, s{sT0}, 3")
    a(f"s_lshl_b32 s{sT1}, s{sT0}, 6")
    a(f"s_add_u32 s{sT1}, s{sT1}, s{sM0}")
    a(f"s_lshl_b32 s{sXOFF}, s{sT1}, 11")
    a(f"s_lshl_b32 s{sK}, s{sG}, 1" if OPT["rot"] else f"s_mov_b32 s{sK}, 0")
    a(f"s_lshl_b32 s{sT1}, s{sK}, 7")
    a(f"s_add_u32 s{sXOFF}, s{sXOFF}, s{sT1}")
    a(f"s_lshl_b32 s{sSLOT}, s{sT0}, 13")
    a(f"s_lshl_b32 s{sT3}, s{sT0}, 12")
    a(f"s_add_u32 s{sT3}, s{sT3}, {g.XB}")

    def mid():
        ticket_end(a, "proj", 4, TKT)
        a(f"v_mul_lo_u32 v1, v10, s{sWSTR}")
        a("v_lshlrev_b32 v3, 2, v10")
        a("v_and_b32 v7, 15, v0")
        a("v_xor_b32 v3, v3, v7")
        a(f"v_lshl_add_u32 v{vW[0]}, v3, 4, v1")
        a(f"s_lshl_b32 s{sT1}, s{sWSTR}, 2")
        a(f"s_sub_u32 s{sT1}, s{sT1}, 1024")
        for i in range(1, 4):
            a(f"v_add_u32 v{vW[i]}, s{sT1}, v{vW[i - 1]}")
        if OPT["m16"]:
            for i in (2, 3):
                a(f"v_xor_b32 v{vW[i]}, 0x30, v{vW[i]}")
        a(f"s_sub_u32 s{sWOFF}, s{sSEC}, 1")
        a(f"s_max_i32 s{sWOFF}, s{sWOFF}, 0")
        a(f"s_lshl_b32 s{sWOFF}, s{sWOFF}, 11")
        a(f"s_mul_i32 s{sT1}, s{sT0}, s{sWSTR}")
        a(f"s_lshl_b32 s{sT1}, s{sT1}, 4")
        a(f"s_add_u32 s{sWOFF}, s{sWOFF}, s{sT1}")
        a(f"s_lshl_b32 s{sWSTG}, s{sWSTR}, 6")
        a(f"s_mul_i32 s{sT1}, s{sK}, s{sWSTG}")
        a(f"s_add_u32 s{sWOFF}, s{sWOFF}, s{sT1}")
        ticket_wait(a, "proj", TKT, "L_proj_lredo")
        stamp_mid(a, 2)
        a(f"s_lshl_b32 s{sT1}, s{sNT}, 8")
        a(f"s_add_u32 s{sWOFF}, s{sWOFF}, s{sT1}")
        a(f"s_cmp_ge_u32 s{sNT}, 4")
        srd_sel(a, SRD_WK, 22, 20, 0x10000)
        a(f"s_bfe_u32 s{sT1}, s{sNT}, 0x10001")
        a(f"s_lshl_b32 s{sT1}, s{sT1}, 5")
        a(f"s_lshl_b32 s{sEXO}, s{sT0}, 11")
        a(f"s_add_u32 s{sEXO}, s{sEXO}, s{sT1}")
        a(f"s_lshl_b32 s{sT1}, s{sK}, 12")
        a(f"s_add_u32 s{sEXO}, s{sEXO}, s{sT1}")
        a(f"s_mul_i32 s{sEXS}, s{sT0}, {4096 - 1024}")
        a(f"s_sub_u32 s{sEXS}, 16384, s{sEXS}")
        a(f"s_cmp_lt_u32 s{sT0}, 2")
        a(f"s_cselect_b32 s{sCOL0}, 1, 0")
        a(f"s_cmp_eq_u32 s{sSEC}, 0")
        a(f"s_cselect_b32 s{sCOL0}, s{sCOL0}, 0")

    def after_bar0():
        ticket_notes(a, "proj", 4)
        if OPT["pf"]:
            a(f"s_lshr_b32 s{sOI}, s2, 3")
            a(f"s_and_b32 s{sT0}, s{sWAVE}, 3")
            proj_pf_setup(a, "projB", sG, sOI, sT0)
            if OPT["p0"] != 2:
                pf_adv(a)

    g.mid, g.after_bar0 = mid, after_bar0
    gemm_loader(a, g, "proj", vX, vW)
    def legacy():
        a.label("L_proj_compute")
        a(f"s_lshr_b32 s{sT0}, s{sWAVE}, 1")
        a(f"s_and_b32 s{sT1}, s{sWAVE}, 1")
        a("v_and_b32 v1, 31, v0")
        a("v_lshlrev_b32 v1, 7, v1")
        a(f"s_lshl_b32 s{sT2}, s{sT0}, 14")
        a(f"v_add_u32 v1, s{sT2}, v1")
        a("v_bfe_u32 v2, v0, 1, 3")
        a("v_lshrrev_b32 v3, 5, v0")
        for t in range(4):
            a(f"v_add_u32 v14, {2 * t}, v3")
            a("v_xor_b32 v14, v14, v2")
            a(f"v_lshl_add_u32 v{g.vXA + t}, v14, 4, v1")
        a("v_bfe_u32 v2, v0, 2, 2")
        a("v_lshl_add_u32 v1, v3, 3, v2")
        a("v_lshlrev_b32 v1, 8, v1")
        a("v_bfe_u32 v14, v0, 4, 1")
        a("v_lshl_add_u32 v1, v14, 5, v1")
        a("v_and_b32 v14, 3, v0")
        a("v_lshl_add_u32 v1, v14, 3, v1")
        a(f"v_add_u32 v1, {g.XB}, v1")
        a(f"s_lshl_b32 s{sT2}, s{sT1}, 1")
        for j in range(2):
            a(f"s_add_u32 s{sT3}, s{sT2}, {j}")
            a(f"v_xor_b32 v14, s{sT3}, v2")
            a(f"v_lshl_add_u32 v{g.vWA + j}, v14, 6, v1")
        a(f"v_lshlrev_b32 v{g.vST}, 4, v0")
        a("v_and_b32 v1, 15, v0")
        a("v_lshlrev_b32 v1, 7, v1")
        a(f"s_lshl_b32 s{sT2}, s{sWAVE}, 12")
        a(f"v_add_u32 v1, s{sT2}, v1")
        a("v_bfe_u32 v2, v0, 1, 3")
        a("v_lshrrev_b32 v3, 4, v0")
        for e in range(2):
            a(f"v_add_u32 v14, {4 * e}, v3")
            a("v_xor_b32 v14, v14, v2")
            a(f"v_lshl_add_u32 v{g.vEXX + e}, v14, 4, v1")
        a("v_bfe_u32 v2, v0, 2, 2")
        a("v_lshl_add_u32 v1, v3, 3, v2")
        a("v_lshlrev_b32 v1, 5, v1")
        a("v_and_b32 v14, 3, v0")
        a("v_lshl_add_u32 v1, v14, 3, v1")
        a(f"v_add_u32 v{g.vEXW}, {g.XB + 16384}, v1")
        for r in range(g.nacc):
            a(f"v_mov_b32 v{g.ACC + r}, 0")
        for r in range(8):
            a(f"v_mov_b32 v{g.EXACC + r}, 0")

        a.label("L_proj_cstart")
        ticket_wait(a, "proj", TKT, "L_proj_credo")
        stamp_mid(a, 2)
        decode()

        a(f"s_lshr_b32 s{sT0}, s{sWAVE}, 1")
        a(f"s_and_b32 s{sT1}, s{sWAVE}, 1")
        a(f"s_and_b32 s{sT2}, s{sNT}, 1")
        a(f"s_lshl_b32 s{sT2}, s{sT2}, 14")
        for e in range(2):
            a(f"v_add_u32 v{g.vEXX + e}, s{sT2}, v{g.vEXX + e}")
        a(f"s_lshl_b32 s{sT2}, s{sNT}, 2")
        a(f"s_lshl_b32 s{sT3}, s{sT1}, 1")
        a(f"s_add_u32 s{sT2}, s{sT2}, s{sT3}")
        a(f"s_lshr_b32 s{sT3}, s{sM0}, 5")
        a(f"s_lshl_b32 s{sOBASE}, s{sT0}, 2")
        a(f"s_add_u32 s{sT3}, s{sT3}, s{sOBASE}")
        a(f"s_cmp_le_u32 s{sSEC}, 1")
        csel(a, sOJ, 0x20000, 0x40000)
        csel(a, sOI, 2048, 4096)
        a(f"s_cselect_b32 s{sSCALE}, {f32bits(QSCALE):#x}, 1.0")
        a(f"s_mov_b32 s{sSCALE+1}, s{sSCALE}")
        a(f"s_mul_i32 s{sOBASE}, s{sT2}, s{sOJ}")
        a(f"s_mul_i32 s{sT3}, s{sT3}, s{sOI}")
        a(f"s_add_u32 s{sOBASE}, s{sOBASE}, s{sT3}")
        a(f"s_mov_b32 s{sT2}, {WS_QA:#x}")
        for sec, base in ((1, WS_QB), (2, WS_KVB), (3, WS_KVB + 2048)):
            a(f"s_cmp_eq_u32 s{sSEC}, {sec}")
            a(f"s_cmov_b32 s{sT2}, {base:#x}")
        a(f"s_add_u32 s{sOBASE}, s{sOBASE}, s{sT2}")
        a(f"s_cmp_lg_u32 s{sSEC}, 2")
        a("s_cbranch_scc1 L_proj_nok")
        a("v_and_b32 v1, 0x33, v0")
        a("v_bfe_u32 v2, v0, 2, 1")
        a("v_lshl_or_b32 v1, v2, 3, v1")
        a("v_bfe_u32 v2, v0, 3, 1")
        a("v_lshl_or_b32 v1, v2, 2, v1")
        a(f"v_lshlrev_b32 v{g.vST}, 4, v1")
        a.label("L_proj_nok")
        a(f"s_cmp_eq_u32 s{sSEC}, 3")
        a("s_cbranch_scc1 L_proj_V")
        a(f"s_cmp_eq_u32 s{sSEC}, 0")
        a("s_cbranch_scc0 L_proj_QK")
        a(f"s_cmp_ge_u32 s{sNT}, 4")
        a("s_cbranch_scc1 L_proj_AV")

        st = OPT["st1"]

        def epi(scale):
            a("s_nop 7")
            a("s_nop 7")
            for i in range(g.NI):
                for j in range(g.NJ):
                    c = g.acc(i, j)
                    t = g.F[0] + ((i * g.NJ + j) & 1) * 8
                    if scale:
                        for r in range(0, 16, 2):
                            a(f"v_pk_mul_f32 {vr(c + r, 2)}, {vr(c + r, 2)}, {sr(sSCALE, 2)}")
                    for r in range(8):
                        a(f"v_cvt_pk_bf16_f32 v{t + r}, v{c + 2 * r}, v{c + 2 * r + 1}")
                    a(f"s_mul_i32 s{sT0}, s{sOJ}, {j}")
                    a(f"s_mul_i32 s{sT1}, s{sOI}, {i}")
                    a(f"s_add_u32 s{sT0}, s{sT0}, s{sT1}")
                    a(f"s_add_u32 s{sT0}, s{sT0}, s{sOBASE}")
                    a(f"buffer_store_dwordx4 {vr(t, 4)}, v{g.vST}, {sr(SRD_WS)}, s{sT0} offen{st}")
                    a(f"buffer_store_dwordx4 {vr(t + 4, 4)}, v{g.vST}, {sr(SRD_WS)}, s{sT0} offen offset:1024{st}")

        def epi_extra(part):
            if part == "K":
                a("v_and_b32 v1, 3, v0")
                a("v_bfe_u32 v2, v0, 2, 1")
                a("v_lshl_or_b32 v1, v2, 3, v1")
                a("v_bfe_u32 v2, v0, 3, 1")
                a("v_lshl_or_b32 v1, v2, 2, v1")
            else:
                a("v_and_b32 v1, 15, v0")
            a("v_lshlrev_b32 v1, 4, v1")
            a("v_bfe_u32 v2, v0, 4, 1")
            a("v_lshl_add_u32 v1, v2, 9, v1")
            a("v_lshrrev_b32 v2, 5, v0")
            a("v_lshl_add_u32 v1, v2, 3, v1")
            a(f"s_lshr_b32 s{sT0}, s{sM0}, 5")
            a(f"s_add_u32 s{sT0}, s{sT0}, s{sWAVE}")
            a(f"s_and_b32 s{sT1}, s{sNT}, 1")
            a(f"s_lshl_b32 s{sT1}, s{sT1}, 2")
            a(f"s_add_u32 s{sT0}, s{sT0}, s{sT1}")
            a(f"s_lshl_b32 s{sT0}, s{sT0}, 12")
            a(f"s_add_u32 s{sT0}, s{sT0}, {WS_KVA + (2048 if part == 'V' else 0):#x}")
            a(f"s_bfe_u32 s{sT1}, s{sNT}, 0x10001")
            a(f"s_lshl_b32 s{sT1}, s{sT1}, {10 if part == 'K' else 8}")
            a(f"s_add_u32 s{sT0}, s{sT0}, s{sT1}")
            for th in range(2):
                c = g.EXACC + 4 * th
                if part == "K":
                    for r in range(0, 4, 2):
                        a(f"v_pk_mul_f32 {vr(c + r, 2)}, {vr(c + r, 2)}, {sr(sSCALE, 2)}")
                a(f"v_cvt_pk_bf16_f32 v{g.EXF + 2 * th}, v{c}, v{c + 1}")
                a(f"v_cvt_pk_bf16_f32 v{g.EXF + 2 * th + 1}, v{c + 2}, v{c + 3}")
                a(f"buffer_store_dwordx2 {vr(g.EXF + 2 * th, 2)}, v1, {sr(SRD_WS)}, s{sT0} offen offset:{th * (256 if part == 'K' else 1024)}{st}")

        for lbl, tag, swap, ex, scale in ((None, "proj_AK", False, "K", False), ("L_proj_AV", "proj_AV", False, "V", False),
                                          ("L_proj_QK", "proj_QK", False, None, True), ("L_proj_V", "proj_V", True, None, False)):
            if lbl:
                a.label(lbl)
            gemm_compute(a, g, tag, swap, ex)
            if ex:
                a("s_nop 7")
                epi_extra(ex)
            epi(scale)
            stamp_end(a, 0)
            a("s_endpgm")


    def new16():
        a.label("L_proj_compute")
        XA, WA, EXX, vEXW, vST = 4, 8, 100, 12, 13
        XF, WF = [16, 32], [48, 64]
        g.EXF, g.EXACC = 80, 92
        st = OPT["st1"]
        acc = lambda i, jt: g.ACC + (i * 4 + jt) * 4
        a("v_bfe_u32 v2, v0, 2, 2")
        a("v_lshrrev_b32 v3, 4, v0")
        a("v_lshl_add_u32 v1, v3, 3, v2")
        a("v_lshlrev_b32 v1, 5, v1")
        a("v_and_b32 v14, 3, v0")
        a("v_lshl_add_u32 v1, v14, 3, v1")
        a(f"v_add_u32 v{vEXW}, {g.XB + 16384}, v1")
        for r in range(g.nacc):
            a(f"v_mov_b32 v{g.ACC + r}, 0")
        for r in range(8):
            a(f"v_mov_b32 v{g.EXACC + r}, 0")
        a.label("L_proj_cstart")
        ticket_wait(a, "proj", TKT, "L_proj_credo")
        stamp_mid(a, 2)
        decode()
        a(f"s_lshr_b32 s{sT0}, s{sWAVE}, 1")
        a(f"s_and_b32 s{sT1}, s{sWAVE}, 1")
        a(f"s_lshl_b32 s{sT2}, s{sNT}, 2")
        a(f"s_lshl_b32 s{sT3}, s{sT1}, 1")
        a(f"s_add_u32 s{sT2}, s{sT2}, s{sT3}")
        a(f"s_lshr_b32 s{sT3}, s{sM0}, 5")
        a(f"s_lshl_b32 s{sOBASE}, s{sT0}, 2")
        a(f"s_add_u32 s{sT3}, s{sT3}, s{sOBASE}")
        a(f"s_cmp_le_u32 s{sSEC}, 1")
        csel(a, sOJ, 0x20000, 0x40000)
        csel(a, sOI, 2048, 4096)
        a(f"s_cselect_b32 s{sSCALE}, {f32bits(QSCALE):#x}, 1.0")
        a(f"s_mov_b32 s{sSCALE+1}, s{sSCALE}")
        a(f"s_mul_i32 s{sOBASE}, s{sT2}, s{sOJ}")
        a(f"s_mul_i32 s{sT3}, s{sT3}, s{sOI}")
        a(f"s_add_u32 s{sOBASE}, s{sOBASE}, s{sT3}")
        a(f"s_mov_b32 s{sT2}, {WS_QA:#x}")
        for sec, base in ((1, WS_QB), (2, WS_KVB), (3, WS_KVB + 2048)):
            a(f"s_cmp_eq_u32 s{sSEC}, {sec}")
            a(f"s_cmov_b32 s{sT2}, {base:#x}")
        a(f"s_add_u32 s{sOBASE}, s{sOBASE}, s{sT2}")

        def addrs(vt, kperm):
            if vt:
                a("v_and_b32 v1, 7, v0")
                a("v_and_b32 v2, 8, v0")
                a("v_lshl_add_u32 v1, v2, 1, v1")
            else:
                a("v_and_b32 v1, 15, v0")
            a("v_lshlrev_b32 v1, 7, v1")
            a(f"s_lshl_b32 s{sT2}, s{sT0}, 14")
            a(f"v_add_u32 v1, s{sT2}, v1")
            a("v_bfe_u32 v2, v0, 1, 3")
            a("v_lshrrev_b32 v3, 4, v0")
            a("v_xor_b32 v2, v2, v3")
            a("v_lshl_add_u32 v1, v2, 4, v1")
            for e in range(2):
                for par in range(2):
                    a(f"v_xor_b32 v14, {64 * (e ^ par)}, v1")
                    a(f"v_add_u32 v{XA + 2 * e + par}, {par * (1024 if vt else 2048)}, v14")
            a("v_bfe_u32 v2, v0, 2, 2")
            a("v_lshl_add_u32 v1, v3, 3, v2")
            a("v_lshlrev_b32 v1, 8, v1")
            a("v_and_b32 v14, 1, v0")
            a("v_lshl_add_u32 v1, v14, 3, v1")
            a(f"v_add_u32 v1, {g.XB}, v1")
            a("v_bfe_u32 v14, v0, 1, 1")
            a(f"v_lshlrev_b32 v14, {0 if vt else 1}, v14")
            a("v_and_b32 v15, 1, v3")
            a("v_mul_u32_u24 v15, 3, v15")
            a("v_xor_b32 v14, v14, v15")
            a("v_lshl_add_u32 v1, v14, 4, v1")
            a(f"s_lshl_b32 s{sT2}, s{sT1}, 1")
            for j2 in range(2):
                a(f"s_add_u32 s{sT3}, s{sT2}, {j2}")
                a(f"v_xor_b32 v14, s{sT3}, v2")
                a(f"v_lshl_add_u32 v{WA + 2 * j2}, v14, 6, v1")
                a(f"v_xor_b32 v{WA + 2 * j2 + 1}, {32 if vt else 16}, v{WA + 2 * j2}")
            a("v_and_b32 v1, 15, v0")
            if kperm:
                a(f"s_cmp_lg_u32 s{sSEC}, 2")
                a("s_cbranch_scc1 L_proj_nok")
                a("v_and_b32 v1, 3, v0")
                a("v_bfe_u32 v2, v0, 2, 1")
                a("v_lshl_or_b32 v1, v2, 3, v1")
                a("v_bfe_u32 v2, v0, 3, 1")
                a("v_lshl_or_b32 v1, v2, 2, v1")
                a.label("L_proj_nok")
            a("v_lshlrev_b32 v1, 4, v1")
            a(f"v_lshl_add_u32 v{vST}, v3, 9, v1")

        def xreads(b):
            e, half = b >> 1, b & 1
            return [f"ds_read_b128 {vr(XF[b & 1] + 4 * k, 4)}, v{XA + 2 * e + (k & 1)} offset:{4096 * (2 * half + (k >> 1))}" for k in range(4)]

        def wreads(e, jts):
            return [f"ds_read_b64_tr_b16 {vr(WF[e] + 4 * jt + 2 * u, 2)}, v{WA + jt} offset:{8192 * e + 1024 * u}" for jt in jts for u in range(2)]

        def exreads(e):
            return [f"ds_read_b64_tr_b16 {vr(g.EXF + 2 * u, 2)}, v{vEXW} offset:{1024 * e + 128 * u}" for u in range(2)] + \
                   [f"ds_read_b128 {vr(g.EXF + 4 + 4 * th, 4)}, v{EXX + 2 * e + th}" for th in range(2)]

        def compute(tag, vt, ex):
            adv = lambda r: f"v_add_u32 v{r}, s{sDELTA}, v{r}"

            def stage(last):
                for b in range(4):
                    e, half = b >> 1, b & 1
                    a("s_waitcnt lgkmcnt(0)")
                    reads, post = [], []
                    if b < 3:
                        reads = xreads(b + 1)
                        if b < 2:
                            reads += wreads(1, (2 * b, 2 * b + 1))
                        if ex and b == 1:
                            reads += exreads(1)
                        if not last:
                            if b == 0:
                                post = [adv(XA), adv(XA + 1)]
                            if b == 2:
                                post = [adv(XA + 2), adv(XA + 3)] + [adv(WA + k) for k in range(4)]
                                if ex:
                                    post += [adv(EXX + k) for k in range(4)] + [adv(vEXW)]
                    elif not last:
                        a("s_barrier")
                        w0 = wreads(0, range(4))
                        x0 = xreads(0)
                        reads = w0[:2] + x0[:1] + w0[2:] + x0[1:]
                        if ex:
                            reads += exreads(0)
                    mf = []
                    for k in range(4):
                        for jt in range(4):
                            x, w, c = vr(XF[b & 1] + 4 * k, 4), vr(WF[e] + 4 * jt, 4), vr(acc(4 * half + k, jt), 4)
                            mf.append(f"{MF16} {c}, {x}, {w}, {c}" if vt else f"{MF16} {c}, {w}, {x}, {c}")
                    if ex and half == 0:
                        for th in range(2):
                            x, w, c = vr(g.EXF + 4 + 4 * th, 4), vr(g.EXF, 4), vr(g.EXACC + 4 * th, 4)
                            mf.append(f"{MF16} {c}, {x}, {w}, {c}" if ex == "V" else f"{MF16} {c}, {w}, {x}, {c}")
                    for m in mf:
                        a(m)
                        if reads:
                            a(reads.pop(0))
                        elif post:
                            a(post.pop(0))
                    a.many(reads + post)

            stamp_mid(a, 4)
            a("s_barrier")
            stamp_mid(a, 0)
            a.many(wreads(0, range(4)) + xreads(0))
            if ex:
                a.many(exreads(0))
            a(f"s_mov_b32 s{sCNT}, 0")
            a(f"s_mov_b32 s{sRSLOT}, 0")
            a.raw(".p2align 3")
            a.label(f"L_{tag}_loop")
            a(f"s_add_u32 s{sRSLOT}, s{sRSLOT}, 1")
            a(f"s_cmp_eq_u32 s{sRSLOT}, {g.NSLOT}")
            csel(a, sDELTA, f"{-(g.NSLOT - 1) * g.SLOT & 0xffffffff:#x}", g.SLOT)
            a(f"s_cselect_b32 s{sRSLOT}, 0, s{sRSLOT}")
            stage(False)
            a(f"s_add_u32 s{sCNT}, s{sCNT}, 1")
            a(f"s_cmp_lt_u32 s{sCNT}, {g.NST - 1}")
            a(f"s_cbranch_scc1 L_{tag}_loop")
            stage(True)
            stamp_mid(a, 1)

        def epi(vt, scale):
            a("s_nop 7")
            n = 0
            for blk in range(4):
                for j2 in range(2):
                    a(f"s_mul_i32 s{sT0}, s{sOJ}, {j2}")
                    a(f"s_mul_i32 s{sT1}, s{sOI}, {blk}")
                    a(f"s_add_u32 s{sT0}, s{sT0}, s{sT1}")
                    a(f"s_add_u32 s{sT0}, s{sT0}, s{sOBASE}")
                    for lo in range(2):
                        ca, cb = (acc(2 * blk, 2 * j2 + lo), acc(2 * blk + 1, 2 * j2 + lo)) if vt else \
                                 (acc(2 * blk + lo, 2 * j2), acc(2 * blk + lo, 2 * j2 + 1))
                        t = 16 + (n & 3) * 4
                        n += 1
                        for k, c in enumerate((ca, cb)):
                            if scale:
                                for r in (0, 2):
                                    a(f"v_pk_mul_f32 {vr(c + r, 2)}, {vr(c + r, 2)}, {sr(sSCALE, 2)}")
                            for r in range(2):
                                a(f"v_cvt_pk_bf16_f32 v{t + 2 * k + r}, v{c + 2 * r}, v{c + 2 * r + 1}")
                        a(f"buffer_store_dwordx4 {vr(t, 4)}, v{vST}, {sr(SRD_WS)}, s{sT0} offen offset:{256 * lo}{st}")

        def epi_extra(part):
            if part == "K":
                a("v_and_b32 v1, 3, v0")
                a("v_bfe_u32 v2, v0, 2, 1")
                a("v_lshl_or_b32 v1, v2, 3, v1")
                a("v_bfe_u32 v2, v0, 3, 1")
                a("v_lshl_or_b32 v1, v2, 2, v1")
            else:
                a("v_and_b32 v1, 15, v0")
            a("v_lshlrev_b32 v1, 4, v1")
            a("v_bfe_u32 v2, v0, 4, 1")
            a("v_lshl_add_u32 v1, v2, 9, v1")
            a("v_lshrrev_b32 v2, 5, v0")
            a("v_lshl_add_u32 v1, v2, 3, v1")
            a(f"s_lshr_b32 s{sT0}, s{sM0}, 5")
            a(f"s_add_u32 s{sT0}, s{sT0}, s{sWAVE}")
            a(f"s_and_b32 s{sT1}, s{sNT}, 1")
            a(f"s_lshl_b32 s{sT1}, s{sT1}, 2")
            a(f"s_add_u32 s{sT0}, s{sT0}, s{sT1}")
            a(f"s_lshl_b32 s{sT0}, s{sT0}, 12")
            a(f"s_add_u32 s{sT0}, s{sT0}, {WS_KVA + (2048 if part == 'V' else 0):#x}")
            a(f"s_bfe_u32 s{sT1}, s{sNT}, 0x10001")
            a(f"s_lshl_b32 s{sT1}, s{sT1}, {10 if part == 'K' else 8}")
            a(f"s_add_u32 s{sT0}, s{sT0}, s{sT1}")
            for th in range(2):
                c = g.EXACC + 4 * th
                if part == "K":
                    for r in range(0, 4, 2):
                        a(f"v_pk_mul_f32 {vr(c + r, 2)}, {vr(c + r, 2)}, {sr(sSCALE, 2)}")
                a(f"v_cvt_pk_bf16_f32 v{g.EXF + 2 * th}, v{c}, v{c + 1}")
                a(f"v_cvt_pk_bf16_f32 v{g.EXF + 2 * th + 1}, v{c + 2}, v{c + 3}")
                a(f"buffer_store_dwordx2 {vr(g.EXF + 2 * th, 2)}, v1, {sr(SRD_WS)}, s{sT0} offen offset:{th * (256 if part == 'K' else 1024)}{st}")


        a(f"s_cmp_eq_u32 s{sSEC}, 3")
        a("s_cbranch_scc1 L_proj_V")
        addrs(False, True)
        a(f"s_cmp_eq_u32 s{sSEC}, 0")
        a("s_cbranch_scc0 L_proj_QK")
        a(f"s_and_b32 s{sT2}, s{sNT}, 1")
        a(f"s_sub_u32 s{sT2}, s{sT2}, s{sT0}")
        a(f"s_lshl_b32 s{sT2}, s{sT2}, 2")
        a(f"s_add_u32 s{sT2}, s{sT2}, s{sWAVE}")
        a(f"s_lshl_b32 s{sT2}, s{sT2}, 12")
        for k in range(4):
            a(f"v_add_u32 v{EXX + k}, s{sT2}, v{XA + k}")
        a(f"s_cmp_ge_u32 s{sNT}, 4")
        a("s_cbranch_scc1 L_proj_AV")
        for lbl, tag, vt, ex, scale in ((None, "proj_AK", False, "K", False), ("L_proj_AV", "proj_AV", False, "V", False),
                                        ("L_proj_QK", "proj_QK", False, None, True), ("L_proj_V", "proj_V", True, None, False)):
            if lbl:
                a.label(lbl)
            if vt:
                addrs(True, False)
            compute(tag, vt, ex)
            if ex:
                a("s_nop 7")
                epi_extra(ex)
            epi(vt, scale)
            stamp_end(a, 0)
            a("s_endpgm")


    (new16 if OPT["m16"] else legacy)()
    ticket_redo(a, "proj", "L_proj_credo", "L_proj_cstart")
    ticket_redo(a, "proj", "L_proj_lredo", "L_proj_lstart")
    a.label("L_proj_end")
    a("s_endpgm")
    return a.text(), kernel_desc("proj_kernel", g.nvgpr), g.lds, 512


def gen_outp():
    g = G("outp")
    a = A()
    kernel_head(a, "outp_kernel")
    entry(a, "outp")
    hint_load(a, "outp")
    stamp_mid(a, 2)
    hint_claim(a, "outp", 4)
    a(f"s_andn2_b32 s{sSEC}, 1, s2")
    a(f"s_bfe_u32 s{sT0}, s2, 0x20001")
    a(f"s_lshl_b32 s{sT0}, s{sT0}, 2")
    a(f"s_bfe_u32 s{sT1}, s2, 0x20003")
    a(f"s_add_u32 s{sM0}, s{sT0}, s{sT1}")
    a(f"s_lshr_b32 s{sNT}, s2, 5")
    a(f"s_cmp_lt_u32 s{sWAVE}, 4")
    a("s_cbranch_scc1 L_outp_compute")
    vX = list(range(20, 20 + g.XP))
    vW = list(range(24, 24 + g.WP))
    srd(a, SRD_X, S_WS, WS_SIZE - (OPT["wsb"] << 20))
    a(f"s_cmp_eq_u32 s{sSEC}, 0")
    srd_sel(a, SRD_W, 24, 30, 0x200000)
    csel(a, sXOFF, WS_OA, WS_OB)
    a(f"s_add_u32 s{sT0}, s{sWAVE}, s{sHW}" if OPT["lrot"] else f"s_mov_b32 s{sT0}, s{sWAVE}")
    a(f"s_and_b32 s{sT0}, s{sT0}, {g.NL - 1}")
    a("v_lshlrev_b32 v4, 4, v0")
    a("v_lshrrev_b32 v2, 4, v0")
    a("v_lshlrev_b32 v1, 11, v2")
    a("v_lshlrev_b32 v3, 2, v2")
    a("v_and_b32 v7, 15, v0")
    a("v_xor_b32 v3, v3, v7")
    a(f"v_lshl_add_u32 v{vW[0]}, v3, 4, v1")
    for i in range(1, g.WP):
        a(f"v_add_u32 v{vW[i]}, {i * (8192 - 1024)}, v{vW[0]}")
        if OPT["m16b"] and i & 1:
            a(f"v_xor_b32 v{vW[i]}, 0x30, v{vW[i]}")
    a(f"s_lshl_b32 s{sT1}, s{sM0}, 18")
    a(f"s_add_u32 s{sXOFF}, s{sXOFF}, s{sT1}")
    a(f"s_mul_i32 s{sSLOT}, s{sT0}, {g.XP * 1024}")
    a(f"s_add_u32 s{sXOFF}, s{sXOFF}, s{sSLOT}")
    a(f"s_mul_i32 s{sWOFF}, s{sT0}, {g.WP * 8192}")
    a(f"s_lshl_b32 s{sT1}, s{sNT}, 8")
    a(f"s_add_u32 s{sWOFF}, s{sWOFF}, s{sT1}")
    a(f"s_mov_b32 s{sWSTG}, {64 * 2048}")
    a(f"s_mul_i32 s{sT3}, s{sT0}, {g.WP * 1024}")
    a(f"s_add_u32 s{sT3}, s{sT3}, {g.XB}")
    for i in range(g.XP):
        a(f"v_mov_b32 v{vX[i]}, v4")
    a(f"s_mov_b32 s{sEXO}, 16384")
    if OPT["swap3"]:
        a(f"s_bitcmp1_b32 s{sHW}, 2")
        a("s_cbranch_scc0 L_outp_noswap")
        for i in range(g.XP):
            a(f"v_swap_b32 v{vX[i]}, v{vW[i]}")
        for x, y in [(SRD_X + i, SRD_W + i) for i in range(3)] + [(sXOFF, sWOFF), (sEXO, sWSTG), (sSLOT, sT3)]:
            a(f"s_mov_b32 s{sT1}, s{x}")
            a(f"s_mov_b32 s{x}, s{y}")
            a(f"s_mov_b32 s{y}, s{sT1}")
        a.label("L_outp_noswap")
    gemm_loader(a, g, "outp", vX, vW)
    def legacy():
        a.label("L_outp_compute")
        srd(a, SRD_OUT, S_OUT, 0x800000)
        a(f"s_lshr_b32 s{sT0}, s{sWAVE}, 1")
        a(f"s_and_b32 s{sT1}, s{sWAVE}, 1")
        a(f"s_lshl_b32 s{sT2}, s{sT0}, 13")
        a("v_lshlrev_b32 v1, 4, v0")
        a(f"v_add_u32 v{g.vXA}, s{sT2}, v1")
        a("v_lshrrev_b32 v3, 5, v0")
        a("v_bfe_u32 v2, v0, 2, 2")
        a("v_lshl_add_u32 v1, v3, 2, v2")
        a("v_lshlrev_b32 v1, 8, v1")
        a("v_and_b32 v14, 1, v0")
        a("v_lshl_add_u32 v1, v14, 5, v1")
        a("v_bfe_u32 v14, v0, 4, 1")
        a("v_lshl_add_u32 v1, v14, 4, v1")
        a("v_bfe_u32 v14, v0, 1, 1")
        a("v_lshl_add_u32 v1, v14, 3, v1")
        a(f"v_add_u32 v1, {g.XB}, v1")
        a(f"s_lshl_b32 s{sT2}, s{sT1}, 1")
        for j in range(2):
            a(f"s_add_u32 s{sT3}, s{sT2}, {j}")
            a(f"v_xor_b32 v14, s{sT3}, v2")
            a(f"v_lshl_add_u32 v{g.vWA + j}, v14, 6, v1")
        a(f"s_lshl_b32 s{sT2}, s{sM0}, 1")
        a(f"s_add_u32 s{sT2}, s{sT2}, s{sT0}")
        a(f"s_lshl_b32 s{sOBASE}, s{sT2}, 18")
        a(f"s_lshl_b32 s{sT2}, s{sSEC}, 11")
        a(f"s_add_u32 s{sOBASE}, s{sOBASE}, s{sT2}")
        a(f"s_lshl_b32 s{sT2}, s{sNT}, 8")
        a(f"s_add_u32 s{sOBASE}, s{sOBASE}, s{sT2}")
        a(f"s_lshl_b32 s{sT2}, s{sT1}, 7")
        a(f"s_add_u32 s{sOBASE}, s{sOBASE}, s{sT2}")
        vWR, vRD = 10, 11
        if OPT["epi3"]:
            a("v_and_b32 v1, 31, v0")
            a("v_lshlrev_b32 v2, 7, v1")
            a(f"s_lshl_b32 s{sT2}, s{sWAVE}, 13")
            a(f"v_add_u32 v2, s{sT2}, v2")
            a("v_and_b32 v1, 7, v0")
            a("v_lshlrev_b32 v14, 1, v3")
            a("v_xor_b32 v14, v14, v1")
            a(f"v_lshl_add_u32 v{vWR}, v14, 4, v2")
            a("v_lshrrev_b32 v2, 3, v0")
            a("v_xor_b32 v14, v2, v1")
            a("v_lshlrev_b32 v14, 4, v14")
            a("v_lshl_add_u32 v14, v2, 7, v14")
            a(f"v_add_u32 v{vRD}, s{sT2}, v14")
            a("v_lshlrev_b32 v2, 12, v2")
            a(f"v_lshl_add_u32 v{g.vST}, v1, 4, v2")
        else:
            a("v_and_b32 v1, 31, v0")
            a("v_lshlrev_b32 v1, 12, v1")
            a(f"v_lshl_add_u32 v{g.vST}, v3, 5, v1")
        for r in range(g.nacc):
            a(f"v_mov_b32 v{g.ACC + r}, 0")
        gemm_compute(a, g, "outp", False, None, check="outp")
        a("s_nop 7")
        a("s_nop 7")
        if OPT["epi3"]:
            for j in range(2):
                for e in range(2):
                    a(f"v_xor_b32 v{4 + 2 * j + e}, {(4 * j + e) * 16}, v{vWR}")
            for i in range(g.NI):
                for j in range(g.NJ):
                    c = g.acc(i, j)
                    t = g.F[0] + (i * g.NJ + j) * 8
                    for r in range(8):
                        a(f"v_cvt_pk_bf16_f32 v{t + r}, v{c + 2 * r}, v{c + 2 * r + 1}")
                    for e in range(2):
                        a(f"ds_write_b128 v{4 + 2 * j + e}, {vr(t + 4 * e, 4)} offset:{4096 * i}")
            a("s_waitcnt lgkmcnt(0)")
            for k in range(8):
                a(f"ds_read_b128 {vr(g.ACC + 4 * k, 4)}, v{vRD} offset:{1024 * k}")
            for k in range(8):
                a(f"s_add_u32 s{sT0}, s{sOBASE}, {k * 8 * 4096}")
                a(f"s_waitcnt lgkmcnt({7 - k})")
                a(f"buffer_store_dwordx4 {vr(g.ACC + 4 * k, 4)}, v{g.vST}, {sr(SRD_OUT)}, s{sT0} offen{OPT['st3']}")
        else:
            for i in range(g.NI):
                for j in range(g.NJ):
                    c = g.acc(i, j)
                    t = g.F[0] + ((i * g.NJ + j) & 1) * 8
                    for r in range(8):
                        a(f"v_cvt_pk_bf16_f32 v{t + r}, v{c + 2 * r}, v{c + 2 * r + 1}")
                    a(f"s_add_u32 s{sT0}, s{sOBASE}, {i * 32 * 4096}")
                    a(f"buffer_store_dwordx4 {vr(t, 4)}, v{g.vST}, {sr(SRD_OUT)}, s{sT0} offen offset:{64 * j}")
                    a(f"buffer_store_dwordx4 {vr(t + 4, 4)}, v{g.vST}, {sr(SRD_OUT)}, s{sT0} offen offset:{64 * j + 16}")
        stamp_end(a, 2)
        a("s_endpgm")

    def new16():
        a.label("L_outp_compute")
        assert g.NL == 4 and g.KS == 2
        XA, WA, vWR, vRD, vST = 4, 8, 5, 12, 13
        F = [16, 48]
        acc = lambda i, jt: g.ACC + (i * 4 + jt) * 4
        srd(a, SRD_OUT, S_OUT, 0x800000)
        a(f"s_lshr_b32 s{sT0}, s{sWAVE}, 1")
        a(f"s_and_b32 s{sT1}, s{sWAVE}, 1")
        a("v_lshrrev_b32 v3, 4, v0")
        a("v_and_b32 v1, 15, v0")
        a("v_lshlrev_b32 v1, 4, v1")
        a("v_lshl_add_u32 v1, v3, 9, v1")
        a(f"s_lshl_b32 s{sT2}, s{sT0}, 13")
        a(f"v_add_u32 v{XA}, s{sT2}, v1")
        a("v_bfe_u32 v2, v0, 2, 2")
        a("v_lshrrev_b32 v14, 5, v0")
        a("v_lshl_add_u32 v1, v14, 4, v2")
        a("v_and_b32 v15, 1, v3")
        a("v_lshl_add_u32 v1, v15, 2, v1")
        a("v_lshlrev_b32 v1, 8, v1")
        a("v_and_b32 v14, 1, v0")
        a("v_lshl_add_u32 v1, v14, 3, v1")
        a(f"v_add_u32 v1, {g.XB}, v1")
        a("v_and_b32 v14, 2, v0")
        a("v_mul_u32_u24 v15, 3, v15")
        a("v_xor_b32 v14, v14, v15")
        a("v_lshl_add_u32 v1, v14, 4, v1")
        a(f"s_lshl_b32 s{sT2}, s{sT1}, 1")
        for j2 in range(2):
            a(f"s_add_u32 s{sT3}, s{sT2}, {j2}")
            a(f"v_xor_b32 v14, s{sT3}, v2")
            a(f"v_lshl_add_u32 v{WA + 2 * j2}, v14, 6, v1")
            a(f"v_xor_b32 v{WA + 2 * j2 + 1}, 16, v{WA + 2 * j2}")
        a(f"s_lshl_b32 s{sT2}, s{sM0}, 1")
        a(f"s_add_u32 s{sT2}, s{sT2}, s{sT0}")
        a(f"s_lshl_b32 s{sOBASE}, s{sT2}, 18")
        a(f"s_lshl_b32 s{sT2}, s{sSEC}, 11")
        a(f"s_add_u32 s{sOBASE}, s{sOBASE}, s{sT2}")
        a(f"s_lshl_b32 s{sT2}, s{sNT}, 8")
        a(f"s_add_u32 s{sOBASE}, s{sOBASE}, s{sT2}")
        a(f"s_lshl_b32 s{sT2}, s{sT1}, 7")
        a(f"s_add_u32 s{sOBASE}, s{sOBASE}, s{sT2}")
        a(f"s_mul_i32 s{sT2}, s{sWAVE}, 9216")
        a("v_and_b32 v1, 15, v0")
        a("v_mul_u32_u24 v1, 144, v1")
        a("v_lshrrev_b32 v14, 5, v0")
        a("v_lshl_add_u32 v1, v14, 5, v1")
        a("v_bfe_u32 v14, v0, 4, 1")
        a("v_lshl_add_u32 v1, v14, 3, v1")
        a(f"v_add_u32 v{vWR}, s{sT2}, v1")
        a("v_lshrrev_b32 v2, 3, v0")
        a("v_and_b32 v1, 7, v0")
        a("v_lshlrev_b32 v1, 4, v1")
        a("v_mul_u32_u24 v14, 144, v2")
        a("v_add3_u32 v%d, v14, v1, s%d" % (vRD, sT2))
        a(f"v_lshl_add_u32 v{vST}, v2, 12, v1")
        for r in range(g.nacc):
            a(f"v_mov_b32 v{g.ACC + r}, 0")

        def reads(e):
            x = [f"ds_read_b128 {vr(F[e] + 4 * i, 4)}, v{XA} offset:{4096 * (i >> 1) + 2048 * e + 256 * (i & 1)}" for i in range(4)]
            w = [f"ds_read_b64_tr_b16 {vr(F[e] + 16 + 4 * jt + 2 * u, 2)}, v{WA + jt} offset:{8192 * e + 2048 * u}" for jt in range(4) for u in range(2)]
            return w[:2] + x[:1] + w[2:] + x[1:]

        def stage(last):
            for e in range(2):
                a("s_waitcnt lgkmcnt(0)")
                rd, post = [], []
                if e == 0:
                    rd = reads(1)
                    if not last:
                        post = [f"v_add_u32 v{r}, s{sDELTA}, v{r}" for r in (XA, WA, WA + 1, WA + 2, WA + 3)]
                elif not last:
                    a("s_barrier")
                    rd = reads(0)
                for i in range(4):
                    for jt in range(4):
                        c = vr(acc(i, jt), 4)
                        a(f"{MF16} {c}, {vr(F[e] + 16 + 4 * jt, 4)}, {vr(F[e] + 4 * i, 4)}, {c}")
                        if rd:
                            a(rd.pop(0))
                        elif post:
                            a(post.pop(0))
                a.many(post)

        stamp_mid(a, 4)
        a("s_barrier")
        stamp_mid(a, 0)
        a.many(reads(0))
        a(f"s_mov_b32 s{sCNT}, 0")
        a(f"s_mov_b32 s{sRSLOT}, 0")
        a.raw(".p2align 3")
        a.label("L_outp_loop")
        a(f"s_add_u32 s{sRSLOT}, s{sRSLOT}, 1")
        a(f"s_cmp_eq_u32 s{sRSLOT}, {g.NSLOT}")
        csel(a, sDELTA, f"{-(g.NSLOT - 1) * g.SLOT & 0xffffffff:#x}", g.SLOT)
        a(f"s_cselect_b32 s{sRSLOT}, 0, s{sRSLOT}")
        stage(False)
        a(f"s_add_u32 s{sCNT}, s{sCNT}, 1")
        a(f"s_cmp_lt_u32 s{sCNT}, {g.NST - 1}")
        a("s_cbranch_scc1 L_outp_loop")
        hint_read(a, 14, 15, g.EXB)
        stage(True)
        hint_check(a, "outp", 15)
        stamp_mid(a, 1)
        for i in range(4):
            for j2 in range(2):
                t = 16 + (2 * i + j2) * 4
                for k in range(2):
                    c = acc(i, 2 * j2 + k)
                    for r in range(2):
                        a(f"v_cvt_pk_bf16_f32 v{t + 2 * k + r}, v{c + 2 * r}, v{c + 2 * r + 1}")
                a(f"ds_write2_b64 v{vWR}, {vr(t, 2)}, {vr(t + 2, 2)} offset0:{8 * j2} offset1:{8 * j2 + 2}")
            if i < 3:
                a(f"v_add_u32 v{vWR}, {16 * 144}, v{vWR}")
        a("s_waitcnt lgkmcnt(0)")
        for k in range(8):
            a(f"ds_read_b128 {vr(g.ACC + 4 * k, 4)}, v{vRD} offset:{8 * 144 * k}")
        for k in range(8):
            a(f"s_add_u32 s{sT0}, s{sOBASE}, {k * 8 * 4096}")
            a(f"s_waitcnt lgkmcnt({7 - k})")
            a(f"buffer_store_dwordx4 {vr(g.ACC + 4 * k, 4)}, v{vST}, {sr(SRD_OUT)}, s{sT0} offen{OPT['st3']}")
        stamp_end(a, 2)
        a("s_endpgm")

    (new16 if OPT["m16b"] else legacy)()
    hint_slow(a, "outp")
    a.label("L_outp_end")
    a("s_endpgm")
    return a.text(), kernel_desc("outp_kernel", g.nvgpr), g.lds, 256 + 64 * g.NL


def gen_attn():
    a = A()
    kernel_head(a, "attn_kernel")
    vL16, vK, vKN, IDX = 1, 2, 3, 4
    T0, T1, T2, T3 = 5, 6, 7, 8
    vPF, vPFD, vHD = 9, 10, 11
    ONES = 12
    Q, P, KF, VF, L = [16, 24], [32, 40], [48, 56], [64, 72], [80, 84]
    S, NEG, O = [96, 112], [128, 144], [160, 176]
    NV = 192
    SRD, SRDW = SRD_WS, 36
    sQB, sKV, sOB, sST, sSL, sDM, sGO, sPF, sPFC, sFIRST = 61, 62, 63, 64, 65, 66, 67, 68, 69, 70
    t0, t1, t2, t3 = sT0, sT1, sT2, sT3
    TILES = 8
    STG = TILES * 4096
    NSLOT = 3
    NSTG = 64 // TILES
    FLAG = NSLOT * STG
    lds = FLAG + 64

    entry(a, "attn")
    a(f"v_lshlrev_b32 v{vL16}, 4, v0")
    hint_load(a, "attn")
    stamp_mid(a, 2)
    hint_claim(a, "attn", 0)
    a(f"s_lshr_b32 s{t0}, s2, 3")
    a(f"s_bfe_u32 s{t2}, s2, 0x20001")
    a(f"s_lshl_b32 s{t2}, s{t2}, 4")
    a(f"s_lshl_b32 s{t3}, s{sWAVE}, 1")
    a(f"s_add_u32 s{t2}, s{t2}, s{t3}")
    a(f"s_lshl_b32 s{sKV}, s{t0}, 18")
    a(f"s_add_u32 s{sKV}, s{sKV}, {WS_KVB:#x}")
    a(f"s_lshl_b32 s{sQB}, s{t0}, 17")
    a(f"s_lshl_b32 s{t3}, s{t2}, 11")
    a(f"s_add_u32 s{sQB}, s{sQB}, s{t3}")
    a("s_bitcmp1_b32 s2, 0")
    a(f"s_cmov_b32 s{sKV}, {WS_KVA:#x}")
    a(f"s_cselect_b32 s{t3}, {WS_QA:#x}, {WS_QB:#x}")
    a(f"s_or_b32 s{sQB}, s{sQB}, s{t3}")

    def qloads():
        for q in range(2):
            for c in range(2):
                a(f"buffer_load_dwordx4 {vr(Q[q] + 4 * c, 4)}, v{vL16}, {sr(SRD)}, s{sQB} offen offset:{2048 * q + 1024 * c}")

    stamp_mid(a, 3)
    a(f"s_and_b32 s{t3}, s{sWAVE}, 3")
    a(f"s_lshl_b32 s{t3}, s{t3}, 11")
    a(f"s_add_u32 s{t1}, s{sKV}, s{t3}")

    def grp_dma(grp):
        a(f"s_add_u32 m0, s{t3}, {8192 * grp}")
        a(f"s_add_u32 s{sGO}, s{t1}, {8192 * grp}")
        for c in range(2):
            a(f"buffer_load_dwordx4 v{vL16}, {sr(SRD)}, s{sGO} offen offset:{1024 * c} lds")

    a(f"s_cmp_ge_u32 s{sWAVE}, 4")
    a("s_cbranch_scc1 L_attn_young")
    grp_dma(0)
    qloads()
    a("s_branch L_attn_issued")
    a.label("L_attn_young")
    grp_dma(1)
    if OPT["k2s"]:
        grp_dma(2)
    qloads()
    if not OPT["k2s"]:
        grp_dma(2)
    grp_dma(3)
    a.label("L_attn_issued")
    stamp_mid(a, 4)
    a(f"s_lshr_b32 s{t3}, s{t2}, 2")
    a(f"s_lshl_b32 s{sOB}, s{t3}, 18")
    a(f"s_and_b32 s{t3}, s{t2}, 3")
    a(f"s_lshl_b32 s{t3}, s{t3}, 12")
    a(f"s_add_u32 s{sOB}, s{sOB}, s{t3}")
    a(f"s_lshr_b32 s{t3}, s{t0}, 1")
    a(f"s_lshl_b32 s{t3}, s{t3}, 14")
    a(f"s_add_u32 s{sOB}, s{sOB}, s{t3}")
    a(f"s_and_b32 s{t3}, s{t0}, 1")
    a(f"s_lshl_b32 s{t3}, s{t3}, 11")
    a(f"s_add_u32 s{sOB}, s{sOB}, s{t3}")
    a("s_bitcmp1_b32 s2, 0")
    csel(a, t3, WS_OA, WS_OB)
    srd_sel(a, SRDW, 24, 30, 0x200000)
    a(f"s_add_u32 s{sOB}, s{sOB}, s{t3}")
    a(f"s_lshl_b32 s{sPF}, s{t0}, 3")
    a(f"s_add_u32 s{sPF}, s{sPF}, s{sWAVE}")
    a(f"s_lshl_b32 s{sPF}, s{sPF}, 13")
    a(f"v_lshlrev_b32 v{vPF}, 7, v0")
    a(f"s_lshl_b32 s{sDM}, s{sWAVE}, 12")
    a(f"s_add_u32 s{sDM}, s{sDM}, {STG}")
    a(f"s_add_u32 s{sGO}, s{sKV}, s{sDM}")
    a(f"v_and_b32 v{T0}, 3, v0")
    a(f"v_bfe_u32 v{T1}, v0, 2, 1")
    a(f"v_or_b32 v{T2}, v{T0}, v{T1}")
    a(f"v_xor_b32 v{T1}, 1, v{T1}")
    a(f"v_or_b32 v{T3}, v{T0}, v{T1}")
    a(f"v_mov_b32 v{T0}, 0x3f803f80")
    a(f"v_cmp_eq_u32 vcc, 0, v{T2}")
    a("s_nop 1")
    a(f"v_cndmask_b32 v{ONES}, 0, v{T0}, vcc")
    a(f"v_cndmask_b32 v{ONES + 1}, 0, v{T0}, vcc")
    a(f"v_cmp_eq_u32 vcc, 0, v{T3}")
    a("s_nop 1")
    a(f"v_cndmask_b32 v{ONES + 2}, 0, v{T0}, vcc")
    a(f"v_cndmask_b32 v{ONES + 3}, 0, v{T0}, vcc")
    a(f"v_mov_b32 v{IDX}, 0xdddddddd")
    for q in range(2):
        for r in range(16):
            a(f"v_mov_b32 v{O[q] + r}, 0")
        for r in range(4):
            a(f"v_mov_b32 v{L[q] + r}, 0")
    for r in range(8):
        a(f"v_mov_b32 v{VF[1] + r}, 0")
    a(f"v_mov_b32 v{vK}, v{vL16}")
    a(f"v_add_u32 v{vKN}, {STG}, v{vL16}")

    def kread(kt):
        reg, k = (vK, kt) if kt < TILES else (vKN, kt - TILES)
        return [f"ds_read_b128 {vr(KF[kt & 1] + 4 * c, 4)}, v{reg} offset:{4096 * k + 1024 * c}" for c in range(2)]

    def vread(kt):
        reg, k = (vK, kt) if kt < TILES else (vKN, kt - TILES)
        return [f"ds_read_b128 {vr(VF[kt & 1] + 4 * c, 4)}, v{reg} offset:{4096 * k + 2048 + 1024 * c}" for c in range(2)]

    dma_ins = [f"buffer_load_dwordx4 v{vL16}, {sr(SRD)}, s{sGO} offen offset:{1024 * c} lds" for c in range(4)]

    def dma_adv():
        a(f"s_add_u32 s{sGO}, s{sGO}, {STG}")
        a(f"s_add_u32 s{sDM}, s{sDM}, {STG}")
        a(f"s_cmp_ge_u32 s{sDM}, {NSLOT * STG}")
        a(f"s_cselect_b32 s{t0}, {NSLOT * STG}, 0")
        a(f"s_sub_u32 s{sDM}, s{sDM}, s{t0}")

    a(f"s_cmp_lt_u32 s{sWAVE}, 4")
    a(f"s_cselect_b32 s{sFIRST}, 1, 2")
    a("s_cbranch_scc0 L_attn_b0y")
    a("s_waitcnt vmcnt(4)")
    a("s_barrier")
    a.many(kread(0) + vread(0) + kread(1))
    stamp_mid(a, 0)
    a("s_waitcnt vmcnt(0)")
    a("s_branch L_attn_b0")
    a.label("L_attn_b0y")
    a("s_barrier")
    a("s_waitcnt vmcnt(8)")
    a("s_barrier")
    if OPT["k2s"]:
        a("s_waitcnt vmcnt(6)")
        a("s_barrier")
    a.many(kread(0) + vread(0) + kread(1))
    stamp_mid(a, 0)
    a(f"s_waitcnt vmcnt({2 if OPT['k2s'] else 4})")
    a.label("L_attn_b0")
    stamp_mid(a, 5)
    a(f"s_mov_b32 m0, s{sDM}")
    a("s_waitcnt lgkmcnt(4)")
    for q in range(2):
        a(f"{MF32} {vr(S[q], 16)}, {vr(KF[0], 4)}, {vr(Q[q], 4)}, 0")
        a(dma_ins[2 * q])
        a(f"{MF32} {vr(S[q], 16)}, {vr(KF[0] + 4, 4)}, {vr(Q[q] + 4, 4)}, {vr(S[q], 16)}")
        a(dma_ins[2 * q + 1])
    dma_adv()
    a(f"s_mov_b32 s{sST}, 0")
    a(f"s_mov_b32 s{sSL}, {STG}")
    a("s_nop 5")
    for q in range(2):
        s, t = S[q], T0 + 2 * q
        a(f"v_max3_f32 v{t}, v{s}, v{s + 1}, v{s + 2}")
        for r in range(3, 15, 2):
            a(f"v_max3_f32 v{t}, v{s + r}, v{s + r + 1}, v{t}")
        a(f"v_max_f32 v{t}, v{s + 15}, v{t}")
        a(f"v_mov_b32 v{t + 1}, v{t}")
    a("s_nop 1")
    for q in range(2):
        a(f"v_permlane32_swap_b32 v{T0 + 2 * q}, v{T0 + 2 * q + 1}")
    a("s_nop 1")
    for q in (1, 0):
        t = T0 + 2 * q
        a(f"v_max_f32 v{t}, v{t}, v{t + 1}")
        for r in range(16):
            a(f"v_sub_f32 v{NEG[q] + r}, 0, v{t}")
    for r in range(16):
        a(f"v_sub_f32 v{S[0] + r}, v{S[0] + r}, v{T0}")
    for r in range(8, 16):
        a(f"v_mov_b32 v{S[1] + r}, 0")

    SM32, SM16 = "v_smfmac_f32_32x32x32_bf16", "v_smfmac_f32_16x16x64_bf16"

    def step(u, fill=()):
        q, kt = u & 1, u >> 1
        qp, ktn, ktp = q ^ 1, (u + 1) >> 1, (u - 1) >> 1
        cur, nxt = S[q], S[qp]
        rd = vread(kt + 1) if q == 0 else kread(kt + 2)
        d = dict(
            QK0=f"{MF32} {vr(nxt, 16)}, {vr(KF[ktn & 1], 4)}, {vr(Q[qp], 4)}, {vr(NEG[qp], 16)}",
            QK1=f"{MF32} {vr(nxt, 16)}, {vr(KF[ktn & 1] + 4, 4)}, {vr(Q[qp] + 4, 4)}, {vr(nxt, 16)}",
            PV0=f"{SM32} {vr(O[q], 16)}, {vr(VF[kt & 1], 4)}, {vr(cur, 8)}, v{IDX}",
            PV1=f"{SM32} {vr(O[qp], 16)}, {vr(VF[ktp & 1] + 4, 4)}, {vr(nxt + 8, 8)}, v{IDX}",
            S0=f"{SM16} {vr(L[q], 4)}, {vr(ONES, 4)}, {vr(cur, 8)}, v{IDX}",
            S1=f"{SM16} {vr(L[qp], 4)}, {vr(ONES, 4)}, {vr(nxt + 8, 8)}, v{IDX}",
            R0=rd[0], R1=rd[1], N="s_nop 0" if q == 1 else None,
            Wq="s_waitcnt lgkmcnt(2)" if q == 1 else None, Wp="s_waitcnt lgkmcnt(3)" if q == 0 else None)
        for i in range(16):
            d[f"E{i}"] = f"v_exp_f32 v{cur + i}, v{cur + i}"
        fill = list(fill) + [None] * 2
        d["F0"], d["F1"] = fill[0], fill[1]
        o = "E0 E1 S1 Wq E2 PV1 F0 E3 E4 E5 QK0 F1 E6 E7 E8 QK1 R0 E9 E10 E11 Wp PV0 R1 E12 E13 E14 S0 N E15"
        for t in o.split():
            x = d[t]
            if x:
                a.many(x if isinstance(x, list) else [x])

    if OPT["lstamp"]:
        stamp_mid(a, 2)
    UB = 2 * TILES - 3
    a.raw(".p2align 3")
    a.label("L_attn_loop")
    a(f"s_cmp_eq_u32 s{sFIRST}, 1")
    for u in range(2 * TILES):
        fill = ()
        if u in (1, 5, 9):
            a(f"s_cbranch_scc1 L_attn_first{u}")
            a.label(f"L_attn_back{u}")
            if u == (5 if OPT["k2s"] else 1):
                a(f"s_cmp_lg_u32 s{sFIRST}, 0")
        if u == UB:
            a("s_waitcnt vmcnt(0)")
            a("s_barrier")
            a(f"s_mov_b32 m0, s{sDM}")
            fill = (dma_ins[0], dma_ins[1])
        if u == UB + 1:
            fill = (dma_ins[2], dma_ins[3])
        if u == UB + 2:
            fill = ([f"s_cmp_eq_u32 s{sST}, {OPT['wos']}", f"s_cselect_b32 s{sPFC}, s{sPF}, 0x7ff00000",
                     f"buffer_load_dword v{vPFD}, v{vPF}, {sr(SRDW)}, s{sPFC} offen"],
                    [f"s_add_u32 s{sGO}, s{sGO}, {STG}", f"s_add_u32 s{sDM}, s{sDM}, {STG}"])
        if (u - UB) % 4 == 0:
            a(f"s_setprio {3 - ((u - UB) % (2 * TILES)) // 4}")
        step(u, fill)
    a(f"s_cmp_ge_u32 s{sDM}, {NSLOT * STG}")
    a(f"s_cselect_b32 s{t0}, {NSLOT * STG}, 0")
    a(f"s_sub_u32 s{sDM}, s{sDM}, s{t0}")
    if OPT["oob"]:
        a(f"s_cmp_ge_u32 s{sST}, {NSTG - 3}")
        a(f"s_cmov_b32 s{sGO}, 0x7ff00000")
    a(f"s_mov_b32 s{sFIRST}, 0")
    a(f"v_mov_b32 v{vK}, v{vKN}")
    a(f"s_add_u32 s{sSL}, s{sSL}, {STG}")
    a(f"s_cmp_ge_u32 s{sSL}, {NSLOT * STG}")
    a(f"s_cselect_b32 s{sSL}, 0, s{sSL}")
    a(f"v_add_u32 v{vKN}, s{sSL}, v{vL16}")
    if OPT["lstamp"] and STAMP:
        for k_, n_ in ((0, 3), (1, 4), (6, 5)):
            a(f"s_cmp_lg_u32 s{sST}, {k_}")
            a(f"s_cbranch_scc1 L_attn_ls{k_}")
            stamp_mid(a, n_)
            a.label(f"L_attn_ls{k_}")
    a(f"s_add_u32 s{sST}, s{sST}, 1")
    a(f"s_cmp_lt_u32 s{sST}, {NSTG}")
    a("s_cbranch_scc1 L_attn_loop")
    stamp_mid(a, 1)
    tbl_offset(a, t0)
    a(f"v_mov_b32 v{T2}, 0")
    a(f"buffer_load_dword v{vPFD}, v{T2}, {sr(SRD)}, s{t0} offen")
    a(f"{SM32} {vr(O[1], 16)}, {vr(VF[1] + 4, 4)}, {vr(S[1] + 8, 8)}, v{IDX}")
    a(f"{SM16} {vr(L[1], 4)}, {vr(ONES, 4)}, {vr(S[1] + 8, 8)}, v{IDX}")
    a(f"v_mov_b32 v{T2}, 0")
    for q in range(2):
        for r in range(16):
            a(f"v_fmac_f32 v{T2}, 0, v{O[q] + r}")
    a(f"v_max_f32 v{T3}, v{L[0]}, v{L[1]}")
    a(f"v_fmac_f32 v{T2}, 0, v{L[0]}")
    a(f"v_fmac_f32 v{T2}, 0, v{L[1]}")
    a(f"v_add_f32 v{T3}, v{T3}, v{T2}")
    a(f"v_mov_b32 v{T2}, {f32bits(2.0 ** 40):#x}")
    a(f"v_cmp_nle_f32 vcc, v{T3}, v{T2}")
    a("s_waitcnt lgkmcnt(0)")
    a("s_nop 3")
    a("s_cbranch_vccnz L_attn_slow")

    def finish(q, lreg):
        a(f"v_rcp_f32 v{T0}, v{lreg}")
        a("s_nop 0")
        for r in range(16):
            a(f"v_mul_f32 v{O[q] + r}, v{O[q] + r}, v{T0}")
        for r in range(8):
            a(f"v_cvt_pk_bf16_f32 v{P[q] + r}, v{O[q] + 2 * r}, v{O[q] + 2 * r + 1}")
        a(f"s_add_u32 s{t0}, s{sOB}, {4096 * q}")
        for c in range(2):
            a(f"buffer_store_dwordx4 {vr(P[q] + 4 * c, 4)}, v{vL16}, {sr(SRD)}, s{t0} offen offset:{1024 * c}{OPT['st2']}")

    for q in range(2):
        finish(q, L[q])
    if OPT["orb"]:
        a(f"v_and_b32 v{T1}, 15, v0")
        a(f"v_lshlrev_b32 v{T1}, 7, v{T1}")
        a(f"v_bfe_u32 v{T2}, v0, 4, 1")
        a(f"v_lshl_add_u32 v{T1}, v{T2}, 12, v{T1}")
        a("s_waitcnt vmcnt(0)")
        a(f"buffer_load_dword v{vPFD}, v{T1}, {sr(SRD)}, s{sOB} offen")
    stamp_end(a, 1, OPT["orb"])
    a("s_endpgm")

    for u in (1, 5, 9):
        a.label(f"L_attn_first{u}")
        if u > 1:
            a(f"s_waitcnt vmcnt({6 if u == 5 else 4})")
        if u == 9:
            a(f"s_cmp_lg_u32 s{sWAVE}, 0")
            a("s_cbranch_scc1 L_attn_nov")
            hint_verdict(a, "attn", T0, vHD, FLAG)
            a.label("L_attn_nov")
        a("s_barrier")
        if u == 9:
            hint_read(a, T0, vHD, FLAG)
            a("s_waitcnt lgkmcnt(0)")
            hint_check(a, "attn", vHD)
        a(f"s_branch L_attn_back{u}")

    a.label("L_attn_slow")
    M, LS, AL = 88, 89, 90
    for q in range(2):
        s = S[0]
        a(f"v_mov_b32 v{M}, 0xff7fffff")
        a(f"v_mov_b32 v{LS}, 0")
        for r in range(16):
            a(f"v_mov_b32 v{O[q] + r}, 0")
        a(f"s_mov_b32 s{sGO}, s{sKV}")
        a(f"s_mov_b32 s{sST}, 0")
        a.label(f"L_attn_slow_{q}")
        for c in range(2):
            a(f"buffer_load_dwordx4 {vr(KF[0] + 4 * c, 4)}, v{vL16}, {sr(SRD)}, s{sGO} offen offset:{1024 * c}")
        for c in range(2):
            a(f"buffer_load_dwordx4 {vr(VF[0] + 4 * c, 4)}, v{vL16}, {sr(SRD)}, s{sGO} offen offset:{2048 + 1024 * c}")
        a("s_waitcnt vmcnt(0)")
        a(f"{MF32} {vr(s, 16)}, {vr(KF[0], 4)}, {vr(Q[q], 4)}, 0")
        a(f"{MF32} {vr(s, 16)}, {vr(KF[0] + 4, 4)}, {vr(Q[q] + 4, 4)}, {vr(s, 16)}")
        a("s_nop 7")
        a("s_nop 7")
        a(f"v_max3_f32 v{T0}, v{s}, v{s + 1}, v{M}")
        for r in range(2, 16, 2):
            a(f"v_max3_f32 v{T0}, v{s + r}, v{s + r + 1}, v{T0}")
        a(f"v_mov_b32 v{T1}, v{T0}")
        a("s_nop 1")
        a(f"v_permlane32_swap_b32 v{T0}, v{T1}")
        a("s_nop 1")
        a(f"v_max_f32 v{T0}, v{T0}, v{T1}")
        a(f"v_sub_f32 v{AL}, v{M}, v{T0}")
        a(f"v_exp_f32 v{AL}, v{AL}")
        a(f"v_mov_b32 v{M}, v{T0}")
        for r in range(16):
            a(f"v_sub_f32 v{s + r}, v{s + r}, v{T0}")
        for r in range(16):
            a(f"v_exp_f32 v{s + r}, v{s + r}")
        a(f"v_mul_f32 v{LS}, v{LS}, v{AL}")
        for r in range(16):
            a(f"v_mul_f32 v{O[q] + r}, v{O[q] + r}, v{AL}")
        for r in range(16):
            a(f"v_and_b32 v{s + r}, 0xffff0000, v{s + r}")
        for r in range(16):
            a(f"v_add_f32 v{LS}, v{LS}, v{s + r}")
        a("s_nop 1")
        a(f"{SM32} {vr(O[q], 16)}, {vr(VF[0], 4)}, {vr(s, 8)}, v{IDX}")
        a(f"{SM32} {vr(O[q], 16)}, {vr(VF[0] + 4, 4)}, {vr(s + 8, 8)}, v{IDX}")
        a("s_nop 7")
        a("s_nop 7")
        a(f"s_add_u32 s{sGO}, s{sGO}, 4096")
        a(f"s_add_u32 s{sST}, s{sST}, 1")
        a(f"s_cmp_lt_u32 s{sST}, 64")
        a(f"s_cbranch_scc1 L_attn_slow_{q}")
        a(f"v_mov_b32 v{T1}, v{LS}")
        a("s_nop 1")
        a(f"v_permlane32_swap_b32 v{LS}, v{T1}")
        a("s_nop 1")
        a(f"v_add_f32 v{LS}, v{LS}, v{T1}")
        finish(q, LS)
        a("s_waitcnt vmcnt(0)")
    stamp_end(a, 1)
    a("s_endpgm")
    hint_slow(a, "attn")
    a.label("L_attn_end")
    a("s_endpgm")
    return a.text(), kernel_desc("attn_kernel", NV), lds, 512


HEADER = """; Fused MQA (branch A) + MHA (branch B) attention block in three launches (hand-written via a generator script).
;   proj_kernel : Q/K/V projections, 256x128 tiles, LDS-DMA ring, 4 MFMA waves + 4 loader waves.
;   attn_kernel : softmax(Q K^T) V for one (branch, head, 512 rows); S^T = K Q^T - m comes straight out of the MFMA,
;                 P V and the row sums use sparse MFMAs that pick the high (bf16) halves of the f32 exp results.
;                 m is the row max over the first key tile; after the loop the row sum / outputs are checked and a wave
;   outp_kernel : output projections, 128x128 tiles -> d_out.
"""


def main(path):
    ks = [("proj_kernel",) + gen_proj(), ("attn_kernel",) + gen_attn(), ("outp_kernel",) + gen_outp()]
    s = HEADER
    for n, t, d, lds, blk in ks:
        s += f"; @launch kernel={n} grid=(256,1,1) block=({blk},1,1) lds={lds}\n"
    if OPT["twice3"]:
        s += s.splitlines()[-1] + "\n"
    s += '.amdgcn_target "amdgcn-amd-amdhsa--gfx950"\n'
    s += "".join(k[1] for k in ks) + "".join(k[2] for k in ks)
    open(path, "w").write(s)


if __name__ == "__main__":
    args = sys.argv[1:]
    if "--stamp" in args:
        STAMP = True
        args.remove("--stamp")
    for x in list(args):
        if "=" in x:
            k_, v_ = x.split("=")
            assert k_ in OPT, k_
            OPT[k_] = int(v_) if v_.lstrip("-").isdigit() else ("" if v_ == "none" else " " + v_.replace("+", " "))
            args.remove(x)
    main(args[0] if args else f"cdna_kernels/{NAME}.s")
```

```python
import sys, math, struct

NAME = "concat_heads__grouped_kv_mqa__softmax_full_mha__prompt"

WS_QA = 0x0000000
WS_QB = 0x0400000
WS_KVA = 0x0800000
WS_TBL = 0x0900000
WS_CLM = 0x0910000
WS_KVB = 0x1000000
WS_OA = 0x2000000
WS_OB = 0x2400000
WS_STAMP = 0x8000000
WS_SIZE = 268435456

QSCALE = (32 ** -0.5) * math.log2(math.e)
STAMP = False
OPT = dict(pre=16, st1=" sc0 sc1", st2=" sc0 sc1", ld1="", pfb="", pf=1, pf0=0, pfd=2, badtbl=0, lstamp=0, epi3=1, nl3=4, fake16=0, badtk=0, pfirst=1, pwait=0, wsb=0, st3=" nt", k2s=1, p0=2, xfirst=1, rot=0, ks3=2, xp=0, lrot=1, swap3=1, p1e=1, orb=0, twice3=0, wos=6, oob=1, m16=1, m16b=1, pepi=1, stkv=" nt")

MF32 = "v_mfma_f32_32x32x16_bf16"
MF16 = "v_mfma_f32_16x16x32_bf16"


def f32bits(x):
    return struct.unpack("<I", struct.pack("<f", x))[0]


class A:
    def __init__(self):
        self.l = []

    def __call__(self, s):
        self.l.append("    " + s)

    def many(self, xs):
        for x in xs:
            self(x)

    def label(self, s):
        self.l.append(s + ":")

    def raw(self, s):
        self.l.append(s)

    def text(self):
        return "\n".join(self.l) + "\n"


def vr(b, n):
    return f"v[{b}:{b + n - 1}]"


def sr(b, n=4):
    return f"s[{b}:{b + n - 1}]"


def srd(a, d, lo, size):
    a(f"s_mov_b32 s{d}, s{lo}")
    a(f"s_mov_b32 s{d+1}, s{lo + 1}")
    a(f"s_mov_b32 s{d+2}, {size:#x}")
    a(f"s_mov_b32 s{d+3}, 0x00020000")


def srd_sel(a, d, lo1, lo0, size1, size0=None):
    a(f"s_cselect_b32 s{d}, s{lo1}, s{lo0}")
    a(f"s_cselect_b32 s{d+1}, s{lo1 + 1}, s{lo0 + 1}")
    if size0 is None:
        a(f"s_mov_b32 s{d+2}, {size1:#x}")
    else:
        csel(a, d + 2, size1, size0)
    a(f"s_mov_b32 s{d+3}, 0x00020000")


def csel(a, d, x, y):
    a(f"s_mov_b32 s{d}, {y}")
    a(f"s_cmov_b32 s{d}, {x}")


def kernel_head(a, name):
    a.raw(".text")
    a.raw(f".globl {name}")
    a.raw(".p2align 8")
    a.raw(f".type {name},@function")
    a.label(name)


def kernel_desc(name, nvgpr, nsgpr=102):
    acc = (nvgpr + 3) // 4 * 4
    return f""".section .rodata,"a"
.p2align 6
.amdhsa_kernel {name}
  .amdhsa_next_free_vgpr {nvgpr}
  .amdhsa_next_free_sgpr {nsgpr}
  .amdhsa_accum_offset {acc}
  .amdhsa_group_segment_fixed_size 0
  .amdhsa_kernarg_size 88
  .amdhsa_user_sgpr_count 2
  .amdhsa_user_sgpr_kernarg_segment_ptr 1
  .amdhsa_system_sgpr_workgroup_id_x 1
.end_amdhsa_kernel
"""


sXCC, sHW, sTRY, sTK = 3, 8, 9, 10
SRD_DBG = 12
S_IN = 16
S_OUT = 32
S_WS = 34
SRD_WS = 44
sWAVE = 56
sT0, sT1, sT2, sT3 = 57, 58, 59, 60
sOK = 81


def stamp_begin(a):
    if STAMP:
        a("s_memtime s[82:83]")
        a("s_memrealtime s[84:85]")
        for n in range(6):
            a(f"s_mov_b32 s{90 + 2 * n}, 0")


def stamp_mid(a, n):
    if STAMP:
        a(f"s_memtime s[{90 + 2 * n}:{91 + 2 * n}]")


def stamp_end(a, kidx, keep=0):
    if not STAMP:
        return
    a(f"s_waitcnt vmcnt({keep})")
    a("s_memtime s[86:87]")
    a("s_memrealtime s[88:89]")
    a("s_waitcnt lgkmcnt(0)")
    a(f"s_min_u32 s9, s{sWAVE}, 7")
    a("s_lshl_b32 s8, s2, 3")
    a("s_add_u32 s8, s8, s9")
    a("s_lshl_b32 s8, s8, 6")
    a(f"s_add_u32 s8, s8, {WS_STAMP + kidx * 0x20000:#x}")
    for i, r in enumerate((82, 84, 86, 88, 90, 92, 94, 96, 98, 100, 100, 100)):
        a(f"v_mov_b32 v{4 + i}, s{r}")
    a("v_mov_b32 v1, 0")
    a("s_mov_b64 exec, 1")
    for i in range(3):
        a(f"buffer_store_dwordx4 v[{4 + 4 * i}:{7 + 4 * i}], v1, {sr(SRD_WS)}, s8 offen offset:{16 * i}")


def entry(a, tag):
    a("s_cmp_ge_u32 s2, 256")
    a(f"s_cbranch_scc1 L_{tag}_end")
    stamp_begin(a)
    a(f"s_load_dwordx16 {sr(S_IN, 16)}, s[0:1], 0")
    a(f"s_load_dwordx2 {sr(S_OUT, 2)}, s[0:1], 64")
    a(f"s_load_dwordx2 {sr(SRD_DBG, 2)}, s[0:1], 72")
    a(f"s_load_dwordx2 {sr(S_WS, 2)}, s[0:1], 80")
    a("v_lshrrev_b32 v1, 6, v0")
    a("v_and_b32 v0, 63, v0")
    a(f"v_readfirstlane_b32 s{sWAVE}, v1")
    a(f"s_getreg_b32 s{sXCC}, hwreg(HW_REG_XCC_ID, 0, 3)")
    a(f"s_getreg_b32 s{sHW}, hwreg(HW_REG_HW_ID, 8, 8)")
    a(f"s_mov_b32 s{SRD_DBG + 2}, 256")
    a(f"s_mov_b32 s{SRD_DBG + 3}, 0x00020000")


def ws_reloc(a):
    if OPT["wsb"]:
        a(f"s_add_u32 s{S_WS}, s{S_WS}, {OPT['wsb'] << 20:#x}")
        a(f"s_addc_u32 s{S_WS + 1}, s{S_WS + 1}, 0")


def tbl_offset(a, d):
    a(f"s_lshl_b32 s{d}, s{sXCC}, 8")
    a(f"s_or_b32 s{d}, s{d}, s{sHW}")
    a(f"s_lshl_b32 s{d}, s{d}, 2")
    a(f"s_add_u32 s{d}, s{d}, {WS_TBL:#x}")


sG, sMT = 32, 33


def ticket_issue(a, tag, who):
    a(f"s_mov_b32 s{sG}, s{sXCC}")
    a(f"s_bfe_u32 s{sMT}, s{sHW}, 0x20005")
    if OPT["badtk"]:
        a(f"s_and_b32 s{sMT}, s{sMT}, 1")
        a(f"s_and_b32 s{sG}, s{sG}, 5")
    a(f"s_mov_b32 s{sOK}, 0")
    a(f"s_cmp_lg_u32 s{sWAVE}, {who}")
    a(f"s_cbranch_scc1 L_{tag}_cl0")
    a(f"s_lshl_b32 s{sTK + 1}, s{sG}, 2")
    a(f"s_or_b32 s{sTK + 1}, s{sTK + 1}, s{sMT}")
    a(f"s_lshl_b32 s{sTRY}, s{sTK + 1}, 3")
    a(f"s_mov_b32 s{sTK}, 1")
    a(f"s_atomic_add s{sTK}, {sr(SRD_DBG, 2)}, s{sTRY} glc")
    a.label(f"L_{tag}_cl0")


def ticket_end(a, tag, who, ldsoff):
    a(f"s_cmp_lg_u32 s{sWAVE}, {who}")
    a(f"s_cbranch_scc1 L_{tag}_cl3")
    a(f"s_cmp_lg_u32 s{sOK}, 0")
    a(f"s_cbranch_scc1 L_{tag}_cl3")
    a(f"s_mov_b32 s{sCNT}, 0")
    a.label(f"L_{tag}_cl1")
    a("s_waitcnt lgkmcnt(0)")
    a(f"s_cmp_lt_u32 s{sTK}, 8")
    a(f"s_cbranch_scc1 L_{tag}_cl2")
    a(f"s_add_u32 s{sCNT}, s{sCNT}, 1")
    a(f"s_cmp_ge_u32 s{sCNT}, 32")
    a(f"s_cbranch_scc1 L_{tag}_cl2")
    a(f"s_add_u32 s{sTK + 1}, s{sTK + 1}, 1")
    a(f"s_and_b32 s{sTK + 1}, s{sTK + 1}, 31")
    a(f"s_lshl_b32 s{sTRY}, s{sTK + 1}, 3")
    a(f"s_mov_b32 s{sTK}, 1")
    a(f"s_atomic_add s{sTK}, {sr(SRD_DBG, 2)}, s{sTRY} glc")
    a(f"s_branch L_{tag}_cl1")
    a.label(f"L_{tag}_cl2")
    a(f"s_min_u32 s{sTK}, s{sTK}, 8")
    a(f"s_lshl_b32 s{sTK}, s{sTK}, 5")
    a(f"s_and_b32 s{sTRY}, s{sTK + 1}, 3")
    a(f"s_lshl_b32 s{sTRY}, s{sTRY}, 3")
    a(f"s_or_b32 s{sTK}, s{sTK}, s{sTRY}")
    a(f"s_lshr_b32 s{sTRY}, s{sTK + 1}, 2")
    a(f"s_or_b32 s{sTK}, s{sTK}, s{sTRY}")
    a("s_mov_b64 exec, 1")
    a(f"v_mov_b32 v2, {ldsoff}")
    a(f"v_mov_b32 v3, s{sTK}")
    a("ds_write_b32 v2, v3")
    a("s_mov_b64 exec, -1")
    a("s_waitcnt lgkmcnt(0)")
    a.label(f"L_{tag}_cl3")


def ticket_notes(a, tag, who):
    a(f"s_cmp_lg_u32 s{sWAVE}, {who}")
    a(f"s_cbranch_scc1 L_{tag}_cl4")
    a("s_mov_b64 exec, 1")
    a("v_mov_b32 v1, 0")
    a("v_mov_b32 v3, s2")
    a(f"s_lshl_b32 s{sT1}, s2, 7")
    a(f"s_add_u32 s{sT1}, s{sT1}, {WS_CLM:#x}")
    a(f"buffer_store_dword v1, v1, {sr(SRD_WS)}, s{sT1} offen")
    a(f"s_add_u32 s{sT1}, s{sT1}, 0x8000")
    a(f"buffer_store_dword v1, v1, {sr(SRD_WS)}, s{sT1} offen")
    tbl_offset(a, sT1)
    a(f"buffer_store_dword v3, v1, {sr(SRD_WS)}, s{sT1} offen sc0 sc1")
    a("s_mov_b64 exec, -1")
    a.label(f"L_{tag}_cl4")


def ticket_wait(a, tag, ldsoff, redo):
    a(f"v_mov_b32 v2, {ldsoff}")
    a("s_barrier")
    a("ds_read_b32 v3, v2")
    a(f"s_lshl_b32 s{sT1}, s{sMT}, 3")
    a(f"s_or_b32 s{sT1}, s{sT1}, s{sG}")
    a("s_waitcnt lgkmcnt(0)")
    a("v_readfirstlane_b32 s2, v3")
    a("s_nop 3")
    a(f"s_and_b32 s{sT2}, s2, 0x31f")
    a(f"s_cmp_lg_u32 s{sT2}, s{sT1}")
    a(f"s_cbranch_scc1 {redo}")
    a(f"s_lshr_b32 s{sNT}, s2, 5")


def ticket_redo(a, tag, lbl, back):
    a.label(lbl)
    a("s_waitcnt vmcnt(0)")
    a("s_cmp_ge_u32 s2, 256")
    a(f"s_cbranch_scc1 L_{tag}_end")
    a(f"s_and_b32 s{sG}, s2, 7")
    a(f"s_bfe_u32 s{sMT}, s2, 0x20003")
    a(f"s_mov_b32 s{sOK}, 1")
    a(f"s_branch {back}")


def hint_load(a, tag):
    tbl_offset(a, sTK)
    a("s_waitcnt lgkmcnt(0)")
    ws_reloc(a)
    a(f"s_load_dword s2, {sr(S_WS, 2)}, s{sTK}")
    srd(a, SRD_WS, S_WS, WS_SIZE - (OPT["wsb"] << 20))
    a(f"s_mov_b32 s{sOK}, 0")
    a("s_waitcnt lgkmcnt(0)")
    if OPT["badtbl"]:
        a(f"s_and_b32 s2, s2, {OPT['badtbl']}")
    a("s_and_b32 s2, s2, 255")
    a.label(f"L_{tag}_item")


def clm_base(tag):
    return WS_CLM + (0 if tag == "attn" else 0x8000)


def hint_claim(a, tag, who):
    a(f"s_cmp_lg_u32 s{sWAVE}, {who}")
    a(f"s_cbranch_scc1 L_{tag}_noc")
    a(f"s_lshl_b32 s{sTK + 1}, s2, 7")
    a(f"s_add_u32 s{sTK + 1}, s{sTK + 1}, {clm_base(tag):#x}")
    a(f"s_mov_b32 s{sTK}, 1")
    a(f"s_atomic_or s{sTK}, {sr(S_WS, 2)}, s{sTK + 1} glc")
    a.label(f"L_{tag}_noc")


def hint_verdict(a, tag, vA, vD, ldsoff):
    a("s_waitcnt lgkmcnt(0)")
    a(f"s_andn2_b32 s{sTK}, s{sTK}, s{sOK}")
    if OPT["twice3"] and tag == "outp":
        a(f"s_mov_b32 s{sTK}, 0")
    a(f"s_cmp_lg_u32 s{sTK}, 0")
    a(f"s_mov_b32 s{sTRY}, s2")
    a(f"s_cbranch_scc1 L_{tag}_hslow")
    a.label(f"L_{tag}_hback")
    a(f"v_mov_b32 v{vA}, {ldsoff}")
    a(f"v_mov_b32 v{vD}, s{sTRY}")
    a(f"ds_write_b32 v{vA}, v{vD}")
    a("s_waitcnt lgkmcnt(0)")


def hint_slow(a, tag):
    sN = 4
    a.label(f"L_{tag}_hslow")
    a(f"s_mov_b32 s{sN}, 0")
    a.label(f"L_{tag}_hs1")
    a(f"s_add_u32 s{sN}, s{sN}, 1")
    a(f"s_add_u32 s{sTRY}, s{sTRY}, 9")
    a(f"s_and_b32 s{sTRY}, s{sTRY}, 255")
    a(f"s_cmp_gt_u32 s{sN}, 256")
    a(f"s_cbranch_scc1 L_{tag}_hs2")
    a(f"s_lshl_b32 s{sTK + 1}, s{sTRY}, 7")
    a(f"s_add_u32 s{sTK + 1}, s{sTK + 1}, {clm_base(tag):#x}")
    a(f"s_mov_b32 s{sTK}, 1")
    a(f"s_atomic_or s{sTK}, {sr(S_WS, 2)}, s{sTK + 1} glc")
    a("s_waitcnt lgkmcnt(0)")
    a(f"s_cmp_lg_u32 s{sTK}, 0")
    a(f"s_cbranch_scc1 L_{tag}_hs1")
    a(f"s_branch L_{tag}_hback")
    a.label(f"L_{tag}_hs2")
    a(f"s_mov_b32 s{sTRY}, 0x8000")
    a(f"s_branch L_{tag}_hback")
    a.label(f"L_{tag}_restart")
    a("s_waitcnt vmcnt(0) lgkmcnt(0)")
    a("s_barrier")
    a(f"s_mov_b32 s2, s{sTRY}")
    a(f"s_mov_b32 s{sOK}, 1")
    a("s_setprio 0")
    a("s_cmp_ge_u32 s2, 256")
    a(f"s_cbranch_scc1 L_{tag}_end")
    a(f"s_branch L_{tag}_item")


def hint_read(a, vA, vD, ldsoff):
    a(f"v_mov_b32 v{vA}, {ldsoff}")
    a(f"ds_read_b32 v{vD}, v{vA}")


def hint_check(a, tag, vD):
    a(f"v_readfirstlane_b32 s{sTRY}, v{vD}")
    a("s_nop 3")
    a(f"s_cmp_lg_u32 s{sTRY}, s2")
    a(f"s_cbranch_scc1 L_{tag}_restart")


SRD_X, SRD_W, SRD_WK, SRD_WV, SRD_PF, SRD_OUT = 36, 40, 48, 52, 4, 48
sXOFF, sWOFF, sWSTG, sSLOT, sCNT, sDELTA = 61, 62, 64, 65, 66, 67
sOBASE, sOJ, sOI, sSCALE = 68, 69, 70, 72
sSEC, sM0, sCOL0, sWSTR, sNT, sEXO, sEXS, sRSLOT = 74, 75, 76, 77, 78, 79, 80, 63
sPFO, sPFS, sPFN = 9, 10, 11
sPFL, sPFW, sK = 68, 69, 71


class G:
    def __init__(self, kind):
        self.kind = kind
        proj = kind == "proj"
        self.NI, self.NJ = (4, 2) if proj else (2, 2)
        self.XB = 32768 if proj else 16384
        self.NSLOT = 3 if proj else 4
        self.NL = 4 if proj else OPT["nl3"]
        self.SLOT = self.XB + 16384 + (2048 if proj else 0)
        self.XP = self.XB // 1024 // self.NL
        self.WP = 16 // self.NL
        self.NST = 16
        self.EXB = self.NSLOT * self.SLOT
        self.lds = self.NSLOT * self.SLOT + 64
        self.KS = 1 if proj else OPT["ks3"]
        self.ACC = 128 if proj else 16 + 32 * self.KS + (16 if self.KS == 1 else 0)
        self.nacc = self.NI * self.NJ * 16
        self.f1 = self.NI * 4 + self.NJ * 4
        fsz = self.f1 * self.KS
        self.F = [16, 16 + fsz]
        self.vXA, self.vWA, self.vEXX, self.vEXW, self.vST = 4, 8, 10, 12, 13
        self.EXF = 16 + 2 * fsz
        self.EXACC = self.EXF + 12
        self.nvgpr = self.ACC + self.nacc

    def fx(self, t, i):
        return self.F[(t // self.KS) & 1] + (t % self.KS) * self.f1 + 4 * i

    def fw(self, t, j):
        return self.F[(t // self.KS) & 1] + (t % self.KS) * self.f1 + self.NI * 4 + 4 * j

    def acc(self, i, j):
        return self.ACC + (i * self.NJ + j) * 16


def gemm_reads(g, T):
    proj = g.kind == "proj"
    out = []
    for t in range(T * g.KS, (T + 1) * g.KS):
        wr = [f"ds_read_b64_tr_b16 {vr(g.fw(t, j) + 2 * u, 2)}, v{g.vWA + j} offset:{4096 * t + (1024 if proj else 2048) * u}"
              for j in range(g.NJ) for u in range(2)]
        if proj:
            xr = [f"ds_read_b128 {vr(g.fx(t, i), 4)}, v{g.vXA + t} offset:{4096 * i}" for i in range(g.NI)]
        else:
            xr = [f"ds_read_b128 {vr(g.fx(t, i), 4)}, v{g.vXA} offset:{4096 * i + 1024 * t}" for i in range(g.NI)]
        out += [xr[0]] + wr + xr[1:]
    if OPT["xp"] == 1:
        out = out[::2]
    if OPT["xp"] == 2:
        out = out[:1]
    return out


def gemm_extra_reads(g, e):
    return [f"ds_read_b64_tr_b16 {vr(g.EXF + 2 * u, 2)}, v{g.vEXW} offset:{1024 * e + 128 * u}" for u in range(2)] + \
           [f"ds_read_b128 {vr(g.EXF + 4 + 4 * th, 4)}, v{g.vEXX + e} offset:{2048 * th}" for th in range(2)]


def gemm_step(a, g, T, swap, reads, pre=(), extra_mfma=(), post_valu=()):
    a.many(pre)
    mf = []
    for t in range(T * g.KS, (T + 1) * g.KS):
        for i in range(g.NI):
            for j in range(g.NJ):
                x, w, c = vr(g.fx(t, i), 4), vr(g.fw(t, j), 4), vr(g.acc(i, j), 16)
                mf.append(f"{MF32} {c}, {x}, {w}, {c}" if swap else f"{MF32} {c}, {w}, {x}, {c}")
    mf += list(extra_mfma)
    reads, post_valu = list(reads), list(post_valu)
    for m in mf:
        if OPT["fake16"] and m.startswith(MF32):
            import re as _re
            c0 = int(_re.search(r"v\[(\d+):", m).group(1))
            ops = m.split(", ")
            for h in range(2):
                cc = vr(c0 + 4 * h + 8 * (T & 1), 4)
                a(f"{MF16} {cc}, {ops[1 + h]}, {ops[2 - h]}, {cc}")
        elif OPT["xp"] != 3:
            a(m)
        for _ in range(2):
            if reads:
                a(reads.pop(0))
        if not reads:
            for _ in range(2):
                if post_valu:
                    a(post_valu.pop(0))
    a.many(reads + post_valu)


def gemm_compute(a, g, tag, swap, extras, check=None):
    proj = g.kind == "proj"

    def ex_mfma():
        w = vr(g.EXF, 4)
        out = []
        for th in range(2):
            x, c = vr(g.EXF + 4 + 4 * th, 4), vr(g.EXACC + 4 * th, 4)
            out.append(f"{MF16} {c}, {x}, {w}, {c}" if extras == "V" else f"{MF16} {c}, {w}, {x}, {c}")
        return out

    def adv(reg):
        return f"v_add_u32 v{reg}, s{sDELTA}, v{reg}"

    NB = 4 // g.KS

    def stage(last):
        for t in range(NB):
            pre = ["s_waitcnt lgkmcnt(0)"]
            reads, post, em = [], [], []
            if t < NB - 1:
                reads = gemm_reads(g, t + 1)
                if extras and t == 1:
                    reads += gemm_extra_reads(g, 1)
                if not last:
                    if proj:
                        post.append(adv(g.vXA + t + 1))
                    if t == NB - 2:
                        post += [adv(g.vWA), adv(g.vWA + 1), adv(g.vXA)]
                        if extras:
                            post += [adv(g.vEXX), adv(g.vEXX + 1), adv(g.vEXW)]
            elif not last:
                pre.append("s_barrier")
                reads = gemm_reads(g, 0)
                if extras:
                    reads += gemm_extra_reads(g, 0)
            if extras and t in (0, 2):
                em = ex_mfma()
            gemm_step(a, g, t, swap, reads, pre, em, post)

    stamp_mid(a, 4)
    a("s_barrier")
    stamp_mid(a, 0)
    a.many(gemm_reads(g, 0))
    if extras:
        a.many(gemm_extra_reads(g, 0))
    a(f"s_mov_b32 s{sCNT}, 0")
    a(f"s_mov_b32 s{sRSLOT}, 0")
    a.raw(".p2align 3")
    a.label(f"L_{tag}_loop")
    a(f"s_add_u32 s{sRSLOT}, s{sRSLOT}, 1")
    a(f"s_cmp_eq_u32 s{sRSLOT}, {g.NSLOT}")
    csel(a, sDELTA, f"{-(g.NSLOT - 1) * g.SLOT & 0xffffffff:#x}", g.SLOT)
    a(f"s_cselect_b32 s{sRSLOT}, 0, s{sRSLOT}")
    stage(False)
    a(f"s_add_u32 s{sCNT}, s{sCNT}, 1")
    a(f"s_cmp_lt_u32 s{sCNT}, {g.NST - 1}")
    a(f"s_cbranch_scc1 L_{tag}_loop")
    if check:
        hint_read(a, 14, 15, g.EXB)
    stage(True)
    if check:
        hint_check(a, check, 15)
    stamp_mid(a, 1)


def pf_adv(a):
    a(f"s_add_u32 s{sPFO}, s{sPFO}, s{sPFS}")
    a(f"s_cmp_ge_u32 s{sPFO}, s{sPFL}")
    a(f"s_cselect_b32 s{sT1}, s{sPFW}, 0")
    a(f"s_sub_u32 s{sPFO}, s{sPFO}, s{sT1}")


def k_wrap(a, lbl, n):
    a(f"s_add_u32 s{sK}, s{sK}, {n}")
    a(f"s_cmp_lt_u32 s{sK}, 16")
    a(f"s_cbranch_scc1 {lbl}")
    a(f"s_mov_b32 s{sK}, 0")
    a(f"s_sub_u32 s{sXOFF}, s{sXOFF}, 2048")
    a(f"s_lshl_b32 s{sT1}, s{sWSTG}, 4")
    a(f"s_sub_u32 s{sWOFF}, s{sWOFF}, s{sT1}")
    a(f"s_sub_u32 s{sEXO}, s{sEXO}, 0x10000")
    a.label(lbl)


def gemm_loader(a, g, tag, vX, vW):
    proj = g.kind == "proj"
    per, LA = g.XP + g.WP, g.NSLOT
    lb = OPT["ld1"] if proj else ""
    pf = proj and OPT["pf"]

    def prefetch():
        a(f"buffer_load_dword v9, v8, {sr(SRD_PF)}, s{sPFO} offen{OPT['pfb']}")
        pf_adv(a)

    def prefetch_if(hi, lbl):
        a(f"s_cmp_ge_u32 s{sWAVE}, 6")
        a(f"s_cbranch_scc{0 if hi else 1} {lbl}")
        prefetch()
        a.label(lbl)

    nlab = [0]

    def issue(lo=0, hi=None):
        hi = per if hi is None else hi
        for n in range(lo, hi):
            isx = n < g.XP
            i = n if isx else n - g.XP
            if i % 4 == 0 or n == lo:
                base = (i // 4) * 4096 if isx else 0
                a(f"s_add_u32 m0, s{sSLOT if isx else sEXS + 0}, {base}" if isx else f"s_add_u32 m0, s{sT3}, 0")
                a("s_nop 0")
            if isx:
                a(f"buffer_load_dwordx4 v{vX[i]}, {sr(SRD_X)}, s{sXOFF} offen offset:{(i % 4) * 1024}{lb} lds")
            else:
                a(f"buffer_load_dwordx4 v{vW[i]}, {sr(SRD_W)}, s{sWOFF} offen offset:{(i % 4) * 1024}{lb} lds")
        if hi == per:
            a(f"s_add_u32 s{sXOFF}, s{sXOFF}, {128 if proj else f's{sEXO}'}")
            a(f"s_add_u32 s{sWOFF}, s{sWOFF}, s{sWSTG}")
            if proj:
                nlab[0] += 1
                k_wrap(a, f"L_{tag}_kw{nlab[0]}", 1)
            a(f"s_add_u32 s{sRSLOT}, s{sRSLOT}, 1")
            a(f"s_cmp_eq_u32 s{sRSLOT}, {g.NSLOT}")
            csel(a, sDELTA, f"{-(g.NSLOT - 1) * g.SLOT & 0xffffffff:#x}", g.SLOT)
            a(f"s_cselect_b32 s{sRSLOT}, 0, s{sRSLOT}")
            a(f"s_add_u32 s{sSLOT}, s{sSLOT}, s{sDELTA}")
            a(f"s_add_u32 s{sT3}, s{sT3}, s{sDELTA}")

    def maybe_extra(lbl, st=0):
        if not proj:
            return
        a(f"s_cmp_eq_u32 s{sCOL0}, 0")
        a(f"s_cbranch_scc1 {lbl}")
        a(f"s_add_u32 m0, s{sT3}, s{sEXS}")
        if st:
            a(f"s_add_u32 m0, m0, {st * g.SLOT}")
        a("s_nop 0")
        a(f"buffer_load_dwordx4 v6, {sr(SRD_WK)}, s{sEXO} offen lds")
        a(f"s_add_u32 s{sEXO}, s{sEXO}, 4096")
        a.label(lbl)

    a(f"s_mov_b32 s{sRSLOT}, 0")
    stamp_mid(a, 3)
    if proj:
        def xs(st):
            a(f"s_add_u32 s{sDELTA}, s{sXOFF}, {128 * st}")
            for i in range(g.XP):
                if i % 4 == 0:
                    a(f"s_add_u32 m0, s{sSLOT}, {st * g.SLOT + (i // 4) * 4096}")
                    a("s_nop 0")
                a(f"buffer_load_dwordx4 v{vX[i]}, {sr(SRD_X)}, s{sDELTA} offen offset:{(i % 4) * 1024}{lb} lds")

        def ws_(st):
            maybe_extra(f"L_{tag}_x{st}", st)
            a(f"s_add_u32 m0, s{sT3}, {st * g.SLOT}")
            a("s_nop 0")
            for i in range(g.WP):
                a(f"buffer_load_dwordx4 v{vW[i]}, {sr(SRD_W)}, s{sWOFF} offen offset:{i * 1024}{lb} lds")
            a(f"s_add_u32 s{sWOFF}, s{sWOFF}, s{sWSTG}")

        for st in range(OPT["xfirst"]):
            xs(st)
        if pf and OPT["p1e"]:
            a(f"s_cmp_ge_u32 s{sWAVE}, 6")
            a(f"s_cbranch_scc0 L_{tag}_p1e")
            a(f"buffer_load_dword v9, v8, {sr(SRD_PF)}, s{sOBASE} offen{OPT['pfb']}")
            a.label(f"L_{tag}_p1e")
        g.mid()
        ws_(0)
        young = g.WP
        if OPT["xfirst"] == 1:
            young += g.XP
            xs(1)
        ws_(1)
        stamp_mid(a, 4)
        a(f"s_add_u32 s{sXOFF}, s{sXOFF}, 256")
        k_wrap(a, f"L_{tag}_kw0", 2)
        a(f"s_add_u32 s{sSLOT}, s{sSLOT}, {2 * g.SLOT}")
        a(f"s_add_u32 s{sT3}, s{sT3}, {2 * g.SLOT}")
        a(f"s_mov_b32 s{sRSLOT}, 2")
        a(f"s_waitcnt vmcnt({young})")
        stamp_mid(a, 5)
        a("s_barrier")
        stamp_mid(a, 0)
        if pf and OPT["p0"] == 2:
            g.after_bar0()
            if not OPT["p1e"]:
                a(f"s_cmp_ge_u32 s{sWAVE}, 6")
                a(f"s_cbranch_scc0 L_{tag}_p1b")
                a(f"buffer_load_dword v9, v8, {sr(SRD_PF)}, s{sPFO} offen{OPT['pfb']}")
                a.label(f"L_{tag}_p1b")
            pf_adv(a)
        maybe_extra(f"L_{tag}_x1b")
        issue()
        if not (pf and OPT["p0"] == 2):
            g.after_bar0()
        if pf:
            prefetch_if(False, f"L_{tag}_p2")
            a(f"s_cmp_ge_u32 s{sWAVE}, 6")
            a(f"s_cselect_b32 s{sPFN}, {OPT['pf0']}, {OPT['pf0'] + OPT['pfd']}")
    else:
        issue()
        pre = min(OPT["pre"] * 4 // g.NL, per * (LA - 1))
        full, part = divmod(pre, per)
        for _ in range(full):
            issue()
        if part:
            issue(0, part)
        stamp_mid(a, 4)
        a(f"s_waitcnt vmcnt({pre})")
        stamp_mid(a, 5)
        a("s_barrier")
        stamp_mid(a, 0)
        if part:
            issue(part, per)
            full += 1
        for _ in range(LA - 1 - full):
            issue()
    a(f"s_mov_b32 s{sCNT}, 0")
    a.label(f"L_{tag}_lloop")
    a(f"s_waitcnt vmcnt({(LA - 2) * per})")
    a("s_barrier")
    if OPT["lstamp"] and STAMP:
        for k_, n_ in ((1, 2), (4, 3), (8, 4), (11, 5)):
            a(f"s_cmp_lg_u32 s{sCNT}, {k_}")
            a(f"s_cbranch_scc1 L_{tag}_ls{k_}")
            stamp_mid(a, n_)
            a.label(f"L_{tag}_ls{k_}")
    maybe_extra(f"L_{tag}_x2")
    issue()
    if pf:
        a(f"s_cmp_eq_u32 s{sCNT}, s{sPFN}")
        a(f"s_cbranch_scc0 L_{tag}_nopf")
        prefetch()
        a(f"s_add_u32 s{sPFN}, s{sPFN}, {2 * OPT['pfd']}")
        a(f"s_cmp_gt_u32 s{sPFN}, {OPT['pf0'] + 4 * OPT['pfd']}")
        a(f"s_cselect_b32 s{sPFN}, 64, s{sPFN}")
        a.label(f"L_{tag}_nopf")
    a(f"s_add_u32 s{sCNT}, s{sCNT}, 1")
    a(f"s_cmp_lt_u32 s{sCNT}, {g.NST - LA}")
    a(f"s_cbranch_scc1 L_{tag}_lloop")
    for s in range(g.NST - LA, g.NST - 1):
        a(f"s_waitcnt vmcnt({(g.NST - 2 - s) * per})")
        if not proj and s == g.NST - LA:
            a(f"s_cmp_lg_u32 s{sWAVE}, 4")
            a(f"s_cbranch_scc1 L_{tag}_nov")
            hint_verdict(a, tag, 14, 15, g.EXB)
            a.label(f"L_{tag}_nov")
        a("s_barrier")
        if proj and s == g.NST - 2:
            tbl_offset(a, sT1)
            a("v_mov_b32 v1, 0")
            a(f"buffer_load_dword v2, v1, {sr(SRD_WS)}, s{sT1} offen")
    if not proj:
        hint_read(a, 14, 15, g.EXB)
        a("s_waitcnt lgkmcnt(0)")
        hint_check(a, tag, 15)
    stamp_mid(a, 1)
    stamp_end(a, 0 if proj else 2)
    a("s_endpgm")


def proj_group(a, sg):
    a(f"s_and_b32 s{sSEC}, s{sg}, 3")
    a(f"s_cmp_eq_u32 s{sSEC}, 0")
    csel(a, sWSTR, 2048, 6144)
    srd_sel(a, SRD_X, 16, 26, 0x400000)
    srd_sel(a, SRD_W, 18, 28, 0x200000, 0x600000)


def proj_pf_setup(a, tag, sg, sidx, sw2, dst=None):
    sPFO, sPFS = dst if dst else (9, 10)
    sPFL, sPFW = (sOI, sK) if dst else (68, 69)
    a(f"s_lshr_b32 s{sPFW}, s{sw2}, 1")
    if OPT["rot"]:
        a(f"s_add_u32 s{sPFW}, s{sPFW}, s{sg}")
        a(f"s_and_b32 s{sPFW}, s{sPFW}, 7")
    a(f"s_bitcmp1_b32 s{sw2}, 0")
    for i in range(3):
        a(f"s_cselect_b32 s{SRD_PF + i}, s{SRD_W + i}, s{SRD_X + i}")
    a(f"s_mov_b32 s{SRD_PF + 3}, 0x00020000")
    a(f"s_cbranch_scc1 L_{tag}_pfw")
    a("v_and_b32 v1, 31, v0")
    a("v_lshlrev_b32 v1, 11, v1")
    a("v_lshrrev_b32 v8, 5, v0")
    a("v_lshl_add_u32 v8, v8, 7, v1")
    a(f"s_lshr_b32 s{sT1}, s{sg}, 2")
    a(f"s_lshl_b32 s{sT1}, s{sT1}, 5")
    a(f"s_add_u32 s{sT1}, s{sT1}, s{sidx}")
    a(f"s_lshl_b32 s{sT1}, s{sT1}, 16")
    a(f"s_lshl_b32 s{sT2}, s{sPFW}, 8")
    a(f"s_add_u32 s{sPFO}, s{sT1}, s{sT2}")
    a(f"s_mov_b32 s{sPFS}, 512")
    a(f"s_add_u32 s{sPFL}, s{sT1}, 2048")
    a(f"s_mov_b32 s{sPFW}, 2048")
    a(f"s_branch L_{tag}_pfdone")
    a.label(f"L_{tag}_pfw")
    a("v_lshrrev_b32 v8, 5, v0")
    a("v_lshlrev_b32 v8, 6, v8")
    a("v_bfe_u32 v1, v0, 4, 1")
    a("v_add_u32 v8, v8, v1")
    a(f"v_mul_lo_u32 v8, v8, s{sWSTR}")
    a("v_and_b32 v1, 15, v0")
    a("v_lshl_add_u32 v8, v1, 7, v8")
    a(f"s_lshl_b32 s{sT2}, s{sPFW}, 6")
    a(f"s_add_u32 s{sT2}, s{sT2}, s{sidx}")
    a(f"s_lshl_b32 s{sT2}, s{sT2}, 1")
    a(f"s_mul_i32 s{sT2}, s{sT2}, s{sWSTR}")
    a(f"s_sub_u32 s{sT1}, s{sSEC}, 1")
    a(f"s_max_i32 s{sT1}, s{sT1}, 0")
    a(f"s_lshl_b32 s{sT1}, s{sT1}, 11")
    a(f"s_add_u32 s{sPFO}, s{sT2}, s{sT1}")
    a(f"s_lshl_b32 s{sPFS}, s{sWSTR}, 8")
    a(f"s_lshl_b32 s{sPFL}, s{sWSTR}, 10")
    a(f"s_mov_b32 s{sPFW}, s{sPFL}")
    a.label(f"L_{tag}_pfdone")


def gen_proj():
    g = G("proj")
    a = A()
    kernel_head(a, "proj_kernel")
    entry(a, "proj")
    a("s_waitcnt lgkmcnt(0)")
    ws_reloc(a)
    ticket_issue(a, "proj", 4)
    srd(a, SRD_WS, S_WS, WS_SIZE - (OPT["wsb"] << 20))
    def decode():
        proj_group(a, sG)
        a(f"s_lshr_b32 s{sT0}, s{sG}, 2")
        a(f"s_lshl_b32 s{sM0}, s{sT0}, 10")
        a(f"s_lshl_b32 s{sT0}, s{sMT}, 8")
        a(f"s_add_u32 s{sM0}, s{sM0}, s{sT0}")

    TKT = 2 * g.SLOT + g.XB
    a(f"s_cmp_lt_u32 s{sWAVE}, 4")
    a("s_cbranch_scc1 L_proj_compute")
    vX = list(range(16, 24))
    vW = list(range(24, 28))
    a("v_lshrrev_b32 v1, 3, v0")
    a("v_lshlrev_b32 v1, 11, v1")
    a("v_lshrrev_b32 v10, 4, v0")
    a("v_and_b32 v7, 7, v0")
    a("v_xor_b32 v11, v10, v7")
    a("v_xor_b32 v12, 4, v11")
    a("v_lshl_add_u32 v11, v11, 4, v1")
    a("v_lshl_add_u32 v12, v12, 4, v1")
    for i in range(8):
        a(f"v_add_u32 v{vX[i]}, {i * 16384 - (i % 4) * 1024}, v{11 + (((i & 1) ^ (i >> 1 & 1)) if OPT['m16'] else (i & 1))}")
    a("v_lshrrev_b32 v6, 1, v0")
    a("v_lshlrev_b32 v6, 6, v6")
    a("v_and_b32 v7, 1, v0")
    a("v_lshl_add_u32 v6, v7, 4, v6")
    a.label("L_proj_lstart")
    decode()
    if OPT["pf"]:
        a(f"s_lshr_b32 s{sT0}, s{sHW}, 2")
        a(f"s_and_b32 s{sT0}, s{sT0}, 0x18")
        a(f"s_and_b32 s{sT3}, s{sHW}, 7")
        a(f"s_or_b32 s{sT0}, s{sT0}, s{sT3}")
        a(f"s_and_b32 s{sT3}, s{sWAVE}, 3")
        proj_pf_setup(a, "projA", sG, sT0, sT3, (sOBASE, sOJ))
        a(f"s_cmp_ge_u32 s{sWAVE}, 6")
        a("s_cbranch_scc1 L_proj_pkv")
        a(f"buffer_load_dword v9, v8, {sr(SRD_PF)}, s{sOBASE} offen{OPT['pfb']}")
        a("s_branch L_proj_nokv")
        a.label("L_proj_pkv")
        a(f"s_cmp_lg_u32 s{sSEC}, 0")
        a("s_cbranch_scc1 L_proj_nokv")
        a(f"s_lshl_b32 s{sT0}, s{sT0}, 11")
        a("v_and_b32 v1, 15, v0")
        a("v_lshlrev_b32 v1, 7, v1")
        a(f"s_cmp_eq_u32 s{sWAVE}, 6")
        srd_sel(a, SRD_WK, 20, 22, 0x10000)
        a(f"buffer_load_dword v9, v1, {sr(SRD_WK)}, s{sT0} offen{OPT['pfb']}")
        a.label("L_proj_nokv")
    a(f"s_add_u32 s{sT0}, s{sWAVE}, s{sHW}" if OPT["lrot"] else f"s_mov_b32 s{sT0}, s{sWAVE}")
    a(f"s_and_b32 s{sT0}, s{sT0}, 3")
    a(f"s_lshl_b32 s{sT1}, s{sT0}, 6")
    a(f"s_add_u32 s{sT1}, s{sT1}, s{sM0}")
    a(f"s_lshl_b32 s{sXOFF}, s{sT1}, 11")
    a(f"s_lshl_b32 s{sK}, s{sG}, 1" if OPT["rot"] else f"s_mov_b32 s{sK}, 0")
    a(f"s_lshl_b32 s{sT1}, s{sK}, 7")
    a(f"s_add_u32 s{sXOFF}, s{sXOFF}, s{sT1}")
    a(f"s_lshl_b32 s{sSLOT}, s{sT0}, 13")
    a(f"s_lshl_b32 s{sT3}, s{sT0}, 12")
    a(f"s_add_u32 s{sT3}, s{sT3}, {g.XB}")

    def mid():
        ticket_end(a, "proj", 4, TKT)
        a(f"v_mul_lo_u32 v1, v10, s{sWSTR}")
        a("v_lshlrev_b32 v3, 2, v10")
        a("v_and_b32 v7, 15, v0")
        a("v_xor_b32 v3, v3, v7")
        a(f"v_lshl_add_u32 v{vW[0]}, v3, 4, v1")
        a(f"s_lshl_b32 s{sT1}, s{sWSTR}, 2")
        a(f"s_sub_u32 s{sT1}, s{sT1}, 1024")
        for i in range(1, 4):
            a(f"v_add_u32 v{vW[i]}, s{sT1}, v{vW[i - 1]}")
        if OPT["m16"]:
            for i in (2, 3):
                a(f"v_xor_b32 v{vW[i]}, 0x30, v{vW[i]}")
        a(f"s_sub_u32 s{sWOFF}, s{sSEC}, 1")
        a(f"s_max_i32 s{sWOFF}, s{sWOFF}, 0")
        a(f"s_lshl_b32 s{sWOFF}, s{sWOFF}, 11")
        a(f"s_mul_i32 s{sT1}, s{sT0}, s{sWSTR}")
        a(f"s_lshl_b32 s{sT1}, s{sT1}, 4")
        a(f"s_add_u32 s{sWOFF}, s{sWOFF}, s{sT1}")
        a(f"s_lshl_b32 s{sWSTG}, s{sWSTR}, 6")
        a(f"s_mul_i32 s{sT1}, s{sK}, s{sWSTG}")
        a(f"s_add_u32 s{sWOFF}, s{sWOFF}, s{sT1}")
        ticket_wait(a, "proj", TKT, "L_proj_lredo")
        stamp_mid(a, 2)
        a(f"s_lshl_b32 s{sT1}, s{sNT}, 8")
        a(f"s_add_u32 s{sWOFF}, s{sWOFF}, s{sT1}")
        a(f"s_cmp_ge_u32 s{sNT}, 4")
        srd_sel(a, SRD_WK, 22, 20, 0x10000)
        a(f"s_bfe_u32 s{sT1}, s{sNT}, 0x10001")
        a(f"s_lshl_b32 s{sT1}, s{sT1}, 5")
        a(f"s_lshl_b32 s{sEXO}, s{sT0}, 11")
        a(f"s_add_u32 s{sEXO}, s{sEXO}, s{sT1}")
        a(f"s_lshl_b32 s{sT1}, s{sK}, 12")
        a(f"s_add_u32 s{sEXO}, s{sEXO}, s{sT1}")
        a(f"s_mul_i32 s{sEXS}, s{sT0}, {4096 - 1024}")
        a(f"s_sub_u32 s{sEXS}, 16384, s{sEXS}")
        a(f"s_cmp_lt_u32 s{sT0}, 2")
        a(f"s_cselect_b32 s{sCOL0}, 1, 0")
        a(f"s_cmp_eq_u32 s{sSEC}, 0")
        a(f"s_cselect_b32 s{sCOL0}, s{sCOL0}, 0")

    def after_bar0():
        ticket_notes(a, "proj", 4)
        if OPT["pf"]:
            a(f"s_lshr_b32 s{sOI}, s2, 3")
            a(f"s_and_b32 s{sT0}, s{sWAVE}, 3")
            proj_pf_setup(a, "projB", sG, sOI, sT0)
            if OPT["p0"] != 2:
                pf_adv(a)

    g.mid, g.after_bar0 = mid, after_bar0
    gemm_loader(a, g, "proj", vX, vW)
    def legacy():
        a.label("L_proj_compute")
        a(f"s_lshr_b32 s{sT0}, s{sWAVE}, 1")
        a(f"s_and_b32 s{sT1}, s{sWAVE}, 1")
        a("v_and_b32 v1, 31, v0")
        a("v_lshlrev_b32 v1, 7, v1")
        a(f"s_lshl_b32 s{sT2}, s{sT0}, 14")
        a(f"v_add_u32 v1, s{sT2}, v1")
        a("v_bfe_u32 v2, v0, 1, 3")
        a("v_lshrrev_b32 v3, 5, v0")
        for t in range(4):
            a(f"v_add_u32 v14, {2 * t}, v3")
            a("v_xor_b32 v14, v14, v2")
            a(f"v_lshl_add_u32 v{g.vXA + t}, v14, 4, v1")
        a("v_bfe_u32 v2, v0, 2, 2")
        a("v_lshl_add_u32 v1, v3, 3, v2")
        a("v_lshlrev_b32 v1, 8, v1")
        a("v_bfe_u32 v14, v0, 4, 1")
        a("v_lshl_add_u32 v1, v14, 5, v1")
        a("v_and_b32 v14, 3, v0")
        a("v_lshl_add_u32 v1, v14, 3, v1")
        a(f"v_add_u32 v1, {g.XB}, v1")
        a(f"s_lshl_b32 s{sT2}, s{sT1}, 1")
        for j in range(2):
            a(f"s_add_u32 s{sT3}, s{sT2}, {j}")
            a(f"v_xor_b32 v14, s{sT3}, v2")
            a(f"v_lshl_add_u32 v{g.vWA + j}, v14, 6, v1")
        a(f"v_lshlrev_b32 v{g.vST}, 4, v0")
        a("v_and_b32 v1, 15, v0")
        a("v_lshlrev_b32 v1, 7, v1")
        a(f"s_lshl_b32 s{sT2}, s{sWAVE}, 12")
        a(f"v_add_u32 v1, s{sT2}, v1")
        a("v_bfe_u32 v2, v0, 1, 3")
        a("v_lshrrev_b32 v3, 4, v0")
        for e in range(2):
            a(f"v_add_u32 v14, {4 * e}, v3")
            a("v_xor_b32 v14, v14, v2")
            a(f"v_lshl_add_u32 v{g.vEXX + e}, v14, 4, v1")
        a("v_bfe_u32 v2, v0, 2, 2")
        a("v_lshl_add_u32 v1, v3, 3, v2")
        a("v_lshlrev_b32 v1, 5, v1")
        a("v_and_b32 v14, 3, v0")
        a("v_lshl_add_u32 v1, v14, 3, v1")
        a(f"v_add_u32 v{g.vEXW}, {g.XB + 16384}, v1")
        for r in range(g.nacc):
            a(f"v_mov_b32 v{g.ACC + r}, 0")
        for r in range(8):
            a(f"v_mov_b32 v{g.EXACC + r}, 0")

        a.label("L_proj_cstart")
        ticket_wait(a, "proj", TKT, "L_proj_credo")
        stamp_mid(a, 2)
        decode()

        a(f"s_lshr_b32 s{sT0}, s{sWAVE}, 1")
        a(f"s_and_b32 s{sT1}, s{sWAVE}, 1")
        a(f"s_and_b32 s{sT2}, s{sNT}, 1")
        a(f"s_lshl_b32 s{sT2}, s{sT2}, 14")
        for e in range(2):
            a(f"v_add_u32 v{g.vEXX + e}, s{sT2}, v{g.vEXX + e}")
        a(f"s_lshl_b32 s{sT2}, s{sNT}, 2")
        a(f"s_lshl_b32 s{sT3}, s{sT1}, 1")
        a(f"s_add_u32 s{sT2}, s{sT2}, s{sT3}")
        a(f"s_lshr_b32 s{sT3}, s{sM0}, 5")
        a(f"s_lshl_b32 s{sOBASE}, s{sT0}, 2")
        a(f"s_add_u32 s{sT3}, s{sT3}, s{sOBASE}")
        a(f"s_cmp_le_u32 s{sSEC}, 1")
        csel(a, sOJ, 0x20000, 0x40000)
        csel(a, sOI, 2048, 4096)
        a(f"s_cselect_b32 s{sSCALE}, {f32bits(QSCALE):#x}, 1.0")
        a(f"s_mov_b32 s{sSCALE+1}, s{sSCALE}")
        a(f"s_mul_i32 s{sOBASE}, s{sT2}, s{sOJ}")
        a(f"s_mul_i32 s{sT3}, s{sT3}, s{sOI}")
        a(f"s_add_u32 s{sOBASE}, s{sOBASE}, s{sT3}")
        a(f"s_mov_b32 s{sT2}, {WS_QA:#x}")
        for sec, base in ((1, WS_QB), (2, WS_KVB), (3, WS_KVB + 2048)):
            a(f"s_cmp_eq_u32 s{sSEC}, {sec}")
            a(f"s_cmov_b32 s{sT2}, {base:#x}")
        a(f"s_add_u32 s{sOBASE}, s{sOBASE}, s{sT2}")
        a(f"s_cmp_lg_u32 s{sSEC}, 2")
        a("s_cbranch_scc1 L_proj_nok")
        a("v_and_b32 v1, 0x33, v0")
        a("v_bfe_u32 v2, v0, 2, 1")
        a("v_lshl_or_b32 v1, v2, 3, v1")
        a("v_bfe_u32 v2, v0, 3, 1")
        a("v_lshl_or_b32 v1, v2, 2, v1")
        a(f"v_lshlrev_b32 v{g.vST}, 4, v1")
        a.label("L_proj_nok")
        a(f"s_cmp_eq_u32 s{sSEC}, 3")
        a("s_cbranch_scc1 L_proj_V")
        a(f"s_cmp_eq_u32 s{sSEC}, 0")
        a("s_cbranch_scc0 L_proj_QK")
        a(f"s_cmp_ge_u32 s{sNT}, 4")
        a("s_cbranch_scc1 L_proj_AV")

        st = OPT["st1"]

        def epi(scale):
            a("s_nop 7")
            a("s_nop 7")
            for i in range(g.NI):
                for j in range(g.NJ):
                    c = g.acc(i, j)
                    t = g.F[0] + ((i * g.NJ + j) & 1) * 8
                    if scale:
                        for r in range(0, 16, 2):
                            a(f"v_pk_mul_f32 {vr(c + r, 2)}, {vr(c + r, 2)}, {sr(sSCALE, 2)}")
                    for r in range(8):
                        a(f"v_cvt_pk_bf16_f32 v{t + r}, v{c + 2 * r}, v{c + 2 * r + 1}")
                    a(f"s_mul_i32 s{sT0}, s{sOJ}, {j}")
                    a(f"s_mul_i32 s{sT1}, s{sOI}, {i}")
                    a(f"s_add_u32 s{sT0}, s{sT0}, s{sT1}")
                    a(f"s_add_u32 s{sT0}, s{sT0}, s{sOBASE}")
                    a(f"buffer_store_dwordx4 {vr(t, 4)}, v{g.vST}, {sr(SRD_WS)}, s{sT0} offen{st}")
                    a(f"buffer_store_dwordx4 {vr(t + 4, 4)}, v{g.vST}, {sr(SRD_WS)}, s{sT0} offen offset:1024{st}")

        def epi_extra(part):
            if part == "K":
                a("v_and_b32 v1, 3, v0")
                a("v_bfe_u32 v2, v0, 2, 1")
                a("v_lshl_or_b32 v1, v2, 3, v1")
                a("v_bfe_u32 v2, v0, 3, 1")
                a("v_lshl_or_b32 v1, v2, 2, v1")
            else:
                a("v_and_b32 v1, 15, v0")
            a("v_lshlrev_b32 v1, 4, v1")
            a("v_bfe_u32 v2, v0, 4, 1")
            a("v_lshl_add_u32 v1, v2, 9, v1")
            a("v_lshrrev_b32 v2, 5, v0")
            a("v_lshl_add_u32 v1, v2, 3, v1")
            a(f"s_lshr_b32 s{sT0}, s{sM0}, 5")
            a(f"s_add_u32 s{sT0}, s{sT0}, s{sWAVE}")
            a(f"s_and_b32 s{sT1}, s{sNT}, 1")
            a(f"s_lshl_b32 s{sT1}, s{sT1}, 2")
            a(f"s_add_u32 s{sT0}, s{sT0}, s{sT1}")
            a(f"s_lshl_b32 s{sT0}, s{sT0}, 12")
            a(f"s_add_u32 s{sT0}, s{sT0}, {WS_KVA + (2048 if part == 'V' else 0):#x}")
            a(f"s_bfe_u32 s{sT1}, s{sNT}, 0x10001")
            a(f"s_lshl_b32 s{sT1}, s{sT1}, {10 if part == 'K' else 8}")
            a(f"s_add_u32 s{sT0}, s{sT0}, s{sT1}")
            for th in range(2):
                c = g.EXACC + 4 * th
                if part == "K":
                    for r in range(0, 4, 2):
                        a(f"v_pk_mul_f32 {vr(c + r, 2)}, {vr(c + r, 2)}, {sr(sSCALE, 2)}")
                a(f"v_cvt_pk_bf16_f32 v{g.EXF + 2 * th}, v{c}, v{c + 1}")
                a(f"v_cvt_pk_bf16_f32 v{g.EXF + 2 * th + 1}, v{c + 2}, v{c + 3}")
                a(f"buffer_store_dwordx2 {vr(g.EXF + 2 * th, 2)}, v1, {sr(SRD_WS)}, s{sT0} offen offset:{th * (256 if part == 'K' else 1024)}{st}")

        for lbl, tag, swap, ex, scale in ((None, "proj_AK", False, "K", False), ("L_proj_AV", "proj_AV", False, "V", False),
                                          ("L_proj_QK", "proj_QK", False, None, True), ("L_proj_V", "proj_V", True, None, False)):
            if lbl:
                a.label(lbl)
            gemm_compute(a, g, tag, swap, ex)
            if ex:
                a("s_nop 7")
                epi_extra(ex)
            epi(scale)
            stamp_end(a, 0)
            a("s_endpgm")


    def new16():
        a.label("L_proj_compute")
        XA, WA, EXX, vEXW, vST = 4, 8, 100, 12, 13
        XF, WF = [16, 32], [48, 64]
        g.EXF, g.EXACC = 80, 92
        st = OPT["st1"]
        acc = lambda i, jt: g.ACC + (i * 4 + jt) * 4
        a("v_bfe_u32 v2, v0, 2, 2")
        a("v_lshrrev_b32 v3, 4, v0")
        a("v_lshl_add_u32 v1, v3, 3, v2")
        a("v_lshlrev_b32 v1, 5, v1")
        a("v_and_b32 v14, 3, v0")
        a("v_lshl_add_u32 v1, v14, 3, v1")
        a(f"v_add_u32 v{vEXW}, {g.XB + 16384}, v1")
        for r in range(g.nacc):
            a(f"v_mov_b32 v{g.ACC + r}, 0")
        for r in range(8):
            a(f"v_mov_b32 v{g.EXACC + r}, 0")
        a.label("L_proj_cstart")
        ticket_wait(a, "proj", TKT, "L_proj_credo")
        stamp_mid(a, 2)
        decode()
        a(f"s_lshr_b32 s{sT0}, s{sWAVE}, 1")
        a(f"s_and_b32 s{sT1}, s{sWAVE}, 1")
        a(f"s_lshl_b32 s{sT2}, s{sNT}, 2")
        a(f"s_lshl_b32 s{sT3}, s{sT1}, 1")
        a(f"s_add_u32 s{sT2}, s{sT2}, s{sT3}")
        a(f"s_lshr_b32 s{sT3}, s{sM0}, 5")
        a(f"s_lshl_b32 s{sOBASE}, s{sT0}, 2")
        a(f"s_add_u32 s{sT3}, s{sT3}, s{sOBASE}")
        a(f"s_cmp_le_u32 s{sSEC}, 1")
        csel(a, sOJ, 0x20000, 0x40000)
        csel(a, sOI, 2048, 4096)
        a(f"s_cselect_b32 s{sSCALE}, {f32bits(QSCALE):#x}, 1.0")
        a(f"s_mov_b32 s{sSCALE+1}, s{sSCALE}")
        a(f"s_mul_i32 s{sOBASE}, s{sT2}, s{sOJ}")
        a(f"s_mul_i32 s{sT3}, s{sT3}, s{sOI}")
        a(f"s_add_u32 s{sOBASE}, s{sOBASE}, s{sT3}")
        a(f"s_mov_b32 s{sT2}, {WS_QA:#x}")
        for sec, base in ((1, WS_QB), (2, WS_KVB), (3, WS_KVB + 2048)):
            a(f"s_cmp_eq_u32 s{sSEC}, {sec}")
            a(f"s_cmov_b32 s{sT2}, {base:#x}")
        a(f"s_add_u32 s{sOBASE}, s{sOBASE}, s{sT2}")

        def addrs(vt, kperm):
            if vt:
                a("v_and_b32 v1, 7, v0")
                a("v_and_b32 v2, 8, v0")
                a("v_lshl_add_u32 v1, v2, 1, v1")
            else:
                a("v_and_b32 v1, 15, v0")
            a("v_lshlrev_b32 v1, 7, v1")
            a(f"s_lshl_b32 s{sT2}, s{sT0}, 14")
            a(f"v_add_u32 v1, s{sT2}, v1")
            a("v_bfe_u32 v2, v0, 1, 3")
            a("v_lshrrev_b32 v3, 4, v0")
            a("v_xor_b32 v2, v2, v3")
            a("v_lshl_add_u32 v1, v2, 4, v1")
            for e in range(2):
                for par in range(2):
                    a(f"v_xor_b32 v14, {64 * (e ^ par)}, v1")
                    a(f"v_add_u32 v{XA + 2 * e + par}, {par * (1024 if vt else 2048)}, v14")
            a("v_bfe_u32 v2, v0, 2, 2")
            a("v_lshl_add_u32 v1, v3, 3, v2")
            a("v_lshlrev_b32 v1, 8, v1")
            a("v_and_b32 v14, 1, v0")
            a("v_lshl_add_u32 v1, v14, 3, v1")
            a(f"v_add_u32 v1, {g.XB}, v1")
            a("v_bfe_u32 v14, v0, 1, 1")
            a(f"v_lshlrev_b32 v14, {0 if vt else 1}, v14")
            a("v_and_b32 v15, 1, v3")
            a("v_mul_u32_u24 v15, 3, v15")
            a("v_xor_b32 v14, v14, v15")
            a("v_lshl_add_u32 v1, v14, 4, v1")
            a(f"s_lshl_b32 s{sT2}, s{sT1}, 1")
            for j2 in range(2):
                a(f"s_add_u32 s{sT3}, s{sT2}, {j2}")
                a(f"v_xor_b32 v14, s{sT3}, v2")
                a(f"v_lshl_add_u32 v{WA + 2 * j2}, v14, 6, v1")
                a(f"v_xor_b32 v{WA + 2 * j2 + 1}, {32 if vt else 16}, v{WA + 2 * j2}")
            a("v_and_b32 v1, 15, v0")
            if kperm:
                a(f"s_cmp_lg_u32 s{sSEC}, 2")
                a("s_cbranch_scc1 L_proj_nok")
                a("v_and_b32 v1, 3, v0")
                a("v_bfe_u32 v2, v0, 2, 1")
                a("v_lshl_or_b32 v1, v2, 3, v1")
                a("v_bfe_u32 v2, v0, 3, 1")
                a("v_lshl_or_b32 v1, v2, 2, v1")
                a.label("L_proj_nok")
            a("v_lshlrev_b32 v1, 4, v1")
            a(f"v_lshl_add_u32 v{vST}, v3, 9, v1")

        def xreads(b):
            e, half = b >> 1, b & 1
            return [f"ds_read_b128 {vr(XF[b & 1] + 4 * k, 4)}, v{XA + 2 * e + (k & 1)} offset:{4096 * (2 * half + (k >> 1))}" for k in range(4)]

        def wreads(e, jts):
            return [f"ds_read_b64_tr_b16 {vr(WF[e] + 4 * jt + 2 * u, 2)}, v{WA + jt} offset:{8192 * e + 1024 * u}" for jt in jts for u in range(2)]

        def exreads(e):
            return [f"ds_read_b64_tr_b16 {vr(g.EXF + 2 * u, 2)}, v{vEXW} offset:{1024 * e + 128 * u}" for u in range(2)] + \
                   [f"ds_read_b128 {vr(g.EXF + 4 + 4 * th, 4)}, v{EXX + 2 * e + th}" for th in range(2)]

        def compute(tag, vt, ex, scale):
            adv = lambda r: f"v_add_u32 v{r}, s{sDELTA}, v{r}"

            def stage(last):
                for b in range(4):
                    e, half = b >> 1, b & 1
                    a("s_waitcnt lgkmcnt(0)")
                    reads, post = [], []
                    if b < 3:
                        reads = xreads(b + 1)
                        if b < 2:
                            reads += wreads(1, (2 * b, 2 * b + 1))
                        if ex and b == 1:
                            reads += exreads(1)
                        if not last:
                            if b == 0:
                                post = [adv(XA), adv(XA + 1)]
                            if b == 2:
                                post = [adv(XA + 2), adv(XA + 3)] + [adv(WA + k) for k in range(4)]
                                if ex:
                                    post += [adv(EXX + k) for k in range(4)] + [adv(vEXW)]
                    elif not last:
                        a("s_barrier")
                        w0 = wreads(0, range(4))
                        x0 = xreads(0)
                        reads = w0[:2] + x0[:1] + w0[2:] + x0[1:]
                        if ex:
                            reads += exreads(0)
                    mf = []
                    for k in range(4):
                        for jt in range(4):
                            x, w, c = vr(XF[b & 1] + 4 * k, 4), vr(WF[e] + 4 * jt, 4), vr(acc(4 * half + k, jt), 4)
                            mf.append(f"{MF16} {c}, {x}, {w}, {c}" if vt else f"{MF16} {c}, {w}, {x}, {c}")
                    if ex and half == 0:
                        for th in range(2):
                            x, w, c = vr(g.EXF + 4 + 4 * th, 4), vr(g.EXF, 4), vr(g.EXACC + 4 * th, 4)
                            mf.append(f"{MF16} {c}, {x}, {w}, {c}" if ex == "V" else f"{MF16} {c}, {w}, {x}, {c}")
                    per_gap = 1
                    if last and b == 3 and OPT["pepi"]:
                        post = ["s_nop 3"] + epi_list(vt, scale, (0, 1))
                        per_gap = (len(post) + 15) // 16
                    for m in mf:
                        a(m)
                        if reads:
                            a(reads.pop(0))
                        else:
                            for _ in range(per_gap):
                                if post:
                                    a(post.pop(0))
                    a.many(reads + post)

            stamp_mid(a, 4)
            a("s_barrier")
            stamp_mid(a, 0)
            a.many(wreads(0, range(4)) + xreads(0))
            if ex:
                a.many(exreads(0))
            a(f"s_mov_b32 s{sCNT}, 0")
            a(f"s_mov_b32 s{sRSLOT}, 0")
            a.raw(".p2align 3")
            a.label(f"L_{tag}_loop")
            a(f"s_add_u32 s{sRSLOT}, s{sRSLOT}, 1")
            a(f"s_cmp_eq_u32 s{sRSLOT}, {g.NSLOT}")
            csel(a, sDELTA, f"{-(g.NSLOT - 1) * g.SLOT & 0xffffffff:#x}", g.SLOT)
            a(f"s_cselect_b32 s{sRSLOT}, 0, s{sRSLOT}")
            stage(False)
            a(f"s_add_u32 s{sCNT}, s{sCNT}, 1")
            a(f"s_cmp_lt_u32 s{sCNT}, {g.NST - 1}")
            a(f"s_cbranch_scc1 L_{tag}_loop")
            stage(True)
            stamp_mid(a, 1)

        def epi_list(vt, scale, blks):
            out, n = [], 0
            st = cur_st[0]
            for blk in blks:
                for j2 in range(2):
                    out.append(f"s_mul_i32 s{sT0}, s{sOJ}, {j2}")
                    out.append(f"s_mul_i32 s{sT1}, s{sOI}, {blk}")
                    out.append(f"s_add_u32 s{sT0}, s{sT0}, s{sT1}")
                    out.append(f"s_add_u32 s{sT0}, s{sT0}, s{sOBASE}")
                    for lo in range(2):
                        ca, cb = (acc(2 * blk, 2 * j2 + lo), acc(2 * blk + 1, 2 * j2 + lo)) if vt else \
                                 (acc(2 * blk + lo, 2 * j2), acc(2 * blk + lo, 2 * j2 + 1))
                        t = 16 + (n & 3) * 4
                        n += 1
                        for k, c in enumerate((ca, cb)):
                            if scale:
                                for r in (0, 2):
                                    out.append(f"v_pk_mul_f32 {vr(c + r, 2)}, {vr(c + r, 2)}, {sr(sSCALE, 2)}")
                            for r in range(2):
                                out.append(f"v_cvt_pk_bf16_f32 v{t + 2 * k + r}, v{c + 2 * r}, v{c + 2 * r + 1}")
                        out.append(f"buffer_store_dwordx4 {vr(t, 4)}, v{vST}, {sr(SRD_WS)}, s{sT0} offen offset:{256 * lo}{st}")
            return out

        cur_st = [st]

        def epi(vt, scale):
            a("s_nop 7")
            a.many(epi_list(vt, scale, (2, 3) if OPT["pepi"] else range(4)))

        def epi_extra(part):
            if part == "K":
                a("v_and_b32 v1, 3, v0")
                a("v_bfe_u32 v2, v0, 2, 1")
                a("v_lshl_or_b32 v1, v2, 3, v1")
                a("v_bfe_u32 v2, v0, 3, 1")
                a("v_lshl_or_b32 v1, v2, 2, v1")
            else:
                a("v_and_b32 v1, 15, v0")
            a("v_lshlrev_b32 v1, 4, v1")
            a("v_bfe_u32 v2, v0, 4, 1")
            a("v_lshl_add_u32 v1, v2, 9, v1")
            a("v_lshrrev_b32 v2, 5, v0")
            a("v_lshl_add_u32 v1, v2, 3, v1")
            a(f"s_lshr_b32 s{sT0}, s{sM0}, 5")
            a(f"s_add_u32 s{sT0}, s{sT0}, s{sWAVE}")
            a(f"s_and_b32 s{sT1}, s{sNT}, 1")
            a(f"s_lshl_b32 s{sT1}, s{sT1}, 2")
            a(f"s_add_u32 s{sT0}, s{sT0}, s{sT1}")
            a(f"s_lshl_b32 s{sT0}, s{sT0}, 12")
            a(f"s_add_u32 s{sT0}, s{sT0}, {WS_KVA + (2048 if part == 'V' else 0):#x}")
            a(f"s_bfe_u32 s{sT1}, s{sNT}, 0x10001")
            a(f"s_lshl_b32 s{sT1}, s{sT1}, {10 if part == 'K' else 8}")
            a(f"s_add_u32 s{sT0}, s{sT0}, s{sT1}")
            for th in range(2):
                c = g.EXACC + 4 * th
                if part == "K":
                    for r in range(0, 4, 2):
                        a(f"v_pk_mul_f32 {vr(c + r, 2)}, {vr(c + r, 2)}, {sr(sSCALE, 2)}")
                a(f"v_cvt_pk_bf16_f32 v{g.EXF + 2 * th}, v{c}, v{c + 1}")
                a(f"v_cvt_pk_bf16_f32 v{g.EXF + 2 * th + 1}, v{c + 2}, v{c + 3}")
                a(f"buffer_store_dwordx2 {vr(g.EXF + 2 * th, 2)}, v1, {sr(SRD_WS)}, s{sT0} offen offset:{th * (256 if part == 'K' else 1024)}{st}")


        a(f"s_cmp_eq_u32 s{sSEC}, 3")
        a("s_cbranch_scc1 L_proj_V")
        addrs(False, True)
        a(f"s_cmp_eq_u32 s{sSEC}, 2")
        a("s_cbranch_scc1 L_proj_K")
        a(f"s_cmp_eq_u32 s{sSEC}, 0")
        a("s_cbranch_scc0 L_proj_QK")
        a(f"s_and_b32 s{sT2}, s{sNT}, 1")
        a(f"s_sub_u32 s{sT2}, s{sT2}, s{sT0}")
        a(f"s_lshl_b32 s{sT2}, s{sT2}, 2")
        a(f"s_add_u32 s{sT2}, s{sT2}, s{sWAVE}")
        a(f"s_lshl_b32 s{sT2}, s{sT2}, 12")
        for k in range(4):
            a(f"v_add_u32 v{EXX + k}, s{sT2}, v{XA + k}")
        a(f"s_cmp_ge_u32 s{sNT}, 4")
        a("s_cbranch_scc1 L_proj_AV")
        for lbl, tag, vt, ex, scale in ((None, "proj_AK", False, "K", False), ("L_proj_AV", "proj_AV", False, "V", False),
                                        ("L_proj_QK", "proj_QK", False, None, True), ("L_proj_K", "proj_K", False, None, False),
                                        ("L_proj_V", "proj_V", True, None, False)):
            if lbl:
                a.label(lbl)
            cur_st[0] = OPT["stkv"] if tag in ("proj_K", "proj_V") else st
            if vt:
                addrs(True, False)
            compute(tag, vt, ex, scale)
            if ex:
                a("s_nop 7")
                epi_extra(ex)
            epi(vt, scale)
            stamp_end(a, 0)
            a("s_endpgm")


    (new16 if OPT["m16"] else legacy)()
    ticket_redo(a, "proj", "L_proj_credo", "L_proj_cstart")
    ticket_redo(a, "proj", "L_proj_lredo", "L_proj_lstart")
    a.label("L_proj_end")
    a("s_endpgm")
    return a.text(), kernel_desc("proj_kernel", g.nvgpr), g.lds, 512


def gen_outp():
    g = G("outp")
    a = A()
    kernel_head(a, "outp_kernel")
    entry(a, "outp")
    hint_load(a, "outp")
    stamp_mid(a, 2)
    hint_claim(a, "outp", 4)
    a(f"s_andn2_b32 s{sSEC}, 1, s2")
    a(f"s_bfe_u32 s{sT0}, s2, 0x20001")
    a(f"s_lshl_b32 s{sT0}, s{sT0}, 2")
    a(f"s_bfe_u32 s{sT1}, s2, 0x20003")
    a(f"s_add_u32 s{sM0}, s{sT0}, s{sT1}")
    a(f"s_lshr_b32 s{sNT}, s2, 5")
    a(f"s_cmp_lt_u32 s{sWAVE}, 4")
    a("s_cbranch_scc1 L_outp_compute")
    vX = list(range(20, 20 + g.XP))
    vW = list(range(24, 24 + g.WP))
    srd(a, SRD_X, S_WS, WS_SIZE - (OPT["wsb"] << 20))
    a(f"s_cmp_eq_u32 s{sSEC}, 0")
    srd_sel(a, SRD_W, 24, 30, 0x200000)
    csel(a, sXOFF, WS_OA, WS_OB)
    a(f"s_add_u32 s{sT0}, s{sWAVE}, s{sHW}" if OPT["lrot"] else f"s_mov_b32 s{sT0}, s{sWAVE}")
    a(f"s_and_b32 s{sT0}, s{sT0}, {g.NL - 1}")
    a("v_lshlrev_b32 v4, 4, v0")
    a("v_lshrrev_b32 v2, 4, v0")
    a("v_lshlrev_b32 v1, 11, v2")
    a("v_lshlrev_b32 v3, 2, v2")
    a("v_and_b32 v7, 15, v0")
    a("v_xor_b32 v3, v3, v7")
    a(f"v_lshl_add_u32 v{vW[0]}, v3, 4, v1")
    for i in range(1, g.WP):
        a(f"v_add_u32 v{vW[i]}, {i * (8192 - 1024)}, v{vW[0]}")
        if OPT["m16b"] and i & 1:
            a(f"v_xor_b32 v{vW[i]}, 0x30, v{vW[i]}")
    a(f"s_lshl_b32 s{sT1}, s{sM0}, 18")
    a(f"s_add_u32 s{sXOFF}, s{sXOFF}, s{sT1}")
    a(f"s_mul_i32 s{sSLOT}, s{sT0}, {g.XP * 1024}")
    a(f"s_add_u32 s{sXOFF}, s{sXOFF}, s{sSLOT}")
    a(f"s_mul_i32 s{sWOFF}, s{sT0}, {g.WP * 8192}")
    a(f"s_lshl_b32 s{sT1}, s{sNT}, 8")
    a(f"s_add_u32 s{sWOFF}, s{sWOFF}, s{sT1}")
    a(f"s_mov_b32 s{sWSTG}, {64 * 2048}")
    a(f"s_mul_i32 s{sT3}, s{sT0}, {g.WP * 1024}")
    a(f"s_add_u32 s{sT3}, s{sT3}, {g.XB}")
    for i in range(g.XP):
        a(f"v_mov_b32 v{vX[i]}, v4")
    a(f"s_mov_b32 s{sEXO}, 16384")
    if OPT["swap3"]:
        a(f"s_bitcmp1_b32 s{sHW}, 2")
        a("s_cbranch_scc0 L_outp_noswap")
        for i in range(g.XP):
            a(f"v_swap_b32 v{vX[i]}, v{vW[i]}")
        for x, y in [(SRD_X + i, SRD_W + i) for i in range(3)] + [(sXOFF, sWOFF), (sEXO, sWSTG), (sSLOT, sT3)]:
            a(f"s_mov_b32 s{sT1}, s{x}")
            a(f"s_mov_b32 s{x}, s{y}")
            a(f"s_mov_b32 s{y}, s{sT1}")
        a.label("L_outp_noswap")
    gemm_loader(a, g, "outp", vX, vW)
    def legacy():
        a.label("L_outp_compute")
        srd(a, SRD_OUT, S_OUT, 0x800000)
        a(f"s_lshr_b32 s{sT0}, s{sWAVE}, 1")
        a(f"s_and_b32 s{sT1}, s{sWAVE}, 1")
        a(f"s_lshl_b32 s{sT2}, s{sT0}, 13")
        a("v_lshlrev_b32 v1, 4, v0")
        a(f"v_add_u32 v{g.vXA}, s{sT2}, v1")
        a("v_lshrrev_b32 v3, 5, v0")
        a("v_bfe_u32 v2, v0, 2, 2")
        a("v_lshl_add_u32 v1, v3, 2, v2")
        a("v_lshlrev_b32 v1, 8, v1")
        a("v_and_b32 v14, 1, v0")
        a("v_lshl_add_u32 v1, v14, 5, v1")
        a("v_bfe_u32 v14, v0, 4, 1")
        a("v_lshl_add_u32 v1, v14, 4, v1")
        a("v_bfe_u32 v14, v0, 1, 1")
        a("v_lshl_add_u32 v1, v14, 3, v1")
        a(f"v_add_u32 v1, {g.XB}, v1")
        a(f"s_lshl_b32 s{sT2}, s{sT1}, 1")
        for j in range(2):
            a(f"s_add_u32 s{sT3}, s{sT2}, {j}")
            a(f"v_xor_b32 v14, s{sT3}, v2")
            a(f"v_lshl_add_u32 v{g.vWA + j}, v14, 6, v1")
        a(f"s_lshl_b32 s{sT2}, s{sM0}, 1")
        a(f"s_add_u32 s{sT2}, s{sT2}, s{sT0}")
        a(f"s_lshl_b32 s{sOBASE}, s{sT2}, 18")
        a(f"s_lshl_b32 s{sT2}, s{sSEC}, 11")
        a(f"s_add_u32 s{sOBASE}, s{sOBASE}, s{sT2}")
        a(f"s_lshl_b32 s{sT2}, s{sNT}, 8")
        a(f"s_add_u32 s{sOBASE}, s{sOBASE}, s{sT2}")
        a(f"s_lshl_b32 s{sT2}, s{sT1}, 7")
        a(f"s_add_u32 s{sOBASE}, s{sOBASE}, s{sT2}")
        vWR, vRD = 10, 11
        if OPT["epi3"]:
            a("v_and_b32 v1, 31, v0")
            a("v_lshlrev_b32 v2, 7, v1")
            a(f"s_lshl_b32 s{sT2}, s{sWAVE}, 13")
            a(f"v_add_u32 v2, s{sT2}, v2")
            a("v_and_b32 v1, 7, v0")
            a("v_lshlrev_b32 v14, 1, v3")
            a("v_xor_b32 v14, v14, v1")
            a(f"v_lshl_add_u32 v{vWR}, v14, 4, v2")
            a("v_lshrrev_b32 v2, 3, v0")
            a("v_xor_b32 v14, v2, v1")
            a("v_lshlrev_b32 v14, 4, v14")
            a("v_lshl_add_u32 v14, v2, 7, v14")
            a(f"v_add_u32 v{vRD}, s{sT2}, v14")
            a("v_lshlrev_b32 v2, 12, v2")
            a(f"v_lshl_add_u32 v{g.vST}, v1, 4, v2")
        else:
            a("v_and_b32 v1, 31, v0")
            a("v_lshlrev_b32 v1, 12, v1")
            a(f"v_lshl_add_u32 v{g.vST}, v3, 5, v1")
        for r in range(g.nacc):
            a(f"v_mov_b32 v{g.ACC + r}, 0")
        gemm_compute(a, g, "outp", False, None, check="outp")
        a("s_nop 7")
        a("s_nop 7")
        if OPT["epi3"]:
            for j in range(2):
                for e in range(2):
                    a(f"v_xor_b32 v{4 + 2 * j + e}, {(4 * j + e) * 16}, v{vWR}")
            for i in range(g.NI):
                for j in range(g.NJ):
                    c = g.acc(i, j)
                    t = g.F[0] + (i * g.NJ + j) * 8
                    for r in range(8):
                        a(f"v_cvt_pk_bf16_f32 v{t + r}, v{c + 2 * r}, v{c + 2 * r + 1}")
                    for e in range(2):
                        a(f"ds_write_b128 v{4 + 2 * j + e}, {vr(t + 4 * e, 4)} offset:{4096 * i}")
            a("s_waitcnt lgkmcnt(0)")
            for k in range(8):
                a(f"ds_read_b128 {vr(g.ACC + 4 * k, 4)}, v{vRD} offset:{1024 * k}")
            for k in range(8):
                a(f"s_add_u32 s{sT0}, s{sOBASE}, {k * 8 * 4096}")
                a(f"s_waitcnt lgkmcnt({7 - k})")
                a(f"buffer_store_dwordx4 {vr(g.ACC + 4 * k, 4)}, v{g.vST}, {sr(SRD_OUT)}, s{sT0} offen{OPT['st3']}")
        else:
            for i in range(g.NI):
                for j in range(g.NJ):
                    c = g.acc(i, j)
                    t = g.F[0] + ((i * g.NJ + j) & 1) * 8
                    for r in range(8):
                        a(f"v_cvt_pk_bf16_f32 v{t + r}, v{c + 2 * r}, v{c + 2 * r + 1}")
                    a(f"s_add_u32 s{sT0}, s{sOBASE}, {i * 32 * 4096}")
                    a(f"buffer_store_dwordx4 {vr(t, 4)}, v{g.vST}, {sr(SRD_OUT)}, s{sT0} offen offset:{64 * j}")
                    a(f"buffer_store_dwordx4 {vr(t + 4, 4)}, v{g.vST}, {sr(SRD_OUT)}, s{sT0} offen offset:{64 * j + 16}")
        stamp_end(a, 2)
        a("s_endpgm")

    def new16():
        a.label("L_outp_compute")
        assert g.NL == 4 and g.KS == 2
        XA, WA, vWR, vRD, vST = 4, 8, 5, 12, 13
        F = [16, 48]
        acc = lambda i, jt: g.ACC + (i * 4 + jt) * 4
        srd(a, SRD_OUT, S_OUT, 0x800000)
        a(f"s_lshr_b32 s{sT0}, s{sWAVE}, 1")
        a(f"s_and_b32 s{sT1}, s{sWAVE}, 1")
        a("v_lshrrev_b32 v3, 4, v0")
        a("v_and_b32 v1, 15, v0")
        a("v_lshlrev_b32 v1, 4, v1")
        a("v_lshl_add_u32 v1, v3, 9, v1")
        a(f"s_lshl_b32 s{sT2}, s{sT0}, 13")
        a(f"v_add_u32 v{XA}, s{sT2}, v1")
        a("v_bfe_u32 v2, v0, 2, 2")
        a("v_lshrrev_b32 v14, 5, v0")
        a("v_lshl_add_u32 v1, v14, 4, v2")
        a("v_and_b32 v15, 1, v3")
        a("v_lshl_add_u32 v1, v15, 2, v1")
        a("v_lshlrev_b32 v1, 8, v1")
        a("v_and_b32 v14, 1, v0")
        a("v_lshl_add_u32 v1, v14, 3, v1")
        a(f"v_add_u32 v1, {g.XB}, v1")
        a("v_and_b32 v14, 2, v0")
        a("v_mul_u32_u24 v15, 3, v15")
        a("v_xor_b32 v14, v14, v15")
        a("v_lshl_add_u32 v1, v14, 4, v1")
        a(f"s_lshl_b32 s{sT2}, s{sT1}, 1")
        for j2 in range(2):
            a(f"s_add_u32 s{sT3}, s{sT2}, {j2}")
            a(f"v_xor_b32 v14, s{sT3}, v2")
            a(f"v_lshl_add_u32 v{WA + 2 * j2}, v14, 6, v1")
            a(f"v_xor_b32 v{WA + 2 * j2 + 1}, 16, v{WA + 2 * j2}")
        a(f"s_lshl_b32 s{sT2}, s{sM0}, 1")
        a(f"s_add_u32 s{sT2}, s{sT2}, s{sT0}")
        a(f"s_lshl_b32 s{sOBASE}, s{sT2}, 18")
        a(f"s_lshl_b32 s{sT2}, s{sSEC}, 11")
        a(f"s_add_u32 s{sOBASE}, s{sOBASE}, s{sT2}")
        a(f"s_lshl_b32 s{sT2}, s{sNT}, 8")
        a(f"s_add_u32 s{sOBASE}, s{sOBASE}, s{sT2}")
        a(f"s_lshl_b32 s{sT2}, s{sT1}, 7")
        a(f"s_add_u32 s{sOBASE}, s{sOBASE}, s{sT2}")
        a(f"s_mul_i32 s{sT2}, s{sWAVE}, 9216")
        a("v_and_b32 v1, 15, v0")
        a("v_mul_u32_u24 v1, 144, v1")
        a("v_lshrrev_b32 v14, 5, v0")
        a("v_lshl_add_u32 v1, v14, 5, v1")
        a("v_bfe_u32 v14, v0, 4, 1")
        a("v_lshl_add_u32 v1, v14, 3, v1")
        a(f"v_add_u32 v{vWR}, s{sT2}, v1")
        a("v_lshrrev_b32 v2, 3, v0")
        a("v_and_b32 v1, 7, v0")
        a("v_lshlrev_b32 v1, 4, v1")
        a("v_mul_u32_u24 v14, 144, v2")
        a("v_add3_u32 v%d, v14, v1, s%d" % (vRD, sT2))
        a(f"v_lshl_add_u32 v{vST}, v2, 12, v1")
        for r in range(g.nacc):
            a(f"v_mov_b32 v{g.ACC + r}, 0")

        def reads(e):
            x = [f"ds_read_b128 {vr(F[e] + 4 * i, 4)}, v{XA} offset:{4096 * (i >> 1) + 2048 * e + 256 * (i & 1)}" for i in range(4)]
            w = [f"ds_read_b64_tr_b16 {vr(F[e] + 16 + 4 * jt + 2 * u, 2)}, v{WA + jt} offset:{8192 * e + 2048 * u}" for jt in range(4) for u in range(2)]
            return w[:2] + x[:1] + w[2:] + x[1:]

        def stage(last):
            for e in range(2):
                a("s_waitcnt lgkmcnt(0)")
                rd, post = [], []
                if e == 0:
                    rd = reads(1)
                    if not last:
                        post = [f"v_add_u32 v{r}, s{sDELTA}, v{r}" for r in (XA, WA, WA + 1, WA + 2, WA + 3)]
                elif not last:
                    a("s_barrier")
                    rd = reads(0)
                for i in range(4):
                    for jt in range(4):
                        c = vr(acc(i, jt), 4)
                        a(f"{MF16} {c}, {vr(F[e] + 16 + 4 * jt, 4)}, {vr(F[e] + 4 * i, 4)}, {c}")
                        if rd:
                            a(rd.pop(0))
                        elif post:
                            a(post.pop(0))
                a.many(post)

        stamp_mid(a, 4)
        a("s_barrier")
        stamp_mid(a, 0)
        a.many(reads(0))
        a(f"s_mov_b32 s{sCNT}, 0")
        a(f"s_mov_b32 s{sRSLOT}, 0")
        a.raw(".p2align 3")
        a.label("L_outp_loop")
        a(f"s_add_u32 s{sRSLOT}, s{sRSLOT}, 1")
        a(f"s_cmp_eq_u32 s{sRSLOT}, {g.NSLOT}")
        csel(a, sDELTA, f"{-(g.NSLOT - 1) * g.SLOT & 0xffffffff:#x}", g.SLOT)
        a(f"s_cselect_b32 s{sRSLOT}, 0, s{sRSLOT}")
        stage(False)
        a(f"s_add_u32 s{sCNT}, s{sCNT}, 1")
        a(f"s_cmp_lt_u32 s{sCNT}, {g.NST - 1}")
        a("s_cbranch_scc1 L_outp_loop")
        hint_read(a, 14, 15, g.EXB)
        stage(True)
        hint_check(a, "outp", 15)
        stamp_mid(a, 1)
        for i in range(4):
            for j2 in range(2):
                t = 16 + (2 * i + j2) * 4
                for k in range(2):
                    c = acc(i, 2 * j2 + k)
                    for r in range(2):
                        a(f"v_cvt_pk_bf16_f32 v{t + 2 * k + r}, v{c + 2 * r}, v{c + 2 * r + 1}")
                a(f"ds_write2_b64 v{vWR}, {vr(t, 2)}, {vr(t + 2, 2)} offset0:{8 * j2} offset1:{8 * j2 + 2}")
            if i < 3:
                a(f"v_add_u32 v{vWR}, {16 * 144}, v{vWR}")
        a("s_waitcnt lgkmcnt(0)")
        for k in range(8):
            a(f"ds_read_b128 {vr(g.ACC + 4 * k, 4)}, v{vRD} offset:{8 * 144 * k}")
        for k in range(8):
            a(f"s_add_u32 s{sT0}, s{sOBASE}, {k * 8 * 4096}")
            a(f"s_waitcnt lgkmcnt({7 - k})")
            a(f"buffer_store_dwordx4 {vr(g.ACC + 4 * k, 4)}, v{vST}, {sr(SRD_OUT)}, s{sT0} offen{OPT['st3']}")
        stamp_end(a, 2)
        a("s_endpgm")

    (new16 if OPT["m16b"] else legacy)()
    hint_slow(a, "outp")
    a.label("L_outp_end")
    a("s_endpgm")
    return a.text(), kernel_desc("outp_kernel", g.nvgpr), g.lds, 256 + 64 * g.NL


def gen_attn():
    a = A()
    kernel_head(a, "attn_kernel")
    vL16, vK, vKN, IDX = 1, 2, 3, 4
    T0, T1, T2, T3 = 5, 6, 7, 8
    vPF, vPFD, vHD = 9, 10, 11
    ONES = 12
    Q, P, KF, VF, L = [16, 24], [32, 40], [48, 56], [64, 72], [80, 84]
    S, NEG, O = [96, 112], [128, 144], [160, 176]
    NV = 192
    SRD, SRDW = SRD_WS, 36
    sQB, sKV, sOB, sST, sSL, sDM, sGO, sPF, sPFC, sFIRST = 61, 62, 63, 64, 65, 66, 67, 68, 69, 70
    t0, t1, t2, t3 = sT0, sT1, sT2, sT3
    TILES = 8
    STG = TILES * 4096
    NSLOT = 3
    NSTG = 64 // TILES
    FLAG = NSLOT * STG
    lds = FLAG + 64

    entry(a, "attn")
    a(f"v_lshlrev_b32 v{vL16}, 4, v0")
    hint_load(a, "attn")
    stamp_mid(a, 2)
    hint_claim(a, "attn", 0)
    a(f"s_lshr_b32 s{t0}, s2, 3")
    a(f"s_bfe_u32 s{t2}, s2, 0x20001")
    a(f"s_lshl_b32 s{t2}, s{t2}, 4")
    a(f"s_lshl_b32 s{t3}, s{sWAVE}, 1")
    a(f"s_add_u32 s{t2}, s{t2}, s{t3}")
    a(f"s_lshl_b32 s{sKV}, s{t0}, 18")
    a(f"s_add_u32 s{sKV}, s{sKV}, {WS_KVB:#x}")
    a(f"s_lshl_b32 s{sQB}, s{t0}, 17")
    a(f"s_lshl_b32 s{t3}, s{t2}, 11")
    a(f"s_add_u32 s{sQB}, s{sQB}, s{t3}")
    a("s_bitcmp1_b32 s2, 0")
    a(f"s_cmov_b32 s{sKV}, {WS_KVA:#x}")
    a(f"s_cselect_b32 s{t3}, {WS_QA:#x}, {WS_QB:#x}")
    a(f"s_or_b32 s{sQB}, s{sQB}, s{t3}")

    def qloads():
        for q in range(2):
            for c in range(2):
                a(f"buffer_load_dwordx4 {vr(Q[q] + 4 * c, 4)}, v{vL16}, {sr(SRD)}, s{sQB} offen offset:{2048 * q + 1024 * c}")

    stamp_mid(a, 3)
    a(f"s_and_b32 s{t3}, s{sWAVE}, 3")
    a(f"s_lshl_b32 s{t3}, s{t3}, 11")
    a(f"s_add_u32 s{t1}, s{sKV}, s{t3}")

    def grp_dma(grp):
        a(f"s_add_u32 m0, s{t3}, {8192 * grp}")
        a(f"s_add_u32 s{sGO}, s{t1}, {8192 * grp}")
        for c in range(2):
            a(f"buffer_load_dwordx4 v{vL16}, {sr(SRD)}, s{sGO} offen offset:{1024 * c} lds")

    a(f"s_cmp_ge_u32 s{sWAVE}, 4")
    a("s_cbranch_scc1 L_attn_young")
    grp_dma(0)
    qloads()
    a("s_branch L_attn_issued")
    a.label("L_attn_young")
    grp_dma(1)
    if OPT["k2s"]:
        grp_dma(2)
    qloads()
    if not OPT["k2s"]:
        grp_dma(2)
    grp_dma(3)
    a.label("L_attn_issued")
    stamp_mid(a, 4)
    a(f"s_lshr_b32 s{t3}, s{t2}, 2")
    a(f"s_lshl_b32 s{sOB}, s{t3}, 18")
    a(f"s_and_b32 s{t3}, s{t2}, 3")
    a(f"s_lshl_b32 s{t3}, s{t3}, 12")
    a(f"s_add_u32 s{sOB}, s{sOB}, s{t3}")
    a(f"s_lshr_b32 s{t3}, s{t0}, 1")
    a(f"s_lshl_b32 s{t3}, s{t3}, 14")
    a(f"s_add_u32 s{sOB}, s{sOB}, s{t3}")
    a(f"s_and_b32 s{t3}, s{t0}, 1")
    a(f"s_lshl_b32 s{t3}, s{t3}, 11")
    a(f"s_add_u32 s{sOB}, s{sOB}, s{t3}")
    a("s_bitcmp1_b32 s2, 0")
    csel(a, t3, WS_OA, WS_OB)
    srd_sel(a, SRDW, 24, 30, 0x200000)
    a(f"s_add_u32 s{sOB}, s{sOB}, s{t3}")
    a(f"s_lshl_b32 s{sPF}, s{t0}, 3")
    a(f"s_add_u32 s{sPF}, s{sPF}, s{sWAVE}")
    a(f"s_lshl_b32 s{sPF}, s{sPF}, 13")
    a(f"v_lshlrev_b32 v{vPF}, 7, v0")
    a(f"s_lshl_b32 s{sDM}, s{sWAVE}, 12")
    a(f"s_add_u32 s{sDM}, s{sDM}, {STG}")
    a(f"s_add_u32 s{sGO}, s{sKV}, s{sDM}")
    a(f"v_and_b32 v{T0}, 3, v0")
    a(f"v_bfe_u32 v{T1}, v0, 2, 1")
    a(f"v_or_b32 v{T2}, v{T0}, v{T1}")
    a(f"v_xor_b32 v{T1}, 1, v{T1}")
    a(f"v_or_b32 v{T3}, v{T0}, v{T1}")
    a(f"v_mov_b32 v{T0}, 0x3f803f80")
    a(f"v_cmp_eq_u32 vcc, 0, v{T2}")
    a("s_nop 1")
    a(f"v_cndmask_b32 v{ONES}, 0, v{T0}, vcc")
    a(f"v_cndmask_b32 v{ONES + 1}, 0, v{T0}, vcc")
    a(f"v_cmp_eq_u32 vcc, 0, v{T3}")
    a("s_nop 1")
    a(f"v_cndmask_b32 v{ONES + 2}, 0, v{T0}, vcc")
    a(f"v_cndmask_b32 v{ONES + 3}, 0, v{T0}, vcc")
    a(f"v_mov_b32 v{IDX}, 0xdddddddd")
    for q in range(2):
        for r in range(16):
            a(f"v_mov_b32 v{O[q] + r}, 0")
        for r in range(4):
            a(f"v_mov_b32 v{L[q] + r}, 0")
    for r in range(8):
        a(f"v_mov_b32 v{VF[1] + r}, 0")
    a(f"v_mov_b32 v{vK}, v{vL16}")
    a(f"v_add_u32 v{vKN}, {STG}, v{vL16}")

    def kread(kt):
        reg, k = (vK, kt) if kt < TILES else (vKN, kt - TILES)
        return [f"ds_read_b128 {vr(KF[kt & 1] + 4 * c, 4)}, v{reg} offset:{4096 * k + 1024 * c}" for c in range(2)]

    def vread(kt):
        reg, k = (vK, kt) if kt < TILES else (vKN, kt - TILES)
        return [f"ds_read_b128 {vr(VF[kt & 1] + 4 * c, 4)}, v{reg} offset:{4096 * k + 2048 + 1024 * c}" for c in range(2)]

    dma_ins = [f"buffer_load_dwordx4 v{vL16}, {sr(SRD)}, s{sGO} offen offset:{1024 * c} lds" for c in range(4)]

    def dma_adv():
        a(f"s_add_u32 s{sGO}, s{sGO}, {STG}")
        a(f"s_add_u32 s{sDM}, s{sDM}, {STG}")
        a(f"s_cmp_ge_u32 s{sDM}, {NSLOT * STG}")
        a(f"s_cselect_b32 s{t0}, {NSLOT * STG}, 0")
        a(f"s_sub_u32 s{sDM}, s{sDM}, s{t0}")

    a(f"s_cmp_lt_u32 s{sWAVE}, 4")
    a(f"s_cselect_b32 s{sFIRST}, 1, 2")
    a("s_cbranch_scc0 L_attn_b0y")
    a("s_waitcnt vmcnt(4)")
    a("s_barrier")
    a.many(kread(0) + vread(0) + kread(1))
    stamp_mid(a, 0)
    a("s_waitcnt vmcnt(0)")
    a("s_branch L_attn_b0")
    a.label("L_attn_b0y")
    a("s_barrier")
    a("s_waitcnt vmcnt(8)")
    a("s_barrier")
    if OPT["k2s"]:
        a("s_waitcnt vmcnt(6)")
        a("s_barrier")
    a.many(kread(0) + vread(0) + kread(1))
    stamp_mid(a, 0)
    a(f"s_waitcnt vmcnt({2 if OPT['k2s'] else 4})")
    a.label("L_attn_b0")
    stamp_mid(a, 5)
    a(f"s_mov_b32 m0, s{sDM}")
    a("s_waitcnt lgkmcnt(4)")
    for q in range(2):
        a(f"{MF32} {vr(S[q], 16)}, {vr(KF[0], 4)}, {vr(Q[q], 4)}, 0")
        a(dma_ins[2 * q])
        a(f"{MF32} {vr(S[q], 16)}, {vr(KF[0] + 4, 4)}, {vr(Q[q] + 4, 4)}, {vr(S[q], 16)}")
        a(dma_ins[2 * q + 1])
    dma_adv()
    a(f"s_mov_b32 s{sST}, 0")
    a(f"s_mov_b32 s{sSL}, {STG}")
    a("s_nop 5")
    for q in range(2):
        s, t = S[q], T0 + 2 * q
        a(f"v_max3_f32 v{t}, v{s}, v{s + 1}, v{s + 2}")
        for r in range(3, 15, 2):
            a(f"v_max3_f32 v{t}, v{s + r}, v{s + r + 1}, v{t}")
        a(f"v_max_f32 v{t}, v{s + 15}, v{t}")
        a(f"v_mov_b32 v{t + 1}, v{t}")
    a("s_nop 1")
    for q in range(2):
        a(f"v_permlane32_swap_b32 v{T0 + 2 * q}, v{T0 + 2 * q + 1}")
    a("s_nop 1")
    for q in (1, 0):
        t = T0 + 2 * q
        a(f"v_max_f32 v{t}, v{t}, v{t + 1}")
        for r in range(16):
            a(f"v_sub_f32 v{NEG[q] + r}, 0, v{t}")
    for r in range(16):
        a(f"v_sub_f32 v{S[0] + r}, v{S[0] + r}, v{T0}")
    for r in range(8, 16):
        a(f"v_mov_b32 v{S[1] + r}, 0")

    SM32, SM16 = "v_smfmac_f32_32x32x32_bf16", "v_smfmac_f32_16x16x64_bf16"

    def step(u, fill=()):
        q, kt = u & 1, u >> 1
        qp, ktn, ktp = q ^ 1, (u + 1) >> 1, (u - 1) >> 1
        cur, nxt = S[q], S[qp]
        rd = vread(kt + 1) if q == 0 else kread(kt + 2)
        d = dict(
            QK0=f"{MF32} {vr(nxt, 16)}, {vr(KF[ktn & 1], 4)}, {vr(Q[qp], 4)}, {vr(NEG[qp], 16)}",
            QK1=f"{MF32} {vr(nxt, 16)}, {vr(KF[ktn & 1] + 4, 4)}, {vr(Q[qp] + 4, 4)}, {vr(nxt, 16)}",
            PV0=f"{SM32} {vr(O[q], 16)}, {vr(VF[kt & 1], 4)}, {vr(cur, 8)}, v{IDX}",
            PV1=f"{SM32} {vr(O[qp], 16)}, {vr(VF[ktp & 1] + 4, 4)}, {vr(nxt + 8, 8)}, v{IDX}",
            S0=f"{SM16} {vr(L[q], 4)}, {vr(ONES, 4)}, {vr(cur, 8)}, v{IDX}",
            S1=f"{SM16} {vr(L[qp], 4)}, {vr(ONES, 4)}, {vr(nxt + 8, 8)}, v{IDX}",
            R0=rd[0], R1=rd[1], N="s_nop 0" if q == 1 else None,
            Wq="s_waitcnt lgkmcnt(2)" if q == 1 else None, Wp="s_waitcnt lgkmcnt(3)" if q == 0 else None)
        for i in range(16):
            d[f"E{i}"] = f"v_exp_f32 v{cur + i}, v{cur + i}"
        fill = list(fill) + [None] * 2
        d["F0"], d["F1"] = fill[0], fill[1]
        o = "E0 E1 S1 Wq E2 PV1 F0 E3 E4 E5 QK0 F1 E6 E7 E8 QK1 R0 E9 E10 E11 Wp PV0 R1 E12 E13 E14 S0 N E15"
        for t in o.split():
            x = d[t]
            if x:
                a.many(x if isinstance(x, list) else [x])

    if OPT["lstamp"]:
        stamp_mid(a, 2)
    UB = 2 * TILES - 3
    a.raw(".p2align 3")
    a.label("L_attn_loop")
    a(f"s_cmp_eq_u32 s{sFIRST}, 1")
    for u in range(2 * TILES):
        fill = ()
        if u in (1, 5, 9):
            a(f"s_cbranch_scc1 L_attn_first{u}")
            a.label(f"L_attn_back{u}")
            if u == (5 if OPT["k2s"] else 1):
                a(f"s_cmp_lg_u32 s{sFIRST}, 0")
        if u == UB:
            a("s_waitcnt vmcnt(0)")
            a("s_barrier")
            a(f"s_mov_b32 m0, s{sDM}")
            fill = (dma_ins[0], dma_ins[1])
        if u == UB + 1:
            fill = (dma_ins[2], dma_ins[3])
        if u == UB + 2:
            fill = ([f"s_cmp_eq_u32 s{sST}, {OPT['wos']}", f"s_cselect_b32 s{sPFC}, s{sPF}, 0x7ff00000",
                     f"buffer_load_dword v{vPFD}, v{vPF}, {sr(SRDW)}, s{sPFC} offen"],
                    [f"s_add_u32 s{sGO}, s{sGO}, {STG}", f"s_add_u32 s{sDM}, s{sDM}, {STG}"])
        if (u - UB) % 4 == 0:
            a(f"s_setprio {3 - ((u - UB) % (2 * TILES)) // 4}")
        step(u, fill)
    a(f"s_cmp_ge_u32 s{sDM}, {NSLOT * STG}")
    a(f"s_cselect_b32 s{t0}, {NSLOT * STG}, 0")
    a(f"s_sub_u32 s{sDM}, s{sDM}, s{t0}")
    if OPT["oob"]:
        a(f"s_cmp_ge_u32 s{sST}, {NSTG - 3}")
        a(f"s_cmov_b32 s{sGO}, 0x7ff00000")
    a(f"s_mov_b32 s{sFIRST}, 0")
    a(f"v_mov_b32 v{vK}, v{vKN}")
    a(f"s_add_u32 s{sSL}, s{sSL}, {STG}")
    a(f"s_cmp_ge_u32 s{sSL}, {NSLOT * STG}")
    a(f"s_cselect_b32 s{sSL}, 0, s{sSL}")
    a(f"v_add_u32 v{vKN}, s{sSL}, v{vL16}")
    if OPT["lstamp"] and STAMP:
        for k_, n_ in ((0, 3), (1, 4), (6, 5)):
            a(f"s_cmp_lg_u32 s{sST}, {k_}")
            a(f"s_cbranch_scc1 L_attn_ls{k_}")
            stamp_mid(a, n_)
            a.label(f"L_attn_ls{k_}")
    a(f"s_add_u32 s{sST}, s{sST}, 1")
    a(f"s_cmp_lt_u32 s{sST}, {NSTG}")
    a("s_cbranch_scc1 L_attn_loop")
    stamp_mid(a, 1)
    tbl_offset(a, t0)
    a(f"v_mov_b32 v{T2}, 0")
    a(f"buffer_load_dword v{vPFD}, v{T2}, {sr(SRD)}, s{t0} offen")
    a(f"{SM32} {vr(O[1], 16)}, {vr(VF[1] + 4, 4)}, {vr(S[1] + 8, 8)}, v{IDX}")
    a(f"{SM16} {vr(L[1], 4)}, {vr(ONES, 4)}, {vr(S[1] + 8, 8)}, v{IDX}")
    a(f"v_mov_b32 v{T2}, 0")
    for q in range(2):
        for r in range(16):
            a(f"v_fmac_f32 v{T2}, 0, v{O[q] + r}")
    a(f"v_max_f32 v{T3}, v{L[0]}, v{L[1]}")
    a(f"v_fmac_f32 v{T2}, 0, v{L[0]}")
    a(f"v_fmac_f32 v{T2}, 0, v{L[1]}")
    a(f"v_add_f32 v{T3}, v{T3}, v{T2}")
    a(f"v_mov_b32 v{T2}, {f32bits(2.0 ** 40):#x}")
    a(f"v_cmp_nle_f32 vcc, v{T3}, v{T2}")
    a("s_waitcnt lgkmcnt(0)")
    a("s_nop 3")
    a("s_cbranch_vccnz L_attn_slow")

    def finish(q, lreg):
        a(f"v_rcp_f32 v{T0}, v{lreg}")
        a("s_nop 0")
        for r in range(16):
            a(f"v_mul_f32 v{O[q] + r}, v{O[q] + r}, v{T0}")
        for r in range(8):
            a(f"v_cvt_pk_bf16_f32 v{P[q] + r}, v{O[q] + 2 * r}, v{O[q] + 2 * r + 1}")
        a(f"s_add_u32 s{t0}, s{sOB}, {4096 * q}")
        for c in range(2):
            a(f"buffer_store_dwordx4 {vr(P[q] + 4 * c, 4)}, v{vL16}, {sr(SRD)}, s{t0} offen offset:{1024 * c}{OPT['st2']}")

    for q in range(2):
        finish(q, L[q])
    if OPT["orb"]:
        a(f"v_and_b32 v{T1}, 15, v0")
        a(f"v_lshlrev_b32 v{T1}, 7, v{T1}")
        a(f"v_bfe_u32 v{T2}, v0, 4, 1")
        a(f"v_lshl_add_u32 v{T1}, v{T2}, 12, v{T1}")
        a("s_waitcnt vmcnt(0)")
        a(f"buffer_load_dword v{vPFD}, v{T1}, {sr(SRD)}, s{sOB} offen")
    stamp_end(a, 1, OPT["orb"])
    a("s_endpgm")

    for u in (1, 5, 9):
        a.label(f"L_attn_first{u}")
        if u > 1:
            a(f"s_waitcnt vmcnt({6 if u == 5 else 4})")
        if u == 9:
            a(f"s_cmp_lg_u32 s{sWAVE}, 0")
            a("s_cbranch_scc1 L_attn_nov")
            hint_verdict(a, "attn", T0, vHD, FLAG)
            a.label("L_attn_nov")
        a("s_barrier")
        if u == 9:
            hint_read(a, T0, vHD, FLAG)
            a("s_waitcnt lgkmcnt(0)")
            hint_check(a, "attn", vHD)
        a(f"s_branch L_attn_back{u}")

    a.label("L_attn_slow")
    M, LS, AL = 88, 89, 90
    for q in range(2):
        s = S[0]
        a(f"v_mov_b32 v{M}, 0xff7fffff")
        a(f"v_mov_b32 v{LS}, 0")
        for r in range(16):
            a(f"v_mov_b32 v{O[q] + r}, 0")
        a(f"s_mov_b32 s{sGO}, s{sKV}")
        a(f"s_mov_b32 s{sST}, 0")
        a.label(f"L_attn_slow_{q}")
        for c in range(2):
            a(f"buffer_load_dwordx4 {vr(KF[0] + 4 * c, 4)}, v{vL16}, {sr(SRD)}, s{sGO} offen offset:{1024 * c}")
        for c in range(2):
            a(f"buffer_load_dwordx4 {vr(VF[0] + 4 * c, 4)}, v{vL16}, {sr(SRD)}, s{sGO} offen offset:{2048 + 1024 * c}")
        a("s_waitcnt vmcnt(0)")
        a(f"{MF32} {vr(s, 16)}, {vr(KF[0], 4)}, {vr(Q[q], 4)}, 0")
        a(f"{MF32} {vr(s, 16)}, {vr(KF[0] + 4, 4)}, {vr(Q[q] + 4, 4)}, {vr(s, 16)}")
        a("s_nop 7")
        a("s_nop 7")
        a(f"v_max3_f32 v{T0}, v{s}, v{s + 1}, v{M}")
        for r in range(2, 16, 2):
            a(f"v_max3_f32 v{T0}, v{s + r}, v{s + r + 1}, v{T0}")
        a(f"v_mov_b32 v{T1}, v{T0}")
        a("s_nop 1")
        a(f"v_permlane32_swap_b32 v{T0}, v{T1}")
        a("s_nop 1")
        a(f"v_max_f32 v{T0}, v{T0}, v{T1}")
        a(f"v_sub_f32 v{AL}, v{M}, v{T0}")
        a(f"v_exp_f32 v{AL}, v{AL}")
        a(f"v_mov_b32 v{M}, v{T0}")
        for r in range(16):
            a(f"v_sub_f32 v{s + r}, v{s + r}, v{T0}")
        for r in range(16):
            a(f"v_exp_f32 v{s + r}, v{s + r}")
        a(f"v_mul_f32 v{LS}, v{LS}, v{AL}")
        for r in range(16):
            a(f"v_mul_f32 v{O[q] + r}, v{O[q] + r}, v{AL}")
        for r in range(16):
            a(f"v_and_b32 v{s + r}, 0xffff0000, v{s + r}")
        for r in range(16):
            a(f"v_add_f32 v{LS}, v{LS}, v{s + r}")
        a("s_nop 1")
        a(f"{SM32} {vr(O[q], 16)}, {vr(VF[0], 4)}, {vr(s, 8)}, v{IDX}")
        a(f"{SM32} {vr(O[q], 16)}, {vr(VF[0] + 4, 4)}, {vr(s + 8, 8)}, v{IDX}")
        a("s_nop 7")
        a("s_nop 7")
        a(f"s_add_u32 s{sGO}, s{sGO}, 4096")
        a(f"s_add_u32 s{sST}, s{sST}, 1")
        a(f"s_cmp_lt_u32 s{sST}, 64")
        a(f"s_cbranch_scc1 L_attn_slow_{q}")
        a(f"v_mov_b32 v{T1}, v{LS}")
        a("s_nop 1")
        a(f"v_permlane32_swap_b32 v{LS}, v{T1}")
        a("s_nop 1")
        a(f"v_add_f32 v{LS}, v{LS}, v{T1}")
        finish(q, LS)
        a("s_waitcnt vmcnt(0)")
    stamp_end(a, 1)
    a("s_endpgm")
    hint_slow(a, "attn")
    a.label("L_attn_end")
    a("s_endpgm")
    return a.text(), kernel_desc("attn_kernel", NV), lds, 512


HEADER = """; Fused MQA (branch A) + MHA (branch B) attention block in three launches (hand-written via a generator script).
;   proj_kernel : Q/K/V projections, 256x128 tiles, LDS-DMA ring, 4 MFMA waves + 4 loader waves.
;   attn_kernel : softmax(Q K^T) V for one (branch, head, 512 rows); S^T = K Q^T - m comes straight out of the MFMA,
;                 P V and the row sums use sparse MFMAs that pick the high (bf16) halves of the f32 exp results.
;                 m is the row max over the first key tile; after the loop the row sum / outputs are checked and a wave
;   outp_kernel : output projections, 128x128 tiles -> d_out.
"""


def main(path):
    ks = [("proj_kernel",) + gen_proj(), ("attn_kernel",) + gen_attn(), ("outp_kernel",) + gen_outp()]
    s = HEADER
    for n, t, d, lds, blk in ks:
        s += f"; @launch kernel={n} grid=(256,1,1) block=({blk},1,1) lds={lds}\n"
    if OPT["twice3"]:
        s += s.splitlines()[-1] + "\n"
    s += '.amdgcn_target "amdgcn-amd-amdhsa--gfx950"\n'
    s += "".join(k[1] for k in ks) + "".join(k[2] for k in ks)
    open(path, "w").write(s)


if __name__ == "__main__":
    args = sys.argv[1:]
    if "--stamp" in args:
        STAMP = True
        args.remove("--stamp")
    for x in list(args):
        if "=" in x:
            k_, v_ = x.split("=")
            assert k_ in OPT, k_
            OPT[k_] = int(v_) if v_.lstrip("-").isdigit() else ("" if v_ == "none" else " " + v_.replace("+", " "))
            args.remove(x)
    main(args[0] if args else f"cdna_kernels/{NAME}.s")
```
